```python
import torch

def _softmax(x, axis=-1):
    return torch.softmax(x, dim=axis)

def _gelu(x):
    return torch.nn.functional.gelu(x, approximate='tanh')

def _silu(x):
    return torch.nn.functional.silu(x)

def _sigmoid(x):
    return torch.sigmoid(x)

def _layernorm(x, axis=-1, eps=1e-05):
    m = x.mean(dim=axis, keepdim=True)
    v = x.var(dim=axis, keepdim=True, unbiased=False)
    return (x - m) / torch.sqrt(v + eps)

def _scatter_add(tgt, idx, src, axis=0):
    return tgt.clone().index_add_(axis, idx, src)

def _segment_sum(src, seg, n):
    out = torch.zeros((n,) + src.shape[1:], dtype=src.dtype)
    return out.index_add_(0, seg, src)

def _pad(x, pw):
    flat = tuple((v for pair in reversed(pw) for v in pair))
    return torch.nn.functional.pad(x, flat)
kernel_name = 'adaLN_cond__sliding_block_cached__moe_arch_mod__prompt'

def setup_inputs():

    _w = lambda a: (lambda t: t.to(torch.bfloat16) if t.is_floating_point() else t)(torch.as_tensor(a))

    def _A_setup():
        B, Sq, D = (1, 2048, 1024)
        Hq, Hkv, Sk, Dh = (32, 4, 2048, 128)
        assert Hq % Hkv == 0, (Hq, Hkv)
        return {'x': _w((lambda *s: torch.randn(*s, dtype=torch.bfloat16) * 0.05)(B, Sq, D)), 'k_cache': _w((lambda *s: torch.randn(*s, dtype=torch.bfloat16) * 3.2)(B, Hkv, Sk, Dh)), 'v_cache': _w((lambda *s: torch.randn(*s, dtype=torch.bfloat16) * 0.4)(B, Hkv, Sk, Dh)), 'wq': _w((lambda *s: torch.randn(*s, dtype=torch.bfloat16) * 3.2)(D, Hq * Dh) * D ** (-0.5)), 'wo': _w((lambda *s: torch.randn(*s, dtype=torch.bfloat16) * 0.4)(Hq * Dh, D) * (Hq * Dh) ** (-0.5))}
    _A_in = _A_setup()

    def _B_setup():
        B, S, D, F, C = (1, 2048, 1024, 3584, 1)
        return {'x': _w((lambda *s: torch.randn(*s, dtype=torch.bfloat16) * 0.05)(B, S, D)), 'w_r': _w((lambda *s: torch.randn(*s, dtype=torch.bfloat16) * 0.05)(D)), 'w_gate': _w((lambda *s: torch.randn(*s, dtype=torch.bfloat16) * 0.05)(D, F)), 'w_up': _w((lambda *s: torch.randn(*s, dtype=torch.bfloat16) * 0.05)(D, F)), 'w_down': _w((lambda *s: torch.randn(*s, dtype=torch.bfloat16) * 0.05)(F, D))}
    _B_in = _B_setup()
    return {'A_x': _A_in['x'], 'A_k_cache': _A_in['k_cache'], 'A_v_cache': _A_in['v_cache'], 'A_wq': _A_in['wq'], 'A_wo': _A_in['wo'], 'B_x': _B_in['x'], 'B_w_r': _B_in['w_r'], 'B_w_gate': _B_in['w_gate'], 'B_w_up': _B_in['w_up'], 'B_w_down': _B_in['w_down'], 'c': _w((lambda *s: torch.randn(*s, dtype=torch.bfloat16) * 0.1)(1, 1024) * 8.0), 'w_mod': _w((lambda *s: torch.randn(*s, dtype=torch.bfloat16) * 0.1)(1024, 6 * 1024) * 1024 ** (-0.5) * 8.0)}

def reference(A_x, A_k_cache, A_v_cache, A_wq, A_wo, B_x, B_w_r, B_w_gate, B_w_up, B_w_down, c, w_mod):

    def _A_ref(x, k_cache, v_cache, wq, wo):
        B, Sq, D = x.shape
        Hq, Dh = (32, 128)
        Hkv, Sk = (k_cache.shape[1], k_cache.shape[2])
        W = min(4096, max(256, Sk // 4))
        rep = Hq // Hkv
        q = (lambda x, *d: x.permute(*d))((x @ wq).reshape(B, Sq, Hq, Dh), 0, 2, 1, 3)
        k = (lambda x, n, axis: torch.repeat_interleave(x, n, dim=axis))(k_cache[:, :, Sk - W:, :], rep, axis=1)
        v = (lambda x, n, axis: torch.repeat_interleave(x, n, dim=axis))(v_cache[:, :, Sk - W:, :], rep, axis=1)
        scores = torch.einsum('bhqd,bhkd->bhqk', q, k) * Dh ** (-0.5)
        p = _softmax(scores, axis=-1)
        o = torch.einsum('bhqk,bhkd->bhqd', p, v)
        return (lambda x, *d: x.permute(*d))(o, 0, 2, 1, 3).reshape(B, Sq, Hq * Dh) @ wo

    def _B_ref(x, w_r, w_gate, w_up, w_down):
        B, S, D = x.shape
        C = 1
        r = x @ w_r
        idx = torch.argsort(-r, axis=-1)[:, :C]
        idx_e = (lambda x, n, axis: torch.repeat_interleave(x, n, dim=axis))(idx.reshape(B, C, 1), D, axis=2)
        x_sel = (lambda x, i, axis: torch.take_along_dim(x, i, dim=axis))(x, idx_e, axis=1)
        g = _silu(x_sel @ w_gate)
        u = x_sel @ w_up
        y = g * u @ w_down
        r_sel = _sigmoid((lambda x, i, axis: torch.take_along_dim(x, i, dim=axis))(r, idx, axis=1))
        y = y * r_sel.reshape(B, C, 1)
        b_off = (torch.arange(B) * S).reshape(B, 1)
        flat_idx = (idx + b_off).reshape(B * C)
        zero = (x * 0.0).reshape(B * S, D)
        upd = _scatter_add(zero, flat_idx, y.reshape(B * C, D), axis=0)
        return x + upd.reshape(B, S, D)
    x = A_x
    mod = (_silu(c) @ w_mod).reshape(c.shape[0], 6, 1, -1)
    sa, ca, ga, sb, cb, gb = (mod[:, 0].clone(), mod[:, 1].clone(), mod[:, 2].clone(), mod[:, 3].clone(), mod[:, 4].clone(), mod[:, 5].clone())
    h = _layernorm(x, axis=-1) * (1 + ca) + sa
    x = x + ga * _A_ref(h, A_k_cache, A_v_cache, A_wq, A_wo)
    h = _layernorm(x, axis=-1) * (1 + cb) + sb
    x = x + gb * _B_ref(h, B_w_r, B_w_gate, B_w_up, B_w_down)
    return x
```

```python
import sys, os, re, json
from mega import gen_mega
from build2 import assemble
KEEP = eval(os.environ.get('KEEP'))
def variant(tag, lo, hi, f, **kw):
    body, extra, info = gen_mega('mega_kernel', **kw)
    out = []; ph = False
    for l in body.split('\n'):
        t = l.strip()
        if t == '; STAMP %d' % lo: ph = True
        if t == '; STAMP %d' % hi: ph = False
        if ph and f(t): continue
        out.append(l)
    assemble('mega_kernel', '\n'.join(out), extra, info, 'exp/%s_p.s' % tag, prof=KEEP, listform=True)
F = {
 'base': lambda t: False,
 'nomfma': lambda t: t.startswith('v_mfma'),
 'noO': lambda t: t.startswith('buffer_load_dwordx4') and 'lds' not in t and 'v11,' in t,
 'noW': lambda t: t.startswith('buffer_load') and 'lds' in t,
 'noOW': lambda t: (t.startswith('buffer_load_dwordx4') and 'v11,' in t) or (t.startswith('buffer_load') and 'lds' in t),
 'nolds': lambda t: t.startswith('ds_read_b64_tr'),
 'nobar': lambda t: t == 's_barrier',
 'novalu': lambda t: re.match(r'v_(exp|add_f32|cvt_pk|mul_f32|dot2)', t) is not None,
 'nostore': lambda t: t.startswith('buffer_store'),
 'noldsr': lambda t: t.startswith('ds_read'),
}
if __name__ == '__main__':
    lo, hi = int(sys.argv[1]), int(sys.argv[2])
    for k in sys.argv[3:]:
        variant('ab_' + k, lo, hi, F[k])
```

```python
import re

REG_RE = re.compile(r'\b([vas])(\d+)\b|\b([vas])\[(\d+):(\d+)\]|\b(vcc|exec|m0|scc|vcc_lo|vcc_hi|exec_lo|exec_hi)\b')

def regs_of(op):
    out = []
    for m in REG_RE.finditer(op):
        if m.group(1):
            out.append(m.group(1) + m.group(2))
        elif m.group(3):
            out += [m.group(3) + str(i) for i in range(int(m.group(4)), int(m.group(5)) + 1)]
        else:
            n = m.group(6)
            if n.startswith('vcc'): n = 'vcc'
            if n.startswith('exec'): n = 'exec'
            out.append(n)
    return out

def split_ops(s):
    ops, depth, cur = [], 0, ''
    for ch in s:
        if ch == '[': depth += 1
        if ch == ']': depth -= 1
        if ch == ',' and depth == 0:
            ops.append(cur.strip()); cur = ''
        else:
            cur += ch
    if cur.strip(): ops.append(cur.strip())
    return ops

TRANS = ('v_exp_', 'v_log_', 'v_rcp_', 'v_rsq_', 'v_sqrt_', 'v_sin_', 'v_cos_')

class Inst:
    __slots__ = ('text', 'mn', 'kind', 'reads', 'writes', 'tag', 'passes', 'srcc', 'srcab', 'wide_store',
                 'pre_wait', 'pre_nop', 'wait_tag', 'comment', 'dpp', 'sgpr_vmem')
    def __init__(self, text, tag=None):
        self.text = text.strip()
        self.tag = tag
        self.pre_wait = [None, None]
        self.pre_nop = 0
        self.wait_tag = None
        self.passes = 0
        self.srcc = set(); self.srcab = set()
        self.wide_store = set()
        self.dpp = False
        self.sgpr_vmem = set()
        self.parse()

    def parse(self):
        t = self.text.split(';')[0].strip()
        if t.endswith(':') or t.startswith('.') or t == '':
            self.mn = ''; self.kind = 'label'; self.reads = set(); self.writes = set(); return
        parts = t.split(None, 1)
        mn = parts[0]; rest = parts[1] if len(parts) > 1 else ''
        self.mn = mn
        ops = split_ops(rest)
        R = [regs_of(o) for o in ops]
        allr = set(r for x in R for r in x)
        reads, writes = set(), set()
        kind = None
        if mn.startswith('v_mfma') or mn.startswith('v_smfmac'):
            kind = 'mfma'
            writes = set(R[0]); reads = set(R[1]) | set(R[2]) | set(R[3])
            self.srcc = set(R[3]); self.srcab = set(R[1]) | set(R[2])
            if '32x32x16' in mn or '32x32x8' in mn: self.passes = 8
            elif '16x16x32' in mn or '16x16x16' in mn: self.passes = 4
            else: raise ValueError('unknown mfma ' + mn)
        elif mn.startswith('v_'):
            kind = 'trans' if mn.startswith(TRANS) else 'valu'
            if mn.startswith('v_cmpx'):
                writes = set(R[0]) | {'exec'}; reads = set(r for x in R[1:] for r in x)
            elif mn.startswith('v_permlane32_swap') or mn.startswith('v_permlane16_swap') or mn.startswith('v_swap'):
                writes = set(R[0]) | set(R[1]); reads = set(writes)
            elif mn.startswith(('v_add_co', 'v_sub_co', 'v_subrev_co', 'v_addc_co', 'v_subb_co', 'v_div_scale', 'v_mad_u64_u32')):
                writes = set(R[0]) | set(R[1]); reads = set(r for x in R[2:] for r in x)
            elif mn == 'v_nop':
                pass
            else:
                writes = set(R[0]); reads = set(r for x in R[1:] for r in x)
                if mn.startswith(('v_fmac', 'v_dot2c', 'v_pk_fmac', 'v_writelane', 'v_mac')):
                    reads |= writes
                if mn.startswith('v_div_fmas'): reads.add('vcc')
            if 'dpp' in mn or 'row_' in t or 'quad_perm' in t or 'wave_' in t:
                self.dpp = True
                reads |= writes
            reads.add('exec')
        elif mn.startswith(('buffer_load', 'global_load')):
            lds = (' lds' in (' ' + rest)) or ('_lds_' in mn)
            if lds:
                kind = 'dma'; reads = allr | {'m0'}
            else:
                kind = 'vload'; writes = set(R[0]); reads = set(r for x in R[1:] for r in x)
            self.sgpr_vmem = set(r for r in reads if r[0] == 's' and r != 'scc')
        elif mn.startswith(('buffer_store', 'global_store')):
            kind = 'vstore'; reads = allr
            data = R[0] if mn.startswith('buffer') else R[1]
            if 'x4' in mn or 'x3' in mn: self.wide_store = set(data)
            self.sgpr_vmem = set(r for r in reads if r[0] == 's' and r != 'scc')
        elif mn.startswith(('buffer_atomic', 'global_atomic')):
            ret = ' sc0' in (' ' + rest)
            kind = 'vload' if ret else 'vstore'
            if ret:
                writes = set(R[0])
                reads = allr if mn.startswith('buffer') else set(r for x in R[1:] for r in x)
            else:
                reads = allr
            self.sgpr_vmem = set(r for r in reads if r[0] == 's' and r != 'scc')
        elif mn.startswith(('buffer_wbl2', 'buffer_inv')):
            kind = 'vstore'
        elif mn.startswith('ds_'):
            if mn.startswith('ds_write') or (mn.startswith(('ds_add', 'ds_max', 'ds_min', 'ds_or')) and 'rtn' not in mn):
                kind = 'dswrite'; reads = allr
            else:
                kind = 'dsread'; writes = set(R[0]); reads = set(r for x in R[1:] for r in x)
        elif mn.startswith(('s_load', 's_buffer_load', 's_memtime', 's_memrealtime')):
            kind = 'smem'; writes = set(R[0]); reads = set(r for x in R[1:] for r in x)
        elif mn in ('s_waitcnt',):
            kind = 'wait'
        elif mn in ('s_barrier',):
            kind = 'barrier'
        elif mn in ('s_nop',):
            kind = 'nop'
        elif mn.startswith(('s_cbranch', 's_branch', 's_endpgm', 's_setprio', 's_sleep', 's_sethalt')):
            kind = 'ctrl'
            if 'scc' in mn: reads = {'scc'}
            if 'vcc' in mn: reads = {'vcc'}
            if 'exec' in mn: reads = {'exec'}
        elif mn.startswith('s_cmp') or mn.startswith('s_bitcmp'):
            kind = 'salu'; reads = allr; writes = {'scc'}
        elif mn.startswith('s_'):
            kind = 'salu'; writes = set(R[0]) | {'scc'}; reads = set(r for x in R[1:] for r in x)
            if 'saveexec' in mn: writes.add('exec'); reads.add('exec')
            if mn.startswith(('s_cselect', 's_addc', 's_subb', 's_cmov')): reads.add('scc')
            if mn.startswith(('s_mov', 's_movk', 's_cselect', 's_mul', 's_getreg', 's_cmov', 's_bfm', 's_brev', 's_pack', 's_ff1', 's_flbit')): writes.discard('scc')
            if mn.startswith(('s_addk', 's_mulk', 's_cmov', 's_bitset')): reads |= set(R[0])
        else:
            raise ValueError('unknown instruction: ' + t)
        self.kind = kind; self.reads = reads; self.writes = writes

    def states(self):
        if self.kind == 'label': return 0
        if self.kind == 'nop':
            return int(self.text.split()[1], 0) + 1
        return 1


class Prog:
    def __init__(self):
        self.items = []
        self.cur = self.items
        self._stack = []

    def __call__(self, text, tag=None):
        for line in text.split('\n'):
            line = line.strip()
            if not line: continue
            if line.startswith(';'):
                i = Inst(''); i.text = line; self.cur.append(i); continue
            self.cur.append(Inst(line, tag))

    def add(self, inst):
        self.cur.append(inst)

    def label(self, name):
        self.cur.append(Inst(name + ':'))

    def wait_tag(self, tag, extra_lgkm0=False):
        i = Inst(''); i.text = '; wait tag %s' % (tag,); i.wait_tag = tag
        self.cur.append(i)

    def raw(self, text):
        i = Inst('s_setprio 0'); i.text = text; self.cur.append(i)

    def stamp(self, i):
        self('; STAMP %d' % i)

    def flush(self):
        self('s_waitcnt vmcnt(0) lgkmcnt(0)')
        self('s_nop 15'); self('s_nop 3')

    def loop_begin(self):
        body = []
        self.cur.append(('loop', body))
        self._stack.append(self.cur)
        self.cur = body

    def loop_end(self):
        self.cur = self._stack.pop()

    def alt_begin(self):
        alts = [[]]
        self.cur.append(('alt', alts))
        self._stack.append((self.cur, alts))
        self.cur = alts[0]

    def alt_next(self):
        _, alts = self._stack[-1]
        alts.append([]); self.cur = alts[-1]

    def alt_end(self):
        self.cur, _ = self._stack.pop()

    def _linear(self, items, reps=3):
        outs = [[]]
        for it in items:
            if isinstance(it, tuple) and it[0] == 'loop':
                bs = self._linear(it[1], reps)
                assert len(bs) == 1
                for o in outs: o += bs[0] * reps
            elif isinstance(it, tuple) and it[0] == 'alt':
                new = []
                for a in it[1]:
                    for b in self._linear(a, reps):
                        for o in outs: new.append(o + b)
                outs = new
            else:
                for o in outs: o.append(it)
        return outs

    def analyse(self):
        for _ in range(6):
            changed = False
            for seq in self._linear(self.items):
                changed |= self._pass(seq)
            if not changed: break
        else:
            raise RuntimeError('analysis did not converge')

    def _pass(self, seq):
        changed = False
        vmq = []
        lgq = []
        hist = []
        pos = 0
        for ins in seq:
            if ins.kind == 'label' and ins.wait_tag is None:
                continue
            touch = ins.reads | ins.writes
            need_vm = None; need_lg = None
            if ins.wait_tag is not None:
                tags = ins.wait_tag if isinstance(ins.wait_tag, (list, tuple, set)) else [ins.wait_tag]
                for k in range(len(vmq) - 1, -1, -1):
                    if vmq[k][1] in tags:
                        need_vm = len(vmq) - 1 - k; break
            else:
                for k in range(len(vmq) - 1, -1, -1):
                    if vmq[k][0] & touch:
                        need_vm = len(vmq) - 1 - k; break
                for k in range(len(lgq) - 1, -1, -1):
                    if lgq[k][0] & touch:
                        need_lg = len(lgq) - 1 - k
                        if any(e[1] for e in lgq): need_lg = 0
                        break
            if need_vm is not None and need_vm > 63: need_vm = None
            if need_lg is not None and need_lg > 15: need_lg = None
            if need_vm is not None and (ins.pre_wait[0] is None or need_vm < ins.pre_wait[0]):
                ins.pre_wait[0] = need_vm; changed = True
            if need_lg is not None and (ins.pre_wait[1] is None or need_lg < ins.pre_wait[1]):
                ins.pre_wait[1] = need_lg; changed = True
            has_wait = ins.pre_wait[0] is not None or ins.pre_wait[1] is not None
            if ins.pre_wait[0] is not None:
                n = ins.pre_wait[0]; vmq = vmq[len(vmq) - n:] if n < len(vmq) else vmq
                if n == 0: vmq = []
            if ins.pre_wait[1] is not None:
                n = ins.pre_wait[1]
                if n == 0: lgq = []
                elif n < len(lgq) and not any(e[1] for e in lgq): lgq = lgq[len(lgq) - n:]
            if ins.kind == 'wait':
                m = re.search(r'vmcnt\((\d+)\)', ins.text)
                if m:
                    n = int(m.group(1)); vmq = vmq[len(vmq) - n:] if 0 < n < len(vmq) else ([] if n == 0 else vmq)
                m = re.search(r'lgkmcnt\((\d+)\)', ins.text)
                if m:
                    n = int(m.group(1))
                    if n == 0: lgq = []
                    elif n < len(lgq) and not any(e[1] for e in lgq): lgq = lgq[len(lgq) - n:]
            if has_wait: pos += 1
            if ins.wait_tag is not None:
                continue
            need = 0
            for (p, ppos) in hist:
                d = pos + ins.pre_nop - ppos - 1 + 0
                req = hazard(p, ins)
                gap = pos - ppos - 1
                if req > gap: need = max(need, req - gap)
            if need > ins.pre_nop:
                ins.pre_nop = need; changed = True
            pos += ins.pre_nop
            hist.append((ins, pos))
            pos += ins.states()
            while hist and pos - hist[0][1] > 24: hist.pop(0)
            if ins.kind in ('vload', 'vstore', 'dma'):
                vmq.append((set() if ins.tag == 'pf' else set(ins.writes), ins.tag))
            elif ins.kind in ('dsread', 'dswrite'):
                lgq.append((set(ins.writes), False))
            elif ins.kind == 'smem':
                lgq.append((set(ins.writes), True)); lgq.append((set(), True))
        return changed

    def emit(self):
        self.analyse()
        out = []
        def rec(items):
            for it in items:
                if isinstance(it, tuple):
                    if it[0] == 'loop': rec(it[1])
                    else:
                        for a in it[1]: rec(a)
                    continue
                w = []
                if it.pre_wait[0] is not None: w.append('vmcnt(%d)' % it.pre_wait[0])
                if it.pre_wait[1] is not None: w.append('lgkmcnt(%d)' % it.pre_wait[1])
                if w: out.append('    s_waitcnt ' + ' '.join(w))
                n = it.pre_nop
                while n > 0:
                    k = min(n, 16); out.append('    s_nop %d' % (k - 1)); n -= k
                if it.kind == 'label' and it.text.endswith(':'):
                    out.append(it.text)
                else:
                    out.append('    ' + it.text)
        rec(self.items)
        return '\n'.join(out) + '\n'


def isv(r): return r[0] in 'va' and r not in ('vcc',)
def iss(r): return (r[0] == 's' and r != 'scc') or r == 'vcc'

def hazard(p, c):
    req = 0
    pk, ck = p.kind, c.kind
    pvalu = pk in ('valu', 'trans')
    cvalu = ck in ('valu', 'trans')
    cmem = ck in ('vload', 'vstore', 'dma', 'dsread', 'dswrite')
    if pvalu:
        vw = set(r for r in p.writes if isv(r))
        sw = set(r for r in p.writes if iss(r))
        if ck == 'mfma' and vw & c.reads: req = max(req, 2)
        if pk == 'trans' and cvalu and ck != 'trans' and vw & c.reads: req = max(req, 1)
        if pk == 'trans' and ck == 'trans' and vw & c.reads: req = max(req, 1)
        if pk == 'trans' and cmem and vw & c.reads: req = max(req, 1)
        if cvalu and c.mn.startswith('v_permlane') and vw & c.reads: req = max(req, 2)
        if cvalu and c.dpp and vw & c.reads: req = max(req, 2)
        if cvalu and c.mn.startswith(('v_readlane', 'v_readfirstlane')) and vw & c.reads: req = max(req, 1)
        if cvalu and sw & c.reads:
            req = max(req, 4 if c.mn.startswith(('v_readlane', 'v_writelane', 'v_div_fmas')) else 2)
        if ck in ('vload', 'vstore', 'dma') and sw & c.reads: req = max(req, 5)
        if 'exec' in p.writes:
            if ck == 'mfma': req = max(req, 4)
            if cvalu and c.dpp: req = max(req, 5)
            if cvalu and c.mn.startswith(('v_readlane', 'v_readfirstlane', 'v_writelane', 'v_permlane')): req = max(req, 4)
        if ('op_sel' in p.text or 'sdwa' in p.mn or 'dst_sel' in p.text) and cvalu and vw & (c.reads | c.writes): req = max(req, 1)
        if p.mn.startswith('v_dot'):
            if cvalu and vw & (c.reads | c.writes):
                if c.mn == p.mn and not (vw & (c.reads - c.writes)): pass
                else: req = max(req, 3)
            elif (cmem or ck == 'mfma') and vw & c.reads: req = max(req, 3)
    if pk == 'salu':
        if 'm0' in p.writes and (ck == 'dma' or 'addtid' in c.mn or c.mn.startswith('s_movrel')): req = max(req, 1)
    if pk == 'mfma':
        n = {4: (0, 6, 8, 8, 3), 8: (0, 10, 12, 12, 7)}[p.passes]
        D = p.writes
        if ck == 'mfma':
            if c.srcc & D:
                exact = (c.srcc == D and c.passes == p.passes)
                req = max(req, n[0] if exact else n[1])
            if c.srcab & D: req = max(req, n[2])
            if (c.writes & D) and not (c.srcc == D):
                req = max(req, n[1])
        elif cvalu:
            if D & (c.reads | c.writes): req = max(req, n[3])
            if p.srcc & c.writes: req = max(req, n[4])
        elif cmem:
            if D & (c.reads | c.writes): req = max(req, n[3])
            if p.srcc & c.writes: req = max(req, n[4])
    if pk == 'vstore' and p.wide_store:
        if p.wide_store & c.writes: req = max(req, 2)
    if pk == 'dswrite' and ('b128' in p.mn or 'b96' in p.mn):
        pass
    return req
```

```python
import re
HEADER = open('adaLN_cond__sliding_block_cached__moe_arch_mod__prompt.s.ref').read().split('; Override')[0]
WS_PROF = 0x3800000
NST = 18
KNAME = 'adaLN_cond__sliding_block_cached__moe_arch_mod__prompt_kernel'

def add_prof(name, body, extra, keep):
    slot = {s: i for i, s in enumerate(keep)}
    assert len(keep) <= NST
    pre = "    s_memrealtime s[100:101]\n    s_waitcnt lgkmcnt(0)\n    s_mov_b32 s98, s100\n    s_memtime s[100:101]\n    s_waitcnt lgkmcnt(0)\n    s_mov_b32 s99, s100\n"
    pre += ''.join("    s_mov_b32 s%d, s100\n" % (80 + i) for i in range(NST))
    def st(m):
        k = int(m.group(1))
        if k not in slot: return '; stamp %d dropped' % k
        return 's_memtime s[100:101]\n    s_waitcnt lgkmcnt(0)\n    s_mov_b32 s%d, s100' % (80 + slot[k])
    body = re.sub(r'; STAMP (\d+)', st, body)
    post = """    s_waitcnt vmcnt(0) lgkmcnt(0)
    s_memrealtime s[4:5]
    s_memtime s[100:101]
    s_load_dwordx2 s[8:9], s[0:1], 112
    v_readfirstlane_b32 s6, v0
    s_waitcnt lgkmcnt(0)
    s_mov_b32 s10, 0x5000000
    s_mov_b32 s11, 0x20000
    s_lshr_b32 s6, s6, 6
    s_lshl_b32 s7, s2, 3
    s_add_u32 s6, s6, s7
    s_lshl_b32 s6, s6, 7
    s_add_u32 s6, s6, 0x%x
    s_sub_u32 s100, s100, s99
    s_mov_b64 exec, 1
    v_mov_b32 v4, 0
    v_mov_b32 v8, s98
    v_mov_b32 v9, s4
    v_mov_b32 v10, s100
    v_mov_b32 v11, 0x1234
    buffer_store_dwordx4 v[8:11], v4, s[8:11], s6 offen
""" % WS_PROF
    for g in range(0, NST, 4):
        for i in range(4):
            if g + i < NST:
                post += "    s_sub_u32 s7, s%d, s99\n    v_mov_b32 v%d, s7\n" % (80 + g + i, 12 + g + i)
        post += "    s_nop 1\n    buffer_store_dwordx4 v[%d:%d], v4, s[8:11], s6 offen offset:%d\n" % (12 + g, 15 + g, 16 + 4 * g)
    post += "    s_endpgm\n"
    assert body.rstrip().endswith('s_endpgm')
    body = body.replace('s_cbranch_scc1 %s_end' % name, 's_cbranch_scc1 %s_quit' % name, 1)
    body = pre + body.rstrip()[:-len('s_endpgm')].rstrip() + '\n' + post + '%s_quit:\n    s_endpgm\n' % name
    return body

def assemble(name, body, extra, info, path, prof=None, listform=False):
    sg = info['sgpr']
    if prof is not None:
        body = add_prof(name, body, extra, prof); sg = 102
    out = HEADER
    if listform: out += '; @launch kernel=%s grid=(%d,1,1) block=(%d,1,1) lds=%d\n' % (name, info['grid'], info['block'], info['lds'])
    else: out += '; @launch grid=(%d,1,1) block=(%d,1,1) lds=%d\n' % (info['grid'], info['block'], info['lds'])
    out += '.amdgcn_target "amdgcn-amd-amdhsa--gfx950"\n.text\n'
    out += '.globl %s\n.p2align 8\n.type %s,@function\n%s:\n' % (name, name, name)
    out += body + extra
    out += '.section .rodata,"a"\n.p2align 6\n.amdhsa_kernel %s\n' % name
    out += '  .amdhsa_next_free_vgpr %d\n  .amdhsa_next_free_sgpr %d\n  .amdhsa_accum_offset %d\n' % (info['vgpr'], sg, info['accum'])
    out += '  .amdhsa_group_segment_fixed_size 0\n  .amdhsa_kernarg_size 120\n  .amdhsa_user_sgpr_count 2\n'
    out += '  .amdhsa_user_sgpr_kernarg_segment_ptr 1\n  .amdhsa_system_sgpr_workgroup_id_x 1\n'
    out += '  .amdhsa_float_denorm_mode_32 3\n'
    out += '.end_amdhsa_kernel\n'
    open(path, 'w').write(out)
```

```python
from asmdsl import Prog, Inst
from layout import *
import math

class RA:
    def __init__(self, kind, start, limit):
        self.kind, self.n, self.limit = kind, start, limit
    def alloc(self, n, align=1):
        self.n = (self.n + align - 1) // align * align
        b = self.n; self.n += n
        assert self.n <= self.limit, (self.kind, self.n)
        return (self.kind, b)

def R(reg, off=0, n=1):
    k, b = reg
    if n == 1: return '%s%d' % (k, b + off)
    return '%s[%d:%d]' % (k, b + off, b + off + n - 1)

class Sched:
    def __init__(self):
        self.m = []
        self.after = {}
    def mfma(self, text):
        self.m.append(text); return len(self.m) - 1
    def place(self, idx, item, tag=None):
        self.after.setdefault(idx, []).append((item, tag))
    def emit(self, p, lo=None, hi=None):
        lo = -10**9 if lo is None else lo
        keys = sorted(k for k in self.after if k < 0)
        for k in keys:
            for it, tag in self.after[k]: self._one(p, it, tag)
        for i, m in enumerate(self.m):
            p(m)
            for it, tag in self.after.get(i, []): self._one(p, it, tag)
        for k in sorted(k for k in self.after if k >= len(self.m)):
            for it, tag in self.after[k]: self._one(p, it, tag)
    def _one(self, p, it, tag):
        if callable(it): it(p)
        else: p(it, tag)

def gen_k2(name='k2_kernel', NW=8, NQ=1, D1=4, D2=4, stamps=False, phase2=True, prefetch=True, modcols=True):
    assert NW * NQ == 8
    p = Prog()
    big = (NQ == 2)
    V = RA('v', 0, 256)
    A = RA('a', 0, 256) if big else V
    v_tid = V.alloc(1)
    v_l16 = V.alloc(1)
    v_wqoff = V.alloc(1)
    v_tr = V.alloc(1)
    v_hoff = [V.alloc(1) for _ in range(NQ)]
    v_kvoff = V.alloc(1)
    v_pf = V.alloc(1); v_pfd = V.alloc(1); v_id = V.alloc(1)
    v_t = [V.alloc(1) for _ in range(6)]
    v_l = [[V.alloc(1) for _ in range(2)] for _ in range(NQ)]
    acc = [[A.alloc(16, 4) for _ in range(4)] for _ in range(NQ)]
    NRA = max(D1, D2) + 2
    fr = [A.alloc(4, 4) for _ in range(NRA)]
    qf = [[A.alloc(4, 4) for _ in range(8)] for _ in range(NQ)]
    S = [[V.alloc(16, 4) for _ in range(NQ)] for _ in range(2)]
    negm = [V.alloc(16, 4) for _ in range(NQ)]
    P = [[[V.alloc(4, 4) for _ in range(2)] for _ in range(NQ)] for _ in range(2)]
    H = [[[V.alloc(4, 4) for _ in range(4)] for _ in range(NQ)] for _ in range(2)]
    nv = V.n; na = A.n if big else 0

    PPW = 16 // NW
    WQ_RING = 0
    KV_RING = 65536
    NKV = 6

    p('s_cmp_ge_u32 s2, 256')
    p('s_cbranch_scc1 %s_end' % name)
    p('s_load_dwordx2 s[4:5], s[0:1], %d' % KA['wq'])
    p('s_load_dwordx2 s[8:9], s[0:1], %d' % KA['ws'])
    if prefetch:
        for i, b in enumerate(('wo',)):
            p('s_load_dwordx2 s[%d:%d], s[0:1], %d' % (28 + 4 * i, 29 + 4 * i, KA[b]))
            p('s_mov_b32 s%d, %d' % (30 + 4 * i, 8388608 if b == 'wo' else 7340032))
            p('s_mov_b32 s%d, 0x20000' % (31 + 4 * i))
        p('s_lshl_b32 s3, s2, 11')
        p('v_lshrrev_b32 %s, 6, v0' % R(v_pf))
        p('v_lshlrev_b32 %s, 8, %s' % (R(v_pf), R(v_pf)))
        p('v_and_b32 %s, 63, v0' % R(v_pfd))
        p('v_lshl_add_u32 %s, %s, 7, %s' % (R(v_pf), R(v_pfd), R(v_pf)))
        p('v_add_u32 %s, s3, %s' % (R(v_pf), R(v_pf)))
        p('v_cmp_gt_u32 vcc, 2, %s' % R(v_pfd))
        p('v_bfrev_b32 %s, -2' % R(v_pfd))
        p('v_cndmask_b32 %s, %s, %s, vcc' % (R(v_pf), R(v_pfd), R(v_pf)))
    if modcols:
        p('s_load_dwordx4 s[44:47], s[0:1], %d' % KA['c'])
        p('s_load_dwordx2 s[56:57], s[0:1], %d' % KA['wr'])
        p('v_mov_b32 %s, v0' % R(v_id))
        p('v_cmp_gt_u32 s[60:61], 16, v0')
    if stamps:
        p('s_load_dwordx2 s[40:41], s[0:1], %d' % KA['dbg'])
        p('s_memtime s[44:45]')
    p('s_and_b32 s12, s2, 3')
    p('s_lshl_b32 s12, s12, 3')
    p('s_bfe_u32 s13, s2, 0x30003')
    p('s_add_u32 s12, s12, s13')
    p('s_bfe_u32 s13, s2, 0x10002')
    p('s_lshl_b32 s13, s13, 2')
    p('s_lshr_b32 s14, s2, 6')
    p('s_add_u32 s13, s13, s14')
    p('v_lshrrev_b32 %s, 6, v0' % R(v_t[0]))
    p('v_and_b32 %s, 63, v0' % R(v_tid))
    p('v_readfirstlane_b32 s15, %s' % R(v_t[0]))
    lane = R(v_tid)
    p('v_lshlrev_b32 %s, 4, %s' % (R(v_l16), lane))
    p('v_bfe_u32 %s, %s, 2, 2' % (R(v_t[0]), lane))
    p('v_lshlrev_b32 %s, 13, %s' % (R(v_t[0]), R(v_t[0])))
    p('v_lshrrev_b32 %s, 4, %s' % (R(v_t[1]), lane))
    p('v_lshl_add_u32 %s, %s, 6, %s' % (R(v_t[0]), R(v_t[1]), R(v_t[0])))
    p('v_and_b32 %s, 3, %s' % (R(v_t[2]), lane))
    p('v_lshl_add_u32 %s, %s, 4, %s' % (R(v_wqoff), R(v_t[2]), R(v_t[0])))
    p('v_lshrrev_b32 %s, 5, %s' % (R(v_t[0]), lane))
    p('v_lshlrev_b32 %s, 11, %s' % (R(v_t[0]), R(v_t[0])))
    p('v_bfe_u32 %s, %s, 2, 2' % (R(v_t[1]), lane))
    p('v_lshl_add_u32 %s, %s, 6, %s' % (R(v_t[0]), R(v_t[1]), R(v_t[0])))
    p('v_bfe_u32 %s, %s, 4, 1' % (R(v_t[1]), lane))
    p('v_lshl_add_u32 %s, %s, 5, %s' % (R(v_t[0]), R(v_t[1]), R(v_t[0])))
    p('v_lshl_add_u32 %s, %s, 3, %s' % (R(v_tr), R(v_t[2]), R(v_t[0])))
    p('s_lshl_b32 s16, s12, 8')
    p('s_add_u32 s4, s4, s16')
    p('s_addc_u32 s5, s5, 0')
    p('s_sub_u32 s6, 0x800000, s16')
    p('s_mov_b32 s7, 0x20000')
    p('s_mov_b32 s10, 0x%x' % WS_SIZE)
    p('s_mov_b32 s11, 0x20000')
    p('s_lshl_b32 s17, s13, 3')
    p('s_mul_i32 s18, s15, %d' % NQ)
    p('s_add_u32 s17, s17, s18')
    for q in range(NQ):
        p('s_add_u32 s18, s17, %d' % q)
        p('s_lshl_b32 s18, s18, 16')
        p('v_add_u32 %s, s18, %s' % (R(v_hoff[q]), R(v_l16)))
    p('s_mul_i32 s19, s15, %d' % (PPW * 32768))
    p('s_mul_i32 s20, s15, %d' % (PPW * 1024))
    p('s_lshr_b32 s21, s12, 3')
    p('s_lshl_b32 s21, s21, 18')
    p('s_add_u32 s21, s21, s20')
    p('s_add_u32 s21, s21, 0x%x' % WS_KV)
    p('v_add_u32 %s, s21, %s' % (R(v_kvoff), R(v_l16)))

    def dma_wq(s):
        out = []
        for i in range(PPW):
            out.append(('s_add_u32 s22, s19, 0x%x' % (s * 64 * 8192 + i * 32768), None))
            out.append(('s_add_u32 m0, s20, 0x%x' % (WQ_RING + (s % 4) * 16384 + i * 1024), None))
            out.append(('buffer_load_dwordx4 %s, s[4:7], s22 offen lds' % R(v_wqoff), 'wq%d' % s))
        return out
    def dma_kv(j):
        out = []
        for i in range(PPW):
            out.append(('s_mov_b32 s22, 0x%x' % (j * 16384 + i * 1024), None))
            out.append(('s_add_u32 m0, s20, 0x%x' % (KV_RING + (j % NKV) * 16384 + i * 1024), None))
            out.append(('buffer_load_dwordx4 %s, s[8:11], s22 offen lds' % R(v_kvoff), 'kv%d' % j))
        return out
    def hload(s, q, t):
        return [('s_mov_b32 s23, 0x%x' % (WS_H + s * 4096), None),
                ('buffer_load_dwordx4 %s, %s, s[8:11], s23 offen offset:%d' % (R(H[s % 2][q][t], 0, 4), R(v_hoff[q]), t * 1024), None)]
    def trread(f):
        s, t, dt = f // 16, (f // 4) % 4, f % 4
        base = WQ_RING + (s % 4) * 16384 + t * 4096 + dt * 256
        r = fr[f % NRA]
        return ['ds_read_b64_tr_b16 %s, %s offset:%d' % (R(r, 0, 2), R(v_tr), base),
                'ds_read_b64_tr_b16 %s, %s offset:%d' % (R(r, 2, 2), R(v_tr), base + 1024)]

    for s in range(2):
        for it, tag in dma_wq(s): p(it, tag)
        for q in range(NQ):
            for t in range(4):
                for it, tag in hload(s, q, t): p(it, tag)
    for it, tag in dma_wq(2): p(it, tag)
    p.wait_tag('wq0')
    p('s_barrier')
    p.stamp(0)
    for f in range(D1):
        for x in trread(f): p(x)
    sc = Sched()
    for f in range(256):
        s, t, dt = f // 16, (f // 4) % 4, f % 4
        for q in range(NQ):
            c = '0' if (s == 0 and t == 0) else R(acc[q][dt], 0, 16)
            idx = sc.mfma('v_mfma_f32_32x32x16_bf16 %s, %s, %s, %s' % (R(acc[q][dt], 0, 16), R(fr[f % NRA], 0, 4), R(H[s % 2][q][t], 0, 4), c))
        g = f + D1
        if g < 256:
            if g % 16 == 0:
                sn = g // 16
                sc.place(idx, lambda p, sn=sn: p.wait_tag('wq%d' % sn))
                sc.place(idx, 's_barrier')
                nxt = dma_wq(sn + 2) if sn + 2 < 16 else dma_kv(sn + 2 - 16)
                for i in range(PPW):
                    for it, tag in nxt[3 * i:3 * i + 3]: sc.place(idx + 1 + 2 * i * NQ, it, tag)
            for x in trread(g): sc.place(idx, x)
        if dt == 3 and s + 2 < 16:
            for q in range(NQ):
                for it, tag in hload(s + 2, q, t): sc.place(idx, it, tag)
        if dt == 3 and s >= 14 and t >= 2:
            j = 2 + (s - 14) * 2 + (t - 2)
            for it, tag in dma_kv(j): sc.place(idx, it, tag)
    if modcols:
        from small import silu, rb1, rb2, unpack, ror_add
        class L:
            def __init__(self): self.l = []
            def __call__(self, t, tag=None): self.l.append(t)
        w = [(S[0][0][0], S[0][0][1] + 4 * i) for i in range(4)]; cs = S[1][0]; ma = (S[1][0][0], S[1][0][1] + 4); mu = (S[1][0][0], S[1][0][1] + 12)
        MLDS = KV_RING + 5 * 16384 - 0x20000
        st0 = lambda s_: s_ * 16 * NQ
        ta, tb = R(v_t[4]), R(v_t[5])
        def issue(p):
            p('s_mov_b64 s[48:49], s[44:45]'); p('s_mov_b32 s50, 2048'); p('s_mov_b32 s51, 0x20000')
            p('s_mov_b64 s[52:53], s[46:47]'); p('s_mov_b32 s54, %d' % (1024 * 6144 * 2)); p('s_mov_b32 s55, 0x20000')
            p('s_mov_b32 s58, 2048'); p('s_mov_b32 s59, 0x20000')
            p('s_and_b32 s62, s2, 7'); p('s_lshl_b32 s62, s62, 5'); p('s_lshr_b32 s63, s2, 3'); p('s_add_u32 s62, s62, s63')
            p('s_lshl_b32 s62, s62, 4'); p('s_add_u32 s62, s62, 2048')
            p('v_lshrrev_b32 %s, 1, %s' % (ta, R(v_id)))
            p('v_lshlrev_b32 %s, 3, %s' % (tb, ta))
            p('buffer_load_dwordx2 %s, %s, s[48:51], 0 offen' % (R(cs, 0, 2), tb))
            p('v_mul_u32_u24 %s, %d, %s' % (ta, 4 * 12288, ta))
            p('v_and_b32 %s, 1, %s' % (tb, R(v_id)))
            p('v_lshl_add_u32 %s, %s, 4, %s' % (ta, tb, ta))
            p('s_lshl_b32 s63, s62, 1')
        sc.place(st0(1) + 5, issue)
        for i in range(4):
            sc.place(st0(1 + 2 * i) + 9, 's_add_u32 s26, s63, %d' % (i * 12288))
            sc.place(st0(1 + 2 * i) + 9, 'buffer_load_dwordx4 %s, %s, s[52:55], s26 offen' % (R(w[i], 0, 4), ta))
        q = L()
        unpack(q, R(cs, 2), R(cs, 3), R(cs, 1)); unpack(q, R(cs, 0), R(cs, 1), R(cs, 0))
        for i in range(4): silu(q, R(cs, i), R(mu, i))
        rb2(q, R(cs, 0), R(cs, 1), R(mu, 0)); rb2(q, R(cs, 2), R(cs, 3), R(mu, 1))
        for i in range(4):
            for hf in range(2):
                for d in range(2): unpack(q, R(mu, 2 * d), R(mu, 2 * d + 1), R(w[i], 2 * hf + d))
                for e in range(4):
                    if i == 0: q('v_mul_f32 %s, %s, %s' % (R(ma, 4 * hf + e), R(cs, i), R(mu, e)))
                    else: q('v_fmac_f32 %s, %s, %s' % (R(ma, 4 * hf + e), R(cs, i), R(mu, e)))
        for e in range(4): q('v_permlane32_swap_b32 %s, %s' % (R(ma, e), R(ma, 4 + e)))
        for e in range(4): q('v_add_f32 %s, %s, %s' % (R(ma, e), R(ma, e), R(ma, 4 + e)))
        for e in range(2): q('v_permlane16_swap_b32 %s, %s' % (R(ma, e), R(ma, 2 + e)))
        for e in range(2): q('v_add_f32 %s, %s, %s' % (R(ma, e), R(ma, e), R(ma, 2 + e)))
        for n in (8, 4, 2):
            for e in range(2): ror_add(q, R(ma, e), n)
        q('v_lshrrev_b32 %s, 6, %s' % (ta, R(v_id)))
        q('v_lshlrev_b32 %s, 6, %s' % (ta, ta))
        q('v_lshl_add_u32 %s, %s, 5, %s' % (ta, tb, ta))
        q('v_bfe_u32 %s, %s, 4, 2' % (tb, R(v_id)))
        q('v_lshl_add_u32 %s, %s, 3, %s' % (ta, tb, ta))
        q('v_add_u32 %s, 0x20000, %s' % (ta, ta))
        lo = st0(10); hi = st0(12) - 1
        for i, o in enumerate(q.l):
            sc.place(lo + (i * (hi - lo)) // len(q.l), o)
        def wr(p):
            p('s_mov_b32 s26, 0x00030003')
            p('s_mov_b32 exec_lo, s26'); p('s_mov_b32 exec_hi, s26')
            p('ds_write_b64 %s, %s offset:%d' % (ta, R(ma, 0, 2), MLDS))
            p('s_mov_b64 exec, -1')
            p('v_add_u32 %s, s62, %s' % (tb, R(v_id)))
            p('v_and_b32 %s, 1023, %s' % (R(mu, 0), tb))
            p('v_lshlrev_b32 %s, 1, %s' % (R(mu, 0), R(mu, 0)))
            p('buffer_load_ushort %s, %s, s[56:59], 0 offen' % (R(mu, 1), R(mu, 0)))
            p('s_waitcnt lgkmcnt(0)')
        sc.place(hi, wr)
        def fin(p):
            p('v_and_b32 %s, 15, %s' % (ta, R(v_id)))
            p('v_lshlrev_b32 %s, 2, %s' % (ta, ta))
            p('v_add_u32 %s, 0x20000, %s' % (ta, ta))
            for i in range(8): p('ds_read_b32 %s, %s offset:%d' % (R(ma, i), ta, MLDS + i * 64))
        sc.place(st0(13) + 2, fin)
        def fin2(p):
            for i in range(4): p('v_add_f32 %s, %s, %s' % (R(ma, i), R(ma, i), R(ma, 4 + i)))
            for i in range(2): p('v_add_f32 %s, %s, %s' % (R(ma, i), R(ma, i), R(ma, 2 + i)))
            a = R(ma, 0)
            p('v_add_f32 %s, %s, %s' % (a, a, R(ma, 1)))
            rb1(p, a)
            p('s_lshr_b32 s63, s62, 10')
            p('s_cmp_eq_u32 s63, 4'); p('s_cselect_b32 s26, 1.0, 0')
            p('v_add_f32 %s, s26, %s' % (a, a))
            rb1(p, a)
            p('v_lshlrev_b32 %s, 2, %s' % (tb, tb))
            p('v_lshlrev_b32 %s, 16, %s' % (R(mu, 1), R(mu, 1)))
            p('v_mul_f32 %s, %s, %s' % (R(mu, 1), a, R(mu, 1)))
            p('s_mov_b32 s26, 0x%x' % WS_MOD)
            p('s_mov_b32 s27, 0x%x' % (WS_MOD + 2 * 4096))
            p('s_cmp_eq_u32 s63, 4'); p('s_cselect_b32 s27, s27, 0x7fffffff')
            p('s_mov_b64 exec, s[60:61]')
            p('buffer_store_dword %s, %s, s[8:11], s26 offen' % (a, tb))
            p('buffer_store_dword %s, %s, s[8:11], s27 offen' % (R(mu, 1), tb))
            p('s_mov_b64 exec, -1')
        sc.place(st0(13) + 8, fin2)
    sc.emit(p)
    if stamps: p('s_memtime s[46:47]')
    p.stamp(1)

    cscale = (128 ** -0.5) * math.log2(math.e)
    import struct
    cbits = struct.unpack('<I', struct.pack('<f', cscale))[0]
    p('s_mov_b32 s24, 0x%x' % cbits)
    for q in range(NQ):
        for dt in range(4):
            for r in range(0, 16, 2):
                t = 2 * dt + r // 8
                dst = R(qf[q][t], (r % 8) // 2)
                a0, a1 = R(acc[q][dt], r), R(acc[q][dt], r + 1)
                if big:
                    p('v_accvgpr_read_b32 %s, %s' % (R(v_t[0]), a0)); p('v_accvgpr_read_b32 %s, %s' % (R(v_t[1]), a1))
                    a0, a1 = R(v_t[0]), R(v_t[1])
                p('v_mul_f32 %s, s24, %s' % (R(v_t[2]), a0))
                p('v_mul_f32 %s, s24, %s' % (R(v_t[3]), a1))
                if big:
                    p('v_cvt_pk_bf16_f32 %s, %s, %s' % (R(v_t[4]), R(v_t[2]), R(v_t[3])))
                    p('v_accvgpr_write_b32 %s, %s' % (dst, R(v_t[4])))
                else:
                    p('v_cvt_pk_bf16_f32 %s, %s, %s' % (dst, R(v_t[2]), R(v_t[3])))

    p.stamp(2)
    def kaddr(j, t): return KV_RING + (j % NKV) * 16384 + t * 1024
    def vaddr(j, u, dt): return KV_RING + (j % NKV) * 16384 + 8192 + (u * 4 + dt) * 1024
    v_l16b = v_wqoff
    p('v_add_u32 %s, 0x10000, %s' % (R(v_l16b), R(v_l16)))
    v_l16c = v_tr
    p('v_add_u32 %s, 0x20000, %s' % (R(v_l16c), R(v_l16)))
    def lds_read(dst, addr):
        if addr >= 0x20000: return 'ds_read_b128 %s, %s offset:%d' % (R(dst, 0, 4), R(v_l16c), addr - 0x20000)
        return 'ds_read_b128 %s, %s offset:%d' % (R(dst, 0, 4), R(v_l16b), addr - 0x10000)

    seq = []
    seq += [('k', 0, t) for t in range(8)]
    seq += [('k', 1, t) for t in range(8)]
    marks = {}
    for j in range(1, 17):
        marks[j] = len(seq)
        if j + 1 < 16: seq += [('k', j + 1, t) for t in range(8)]
        seq += [('v', j - 1, i) for i in range(8)]
    def fragaddr(e):
        k, j, i = e
        return kaddr(j, i) if k == 'k' else vaddr(j, i // 4, i % 4)
    sc = Sched()
    first_m = {}
    last_m = {}
    for n, (k, j, i) in enumerate(seq):
        for q in range(NQ):
            f = R(fr[n % NRA], 0, 4)
            if k == 'k':
                d = R(S[j % 2][q], 0, 16)
                c = d if i > 0 else ('0' if j < 2 else R(negm[q], 0, 16))
                idx = sc.mfma('v_mfma_f32_32x32x16_bf16 %s, %s, %s, %s' % (d, f, R(qf[q][i], 0, 4), c))
            else:
                u, dt = i // 4, i % 4
                d = R(acc[q][dt], 0, 16)
                c = '0' if (j == 0 and u == 0) else d
                idx = sc.mfma('v_mfma_f32_32x32x16_bf16 %s, %s, %s, %s' % (d, f, R(P[j % 2][q][u], 0, 4), c))
            first_m.setdefault(n, idx)
            last_m[n] = idx
    kv_ready = set()
    def need_tile(j, at):
        if j in kv_ready: return
        kv_ready.add(j)
        sc.place(at, lambda p, j=j: p.wait_tag('kv%d' % j))
        sc.place(at, 's_barrier')
        jn = j + 2
        if j >= 4 and jn < 16:
            nxt = dma_kv(jn)
            for i in range(PPW):
                for it, tag in nxt[3 * i:3 * i + 3]: sc.place(at + 1 + 2 * i * NQ, it, tag)
    for n in range(len(seq)):
        at = last_m[n - D2] if n - D2 >= 0 else -1
        k, j, i = seq[n]
        if k == 'k': need_tile(j, at)
        sc.place(at, lds_read(fr[n % NRA], fragaddr(seq[n])))
    def softmax_ops(j, q, sub):
        ops = []
        s = S[j % 2][q]
        for r in range(0, 16, 2):
            if sub:
                ops.append('v_add_f32 %s, %s, %s' % (R(s, r), R(s, r), R(negm[q], 0)))
                ops.append('v_add_f32 %s, %s, %s' % (R(s, r + 1), R(s, r + 1), R(negm[q], 0)))
            ops.append('v_exp_f32 %s, %s' % (R(s, r), R(s, r)))
            ops.append('v_exp_f32 %s, %s' % (R(s, r + 1), R(s, r + 1)))
            if j == 0 and r == 0:
                ops.append('v_mov_b32 %s, %s' % (R(v_l[q][0]), R(s, r)))
                ops.append('v_mov_b32 %s, %s' % (R(v_l[q][1]), R(s, r + 1)))
            else:
                ops.append('v_add_f32 %s, %s, %s' % (R(v_l[q][0]), R(v_l[q][0]), R(s, r)))
                ops.append('v_add_f32 %s, %s, %s' % (R(v_l[q][1]), R(v_l[q][1]), R(s, r + 1)))
            ops.append('v_cvt_pk_bf16_f32 %s, %s, %s' % (R(P[j % 2][q][r // 8], (r % 8) // 2), R(s, r), R(s, r + 1)))
        return ops
    def max_ops(q):
        ops = []
        m = R(v_t[q])
        regs = [R(S[b][q], r) for b in range(2) for r in range(16)]
        ops.append('v_max3_f32 %s, %s, %s, %s' % (m, regs[0], regs[1], regs[2]))
        for i in range(3, 31, 2):
            ops.append('v_max3_f32 %s, %s, %s, %s' % (m, m, regs[i], regs[i + 1]))
        ops.append('v_max_f32 %s, %s, %s' % (m, m, regs[31]))
        m2 = R(v_t[2 + q])
        ops.append('v_mov_b32 %s, %s' % (m2, m))
        ops.append('v_permlane32_swap_b32 %s, %s' % (m, m2))
        ops.append('v_max_f32 %s, %s, %s' % (m, m, m2))
        for r in range(16):
            ops.append('v_sub_f32 %s, 0, %s' % (R(negm[q], r), m))
        return ops
    at = last_m[15]
    for q in range(NQ):
        for o in max_ops(q): sc.place(at, o)
    for q in range(NQ):
        for o in softmax_ops(0, q, True): sc.place(at, o)
    for j in range(1, 16):
        lo = first_m[marks[j]]
        hi = last_m[marks[j + 1] - 1]
        ops = []
        for q in range(NQ): ops += softmax_ops(j, q, j < 2)
        nm = hi - lo + 1
        for i, o in enumerate(ops):
            sc.place(lo + min(nm - 1, (i * nm) // len(ops)), o)
    if prefetch:
        assert NW == 8
        for i in range(16):
            j = min(1 + i, 15)
            at = first_m[marks[j]] + (3 if i < 15 else 7)
            sc.place(at, 's_mov_b32 s26, 0x%x' % ((i % 4) * 0x200000 + (i // 4) * 0x80000))
            sc.place(at, 'buffer_load_dword %s, %s, s[28:31], s26 offen' % (R(v_pfd), R(v_pf)), 'pf')
    if phase2:
        sc.emit(p)
    if stamps: p('s_memtime s[48:49]')
    p.stamp(3)

    p.label('%s_epi' % name)
    for q in range(NQ):
        l0, l1 = R(v_l[q][0]), R(v_l[q][1])
        p('v_add_f32 %s, %s, %s' % (l0, l0, l1))
        p('v_mov_b32 %s, %s' % (l1, l0))
        p('v_permlane32_swap_b32 %s, %s' % (l0, l1))
        p('v_add_f32 %s, %s, %s' % (l0, l0, l1))
        p('v_rcp_f32 %s, %s' % (l1, l0))
        p('s_add_u32 s18, s17, %d' % q)
        p('s_lshl_b32 s18, s18, 18')
        p('s_lshl_b32 s25, s12, 13')
        p('s_add_u32 s18, s18, s25')
        p('s_add_u32 s18, s18, 0x%x' % WS_O)
        p('s_add_u32 s25, s18, 4096')
        for dt in range(4):
            for u in range(2):
                o = S[0][0] if (dt * 2 + u) % 2 == 0 else S[1][0]
                for r in range(8):
                    src = R(acc[q][dt], 8 * u + r)
                    if big:
                        p('v_accvgpr_read_b32 %s, %s' % (R(o, 8 + r), src)); src = R(o, 8 + r)
                    p('v_mul_f32 %s, %s, %s' % (R(o, 8 + r), src, l1))
                for r in range(0, 8, 2):
                    p('v_cvt_pk_bf16_f32 %s, %s, %s' % (R(o, r // 2), R(o, 8 + r), R(o, 8 + r + 1)))
                t = 2 * dt + u
                p('buffer_store_dwordx4 %s, %s, s[8:11], %s offen offset:%d' % (R(o, 0, 4), R(v_l16), 's18' if t < 4 else 's25', (t % 4) * 1024))
    if stamps:
        p('s_waitcnt vmcnt(0)')
        p('s_memtime s[50:51]')
        p('s_waitcnt lgkmcnt(0)')
        p('s_sub_u32 s46, s46, s44'); p('s_sub_u32 s48, s48, s44'); p('s_sub_u32 s50, s50, s44')
        p('s_mov_b32 s42, 256'); p('s_mov_b32 s43, 0x20000')
        p('v_mov_b32 %s, s46' % R(S[0][0], 0)); p('v_mov_b32 %s, s48' % R(S[0][0], 1)); p('v_mov_b32 %s, s50' % R(S[0][0], 2)); p('v_mov_b32 %s, s2' % R(S[0][0], 3))
        p('s_lshl_b32 s26, s2, 3'); p('s_add_u32 s26, s26, s15'); p('s_lshl_b32 s26, s26, 4')
        p('v_mov_b32 %s, s26' % R(v_t[0]))
        p('buffer_store_dwordx4 %s, %s, s[40:43], 0 offen' % (R(S[0][0], 0, 4), R(v_t[0])))
    p.label('%s_end' % name)
    p('s_endpgm')
    body = p.emit()
    nfv = (256 + na) if big else nv
    return body, dict(vgpr=nfv, accum=256 if big else (nv + 3) // 4 * 4, sgpr=64, lds=163840, block=NW * 64, grid=256)
```

```python
WS_H     = 0x0000000
WS_KF    = 0x0400000
WS_VF    = 0x0480000
WS_MODG  = 0x0500000
WS_STG   = 0x0520000
WS_HFLAG = 0x0528000
WS_OFLAG = 0x052C000
WS_AFLAG = 0x0530000
WS_MODB  = 0x0540000
WS_MFLAG = 0x0544000
WS_MODP  = 0x0550000
WS_MPFLAG = 0x0560000
WS_Z     = 0x0600000
WS_YP    = WS_Z
WS_KEY   = WS_Z + 0xE0000
WS_GUP   = WS_Z + 0xE1000
WS_O     = 0x1000000
WS_AP    = 0x2C00000
WS_SIZE  = 0x3400000

KA = dict(x=0, k=8, v=16, wq=24, wo=32, bx=40, wr=48, wg=56, wu=64, wd=72, c=80, wmod=88, out=96, dbg=104, ws=112)
```

```python
WS_H     = 0x0000000
WS_KV    = 0x0400000
WS_MODP  = 0x0500000
WS_MODP2 = 0x0520000
WS_MOD   = 0x0580000
WS_MODB  = 0x0588000
WS_SEL   = 0x058C000
WS_ZERO  = 0x0590000
WS_STAT  = 0x0590000
WS_UB    = 0x0596000
WS_CNT   = 0x0596100
WS_PIV   = 0x0598000
WS_GU    = 0x05A0000
WS_YP    = 0x05B0000
WS_X2    = 0x0600000
WS_YP2   = 0x0A00000
WS_KEY2  = 0x0A70000
WS_O     = 0x1000000
WS_WOF   = 0x2200000
WS_AP    = 0x2C00000
WS_KEY   = 0x059A000
WS_XCH   = 0x2800000
WS_XFL   = 0x05B8000
WS_SIZE  = 0x3400000

KA = dict(x=0, k=8, v=16, wq=24, wo=32, bx=40, wr=48, wg=56, wu=64, wd=72, c=80, wmod=88, out=96, dbg=104, ws=112)

import os
O_STRIDE = int(os.environ.get('O_STRIDE', 131072))
W_STRIDE = int(os.environ.get('W_STRIDE', 1048576))
```

```python
from asmdsl import Prog, Inst
from lay2 import *
from k2 import RA, R, Sched
from small import silu, rb1, rb2, unpack, ror_add, xor16_add, xor32_add, f2u, ln_scalars, ln_apply
import math

SPIN_MAX = 1 << 18
LOG2E = 1.4426950408889634
PTR = dict(x=32, k=34, v=36, wq=38, wo=40, bx=42, wr=44, wg=46, wu=48, wd=50, c=52, wmod=54, out=56, dbg=58, ws=60)
OOB = 0x7ffffff0
RING0 = 0; RING1 = 65536; NSL = 6
S_WS, S_A, S_B, S_C, S_D, S_E = 8, 4, 64, 68, 72, 76

def sr(b): return 's[%d:%d]' % (b, b + 3)

def gen_mega(name, stop=None, D1=4, D2=4, D3=4, PO=5, NH=3, prioB=False, gu_at=(1, 7), nwq0=3, MC_AT=(4, 90, 178), MP_AT=(24, 60, 110), WD_AT=6, OF_AT=(200, 255, 1020, 1070), mc_comp=True, NWQ=4, p1st=None, dmaA=False, osc=' sc1', hsc=' sc1', kvsc=' sc1', wlin=False, p3st=None, do_gu=True, do_mc=True, do_wd=True, wopf=None, mf_at=(16, 20, 21, 23), qkst=None, pvst=None, slp=None, slp_loop=0, dma_split=False):
    slp = slp or {}
    def backoff(q, k):
        n = slp.get(k, 0)
        while n > 0:
            q('s_sleep %d' % min(n, 127)); n -= 127

    p = Prog()
    rare = []
    V = RA('v', 0, 256)
    v_tid = V.alloc(1); v_lane = V.alloc(1); v_l16 = V.alloc(1)
    v_wqoff = V.alloc(1); v_tr = V.alloc(1); v_tr2 = V.alloc(1); v_wq2 = V.alloc(1); v_hoff = V.alloc(1); v_kvoff = V.alloc(1)
    v_l = [V.alloc(1), V.alloc(1)]; v_xv = V.alloc(1)
    x4 = V.alloc(4, 4)
    v_t = [V.alloc(1) for _ in range(6)]
    PR = V.alloc(128, 4); QF = V.alloc(32, 4); SS = V.alloc(32, 4); negm = V.alloc(8, 4)
    NRA = 6
    FR = V.alloc(4 * NRA, 4); SP = V.alloc(8, 4)
    assert V.n <= 256
    def sub(reg, off): return (reg[0], reg[1] + off)
    fr = [sub(FR, 4 * i) for i in range(NRA)]
    qf = [sub(QF, 4 * i) for i in range(8)]
    S = [sub(SS, 0), sub(SS, 16)]
    tid, lane, l16 = R(v_tid), R(v_lane), R(v_l16)
    t = [R(x) for x in v_t]

    def mk_srd(q, base, ptr, size):
        q('s_mov_b64 s[%d:%d], s[%d:%d]' % (base, base + 1, PTR[ptr], PTR[ptr] + 1))
        q('s_mov_b32 s%d, 0x%x' % (base + 2, size)); q('s_mov_b32 s%d, 0x20000' % (base + 3))
    cnt = [0]
    def poll(q, tag, loads, test):
        cnt[0] += 1
        lab = '%s_%s%d' % (name, tag, cnt[0])
        q('s_mov_b32 s27, 0')
        q.loop_begin(); q.label(lab + 'p')
        loads(); test()
        if slp_loop: q('s_cbranch_vccz %sg' % lab); q('s_sleep %d' % slp_loop)
        q('s_add_u32 s27, s27, 1')
        q('s_cmp_ge_u32 s27, %d' % SPIN_MAX)
        q('s_cbranch_scc1 %sg' % lab)
        q('s_cbranch_vccnz %sp' % lab)
        q.loop_end()
        q.label(lab + 'g')
    def rare_poll(q, tag, test, loads, flush=True):
        cnt[0] += 1
        lab = '%s_%s%d' % (name, tag, cnt[0])
        test(q)
        q('s_cbranch_vccnz %sr' % lab)
        q.label(lab + 'b')
        z = Prog()
        z.label(lab + 'r')
        if flush: z.flush()
        z('s_mov_b32 s27, 0')
        z.loop_begin(); z.label(lab + 'p')
        loads(z); test(z)
        z('s_add_u32 s27, s27, 1')
        z('s_cmp_ge_u32 s27, %d' % SPIN_MAX)
        z('s_cbranch_scc1 %sg' % lab)
        z('s_cbranch_vccnz %sp' % lab)
        z.loop_end()
        z.label(lab + 'g'); z.flush()
        z('s_branch %sb' % lab)
        rare.append(z)

    p('s_cmp_ge_u32 s2, 256')
    p('s_cbranch_scc1 %s_end' % name)
    p('s_load_dwordx4 s[56:59], s[0:1], 96')
    p('s_load_dwordx2 s[60:61], s[0:1], 112')
    p('s_load_dwordx8 s[48:55], s[0:1], 64')
    p('s_load_dwordx16 s[32:47], s[0:1], 0')
    p('s_memrealtime s[62:63]')
    p('v_lshrrev_b32 %s, 6, %s' % (t[0], tid))
    p('v_and_b32 %s, 63, %s' % (lane, tid))
    p('v_readfirstlane_b32 s3, %s' % t[0])
    p('v_lshlrev_b32 %s, 4, %s' % (l16, lane))
    p('s_and_b32 s12, s2, 3'); p('s_lshl_b32 s12, s12, 3'); p('s_bfe_u32 s13, s2, 0x30003'); p('s_add_u32 s12, s12, s13')
    p('s_bfe_u32 s13, s2, 0x10002'); p('s_lshl_b32 s13, s13, 2'); p('s_lshr_b32 s14, s2, 6'); p('s_add_u32 s13, s13, s14')
    p('v_bfe_u32 %s, %s, 2, 2' % (t[0], lane))
    p('v_lshrrev_b32 %s, 4, %s' % (t[1], lane))
    p('v_and_b32 %s, 3, %s' % (t[2], lane))
    p('v_lshlrev_b32 %s, 6, %s' % (t[3], t[1]))
    p('v_lshl_add_u32 %s, %s, 4, %s' % (t[3], t[2], t[3]))
    p('v_lshl_add_u32 %s, %s, 13, %s' % (R(v_wqoff), t[0], t[3]))
    p('s_and_b32 s14, s3, 1'); p('s_lshl_b32 s14, s14, 5')
    p('v_xor_b32 %s, s14, %s' % (R(v_wqoff), R(v_wqoff)))
    p('v_lshlrev_b32 %s, 11, %s' % (R(v_tr), t[1]))
    p('v_lshl_add_u32 %s, %s, 6, %s' % (R(v_tr), t[0], R(v_tr)))
    p('v_lshl_add_u32 %s, %s, 3, %s' % (R(v_tr), t[2], R(v_tr)))
    p('v_and_b32 %s, 1, %s' % (t[4], t[1])); p('v_lshlrev_b32 %s, 5, %s' % (t[4], t[4]))
    p('v_sub_u32 %s, %s, %s' % (R(v_tr2), R(v_tr), t[4]))
    p('v_add_u32 %s, %s, %s' % (R(v_tr), R(v_tr), t[4]))
    p('s_lshl_b32 s14, s13, 3'); p('s_add_u32 s14, s14, s3'); p('s_lshl_b32 s14, s14, 16')
    p('v_add_u32 %s, s14, %s' % (R(v_hoff), l16))
    p('s_cmp_ge_u32 s3, 4')
    p('s_cbranch_scc1 %s_roleB' % name)

    def wq_slot(s):
        k = s % NWQ
        return RING0 + k * 16384 if k < 4 else RING1 + k * 16384
    def dma_wq(s):
        out = []
        for i in range(2):
            out.append(('s_add_u32 s22, s19, 0x%x' % (s * 64 * 8192 + i * 32768), None))
            out.append(('s_add_u32 m0, s20, 0x%x' % (wq_slot(s) + i * 1024), None))
            out.append(('buffer_load_dwordx4 %s, %s, s22 offen lds' % (R(v_wqoff), sr(S_A)), 'wq%d' % s))
        return out
    def slot(c): return RING1 + (c % NSL) * 16384
    def dma_chunk(c):
        out = []
        for i in range(2):
            if c < 16:
                off = (c * 16384 if c < 8 else (WS_VF - WS_KF) + (c - 8) * 16384) + i * 1024
                out.append(('s_add_u32 s22, s21, 0x%x' % off, None))
                out.append(('s_add_u32 m0, s20, 0x%x' % (slot(c) + i * 1024), None))
                out.append(('buffer_load_dwordx4 %s, %s, s22 offen%s lds' % (l16, sr(S_WS), kvsc), 'ch%d' % c))
            else:
                out.append(('s_add_u32 s22, s24, 0x%x' % ((((c - 16) % 8) * 256 + ((c - 16) // 8) * 32) * 2048 + i * 8192), None))
                out.append(('s_add_u32 m0, s20, 0x%x' % (slot(c) + i * 1024), None))
                out.append(('buffer_load_dwordx4 %s, %s, s22 offen lds' % (R(v_wqoff), sr(S_A)), 'ch%d' % c))
        return out

    MSCR = 63 * 1024
    def modcols(sc):
        w = [sub(QF, 4 * i) for i in range(8)]; acc = SP; cpk = x4
        va, vb = R(v_hoff), R(v_kvoff)
        def issue(q):
            mk_srd(q, S_D, 'wmod', 1024 * 6144 * 2); mk_srd(q, S_E, 'c', 2048)
            q('v_lshrrev_b32 %s, 3, %s' % (t[0], lane)); q('v_lshlrev_b32 %s, 3, %s' % (t[0], t[0]))
            q('s_lshl_b32 s17, s3, 6'); q('v_add_u32 %s, s17, %s' % (t[0], t[0]))
            q('s_lshr_b32 s15, s2, 6'); q('s_and_b32 s14, s2, 63')
            q('v_lshlrev_b32 %s, 1, %s' % (vb, t[0])); q('s_lshl_b32 s17, s15, 9')
            q('buffer_load_dwordx4 %s, %s, %s, s17 offen' % (R(cpk, 0, 4), vb, sr(S_E)))
            q('s_mov_b32 s17, 12288'); q('v_mul_lo_u32 %s, s17, %s' % (va, t[0]))
            q('v_and_b32 %s, 7, %s' % (t[0], lane)); q('v_lshl_add_u32 %s, %s, 4, %s' % (va, t[0], va))
            q('s_mul_i32 s17, s15, %d' % (256 * 12288)); q('s_lshl_b32 s16, s14, 7'); q('s_add_u32 s17, s17, s16'); q('s_add_u32 s17, s17, 4096')
            for i in range(8):
                q('s_add_u32 s22, s17, %d' % (i * 12288))
                q('buffer_load_dwordx4 %s, %s, %s, s22 offen' % (R(w[i], 0, 4), va, sr(S_D)))
        if do_mc: sc.place(MC_AT[0], issue)
        ops = []
        o = ops.append
        for i in range(8):
            c_, lo_ = t[(i % 2) * 2], t[(i % 2) * 2 + 1]
            if i % 2 == 0: o('v_lshlrev_b32 %s, 16, %s' % (c_, R(cpk, i // 2)))
            else: o('v_and_b32 %s, 0xffff0000, %s' % (c_, R(cpk, i // 2)))
            silu(o, c_, lo_); rb1(o, c_)
            o('v_lshrrev_b32 %s, 16, %s' % (lo_, c_))
            for d in range(4):
                for h, xx in ((1, c_), (0, lo_)):
                    if i == 0: o('v_dot2_f32_bf16 %s, %s, %s, 0' % (R(acc, 2 * d + h), R(w[i], d), xx))
                    else: o('v_dot2c_f32_bf16 %s, %s, %s' % (R(acc, 2 * d + h), R(w[i], d), xx))
        for e in range(4): o('v_permlane32_swap_b32 %s, %s' % (R(acc, e), R(acc, 4 + e)))
        for e in range(4): o('v_add_f32 %s, %s, %s' % (R(acc, e), R(acc, e), R(acc, 4 + e)))
        for e in range(2): o('v_permlane16_swap_b32 %s, %s' % (R(acc, e), R(acc, 2 + e)))
        for e in range(2): o('v_add_f32 %s, %s, %s' % (R(acc, e), R(acc, e), R(acc, 2 + e)))
        for e in range(2): ror_add(o, R(acc, e), 8)
        o('v_and_b32 %s, 7, %s' % (t[0], lane)); o('v_lshlrev_b32 %s, 5, %s' % (t[0], t[0]))
        o('v_lshrrev_b32 %s, 4, %s' % (t[1], lane)); o('v_lshl_add_u32 %s, %s, 3, %s' % (t[0], t[1], t[0]))
        o('s_lshl_b32 s16, s3, 8'); o('s_add_u32 s16, s16, %d' % MSCR)
        o('v_add_u32 %s, s16, %s' % (t[0], t[0]))
        o('ds_write_b64 %s, %s' % (t[0], R(acc, 0, 2)))
        lo, hi = MC_AT[1], MC_AT[2]
        for i, x in enumerate(ops): sc.place(lo + (i * (hi - lo)) // len(ops), x)
        sc.place(hi + 1, 's_waitcnt lgkmcnt(0)')
        at = mc_fin_at()
        def fin(q):
            q('v_lshlrev_b32 %s, 2, %s' % (t[0], lane)); q('v_add_u32 %s, %d, %s' % (t[1], MSCR, t[0]))
            for i in range(4): q('ds_read_b32 %s, %s offset:%d' % (R(acc, i), t[1], i * 256))
        sc.place(at, fin)
        def fin2(q):
            q('v_add_f32 %s, %s, %s' % (R(acc, 0), R(acc, 0), R(acc, 1))); q('v_add_f32 %s, %s, %s' % (R(acc, 2), R(acc, 2), R(acc, 3)))
            q('v_add_f32 %s, %s, %s' % (R(acc, 0), R(acc, 0), R(acc, 2)))
            q('s_lshl_b32 s16, s15, 14'); q('s_lshl_b32 s17, s14, 8'); q('s_add_u32 s16, s16, s17'); q('s_add_u32 s16, s16, 0x%x' % WS_MODP)
            q('s_cmp_eq_u32 s3, 0'); q('s_cselect_b32 s16, s16, 0x%x' % OOB)
            q('buffer_store_dword %s, %s, %s, s16 offen sc1' % (R(acc, 0), t[0], sr(S_WS)), 'mst')
        sc.place(at + 4, fin2)
    def mc_fin_at():
        kb = (MC_AT[2] + 2 + 2 * D2) // 32 + 1
        return 32 * kb - 2 * D2 + 4
    def mc_pub(q):
        q.wait_tag('mst')
        q('v_mov_b32 %s, s28' % R(SP, 3)); q('v_mov_b32 %s, 0' % R(SP, 4))
        q('s_lshl_b32 s16, s2, 2'); q('s_add_u32 s16, s16, 0x%x' % WS_MPFLAG)
        q('s_cmp_eq_u32 s3, 0'); q('s_cselect_b32 s16, s16, 0x%x' % OOB)
        q('s_mov_b64 exec, 1')
        q('buffer_store_dword %s, %s, %s, s16 offen sc1' % (R(SP, 3), R(SP, 4), sr(S_WS)))
        q('s_mov_b64 exec, -1')
    def mc_final(sc):
        mpf = R(SP, 0); mpv = R(SP, 1); va, vb = R(SP, 2), R(SP, 5)
        sc.place(MP_AT[0], mc_pub)
        def mp_load(q):
            q('buffer_load_dword %s, %s, %s, s14 offen sc1' % (mpf, va, sr(S_WS)))
        def mp_issue(q):
            q('v_and_b32 %s, 3, %s' % (va, lane)); q('v_lshlrev_b32 %s, 8, %s' % (va, va))
            q('s_lshr_b32 s14, s2, 2'); q('s_lshl_b32 s14, s14, 2'); q('s_add_u32 s14, s14, 0x%x' % WS_MPFLAG)
            mp_load(q)
        sc.place(MP_AT[1], mp_issue)
        sc.place(MP_AT[2], lambda q: rare_poll(q, 'mp', lambda z: z('v_cmp_ne_u32 vcc, s28, %s' % mpf), mp_load))
        def mp_get(q):
            q('v_lshrrev_b32 %s, 4, %s' % (va, lane)); q('v_lshlrev_b32 %s, 14, %s' % (va, va))
            q('v_and_b32 %s, 15, %s' % (vb, lane)); q('v_lshl_add_u32 %s, %s, 2, %s' % (va, vb, va))
            q('s_lshl_b32 s14, s2, 6'); q('s_add_u32 s14, s14, 0x%x' % WS_MODP)
            q('buffer_load_dword %s, %s, %s, s14 offen sc1' % (mpv, va, sr(S_WS)))
        sc.place(MP_AT[2] + 1, mp_get)
        def mp_fin(q):
            xor16_add(q, mpv, va); xor32_add(q, mpv, va)
            rb1(q, mpv)
            q('s_lshr_b32 s14, s2, 6'); q('s_cmp_eq_u32 s14, 2'); q('s_cselect_b32 s14, 1.0, 0')
            q('v_add_f32 %s, s14, %s' % (mpv, mpv))
            q('v_cvt_pk_bf16_f32 %s, %s, %s' % (mpv, mpv, mpv))
            q('v_lshlrev_b32 %s, 1, %s' % (vb, vb))
            q('s_lshl_b32 s14, s2, 5'); q('s_add_u32 s14, s14, 0x%x' % WS_MODB)
            q('s_cmp_eq_u32 s3, 0'); q('s_cselect_b32 s14, s14, 0x%x' % OOB)
            q('s_mov_b64 exec, 0xffff')
            q('buffer_store_short %s, %s, %s, s14 offen sc1' % (mpv, vb, sr(S_WS)), 'mb')
            q('s_mov_b64 exec, -1')
        sc.place(MP_AT[2] + 24, mp_fin)
        def mp_flag(q):
            q.wait_tag('mb')
            q('v_mov_b32 %s, s28' % mpf); q('v_mov_b32 %s, 0' % mpv)
            q('s_lshl_b32 s14, s2, 2'); q('s_add_u32 s14, s14, 0x%x' % WS_MFLAG)
            q('s_cmp_eq_u32 s3, 0'); q('s_cselect_b32 s14, s14, 0x%x' % OOB)
            q('s_mov_b64 exec, 1')
            q('buffer_store_dword %s, %s, %s, s14 offen sc1' % (mpf, mpv, sr(S_WS)))
            q('s_mov_b64 exec, -1')
        sc.place(MP_AT[2] + 64, mp_flag)

    def front(role):
        A_ = role == 'A'
        F = RA('v', PR[1], 256)
        w0 = F.alloc(4, 4); w1 = F.alloc(4, 4); xr = [F.alloc(4, 4), F.alloc(4, 4)]; xt = [F.alloc(4, 4), F.alloc(4, 4)]
        acc = F.alloc(8, 4); X = F.alloc(16, 4); cc = F.alloc(4, 4); g4 = F.alloc(4, 4); s4 = F.alloc(4, 4); kv = F.alloc(12, 4)
        rd = [F.alloc(4, 4) for _ in range(8)]; st = F.alloc(4, 4)
        vz = F.alloc(2, 2); vn = F.alloc(1); va = F.alloc(1); vb = F.alloc(1); vc = F.alloc(1); ve = F.alloc(1); vg = F.alloc(1); vs = F.alloc(1)
        FS = RING1; MT = RING1 + 4096
        p('v_mov_b32 %s, 0' % R(vz, 0)); p('v_mov_b32 %s, 0' % R(vz, 1))
        p('v_lshrrev_b32 %s, 3, %s' % (t[0], tid)); p('v_and_b32 %s, 7, %s' % (t[1], tid))
        p('v_mul_u32_u24 %s, %d, %s' % (R(va), 2 * 12288, t[0])); p('v_lshl_add_u32 %s, %s, 4, %s' % (R(va), t[1], R(va)))
        p('v_lshlrev_b32 %s, 2, %s' % (R(vb), t[0]))
        p('s_and_b32 s14, s2, 31'); p('s_lshr_b32 s15, s2, 5')
        p('s_mul_i32 s26, s15, %d' % (128 * 12288)); p('s_lshl_b32 s16, s14, 7'); p('s_add_u32 s26, s26, s16')
        p('s_lshl_b32 s29, s15, 8')
        p('v_lshlrev_b32 %s, 3, %s' % (R(vc), tid))
        p('s_lshl_b32 s18, s2, 3'); p('s_add_u32 s18, s18, s3'); p('s_lshl_b32 s18, s18, 11')
        p('v_and_b32 %s, 15, %s' % (t[2], lane)); p('v_lshrrev_b32 %s, 4, %s' % (t[3], lane))
        p('v_lshlrev_b32 %s, 11, %s' % (R(ve), t[2])); p('v_lshl_add_u32 %s, %s, 4, %s' % (R(ve), t[3], R(ve)))
        p('s_lshr_b32 s30, s2, 4'); p('s_and_b32 s31, s2, 15')
        p('s_lshl_b32 s19, s30, 3'); p('s_add_u32 s19, s19, s3')
        p('s_lshl_b32 s22, s19, 15'); p('s_lshl_b32 s23, s31, 7'); p('s_add_u32 s22, s22, s23')
        p('s_lshl_b32 s23, s2, 12'); p('s_add_u32 s23, s23, 0x%x' % WS_Z)
        p('s_or_b32 s25, s2, s3')
        p('s_cmp_eq_u32 s25, 0'); p('s_cselect_b32 s25, 0, 0x%x' % OOB)
        p('s_waitcnt lgkmcnt(0)')
        p.stamp(0)
        mk_srd(p, S_B, 'dbg', 256)
        p('s_or_b32 s28, s62, 1')
        p('v_mov_b32 %s, s28' % R(vn))
        p('s_mov_b64 exec, 1')
        p('buffer_store_dword %s, %s, %s, s25 offen sc1' % (R(vn), R(vz, 0), sr(S_B)))
        p('s_mov_b64 exec, -1')
        mk_srd(p, S_C, 'c', 2048); mk_srd(p, S_D, 'wmod', 1024 * 6144 * 2); mk_srd(p, S_E, 'x', 4194304); mk_srd(p, S_WS, 'ws', WS_SIZE)
        p('buffer_load_dword %s, %s, %s, s29 offen' % (R(cc, 0), R(vb), sr(S_C)))
        p('buffer_load_dwordx4 %s, %s, %s, s26 offen' % (R(w0, 0, 4), R(va), sr(S_D)))
        p('s_add_u32 s26, s26, 12288')
        p('buffer_load_dwordx4 %s, %s, %s, s26 offen' % (R(w1, 0, 4), R(va), sr(S_D)))
        for i in range(2):
            p('buffer_load_dwordx4 %s, %s, %s, s18 offen offset:%d' % (R(xr[i], 0, 4), l16, sr(S_E), i * 1024))
        if A_:
            p('s_cmp_eq_u32 s3, 0'); p('s_cselect_b32 s25, 0, 0x%x' % OOB)
            p('buffer_load_dword %s, %s, %s, s25 offen sc1' % (R(vn), R(vz, 0), sr(S_B)), 'n1')
        p('buffer_store_dwordx2 %s, %s, %s, s23 offen sc1' % (R(vz, 0, 2), R(vc), sr(S_WS)))
        p('s_barrier')
        for i in range(2):
            p('buffer_load_dwordx4 %s, %s, %s, s22 offen offset:%d' % (R(xt[i], 0, 4), R(ve), sr(S_E), i * 64))
        p('s_mov_b32 s29, s19')
        if not A_:
            mk_srd(p, S_B, 'k', 2097152); mk_srd(p, S_C, 'v', 2097152)
            p('s_lshl_b32 s20, s2, 2'); p('s_add_u32 s20, s20, s3'); p('s_sub_u32 s20, s20, 4')
            p('s_lshr_b32 s22, s20, 8'); p('s_bfe_u32 s23, s20, 0x40004'); p('s_and_b32 s24, s20, 15')
            p('s_lshl_b32 s25, s22, 19'); p('s_lshl_b32 s26, s23, 13'); p('s_add_u32 s25, s25, s26'); p('s_add_u32 s25, s25, %d' % (1536 * 256))
            p('v_and_b32 %s, 15, %s' % (t[0], lane)); p('v_lshrrev_b32 %s, 4, %s' % (t[1], lane))
            p('s_lshl_b32 s21, s22, 17')
            p('s_cmp_ge_u32 s24, 8')
            p('s_cbranch_scc1 %s_kvV' % name)
            p.alt_begin()
            p('v_lshlrev_b32 %s, 8, %s' % (t[2], t[0])); p('v_lshl_add_u32 %s, %s, 3, %s' % (t[2], t[1], t[2]))
            p('s_and_b32 s26, s24, 1'); p('s_lshl_b32 s26, s26, 12'); p('s_add_u32 s25, s25, s26')
            p('s_lshr_b32 s26, s24, 1'); p('s_lshl_b32 s26, s26, 6'); p('s_add_u32 s25, s25, s26')
            p('buffer_load_dwordx2 %s, %s, %s, s25 offen' % (R(kv, 0, 2), t[2], sr(S_B)))
            p('buffer_load_dwordx2 %s, %s, %s, s25 offen offset:32' % (R(kv, 2, 2), t[2], sr(S_B)))
            p('s_lshl_b32 s26, s23, 13'); p('s_add_u32 s21, s21, s26'); p('s_lshl_b32 s26, s24, 10'); p('s_add_u32 s21, s21, s26')
            p('s_add_u32 s21, s21, 0x%x' % WS_KF)
            p('s_branch %s_kvJ' % name)
            p.alt_next()
            p.label('%s_kvV' % name)
            p('s_bfe_u32 s26, s24, 0x20001'); p('s_lshl_b32 s26, s26, 6'); p('s_add_u32 s25, s25, s26')
            p('s_and_b32 s26, s24, 1'); p('s_lshl_b32 s26, s26, 3'); p('s_add_u32 s25, s25, s26')
            p('s_add_u32 s26, s25, 4096')
            p('v_lshrrev_b32 %s, 2, %s' % (t[2], t[0])); p('v_lshlrev_b32 %s, 4, %s' % (t[2], t[2]))
            p('v_and_b32 %s, 3, %s' % (t[3], t[0])); p('v_lshl_add_u32 %s, %s, 1, %s' % (t[2], t[3], t[2]))
            p('v_lshl_add_u32 %s, %s, 10, %s' % (t[2], t[1], t[2]))
            for e in range(8):
                p('buffer_load_ushort %s, %s, %s, %s offen offset:%d' % (R(kv, 4 + e), t[2], sr(S_C), 's26' if e >= 4 else 's25', (e % 4) * 256))
            p('s_bfe_u32 s26, s24, 0x20001'); p('s_lshl_b32 s26, s26, 15'); p('s_add_u32 s21, s21, s26')
            p('s_lshl_b32 s26, s23, 11'); p('s_add_u32 s21, s21, s26')
            p('s_and_b32 s26, s24, 1'); p('s_lshl_b32 s26, s26, 10'); p('s_add_u32 s21, s21, s26')
            p('s_add_u32 s21, s21, 0x%x' % WS_VF)
            p.alt_end()
            p.label('%s_kvJ' % name)
        cs0, cs1, lo0, lo1 = R(cc, 0), R(cc, 1), R(cc, 2), R(cc, 3)
        unpack(p, cs0, cs1, cs0)
        silu(p, cs0, t[0]); silu(p, cs1, t[1])
        rb2(p, cs0, cs1, t[0])
        p('v_lshrrev_b32 %s, 16, %s' % (lo0, cs0)); p('v_lshrrev_b32 %s, 16, %s' % (lo1, cs1))
        for d in range(4):
            p('v_dot2_f32_bf16 %s, %s, %s, 0' % (R(acc, 2 * d + 1), R(w0, d), cs0))
            p('v_dot2_f32_bf16 %s, %s, %s, 0' % (R(acc, 2 * d), R(w0, d), lo0))
        for d in range(4):
            p('v_dot2c_f32_bf16 %s, %s, %s' % (R(acc, 2 * d + 1), R(w1, d), cs1))
            p('v_dot2c_f32_bf16 %s, %s, %s' % (R(acc, 2 * d), R(w1, d), lo1))
        for e in range(4): p('v_permlane32_swap_b32 %s, %s' % (R(acc, e), R(acc, 4 + e)))
        for e in range(4): p('v_add_f32 %s, %s, %s' % (R(acc, e), R(acc, e), R(acc, 4 + e)))
        for e in range(2): p('v_permlane16_swap_b32 %s, %s' % (R(acc, e), R(acc, 2 + e)))
        for e in range(2): p('v_add_f32 %s, %s, %s' % (R(acc, e), R(acc, e), R(acc, 2 + e)))
        for e in range(2): ror_add(p, R(acc, e), 8)
        p('v_and_b32 %s, 7, %s' % (t[0], lane)); p('v_lshlrev_b32 %s, 5, %s' % (t[0], t[0]))
        p('v_lshrrev_b32 %s, 4, %s' % (t[1], lane)); p('v_lshl_add_u32 %s, %s, 3, %s' % (t[0], t[1], t[0]))
        p('s_lshl_b32 s16, s3, 8'); p('s_add_u32 s16, s16, %d' % FS)
        p('v_add_u32 %s, s16, %s' % (t[0], t[0]))
        p('ds_write_b64 %s, %s' % (t[0], R(acc, 0, 2)))
        p.stamp(20)
        for i in range(2):
            for d in range(4): unpack(p, R(X, 8 * i + 2 * d), R(X, 8 * i + 2 * d + 1), R(xr[i], d))
        Xs = [R(X, i) for i in range(16)]
        mean, sd, rcp = R(st, 0), R(st, 1), R(st, 2)
        var = t[1]
        a0, a1, b0, b1 = t[4], t[5], t[2], t[3]
        p('v_add_f32 %s, %s, %s' % (a0, Xs[0], Xs[1])); p('v_add_f32 %s, %s, %s' % (a1, Xs[2], Xs[3]))
        for i in range(4, 16, 2):
            p('v_add_f32 %s, %s, %s' % (a0, a0, Xs[i])); p('v_add_f32 %s, %s, %s' % (a1, a1, Xs[i + 1]))
        p('v_add_f32 %s, %s, %s' % (mean, a0, a1))
        for n in (1, 2, 4, 8): ror_add(p, mean, n)
        xor16_add(p, mean, a0); xor32_add(p, mean, a0)
        p('v_mul_f32 %s, 0x%x, %s' % (mean, f2u(1.0 / 1024), mean))
        p('v_sub_f32 %s, %s, %s' % (b0, Xs[0], mean)); p('v_mul_f32 %s, %s, %s' % (a0, b0, b0))
        p('v_sub_f32 %s, %s, %s' % (b1, Xs[1], mean)); p('v_mul_f32 %s, %s, %s' % (a1, b1, b1))
        for i in range(2, 16, 2):
            p('v_sub_f32 %s, %s, %s' % (b0, Xs[i], mean)); p('v_sub_f32 %s, %s, %s' % (b1, Xs[i + 1], mean))
            p('v_fmac_f32 %s, %s, %s' % (a0, b0, b0)); p('v_fmac_f32 %s, %s, %s' % (a1, b1, b1))
        p('v_add_f32 %s, %s, %s' % (var, a0, a1))
        for n in (1, 2, 4, 8): ror_add(p, var, n)
        xor16_add(p, var, a0); xor32_add(p, var, a0)
        p('v_mul_f32 %s, 0x%x, %s' % (var, f2u(1.0 / 1024), var))
        ln_scalars(p, mean, var, sd, rcp)
        p('s_lshl_b32 s16, s3, 4'); p('s_add_u32 s16, s16, %d' % (FS + 2048 + 16))
        p('v_mov_b32 %s, s16' % t[3])
        p('ds_write_b128 %s, %s' % (t[3], R(st, 0, 4)))
        p.stamp(3)
        if A_:
            def ntest(q):
                q('v_cmp_eq_u32 vcc, 0, %s' % R(vn))
                q('s_cmp_eq_u32 s3, 0'); q('s_cselect_b64 s[62:63], -1, 0'); q('s_and_b64 vcc, vcc, s[62:63]')
            rare_poll(p, 'n', ntest, lambda q: q('buffer_load_dword %s, %s, %s, 0 offen sc1' % (R(vn), R(vz, 0), sr(S_B))), flush=False)
            p('v_mov_b32 %s, %d' % (t[3], FS + 2048))
            p('s_cmp_eq_u32 s3, 0'); p('s_cselect_b64 exec, 1, 0')
            p('ds_write_b32 %s, %s' % (t[3], R(vn)))
            p('s_mov_b64 exec, -1')
        p.stamp(1)
        p('v_mov_b32 %s, %d' % (t[3], FS + 2048))
        p('v_and_b32 %s, 31, %s' % (t[1], lane)); p('v_lshlrev_b32 %s, 3, %s' % (t[2], t[1])); p('v_add_u32 %s, %d, %s' % (t[2], FS, t[2]))
        p('v_lshlrev_b32 %s, 4, %s' % (t[1], t[1]))
        p('s_waitcnt lgkmcnt(0)')
        p('s_barrier')
        p('ds_read_b32 %s, %s' % (R(vn), t[3]))
        for i in range(8): p('ds_read_b64 %s, %s offset:%d' % (R(rd[i], 0, 2), t[2], i * 256))
        p('v_readfirstlane_b32 s28, %s' % R(vn))
        p('v_and_b32 %s, 7, %s' % (t[4], lane)); p('v_lshlrev_b32 %s, 4, %s' % (t[4], t[4]))
        p('v_add_u32 %s, %d, %s' % (t[5], FS + 2048 + 16, t[4]))
        p('ds_read_b128 %s, %s' % (R(st, 0, 4), t[5]))
        p('v_mov_b32 %s, s28' % R(st, 3))
        p('s_lshl_b32 s16, s2, 7'); p('s_add_u32 s16, s16, 0x%x' % WS_STG)
        p('s_cmp_eq_u32 s3, 0'); p('s_cselect_b32 s16, s16, 0x%x' % OOB)
        p('s_mov_b64 exec, 0xff')
        p('buffer_store_dwordx4 %s, %s, %s, s16 offen sc1' % (R(st, 0, 4), t[4], sr(S_WS)))
        p('s_mov_b64 exec, -1')
        for s_ in (4, 2, 1):
            for i in range(s_): p('v_pk_add_f32 %s, %s, %s' % (R(rd[i], 0, 2), R(rd[i], 0, 2), R(rd[s_ + i], 0, 2)))
        p('v_mov_b32 %s, s28' % R(rd[0], 2)); p('v_mov_b32 %s, s28' % R(rd[0], 3))
        p('s_lshl_b32 s16, s14, 3'); p('s_add_u32 s16, s16, s15'); p('s_lshl_b32 s16, s16, 9'); p('s_add_u32 s16, s16, 0x%x' % WS_MODG)
        p('s_cmp_eq_u32 s3, 0'); p('s_cselect_b32 s16, s16, 0x%x' % OOB)
        p('s_mov_b64 exec, 0xffffffff')
        p('buffer_store_dwordx4 %s, %s, %s, s16 offen sc1' % (R(rd[0], 0, 4), t[1], sr(S_WS)))
        p('s_mov_b64 exec, -1')
        p.stamp(2)
        if not A_:
            p('s_cmp_lt_u32 s24, 8')
            p('s_cbranch_scc1 %s_kvS' % name)
            p.alt_begin()
            for d in range(4):
                p('v_lshl_or_b32 %s, %s, 16, %s' % (R(kv, d), R(kv, 4 + 2 * d + 1), R(kv, 4 + 2 * d)))
            p.alt_next()
            p.alt_end()
            p.label('%s_kvS' % name)
            p('buffer_store_dwordx4 %s, %s, %s, s21 offen sc1' % (R(kv, 0, 4), l16, sr(S_WS)))
        p('s_lshr_b32 s16, s3, 2'); p('s_lshl_b32 s16, s16, 4'); p('s_add_u32 s16, s16, s31'); p('s_lshl_b32 s16, s16, 12')
        p('s_and_b32 s17, s3, 3'); p('s_lshl_b32 s17, s17, 7'); p('s_add_u32 s16, s16, s17'); p('s_add_u32 s16, s16, 0x%x' % WS_MODG)
        p('v_lshrrev_b32 %s, 3, %s' % (R(vg), lane)); p('v_lshlrev_b32 %s, 9, %s' % (R(vg), R(vg)))
        p('v_and_b32 %s, 7, %s' % (t[0], lane)); p('v_lshl_add_u32 %s, %s, 4, %s' % (R(vg), t[0], R(vg)))
        p('v_and_b32 %s, 15, %s' % (R(vs), lane)); p('v_lshlrev_b32 %s, 4, %s' % (R(vs), R(vs)))
        p('s_lshl_b32 s17, s29, 8'); p('s_add_u32 s17, s17, 0x%x' % WS_STG)
        for i in range(2):
            for d in range(4): unpack(p, R(X, 8 * i + 2 * d), R(X, 8 * i + 2 * d + 1), R(xt[i], d))
        def gl():
            p('buffer_load_dwordx4 %s, %s, %s, s16 offen sc1' % (R(g4, 0, 4), R(vg), sr(S_WS)))
            p('buffer_load_dwordx4 %s, %s, %s, s17 offen sc1' % (R(s4, 0, 4), R(vs), sr(S_WS)))
        def gt():
            p('v_cmp_ne_u32 vcc, s28, %s' % R(g4, 2))
            p('v_cmp_ne_u32 s[62:63], s28, %s' % R(g4, 3))
            p('s_or_b64 vcc, vcc, s[62:63]')
            p('v_cmp_ne_u32 s[62:63], s28, %s' % R(s4, 3))
            p('s_or_b64 vcc, vcc, s[62:63]')
        backoff(p, 'g')
        poll(p, 'g', gl, gt)
        p.stamp(4)
        m0_, m1_ = R(g4, 0), R(g4, 1)
        ror_add(p, m0_, 8); ror_add(p, m1_, 8)
        xor16_add(p, m0_, t[1]); xor16_add(p, m1_, t[2]); xor32_add(p, m0_, t[1]); xor32_add(p, m1_, t[2])
        rb2(p, m0_, m1_, t[1])
        p('v_add_f32 %s, %s, %s' % (m0_, '0' if A_ else '1.0', m0_)); p('v_add_f32 %s, %s, %s' % (m1_, '0' if A_ else '1.0', m1_))
        if not A_: rb2(p, m0_, m1_, t[1])
        p('s_lshl_b32 s16, s3, 6'); p('s_add_u32 s16, s16, %d' % MT)
        p('v_lshl_add_u32 %s, %s, 3, s16' % (t[0], t[0]))
        p('ds_write_b64 %s, %s' % (t[0], R(g4, 0, 2)))
        p('v_lshrrev_b32 %s, 4, %s' % (t[1], lane)); p('v_lshlrev_b32 %s, 5, %s' % (t[1], t[1])); p('v_add_u32 %s, %d, %s' % (t[1], MT, t[1]))
        mean, sd, rcp = R(s4, 0), R(s4, 1), R(s4, 2)
        for i in range(16): p('v_sub_f32 %s, %s, %s' % (Xs[i], Xs[i], mean))
        for i in range(0, 16, 2): rb2(p, Xs[i], Xs[i + 1], t[2 + (i // 2) % 2])
        for i in range(16): p('v_mul_f32 %s, %s, %s' % (Xs[i], Xs[i], rcp))
        for i in range(0, 16, 2): rb2(p, Xs[i], Xs[i + 1], t[2 + (i // 2) % 2])
        p('s_lshl_b32 s16, s29, 15'); p('s_lshl_b32 s17, s31, 11'); p('s_add_u32 s16, s16, s17')
        if WS_H: p('s_add_u32 s16, s16, 0x%x' % WS_H)
        p('s_waitcnt lgkmcnt(0)')
        p('s_barrier')
        for hh in range(2):
            for k in range(2):
                p('ds_read_b128 %s, %s offset:%d' % (R(rd[4 * hh + k], 0, 4), t[1], 256 + hh * 128 + k * 16))
                p('ds_read_b128 %s, %s offset:%d' % (R(rd[4 * hh + 2 + k], 0, 4), t[1], hh * 128 + k * 16))
        for hh in range(2):
            for k in range(2):
                for e in range(0, 4, 2):
                    p('v_pk_mul_f32 %s, %s, %s' % (R(X, 8 * hh + 4 * k + e, 2), R(X, 8 * hh + 4 * k + e, 2), R(rd[4 * hh + k], e, 2)))
            for e in range(0, 8, 2): rb2(p, Xs[8 * hh + e], Xs[8 * hh + e + 1], t[2 + (e // 2) % 2])
            for k in range(2):
                for e in range(0, 4, 2):
                    p('v_pk_add_f32 %s, %s, %s' % (R(X, 8 * hh + 4 * k + e, 2), R(X, 8 * hh + 4 * k + e, 2), R(rd[4 * hh + 2 + k], e, 2)))
            o = xr[hh]
            for d in range(4): p('v_cvt_pk_bf16_f32 %s, %s, %s' % (R(o, d), Xs[8 * hh + 2 * d], Xs[8 * hh + 2 * d + 1]))
            p('buffer_store_dwordx4 %s, %s, %s, s16 offen offset:%d sc1' % (R(o, 0, 4), l16, sr(S_WS), hh * 1024), 'hst')
        p('s_lshl_b32 s19, s3, 16'); p('s_lshl_b32 s20, s3, 11'); p('s_lshl_b32 s16, s12, 8')
        p('s_add_u32 s4, s%d, s16' % PTR['wq']); p('s_addc_u32 s5, s%d, 0' % (PTR['wq'] + 1))
        p('s_sub_u32 s6, 0x800000, s16'); p('s_mov_b32 s7, 0x20000')
        for s_ in range(NWQ - 1):
            for it, tag in dma_wq(s_): p(it, tag)
        p('v_mov_b32 %s, s28' % R(vn))
        p('s_lshl_b32 s16, s29, 4'); p('s_add_u32 s16, s16, s31'); p('s_lshl_b32 s16, s16, 2'); p('s_add_u32 s16, s16, 0x%x' % WS_HFLAG)
        p('v_and_b32 %s, 31, %s' % (t[0], lane)); p('v_lshlrev_b32 %s, 2, %s' % (t[0], t[0]))
        p('s_lshl_b32 s17, s13, 3'); p('s_add_u32 s17, s17, s3'); p('s_lshl_b32 s17, s17, 7'); p('s_add_u32 s17, s17, 0x%x' % WS_HFLAG)
        p.wait_tag('hst')
        p('s_mov_b64 exec, 1')
        p('buffer_store_dword %s, %s, %s, s16 offen sc1' % (R(vn), R(vz, 0), sr(S_WS)))
        p('s_mov_b64 exec, -1')
        p.stamp(5)
        backoff(p, 'h')
        poll(p, 'h', lambda: p('buffer_load_dword %s, %s, %s, s17 offen sc1' % (t[1], t[0], sr(S_WS))),
             lambda: p('v_cmp_ne_u32 vcc, s28, %s' % t[1]))
        p.stamp(6)

    acc1 = [sub(PR, 16 * i) for i in range(4)]
    H = [[sub(PR, 64 + 16 * b + 4 * k) for k in range(4)] for b in range(NH)]
    def hload(s, k):
        return [('s_mov_b32 s23, 0x%x' % (WS_H + s * 2048 + (k % 2) * 32768), None),
                ('buffer_load_dwordx4 %s, %s, %s, s23 offen offset:%d%s' % (R(H[s % NH][k], 0, 4), R(v_hoff), sr(S_WS), (k // 2) * 1024, hsc), None)]
    def trread(dst, base, n, va, vb):
        a = vb if n % 2 else va
        off = base + (n // 2) * 256 + (n % 2) * 32
        return ['ds_read_b64_tr_b16 %s, %s offset:%d' % (R(dst, 0, 2), a, off),
                'ds_read_b64_tr_b16 %s, %s offset:%d' % (R(dst, 2, 2), a, off + 1024)]

    def phase1(role):
        A_ = role == 'A'
        def trr(f):
            s, T, n = f // 16, (f // 8) % 2, f % 8
            a = wq_slot(s) + T * 8192
            if a < 0x10000: return trread(fr[f % NRA], a, n, R(v_tr), R(v_tr2))
            return trread(fr[f % NRA], a - 0x20000, n, R(v_xv), R(v_wq2))
        if NWQ > 4:
            p('v_add_u32 %s, 0x20000, %s' % (R(v_xv), R(v_tr))); p('v_add_u32 %s, 0x20000, %s' % (R(v_wq2), R(v_tr2)))
        for s in range(NH - 1):
            for k in range(4):
                for it, tag in hload(s, k): p(it, tag)
        p('s_lshr_b32 s21, s12, 3'); p('s_lshl_b32 s21, s21, 17'); p('s_add_u32 s21, s21, s20'); p('s_add_u32 s21, s21, 0x%x' % WS_KF)
        p.wait_tag('wq0')
        if prioB and not A_: p('s_setprio 1')
        p('s_barrier')
        for f in range(D1):
            for x in trr(f): p(x)
        sc = Sched()
        hnext = [4 * (NH - 1)]
        for f in range(256):
            s, T, n = f // 16, (f // 8) % 2, f % 8
            for qs in range(2):
                d = R(acc1[n // 2], (n % 2) * 8 + qs * 4, 4)
                idx = sc.mfma('v_mfma_f32_16x16x32_bf16 %s, %s, %s, %s' % (d, R(fr[f % NRA], 0, 4), R(H[s % NH][T * 2 + qs], 0, 4), '0' if f < 8 else d))
            g = f + D1
            if g < 256:
                if g % 16 == 0:
                    sn = g // 16
                    sc.place(idx, lambda q, sn=sn: q.wait_tag('wq%d' % sn))
                    sc.place(idx, 's_barrier')
                    nxt = dma_wq(sn + NWQ - 2) if sn + NWQ - 2 < 16 else []
                    for i in range(len(nxt) // 3):
                        for it, tag in nxt[3 * i:3 * i + 3]: sc.place(idx + (1 + 4 * i) * 2, it, tag)
                tr = trr(g)
                if g % 16 != 0:
                    sc.place(idx - 1, tr[0]); sc.place(idx, tr[1])
                else:
                    for x in tr: sc.place(idx, x)
            if f % 4 in (1, 3):
                tq = (f // 4) % 4
                lim = min(64, (s + NH - 1) * 4 + tq + 1)
                if hnext[0] < lim:
                    for it, tag in hload(hnext[0] // 4, hnext[0] % 4): sc.place(idx, it, tag)
                    hnext[0] += 1
        if True:
            fl4 = x4
            def kvf_load(q):
                q('buffer_load_dwordx4 %s, %s, %s, s18 offen sc1' % (R(fl4, 0, 4), t[5], sr(S_WS)))
            def kvf_issue(q):
                q('v_lshrrev_b32 %s, 4, %s' % (t[5], lane)); q('v_lshlrev_b32 %s, 9, %s' % (t[5], t[5]))
                q('v_and_b32 %s, 15, %s' % (t[4], lane)); q('v_lshl_add_u32 %s, %s, 4, %s' % (t[5], t[4], t[5]))
                q('s_lshr_b32 s18, s12, 3'); q('s_lshl_b32 s18, s18, 11'); q('s_add_u32 s18, s18, 0x%x' % (WS_HFLAG + 256))
                kvf_load(q)
            def kvf_test(q):
                a_, b_ = R(v_kvoff), t[4]
                q('v_xor_b32 %s, s28, %s' % (a_, R(fl4, 0))); q('v_xor_b32 %s, s28, %s' % (b_, R(fl4, 1)))
                q('v_or_b32 %s, %s, %s' % (a_, a_, b_))
                q('v_xor_b32 %s, s28, %s' % (b_, R(fl4, 2))); q('v_or_b32 %s, %s, %s' % (a_, a_, b_))
                q('v_xor_b32 %s, s28, %s' % (b_, R(fl4, 3))); q('v_or_b32 %s, %s, %s' % (a_, a_, b_))
                q('v_cmp_ne_u32 vcc, 0, %s' % a_)
            sc.place(2 * (16 * 6 + 6), kvf_issue)
            sc.place(2 * (16 * 9 + 6), lambda q: rare_poll(q, 'kv', kvf_test, kvf_load))
            for c in range(4):
                ch = dma_chunk(c)
                for i in range(2):
                    for it, tag in ch[3 * i:3 * i + 3]: sc.place(2 * (16 * (10 + c) + 8 + 2 * i), it, tag)
        if p1st:
            for i_, s_ in enumerate(p1st): sc.place(32 * s_, lambda q, i_=i_: q.stamp(60 + i_))
        sc.emit(p)
        p.stamp(7)
        p('s_mov_b32 s23, 0x%x' % f2u((128 ** -0.5) * LOG2E))
        for dt in range(4):
            for r in range(0, 16, 2):
                ta, tb = t[(r // 2 % 2) * 2], t[(r // 2 % 2) * 2 + 1]
                p('v_mul_f32 %s, s23, %s' % (ta, R(acc1[dt], r)))
                p('v_mul_f32 %s, s23, %s' % (tb, R(acc1[dt], r + 1)))
                p('v_cvt_pk_bf16_f32 %s, %s, %s' % (R(qf[((r // 4) % 2) * 4 + dt], (r // 8) * 2 + (r % 4) // 2), ta, tb))
        p.stamp(8)

    v_l16b = v_tr; v_l16c = v_tr2
    P = [[sub(PR, 8 * j + 4 * qs) for qs in range(2)] for j in range(16)]
    def lds_read(dst, addr):
        if addr >= 0x20000: return 'ds_read_b128 %s, %s offset:%d' % (R(dst, 0, 4), R(v_l16c), addr - 0x20000)
        return 'ds_read_b128 %s, %s offset:%d' % (R(dst, 0, 4), R(v_l16b), addr - 0x10000)
    def softmax_ops(j, sub_, first, s=None):
        ops = []
        s = S[j % 2] if s is None else s
        for r in range(0, 16, 2):
            a, qs = r // 8, (r // 4) % 2
            if sub_:
                ops.append('v_add_f32 %s, %s, %s' % (R(s, r), R(s, r), R(negm, 4 * qs)))
                ops.append('v_add_f32 %s, %s, %s' % (R(s, r + 1), R(s, r + 1), R(negm, 4 * qs)))
            ops.append('v_exp_f32 %s, %s' % (R(s, r), R(s, r)))
            ops.append('v_exp_f32 %s, %s' % (R(s, r + 1), R(s, r + 1)))
            if first and r % 4 == 0 and a == 0:
                ops.append('v_add_f32 %s, %s, %s' % (R(v_l[qs]), R(s, r), R(s, r + 1)))
            else:
                ops.append('v_add_f32 %s, %s, %s' % (R(v_l[qs]), R(v_l[qs]), R(s, r)))
                ops.append('v_add_f32 %s, %s, %s' % (R(v_l[qs]), R(v_l[qs]), R(s, r + 1)))
            ops.append('v_cvt_pk_bf16_f32 %s, %s, %s' % (R(P[j][qs], a * 2 + (r % 4) // 2), R(s, r), R(s, r + 1)))
        return ops
    def xl_red(m, m2, op):
        return ['v_mov_b32 %s, %s' % (m2, m), 'v_permlane16_swap_b32 %s, %s' % (m, m2), '%s %s, %s, %s' % (op, m, m, m2),
                'v_mov_b32 %s, %s' % (m2, m), 'v_permlane32_swap_b32 %s, %s' % (m, m2), '%s %s, %s, %s' % (op, m, m, m2)]
    def finish_max(ms, m2s):
        ops = []
        a, b = xl_red(ms[0], m2s[0], 'v_max_f32'), xl_red(ms[1], m2s[1], 'v_max_f32')
        for x, y in zip(a, b): ops += [x, y]
        for r in range(8): ops.append('v_sub_f32 %s, 0, %s' % (R(negm, r), ms[r // 4]))
        return ops
    def mf_k(sreg, f, frag, cz):
        T, a = f // 2, f % 2
        out = []
        for qs in range(2):
            d = R(sreg, (a * 2 + qs) * 4, 4)
            c = d if T > 0 else ('0' if cz else R(negm, 4 * qs, 4))
            out.append('v_mfma_f32_16x16x32_bf16 %s, %s, %s, %s' % (d, frag, R(qf[qs * 4 + T], 0, 4), c))
        return out
    accO = [sub(SS, 0), sub(SS, 16)]
    stg = [sub(negm, 0), sub(negm, 4)]
    WD = [sub(QF, 4 * i) for i in range(8)]

    def phase2(role):
        A_ = role == 'A'
        p('v_add_u32 %s, 0x10000, %s' % (R(v_l16b), l16))
        p('v_add_u32 %s, 0x20000, %s' % (R(v_l16c), l16))
        seq = [(j, f) for j in range(16) for f in range(8)]
        sc = Sched()
        for n, (j, f) in enumerate(seq):
            for m_ in mf_k(S[j % 2], f, R(fr[n % NRA], 0, 4), j < 2): sc.mfma(m_)
        def place_reads(sc, nfr, addr_of, chunk_of, n0):
            last = None
            for n in range(nfr):
                at = 2 * (n - D2) + 1 if n - D2 >= 0 else -1
                c = chunk_of(n)
                if c != last:
                    last = c
                    sc.place(at, lambda q, c=c: q.wait_tag('ch%d' % c))
                    sc.place(at, 's_barrier')
                    nx = dma_chunk(c + 4)
                    for q_ in range(2):
                        for it, tag in nx[3 * q_:3 * q_ + 3]: sc.place(max(at, 0) + 2 + 8 * q_, it, tag)
                sc.place(at, lds_read(fr[(n0 + n) % NRA], addr_of(n)))
        place_reads(sc, 128, lambda n: slot(n // 16) + (n % 16) * 1024, lambda n: n // 16, 0)
        ms, m2s = [t[0], t[1]], [t[2], t[3]]
        ops = []
        for qs in range(2):
            rg = [R(S[0], (a * 2 + qs) * 4 + k) for a in range(2) for k in range(4)]
            ops.append('v_max3_f32 %s, %s, %s, %s' % (ms[qs], rg[0], rg[1], rg[2]))
            for i in range(3, 7, 2): ops.append('v_max3_f32 %s, %s, %s, %s' % (ms[qs], ms[qs], rg[i], rg[i + 1]))
            ops.append('v_max_f32 %s, %s, %s' % (ms[qs], ms[qs], rg[7]))
        for i, o in enumerate(ops): sc.place(22 + i, o)
        ops = []
        for qs in range(2):
            rg = [R(S[1], (a * 2 + qs) * 4 + k) for a in range(2) for k in range(4)]
            for i in range(0, 8, 2): ops.append('v_max3_f32 %s, %s, %s, %s' % (ms[qs], ms[qs], rg[i], rg[i + 1]))
        ops += finish_max(ms, m2s) + softmax_ops(0, True, True)
        for o in ops: sc.place(31, o)
        for j in range(1, 15):
            lo, hi = 16 * (j + 1) + 1, 16 * (j + 2) - 1
            ops = softmax_ops(j, j < 2, False)
            nm = hi - lo + 1
            for i, o in enumerate(ops): sc.place(lo + min(nm - 1, (i * nm) // len(ops)), o)
        if not A_:
            def gu_setup(q):
                mk_srd(q, S_B, 'wg', 7340032); mk_srd(q, S_C, 'wu', 7340032)
                q('s_cmp_lt_u32 s2, 224'); q('s_cselect_b32 s66, 7340032, 0'); q('s_cselect_b32 s70, 7340032, 0')
                q('s_and_b32 s29, s2, 7'); q('s_mul_i32 s29, s29, 28'); q('s_lshr_b32 s16, s2, 3'); q('s_add_u32 s29, s29, s16')
                q('s_sub_u32 s16, s3, 4')
                q('v_lshrrev_b32 %s, 3, %s' % (t[4], lane)); q('v_lshlrev_b32 %s, 3, %s' % (t[4], t[4]))
                q('s_lshl_b32 s17, s16, 6'); q('v_add_u32 %s, s17, %s' % (t[4], t[4]))
                q('s_mov_b32 s17, 7168'); q('v_mul_lo_u32 %s, s17, %s' % (R(v_xv), t[4]))
                q('v_and_b32 %s, 7, %s' % (t[4], lane)); q('v_lshl_add_u32 %s, %s, 4, %s' % (R(v_xv), t[4], R(v_xv)))
                q('s_and_b32 s17, s29, 3'); q('s_mul_i32 s18, s17, %d' % (256 * 7168))
                q('s_lshr_b32 s17, s29, 2'); q('s_lshl_b32 s17, s17, 7'); q('s_add_u32 s18, s18, s17')
                q('s_lshl_b32 s15, s16, 13')
            sc.place(1, gu_setup)
            if wopf is not None:
                def wo_pf(q):
                    mk_srd(q, S_D, 'wo', 0x800000)
                    q('v_lshlrev_b32 %s, 7, %s' % (t[5], lane))
                    q('s_lshl_b32 s16, s2, 2'); q('s_add_u32 s16, s16, s3'); q('s_sub_u32 s16, s16, 4'); q('s_lshl_b32 s16, s16, 13')
                    q('buffer_load_dword %s, %s, %s, s16 offen' % (R(x4, 3), t[5], sr(S_D)), 'pf')
                sc.place(wopf, wo_pf)
            items = [(m, i) for i in range(8) for m in range(2)][:-1]
            lo, hi = 2 * (16 * gu_at[0] + 2), 2 * (16 * gu_at[1])
            for k, (m, i) in enumerate(items if do_gu else []):
                at = lo + (k * (hi - lo)) // len(items)
                sc.place(at, 's_add_u32 s22, s18, %d' % (i * 7168))
                sc.place(at, 's_add_u32 m0, s15, %d' % (m * 32768 + i * 1024))
                sc.place(at, 'buffer_load_dwordx4 %s, %s, s22 offen lds' % (R(v_xv), sr(S_B if m == 0 else S_C)), 'gu')
        else:
            sc.place(1, lambda q: (q('s_and_b32 s29, s2, 7'), q('s_mul_i32 s29, s29, 28'), q('s_lshr_b32 s16, s2, 3'), q('s_add_u32 s29, s29, s16')))
        def wo_setup(q):
            mk_srd(q, S_A, 'wo', 0x800000)
            q('v_bfe_u32 %s, %s, 2, 2' % (t[4], lane))
            q('v_lshlrev_b32 %s, 13, %s' % (t[5], t[4])); q('v_sub_u32 %s, %s, %s' % (R(v_wqoff), R(v_wqoff), t[5]))
            q('v_lshl_add_u32 %s, %s, 11, %s' % (R(v_wqoff), t[4], R(v_wqoff)))
            q('s_and_b32 s16, s2, 1'); q('s_lshl_b32 s24, s16, 22')
            q('s_lshr_b32 s16, s2, 5'); q('s_lshl_b32 s16, s16, 8'); q('s_add_u32 s24, s24, s16')
            q('s_lshl_b32 s16, s3, 14'); q('s_add_u32 s24, s24, s16')
            if not A_: q('s_add_u32 s24, s24, %d' % (96 * 2048))
        sc.place(16 * 2 + 5, wo_setup)
        if qkst:
            for i_, s_ in enumerate(qkst): sc.place(s_, lambda q, i_=i_: q.stamp(40 + i_))
        sc.emit(p)
        p.stamp(9)
        pv = [(T, hh, jj, b) for T in range(4) for hh in range(2) for jj in range(8) for b in range(2)]
        sc = Sched()
        for n, (T, hh, jj, b) in enumerate(pv):
            for qs in range(2):
                d = R(accO[T % 2], b * 8 + qs * 4, 4)
                sc.mfma('v_mfma_f32_16x16x32_bf16 %s, %s, %s, %s' % (d, R(fr[(128 + n) % NRA], 0, 4), R(P[8 * hh + jj][qs], 0, 4), '0' if (hh == 0 and jj == 0) else d))
        place_reads(sc, 128, lambda n: slot(8 + n // 16) + (n % 16) * 1024, lambda n: 8 + n // 16, 128)
        l0, l1 = R(v_l[0]), R(v_l[1])
        def mid(q):
            for o in softmax_ops(15, False, False): q(o)
            for x, y in zip(xl_red(l0, t[0], 'v_add_f32'), xl_red(l1, t[2], 'v_add_f32')): q(x); q(y)
            q('v_max_f32 %s, %s, %s' % (t[1], l0, l1))
            q('s_mov_b32 s16, 0x%x' % f2u(2.0 ** 100))
            q('v_cmp_ngt_f32 vcc, s16, %s' % t[1])
            q('v_cmp_u_f32 s[62:63], %s, %s' % (l0, l1))
            q('s_or_b64 vcc, vcc, s[62:63]')
            lab = '%s_fix%s' % (name, role)
            q('s_cbranch_vccnz %s' % lab)
            q.label(lab + 'b')
            q('v_rcp_f32 %s, %s' % (l0, l0)); q('v_rcp_f32 %s, %s' % (l1, l1))
            q('s_lshl_b32 s25, s13, 3'); q('s_add_u32 s25, s25, s3'); q('s_lshl_b32 s25, s25, 18')
            q('s_lshl_b32 s26, s12, 12'); q('s_add_u32 s25, s25, s26'); q('s_add_u32 s25, s25, 0x%x' % WS_O)
            q('s_add_u32 s26, s25, 131072')
            q('s_lshl_b32 s63, s13, 3'); q('s_add_u32 s63, s63, s3'); q('s_lshl_b32 s63, s63, 5'); q('s_add_u32 s63, s63, s12'); q('s_lshl_b32 s63, s63, 2')
            z = Prog()
            z.label(lab); z.flush()
            z('s_lshr_b32 s16, s12, 3'); z('s_lshl_b32 s16, s16, 17'); z('s_add_u32 s16, s16, 0x%x' % WS_KF)
            z('v_add_u32 %s, s16, %s' % (R(v_kvoff), l16))
            z('v_mov_b32 %s, 0xff7fffff' % ms[0]); z('v_mov_b32 %s, 0xff7fffff' % ms[1])
            KF = [sub(S[1], 4 * i) for i in range(4)]
            def ktile(z, j, cz):
                for hf in range(2):
                    z('s_mov_b32 s17, 0x%x' % (j * 8192 + hf * 4096))
                    for i in range(4): z('buffer_load_dwordx4 %s, %s, %s, s17 offen offset:%d' % (R(KF[i], 0, 4), R(v_kvoff), sr(S_WS), i * 1024))
                    for i in range(4):
                        for m_ in mf_k(S[0], hf * 4 + i, R(KF[i], 0, 4), cz): z(m_)
            z('s_mov_b32 s16, 0')
            z.loop_begin(); z.label(lab + 'm')
            for hf in range(2):
                z('s_add_u32 s17, s16, %d' % (hf * 4096))
                for i in range(4): z('buffer_load_dwordx4 %s, %s, %s, s17 offen offset:%d' % (R(KF[i], 0, 4), R(v_kvoff), sr(S_WS), i * 1024))
                for i in range(4):
                    for m_ in mf_k(S[0], hf * 4 + i, R(KF[i], 0, 4), True): z(m_)
            for r in range(0, 16, 2): z('v_max3_f32 %s, %s, %s, %s' % (ms[(r // 4) % 2], ms[(r // 4) % 2], R(S[0], r), R(S[0], r + 1)))
            z('s_add_u32 s16, s16, 8192'); z('s_cmp_lt_u32 s16, 0x20000'); z('s_cbranch_scc1 %sm' % lab)
            z.loop_end()
            for o in finish_max(ms, m2s): z(o)
            for j in range(16):
                ktile(z, j, False)
                for o in softmax_ops(j, False, j == 0, S[0]): z(o)
            for x, y in zip(xl_red(l0, t[0], 'v_add_f32'), xl_red(l1, t[2], 'v_add_f32')): z(x); z(y)
            z.flush()
            z('s_branch %sb' % lab)
            rare.append(z)
        sc.place(-1, mid)
        def ostore(T):
            ops = []
            a = accO[T % 2]
            for qs in range(2):
                for b in range(2):
                    for k in range(4): ops.append(('v_mul_f32 %s, %s, %s' % (R(a, b * 8 + qs * 4 + k), R(a, b * 8 + qs * 4 + k), R(v_l[qs])), None))
                for b in range(2):
                    for k in range(0, 4, 2):
                        ops.append(('v_cvt_pk_bf16_f32 %s, %s, %s' % (R(stg[qs], b * 2 + k // 2), R(a, b * 8 + qs * 4 + k), R(a, b * 8 + qs * 4 + k + 1)), None))
                ops.append(('buffer_store_dwordx4 %s, %s, %s, %s offen offset:%d sc1' % (R(stg[qs], 0, 4), l16, sr(S_WS), 's26' if qs else 's25', T * 1024), 'ost%d' % T))
            return ops
        for T in range(3):
            ops = ostore(T)
            lo = 64 * (T + 1) + 3
            for i, (o, tag) in enumerate(ops): sc.place(lo + 2 * i, o, tag)
        if not A_ and do_wd: sc.place(WD_AT, wd_loads)
        if A_ and mc_comp: modcols(sc)
        if not A_:
            def gulast(q):
                q('s_add_u32 s22, s18, %d' % (7 * 7168))
                q('s_add_u32 m0, s15, %d' % (32768 + 7 * 1024))
                q('buffer_load_dwordx4 %s, %s, s22 offen lds' % (R(v_xv), sr(S_C)), 'gu')
            gl_at = mc_fin_at() + 32
            assert gl_at <= 224
            sc.place(gl_at, gulast)
        for T_, at_ in enumerate(OF_AT):
            if at_ < 1000: sc.place(at_, lambda q, T_=T_: oflag(q, T_))
        if pvst:
            for i_, s_ in enumerate(pvst): sc.place(s_, lambda q, i_=i_: q.stamp(50 + i_))
        sc.emit(p)
        for o, tag in ostore(3): p(o, tag)
        p.stamp(10)

    gu_defer = []
    def oflag(q, T):
        q.wait_tag('ost%d' % T)
        q('s_add_u32 s16, s63, 0x%x' % (WS_OFLAG + T * 8192))
        q('v_mov_b32 %s, s28' % t[4]); q('v_mov_b32 %s, 0' % t[5])
        q('s_mov_b64 exec, 1')
        q('buffer_store_dword %s, %s, %s, s16 offen sc1' % (t[4], t[5], sr(S_WS)))
        q('s_mov_b64 exec, -1')
    def wd_loads(q):
        mk_srd(q, S_D, 'wd', 7340032)
        q('s_cmp_lt_u32 s2, 224'); q('s_cselect_b32 s74, 7340032, 0')
        q('s_lshl_b32 s17, s29, 4'); q('s_sub_u32 s16, s3, 4'); q('s_lshl_b32 s16, s16, 2'); q('s_add_u32 s16, s16, s17'); q('s_lshl_b32 s16, s16, 11')
        for i in range(4):
            q('s_add_u32 s17, s16, %d' % (i * 2048))
            for hf in range(2):
                q('buffer_load_dwordx4 %s, %s, %s, s17 offen offset:%d' % (R(WD[2 * i + hf], 0, 4), l16, sr(S_D), hf * 1024))

    acc3 = [[sub(PR, (n * 2 + qs) * 4) for qs in range(2)] for n in range(8)]
    OB = [[sub(PR, 64 + (k * 2 + qs) * 4) for qs in range(2)] for k in range(PO)]
    assert 64 + PO * 8 <= 128
    XROW = negm; MOD = SS; GA = SP
    MSB, MC1, MGB, MWR = 0, 8, 16, 24
    def phase3(role):
        A_ = role == 'A'; ks = 0 if A_ else 1
        p('s_bfe_u32 s30, s2, 0x20001'); p('s_lshl_b32 s30, s30, 2'); p('s_bfe_u32 s17, s2, 0x20003'); p('s_add_u32 s30, s30, s17')
        p('s_lshr_b32 s31, s2, 5')
        p('s_and_b32 s15, s2, 1')
        p('v_bfe_u32 %s, %s, 2, 2' % (t[2], lane)); p('v_lshrrev_b32 %s, 4, %s' % (t[3], lane)); p('v_and_b32 %s, 3, %s' % (t[4], lane))
        p('v_lshlrev_b32 %s, 11, %s' % (R(v_tr), t[3]))
        p('v_lshl_add_u32 %s, %s, 6, %s' % (R(v_tr), t[2], R(v_tr)))
        p('v_lshl_add_u32 %s, %s, 3, %s' % (R(v_tr), t[4], R(v_tr)))
        p('v_add_u32 %s, 0x%x, %s' % (R(v_tr), 0x10000 + ks * 8192, R(v_tr)))
        p('v_and_b32 %s, 1, %s' % (t[5], t[3])); p('v_lshlrev_b32 %s, 5, %s' % (t[5], t[5]))
        p('v_sub_u32 %s, %s, %s' % (R(v_tr2), R(v_tr), t[5]))
        p('v_add_u32 %s, %s, %s' % (R(v_tr), R(v_tr), t[5]))
        p('v_add_u32 %s, 0x10000, %s' % (R(v_hoff), R(v_tr))); p('v_add_u32 %s, 0x10000, %s' % (R(v_kvoff), R(v_tr2)))
        p('s_and_b32 s17, s3, 3')
        p('s_lshl_b32 s18, s30, 2'); p('s_add_u32 s18, s18, s17')
        p('s_lshl_b32 s19, s18, 18'); p('s_lshl_b32 s23, s15, 16'); p('s_add_u32 s19, s19, s23'); p('s_add_u32 s19, s19, 0x%x' % (WS_O + ks * 4096))
        p('v_add_u32 %s, s19, %s' % (R(v_xv), l16))
        p('s_lshl_b32 s18, s18, 7'); p('s_lshl_b32 s23, s15, 6'); p('s_add_u32 s18, s18, s23'); p('s_add_u32 s18, s18, 0x%x' % WS_OFLAG)
        p('v_and_b32 %s, 15, %s' % (t[2], lane)); p('v_lshlrev_b32 %s, 2, %s' % (t[2], t[2]))
        p.stamp(11)
        backoff(p, 'o')
        poll(p, 'o', lambda: p('buffer_load_dword %s, %s, %s, s18 offen sc1' % (t[3], t[2], sr(S_WS))),
             lambda: p('v_cmp_ne_u32 vcc, s28, %s' % t[3]))
        p.stamp(12)
        def oload(s, qs):
            return ['s_mov_b32 s23, 0x%x' % (qs * 131072 + (s % 8) * 8192),
                    'buffer_load_dwordx4 %s, %s, %s, s23 offen offset:%d%s' % (R(OB[s % PO][qs], 0, 4), R(v_xv), sr(S_WS), (s // 8) * 1024, osc)]
        def rd(f):
            s, n = f // 8, f % 8
            k = (16 + s) % NSL
            if k < 4: return trread(fr[f % NRA], k * 16384, n, R(v_tr), R(v_tr2))
            return trread(fr[f % NRA], (k - 4) * 16384, n, R(v_hoff), R(v_kvoff))
        for s in range(PO - 1):
            for qs in range(2):
                for l_ in oload(s, qs): p(l_)
        sc = Sched()
        NF = 256
        if A_ and mc_comp: mc_final(sc)
        if not A_ and gu_defer: sc.place(4, gu_defer.pop())
        for T_, at_ in enumerate(OF_AT):
            if at_ >= 1000: sc.place(at_ - 1000, lambda q, T_=T_: oflag(q, T_))
        for f in range(NF):
            s, n = f // 8, f % 8
            for qs in range(2):
                d = R(acc3[n][qs], 0, 4)
                sc.mfma('v_mfma_f32_16x16x32_bf16 %s, %s, %s, %s' % (d, R(fr[f % NRA], 0, 4), R(OB[s % PO][qs], 0, 4), '0' if s == 0 else d))
        for f in range(NF):
            at = 2 * (f - D3) + 1 if f - D3 >= 0 else -1
            s, n = f // 8, f % 8
            if n == 0:
                c = 16 + s
                sc.place(at, lambda q, c=c: q.wait_tag('ch%d' % c))
                sc.place(at, 's_barrier')
                if c + 4 < 48:
                    nx = dma_chunk(c + 4)
                    for q_ in range(2):
                        for it, tag in nx[3 * q_:3 * q_ + 3]: sc.place(max(at, 0) + 1 + 7 * q_, it, tag)
            tr = rd(f)
            if at > 0 and n != 0:
                sc.place(at - 1, tr[0]); sc.place(at, tr[1])
            else:
                for x in tr: sc.place(at, x)
        for s in range(32):
            sn = s + PO - 1
            if sn < 32:
                for qs in range(2):
                    for l_ in oload(sn, qs): sc.place(16 * s + 2 + 6 * qs, l_)
        fl = sub(SS, 0)
        def mfl(q):
            q('s_mov_b32 s16, 0x%x' % WS_MFLAG)
            q('buffer_load_dwordx4 %s, %s, %s, s16 offen sc1' % (R(fl, 0, 4), l16, sr(S_WS)))
        def mft(q):
            q('v_xor_b32 %s, s28, %s' % (t[0], R(fl, 0))); q('v_xor_b32 %s, s28, %s' % (t[1], R(fl, 1)))
            q('v_xor_b32 %s, s28, %s' % (t[2], R(fl, 2))); q('v_xor_b32 %s, s28, %s' % (t[3], R(fl, 3)))
            q('v_or3_b32 %s, %s, %s, %s' % (t[0], t[0], t[1], t[2])); q('v_or_b32 %s, %s, %s' % (t[0], t[0], t[3]))
            q('v_cmp_ne_u32 vcc, 0, %s' % t[0])
        of2 = R(x4, 0)
        def of2_load(q): q('buffer_load_dword %s, %s, %s, s17 offen sc1' % (of2, R(x4, 1), sr(S_WS)))
        p('v_mov_b32 %s, %s' % (R(x4, 1), t[2]))
        for T_ in range(1, 4):
            chk = 8 * T_ - (PO - 1)
            sc.place(16 * (chk - 2) + 9, lambda q, T_=T_: (q('s_add_u32 s17, s18, %d' % (T_ * 8192)), of2_load(q)))
            sc.place(16 * chk - 1, lambda q: rare_poll(q, 'o2', lambda z: z('v_cmp_ne_u32 vcc, s28, %s' % of2), of2_load))
        sc.place(16 * mf_at[0] + 5, mfl)
        if mc_comp: sc.place(16 * mf_at[1] + 5, lambda q: rare_poll(q, 'mf', mft, mfl))
        def side(q):
            q('v_lshrrev_b32 %s, 4, %s' % (t[0], lane)); q('v_lshlrev_b32 %s, 3, %s' % (t[0], t[0]))
            q('s_lshl_b32 s16, s31, 8'); q('s_add_u32 s16, s16, 0x%x' % (WS_MODB + ks * 128))
            for i in range(4):
                q('buffer_load_dwordx2 %s, %s, %s, s16 offen offset:%d sc1' % (R(GA, 2 * i, 2), t[0], sr(S_WS), i * 32))
        sc.place(16 * mf_at[2] + 5, side)
        def side2(q):
            mk_srd(q, S_B, 'wr', 2048); mk_srd(q, S_E, 'x', 4194304); mk_srd(q, S_C, 'out', 4194304)
            q('s_lshl_b32 s14, s31, 1'); q('s_add_u32 s14, s14, s15'); q('s_lshl_b32 s14, s14, 3'); q('s_add_u32 s14, s14, s3')
            q('s_lshl_b32 s16, s30, 7'); q('s_add_u32 s14, s14, s16')
            q('s_lshl_b32 s16, s14, 11')
            for hf in range(2): q('buffer_load_dwordx4 %s, %s, %s, s16 offen offset:%d' % (R(XROW, 4 * hf, 4), l16, sr(S_E), hf * 1024))
            for off, mo in ((2048, MSB), (4096, MC1), (6144, MGB)):
                q('s_mov_b32 s16, 0x%x' % (WS_MODB + off))
                for hf in range(2): q('buffer_load_dwordx4 %s, %s, %s, s16 offen offset:%d sc1' % (R(MOD, mo + 4 * hf, 4), l16, sr(S_WS), hf * 1024))
            for hf in range(2): q('buffer_load_dwordx4 %s, %s, %s, 0 offen offset:%d' % (R(MOD, MWR + 4 * hf, 4), l16, sr(S_B), hf * 1024))
        sc.place(16 * mf_at[3] + 5, side2)
        if p3st:
            for i_, s_ in enumerate(p3st): sc.place(16 * s_, lambda q, i_=i_: q.stamp(30 + i_))
        sc.emit(p)
        p.stamp(13)
        p('s_lshl_b32 s16, s3, 13'); p('s_add_u32 s16, s16, 0x%x' % RING1)
        p('v_add_u32 %s, s16, %s' % (t[0], l16))
        p('s_xor_b32 s16, s16, 0x8000')
        p('v_add_u32 %s, s16, %s' % (t[1], l16))
        o_ = 4 * (1 - ks)
        for i in range(4):
            for qs in range(2): p('ds_write_b128 %s, %s offset:%d' % (t[0], R(acc3[o_ + i][qs], 0, 4), (i * 2 + qs) * 1024))
        gaf = sub(PR, 64)
        for i in range(4):
            for d in range(2): unpack(p, R(gaf, 4 * i + 2 * d), R(gaf, 4 * i + 2 * d + 1), R(GA, 2 * i + d))
        p('v_and_b32 %s, 15, %s' % (t[2], lane)); p('v_lshlrev_b32 %s, 6, %s' % (t[2], t[2]))
        p('v_lshrrev_b32 %s, 4, %s' % (t[3], lane))
        p('v_and_b32 %s, 1, %s' % (t[4], t[3])); p('v_lshl_add_u32 %s, %s, 5, %s' % (t[2], t[4], t[2]))
        p('v_lshrrev_b32 %s, 1, %s' % (t[3], t[3])); p('v_lshl_add_u32 %s, %s, 4, %s' % (t[2], t[3], t[2]))
        p('s_and_b32 s17, s3, 3'); p('s_lshl_b32 s18, s30, 2'); p('s_add_u32 s18, s18, s17'); p('s_lshl_b32 s18, s18, 16')
        p('s_lshl_b32 s19, s15, 22'); p('s_add_u32 s18, s18, s19'); p('s_lshl_b32 s19, s31, 12'); p('s_add_u32 s18, s18, s19')
        p('s_add_u32 s18, s18, 0x%x' % (WS_AP + ks * 2048)); p('s_add_u32 s19, s18, 32768')
        p('s_waitcnt lgkmcnt(0)')
        p('s_barrier')
        rx = [sub(PR, 80 + 4 * i) for i in range(8)]
        for i in range(4):
            for qs in range(2): p('ds_read_b128 %s, %s offset:%d' % (R(rx[i * 2 + qs], 0, 4), t[1], (i * 2 + qs) * 1024))
        st4 = [sub(PR, 112 + 4 * i) for i in range(4)]
        for mm in range(2):
            for qs in range(2):
                q4 = st4[mm * 2 + qs]
                for b in range(2):
                    i = 2 * mm + b
                    a = acc3[4 * ks + i][qs]
                    for k in range(0, 4, 2): p('v_pk_add_f32 %s, %s, %s' % (R(a, k, 2), R(a, k, 2), R(rx[i * 2 + qs], k, 2)))
                    for k in range(0, 4, 2): p('v_pk_mul_f32 %s, %s, %s' % (R(a, k, 2), R(a, k, 2), R(gaf, 4 * i + k, 2)))
                    for k in range(0, 4, 2): p('v_cvt_pk_bf16_f32 %s, %s, %s' % (R(q4, 2 * b + k // 2), R(a, k), R(a, k + 1)))
                for d in range(2): p('v_permlane16_swap_b32 %s, %s' % (R(q4, d), R(q4, 2 + d)))
                p('buffer_store_dwordx4 %s, %s, %s, %s offen offset:%d sc1' % (R(q4, 0, 4), t[2], sr(S_WS), 's19' if qs else 's18', mm * 1024), 'ap')
        p.stamp(14)

    def tail(role):
        A_ = role == 'A'; ks = 0 if A_ else 1
        T = RA('v', PR[1], PR[1] + 112)
        gr = T.alloc(4, 4); xf = T.alloc(16, 4); raw = T.alloc(16, 4); uf = T.alloc(16, 4)
        u8 = T.alloc(8, 4); acc = T.alloc(8, 4); fin = T.alloc(8, 4); sl = T.alloc(8, 4)
        w = [sub(uf, 4 * i) for i in range(4)] + [T.alloc(4, 4) for _ in range(4)]
        LB = RING1
        L_KEY = LB; L_BEST = LB + 256; L_XS = LB + 1024; L_X2 = LB + 3072; L_GS = LB + 5120; L_YS = LB + 8192; L_RS = LB + 24576 + 1024
        a0, a1, b0, b1 = R(u8, 0), R(u8, 1), R(u8, 2), R(u8, 3)
        a01, b01 = R(u8, 0, 2), R(u8, 2, 2)
        b0v = R(fin, 2)
        p('v_mov_b32 %s, 0' % b0v)
        for d in range(8):
            unpack(p, a0, a1, R(MOD, MC1 + d)); unpack(p, b0, b1, R(MOD, MWR + d))
            p('v_pk_mul_f32 %s, %s, %s' % (R(uf, 2 * d, 2), a01, b01))
            unpack(p, a0, a1, R(MOD, MSB + d))
            p('v_fmac_f32 %s, %s, %s' % (b0v, a0, b0)); p('v_fmac_f32 %s, %s, %s' % (b0v, a1, b1))
        for n in (1, 2, 4, 8): ror_add(p, b0v, n)
        xor16_add(p, b0v, a0); xor32_add(p, b0v, a0)
        for d in range(8): unpack(p, R(xf, 2 * d), R(xf, 2 * d + 1), R(XROW, d))
        p('s_and_b32 s17, s3, 3'); p('s_lshl_b32 s16, s30, 2'); p('s_add_u32 s16, s16, s17'); p('s_lshl_b32 s16, s16, 5')
        p('s_lshl_b32 s17, s31, 2'); p('s_add_u32 s16, s16, s17'); p('s_lshl_b32 s17, s15, 1'); p('s_add_u32 s16, s16, s17')
        p('s_add_u32 s16, s16, %d' % ks); p('s_lshl_b32 s16, s16, 2'); p('s_add_u32 s16, s16, 0x%x' % WS_AFLAG)
        p('v_mov_b32 %s, s28' % t[0]); p('v_mov_b32 %s, 0' % t[1])
        p('s_lshr_b32 s18, s14, 4'); p('s_lshl_b32 s18, s18, 15'); p('s_and_b32 s19, s14, 15'); p('s_lshl_b32 s19, s19, 6')
        p('s_add_u32 s18, s18, s19'); p('s_add_u32 s18, s18, 0x%x' % WS_AP); p('s_add_u32 s19, s18, 16384')
        p('v_lshrrev_b32 %s, 2, %s' % (t[2], lane)); p('v_lshlrev_b32 %s, 10, %s' % (t[2], t[2]))
        p('v_and_b32 %s, 3, %s' % (t[3], lane)); p('v_lshl_add_u32 %s, %s, 4, %s' % (t[2], t[3], t[2]))
        p('v_add_u32 %s, 0x400000, %s' % (t[3], t[2]))
        p('s_lshr_b32 s25, s14, 5'); p('s_lshl_b32 s25, s25, 7'); p('s_add_u32 s25, s25, 0x%x' % WS_AFLAG)
        p('v_and_b32 %s, 31, %s' % (t[4], lane)); p('v_lshlrev_b32 %s, 2, %s' % (t[4], t[4]))
        p.wait_tag('ap')
        p('s_mov_b64 exec, 1')
        p('buffer_store_dword %s, %s, %s, s16 offen sc1' % (t[0], t[1], sr(S_WS)))
        p('s_mov_b64 exec, -1')
        p.stamp(15)
        backoff(p, 'a')
        poll(p, 'a', lambda: p('buffer_load_dword %s, %s, %s, s25 offen sc1' % (a0, t[4], sr(S_WS))),
             lambda: p('v_cmp_ne_u32 vcc, s28, %s' % a0))
        for hf in range(2):
            p('buffer_load_dwordx4 %s, %s, %s, s%d offen sc1' % (R(raw, 4 * hf, 4), t[2], sr(S_WS), 18 + hf))
            p('buffer_load_dwordx4 %s, %s, %s, s%d offen sc1' % (R(raw, 8 + 4 * hf, 4), t[3], sr(S_WS), 18 + hf))
        p('v_lshlrev_b32 %s, 2, %s' % (t[5], tid))
        p('s_mov_b32 s16, 0x%x' % (WS_MODB + 2048))
        p('buffer_load_dword %s, %s, %s, s16 offen sc1' % (R(sl, 6), t[5], sr(S_WS)))
        p('buffer_load_dword %s, %s, %s, s16 offen offset:2048 sc1' % (R(sl, 4), t[5], sr(S_WS)))
        p.stamp(16)
        for d in range(8):
            k = (d % 2) * 4
            A0, A1, B0_, B1 = [R(u8, k + i) for i in range(4)]
            unpack(p, A0, A1, R(raw, d)); unpack(p, B0_, B1, R(raw, 8 + d))
            p('v_pk_add_f32 %s, %s, %s' % (R(u8, k, 2), R(u8, k, 2), R(u8, k + 2, 2)))
            p('v_pk_add_f32 %s, %s, %s' % (R(xf, 2 * d, 2), R(xf, 2 * d, 2), R(u8, k, 2)))
            rb2(p, R(xf, 2 * d), R(xf, 2 * d + 1), t[d % 2])
        mean, var, s3v, rcp = R(fin, 4), R(fin, 5), R(fin, 6), R(fin, 7)
        p('v_pk_add_f32 %s, %s, %s' % (a01, R(xf, 0, 2), R(xf, 2, 2)))
        p('v_pk_add_f32 %s, %s, %s' % (b01, R(xf, 4, 2), R(xf, 6, 2)))
        for d in (4, 6):
            p('v_pk_add_f32 %s, %s, %s' % (a01, a01, R(xf, 2 * d, 2)))
            p('v_pk_add_f32 %s, %s, %s' % (b01, b01, R(xf, 2 * d + 2, 2)))
        p('v_pk_add_f32 %s, %s, %s' % (a01, a01, b01))
        p('v_add_f32 %s, %s, %s' % (mean, a0, a1))
        for n in (1, 2, 4, 8): ror_add(p, mean, n)
        xor16_add(p, mean, a0); xor32_add(p, mean, a0)
        p('v_mul_f32 %s, 0x%x, %s' % (mean, f2u(1.0 / 1024), mean))
        for i in range(16): p('v_sub_f32 %s, %s, %s' % (R(raw, i), R(xf, i), mean))
        p('v_pk_mul_f32 %s, %s, %s' % (a01, R(raw, 0, 2), R(raw, 0, 2)))
        p('v_pk_mul_f32 %s, %s, %s' % (b01, R(raw, 0, 2), R(uf, 0, 2)))
        for d in range(1, 8):
            p('v_pk_fma_f32 %s, %s, %s, %s' % (a01, R(raw, 2 * d, 2), R(raw, 2 * d, 2), a01))
            p('v_pk_fma_f32 %s, %s, %s, %s' % (b01, R(raw, 2 * d, 2), R(uf, 2 * d, 2), b01))
        p('v_add_f32 %s, %s, %s' % (var, a0, a1)); p('v_add_f32 %s, %s, %s' % (s3v, b0, b1))
        for n in (1, 2, 4, 8):
            ror_add(p, var, n); ror_add(p, s3v, n)
        xor16_add(p, var, a0); xor16_add(p, s3v, a1)
        xor32_add(p, var, a0); xor32_add(p, s3v, a1)
        p('v_mul_f32 %s, 0x%x, %s' % (var, f2u(1.0 / 1024), var))
        p('v_add_f32 %s, 0x%x, %s' % (a0, f2u(1e-5), var))
        p('v_rsq_f32 %s, %s' % (a0, a0))
        p('v_fma_f32 %s, %s, %s, %s' % (R(gr, 3), s3v, a0, b0v))
        sd = s3v
        ln_scalars(p, mean, var, sd, rcp)
        p('v_mov_b32 %s, %s' % (R(gr, 1), mean))
        p('v_mov_b32 %s, %s' % (R(gr, 2), sd))
        p('v_ashrrev_i32 %s, 31, %s' % (t[0], R(gr, 3)))
        p('v_or_b32 %s, 0x80000000, %s' % (t[0], t[0]))
        p('v_xor_b32 %s, %s, %s' % (R(gr, 0), R(gr, 3), t[0]))
        p('v_and_b32 %s, 0xfffff800, %s' % (R(gr, 0), R(gr, 0)))
        p('v_max_u32 %s, 0x800, %s' % (R(gr, 0), R(gr, 0)))
        p('s_sub_u32 s16, 2047, s14')
        p('v_or_b32 %s, s16, %s' % (R(gr, 0), R(gr, 0)))
        p('s_lshl_b32 s16, s3, 4'); p('s_add_u32 s16, s16, %d' % L_KEY)
        p('v_mov_b32 %s, s16' % t[0])
        p('ds_write_b128 %s, %s' % (t[0], R(gr, 0, 4)))
        p('s_waitcnt lgkmcnt(0)')
        p('s_barrier')
        def best_of(ldsoff, n):
            p('v_and_b32 %s, %d, %s' % (t[0], n - 1, lane))
            p('v_lshlrev_b32 %s, 4, %s' % (t[0], t[0])); p('v_add_u32 %s, %d, %s' % (t[0], ldsoff, t[0]))
            p('ds_read_b32 %s, %s' % (a0, t[0]))
            p('v_mov_b32 %s, %s' % (a1, a0))
            for k in ((1, 2, 4) if n == 8 else (1, 2)): ror_add(p, a1, k, 'v_max_u32')
            p('v_cmp_eq_u32 vcc, %s, %s' % (a0, a1))
            p('s_ff1_i32_b64 s16, vcc')
            p('s_lshl_b32 s16, s16, 4'); p('s_add_u32 s16, s16, %d' % ldsoff)
            p('v_mov_b32 %s, s16' % t[0])
            p('ds_read_b128 %s, %s' % (R(gr, 0, 4), t[0]))
        best_of(L_KEY, 8)
        p('s_lshl_b32 s16, s2, 4'); p('s_add_u32 s16, s16, 0x%x' % WS_KEY)
        p('s_cmp_eq_u32 s3, 0'); p('s_cselect_b32 s16, s16, 0x%x' % OOB)
        p('v_mov_b32 %s, 0' % t[1])
        p('s_mov_b64 exec, 1')
        p('buffer_store_dwordx4 %s, %s, %s, s16 offen sc1' % (R(gr, 0, 4), t[1], sr(S_WS)))
        p('s_mov_b64 exec, -1')
        p.stamp(17)
        for hf in range(2):
            X = [R(raw, i) for i in range(8)]
            c1 = [R(raw, 8 + i) for i in range(8)]
            for i in range(8): p('v_sub_f32 %s, %s, %s' % (X[i], R(xf, 8 * hf + i), mean))
            for i in range(0, 8, 2): rb2(p, X[i], X[i + 1], t[0])
            for i in range(8): p('v_mul_f32 %s, %s, %s' % (c1[i], X[i], rcp))
            for i in range(8): p('v_fma_f32 %s, -%s, %s, %s' % (X[i], c1[i], sd, X[i]))
            for i in range(8): p('v_fma_f32 %s, %s, %s, %s' % (X[i], X[i], rcp, c1[i]))
            for i in range(0, 8, 2): rb2(p, X[i], X[i + 1], t[0])
            for op, mo in (('v_pk_mul_f32', MC1), ('v_pk_add_f32', MSB), ('v_pk_mul_f32', MGB)):
                for d in range(4): unpack(p, c1[2 * d], c1[2 * d + 1], R(MOD, mo + 4 * hf + d))
                for d in range(4): p('%s %s, %s, %s' % (op, R(raw, 2 * d, 2), R(raw, 2 * d, 2), R(raw, 8 + 2 * d, 2)))
                for i in range(0, 8, 2): rb2(p, X[i], X[i + 1], t[0])
            for d in range(4): p('v_pk_add_f32 %s, %s, %s' % (R(raw, 2 * d, 2), R(raw, 2 * d, 2), R(xf, 8 * hf + 2 * d, 2)))
            for d in range(4): p('v_cvt_pk_bf16_f32 %s, %s, %s' % (R(xf, 8 * hf + d), X[2 * d], X[2 * d + 1]))
        if A_:
            p('v_lshlrev_b32 %s, 4, %s' % (t[2], tid))
            p('s_mov_b32 s16, 0x%x' % WS_KEY)
            backoff(p, 'w')
            poll(p, 'w', lambda: p('buffer_load_dwordx4 %s, %s, %s, s16 offen sc1' % (R(gr, 0, 4), t[2], sr(S_WS))),
                 lambda: p('v_cmp_eq_u32 vcc, 0, %s' % R(gr, 0)))
            p('v_mov_b32 %s, %s' % (a0, R(gr, 0)))
            for n in (1, 2, 4, 8): ror_add(p, a0, n, 'v_max_u32')
            xor16_add(p, a0, a1, 'v_max_u32'); xor32_add(p, a0, a1, 'v_max_u32')
            p('v_cmp_eq_u32 vcc, %s, %s' % (a0, R(gr, 0)))
            p('s_lshl_b32 s16, s3, 4'); p('s_add_u32 s16, s16, %d' % L_BEST)
            p('v_mov_b32 %s, s16' % t[0])
            p('s_and_saveexec_b64 s[62:63], vcc')
            p('ds_write_b128 %s, %s' % (t[0], R(gr, 0, 4)))
            p('s_mov_b64 exec, s[62:63]')
            p('s_waitcnt lgkmcnt(0)')
        p('s_barrier')
        best_of(L_BEST, 4)
        p('v_and_b32 %s, 0x7ff, %s' % (a0, R(gr, 0)))
        p('v_sub_u32 %s, 2047, %s' % (a0, a0))
        p('v_readfirstlane_b32 s12, %s' % a0)
        p('v_rcp_f32 %s, %s' % (R(sl, 3), R(gr, 2)))
        p.stamp(18)
        p('s_lshr_b32 s18, s12, 4'); p('s_lshl_b32 s18, s18, 15'); p('s_and_b32 s19, s12, 15'); p('s_lshl_b32 s19, s19, 6')
        p('s_add_u32 s18, s18, s19'); p('s_add_u32 s18, s18, 0x%x' % WS_AP); p('s_add_u32 s19, s18, 0x400000')
        p('v_lshrrev_b32 %s, 4, %s' % (t[2], tid)); p('v_lshlrev_b32 %s, 10, %s' % (t[2], t[2]))
        p('v_and_b32 %s, 15, %s' % (t[3], tid)); p('v_lshl_add_u32 %s, %s, 2, %s' % (t[2], t[3], t[2]))
        p('s_lshl_b32 s13, s12, 11')
        p('buffer_load_dword %s, %s, %s, s18 offen sc1' % (R(sl, 0), t[2], sr(S_WS)))
        p('buffer_load_dword %s, %s, %s, s19 offen sc1' % (R(sl, 1), t[2], sr(S_WS)))
        p('buffer_load_dword %s, %s, %s, s13 offen' % (R(sl, 2), t[5], sr(S_E)))
        p('s_lshl_b32 s16, s14, 11'); p('s_cmp_lg_u32 s12, s14'); p('s_cselect_b32 s16, s16, 0x%x' % OOB)
        for hf in range(2):
            p('buffer_store_dwordx4 %s, %s, %s, s16 offen offset:%d sc1' % (R(xf, 8 * hf, 4), l16, sr(S_C), hf * 1024))
        p('s_lshl_b32 s16, s3, 13'); p('v_add_u32 %s, s16, %s' % (t[4], l16))
        p.wait_tag('gu')
        X = [R(fin, 0), R(fin, 1)]
        unpack(p, a0, a1, R(sl, 0)); unpack(p, b0, b1, R(sl, 1))
        p('v_pk_add_f32 %s, %s, %s' % (a01, a01, b01))
        unpack(p, b0, b1, R(sl, 2))
        p('v_pk_add_f32 %s, %s, %s' % (R(fin, 0, 2), b01, a01))
        rb2(p, X[0], X[1], a0)
        p('v_cvt_pk_bf16_f32 %s, %s, %s' % (R(sl, 0), X[0], X[1]))
        unpack(p, R(sl, 4), R(sl, 5), R(sl, 4)); unpack(p, R(sl, 6), R(sl, 7), R(sl, 6))
        ln_apply(p, X, 2, R(gr, 1), R(gr, 2), R(sl, 3), [R(sl, 4), R(sl, 5)], [R(sl, 6), R(sl, 7)], a0, a1)
        p('v_cvt_pk_bf16_f32 %s, %s, %s' % (R(sl, 1), X[0], X[1]))
        p('v_add_u32 %s, %d, %s' % (t[0], L_XS, t[5]))
        p('ds_write_b32 %s, %s' % (t[0], R(sl, 1)))
        p('ds_write_b32 %s, %s offset:2048' % (t[0], R(sl, 0)))
        p('s_waitcnt lgkmcnt(0)')
        p('s_barrier')
        for i in range(8): p('ds_read_b128 %s, %s offset:%d' % (R(w[i], 0, 4), t[4], i * 1024))
        p('s_and_b32 s16, s3, 3'); p('s_lshl_b32 s16, s16, 7'); p('s_and_b32 s17, s29, 3'); p('s_lshl_b32 s17, s17, 9')
        p('s_add_u32 s16, s16, s17'); p('s_add_u32 s16, s16, %d' % L_XS)
        p('v_lshrrev_b32 %s, 3, %s' % (t[0], lane)); p('v_lshlrev_b32 %s, 4, %s' % (t[0], t[0])); p('v_add_u32 %s, s16, %s' % (t[0], t[0]))
        x8 = sub(sl, 4)
        p('ds_read_b128 %s, %s' % (R(x8, 0, 4), t[0]))
        for i in range(8):
            hi, lo = R(u8, (i % 4) * 2), R(u8, (i % 4) * 2 + 1)
            if i % 2 == 0:
                p('v_lshlrev_b32 %s, 16, %s' % (hi, R(x8, i // 2))); p('v_and_b32 %s, 0xffff, %s' % (lo, R(x8, i // 2)))
            else:
                p('v_and_b32 %s, 0xffff0000, %s' % (hi, R(x8, i // 2))); p('v_lshrrev_b32 %s, 16, %s' % (lo, R(x8, i // 2)))
            for d in range(4):
                for h, xx in ((1, hi), (0, lo)):
                    if i == 0: p('v_dot2_f32_bf16 %s, %s, %s, 0' % (R(acc, 2 * d + h), R(w[i], d), xx))
                    else: p('v_dot2c_f32_bf16 %s, %s, %s' % (R(acc, 2 * d + h), R(w[i], d), xx))
        for e in range(4): p('v_permlane32_swap_b32 %s, %s' % (R(acc, e), R(acc, 4 + e)))
        for e in range(4): p('v_add_f32 %s, %s, %s' % (R(acc, e), R(acc, e), R(acc, 4 + e)))
        for e in range(2): p('v_permlane16_swap_b32 %s, %s' % (R(acc, e), R(acc, 2 + e)))
        for e in range(2): p('v_add_f32 %s, %s, %s' % (R(acc, e), R(acc, e), R(acc, 2 + e)))
        for e in range(2): ror_add(p, R(acc, e), 8)
        p('v_and_b32 %s, 7, %s' % (t[0], lane)); p('v_lshlrev_b32 %s, 5, %s' % (t[0], t[0]))
        p('v_lshrrev_b32 %s, 4, %s' % (t[1], lane)); p('v_lshl_add_u32 %s, %s, 3, %s' % (t[0], t[1], t[0]))
        p('s_lshl_b32 s16, s3, 8'); p('s_add_u32 s16, s16, %d' % L_GS)
        p('v_add_u32 %s, s16, %s' % (t[0], t[0]))
        p('ds_write_b64 %s, %s' % (t[0], R(acc, 0, 2)))
        p('s_lshr_b32 s16, s3, 2'); p('s_lshl_b32 s17, s16, 10'); p('s_add_u32 s17, s17, %d' % L_GS)
        p('v_lshlrev_b32 %s, 2, %s' % (t[1], lane)); p('v_add_u32 %s, s17, %s' % (t[0], t[1]))
        p('s_and_b32 s17, s29, 3'); p('s_lshl_b32 s17, s17, 1'); p('s_add_u32 s17, s17, s16'); p('s_mul_i32 s17, s17, %d' % (3584 * 4))
        p('s_lshr_b32 s16, s29, 2'); p('s_lshl_b32 s16, s16, 8'); p('s_add_u32 s17, s17, s16'); p('s_add_u32 s17, s17, 0x%x' % WS_GUP)
        p('s_and_b32 s16, s3, 3'); p('s_cmp_eq_u32 s16, 0'); p('s_cselect_b32 s17, s17, 0x%x' % OOB)
        p('s_cmp_lt_u32 s2, 224'); p('s_cselect_b32 s17, s17, 0x%x' % OOB)
        p('s_waitcnt lgkmcnt(0)')
        p('s_barrier')
        for b in range(4): p('ds_read_b32 %s, %s offset:%d' % (R(acc, b), t[0], b * 256))
        p('v_add_f32 %s, %s, %s' % (R(acc, 0), R(acc, 0), R(acc, 1))); p('v_add_f32 %s, %s, %s' % (R(acc, 2), R(acc, 2), R(acc, 3)))
        p('v_add_f32 %s, %s, %s' % (R(acc, 0), R(acc, 0), R(acc, 2)))
        p('v_or_b32 %s, 1, %s' % (R(acc, 0), R(acc, 0)))
        p('buffer_store_dword %s, %s, %s, s17 offen sc1' % (R(acc, 0), t[1], sr(S_WS)))
        p.stamp(19)
        if not A_:
            p('v_lshrrev_b32 %s, 4, %s' % (t[0], lane)); p('v_mul_u32_u24 %s, %d, %s' % (t[0], 2 * 3584 * 4, t[0]))
            p('v_and_b32 %s, 15, %s' % (t[1], lane)); p('v_lshl_add_u32 %s, %s, 2, %s' % (t[0], t[1], t[0]))
            p('s_lshl_b32 s16, s29, 6'); p('s_add_u32 s16, s16, 0x%x' % WS_GUP); p('s_add_u32 s17, s16, %d' % (3584 * 4))
            g_, u_ = R(acc, 0), R(acc, 1)
            def gl2():
                p('buffer_load_dword %s, %s, %s, s16 offen sc1' % (g_, t[0], sr(S_WS)))
                p('buffer_load_dword %s, %s, %s, s17 offen sc1' % (u_, t[0], sr(S_WS)))
            def gt2():
                p('v_min_u32 %s, %s, %s' % (R(acc, 2), g_, u_))
                p('v_cmp_eq_u32 vcc, 0, %s' % R(acc, 2))
                p('s_cmp_lt_u32 s2, 224'); p('s_cselect_b64 s[62:63], -1, 0'); p('s_and_b64 vcc, vcc, s[62:63]')
            backoff(p, 'gu')
            poll(p, 'gu', gl2, gt2)
            xor16_add(p, g_, R(acc, 2)); xor16_add(p, u_, R(acc, 3)); xor32_add(p, g_, R(acc, 2)); xor32_add(p, u_, R(acc, 3))
            rb2(p, g_, u_, R(acc, 2))
            silu(p, g_, R(acc, 2)); rb1(p, g_)
            p('v_mul_f32 %s, %s, %s' % (g_, g_, u_)); rb1(p, g_)
            p('s_sub_u32 s16, s3, 4'); p('s_lshl_b32 s16, s16, 2')
            for i in range(4):
                p('s_add_u32 s17, s16, %d' % i)
                p('v_readlane_b32 s%d, %s, s17' % (20 + i, g_))
                p('s_lshr_b32 s%d, s%d, 16' % (4 + i, 20 + i))
            y = raw
            for i in range(4):
                for hf in range(2):
                    for d in range(4):
                        for h, xx in ((1, 's%d' % (20 + i)), (0, 's%d' % (4 + i))):
                            dst = R(y, 8 * hf + 2 * d + h)
                            if i == 0: p('v_dot2_f32_bf16 %s, %s, %s, 0' % (dst, R(WD[2 * i + hf], d), xx))
                            else: p('v_dot2c_f32_bf16 %s, %s, %s' % (dst, xx, R(WD[2 * i + hf], d)))
            p('s_sub_u32 s16, s3, 4'); p('s_lshl_b32 s16, s16, 12'); p('s_add_u32 s16, s16, %d' % L_YS)
            p('v_lshlrev_b32 %s, 5, %s' % (t[0], lane)); p('v_add_u32 %s, s16, %s' % (t[0], t[0]))
            for hf in range(2):
                for k in range(2): p('ds_write_b128 %s, %s offset:%d' % (t[0], R(y, 8 * hf + 4 * k, 4), hf * 2048 + k * 16))
            p('s_waitcnt lgkmcnt(0)')
        p('s_barrier')
        p('v_lshlrev_b32 %s, 3, %s' % (t[0], tid)); p('v_add_u32 %s, %d, %s' % (t[1], L_YS, t[0]))
        for b in range(4): p('ds_read_b64 %s, %s offset:%d' % (R(acc, 2 * b, 2), t[1], b * 4096))
        p('v_pk_add_f32 %s, %s, %s' % (R(acc, 0, 2), R(acc, 0, 2), R(acc, 2, 2)))
        p('v_pk_add_f32 %s, %s, %s' % (R(acc, 4, 2), R(acc, 4, 2), R(acc, 6, 2)))
        p('v_pk_add_f32 %s, %s, %s' % (R(acc, 0, 2), R(acc, 0, 2), R(acc, 4, 2)))
        p('v_or_b32 %s, 1, %s' % (R(acc, 0), R(acc, 0))); p('v_or_b32 %s, 1, %s' % (R(acc, 1), R(acc, 1)))
        p('s_lshl_b32 s16, s29, 12'); p('s_add_u32 s16, s16, 0x%x' % WS_YP)
        p('s_cmp_lt_u32 s2, 224'); p('s_cselect_b32 s16, s16, 0x%x' % OOB)
        p('buffer_store_dwordx2 %s, %s, %s, s16 offen sc1' % (R(acc, 0, 2), t[0], sr(S_WS)))
        p('s_cmp_lt_u32 s2, 224')
        p('s_cbranch_scc1 %s_end' % name)
        pp = raw
        p('s_sub_u32 s16, s2, 224'); p('s_lshl_b32 s17, s16, 7'); p('s_add_u32 s17, s17, 0x%x' % WS_YP)
        p('v_lshrrev_b32 %s, 3, %s' % (t[0], tid)); p('v_lshlrev_b32 %s, 12, %s' % (t[0], t[0]))
        p('v_and_b32 %s, 7, %s' % (t[1], tid)); p('v_lshl_add_u32 %s, %s, 4, %s' % (t[0], t[1], t[0]))
        p('v_cmp_gt_u32 vcc, 256, %s' % tid)
        p('v_bfrev_b32 %s, -2' % t[1])
        p('v_cndmask_b32 %s, %s, %s, vcc' % (t[1], t[1], t[0]))
        p('v_mov_b32 %s, 0' % t[3])
        p('v_cndmask_b32 %s, 1, %s, vcc' % (t[2], t[3]))
        p('s_lshl_b32 s18, s16, 6')
        p('v_and_b32 %s, 31, %s' % (t[3], lane)); p('v_lshlrev_b32 %s, 1, %s' % (t[3], t[3])); p('v_add_u32 %s, s18, %s' % (t[3], t[3]))
        p('s_mov_b32 s19, 0x%x' % (WS_MODB + 6144))
        p('buffer_load_ushort %s, %s, %s, s19 offen sc1' % (R(fin, 3), t[3], sr(S_WS)))
        p('v_add_u32 %s, %d, %s' % (t[4], L_XS, t[3]))
        p('ds_read_u16 %s, %s' % (R(fin, 4), t[4])); p('ds_read_u16 %s, %s offset:2048' % (R(fin, 5), t[4]))
        rsel = R(fin, 2)
        p('v_mov_b32 %s, %s' % (rsel, R(gr, 3)))
        rb1(p, rsel)
        p('v_mul_f32 %s, 0x%x, %s' % (rsel, f2u(-LOG2E), rsel))
        p('v_exp_f32 %s, %s' % (rsel, rsel))
        p('v_add_f32 %s, 1.0, %s' % (rsel, rsel))
        p('v_rcp_f32 %s, %s' % (rsel, rsel))
        rb1(p, rsel)
        for r_ in (R(fin, 3), R(fin, 4), R(fin, 5)): p('v_lshlrev_b32 %s, 16, %s' % (r_, r_))
        mn = R(fin, 6)
        def l2():
            for k in range(4):
                p('s_add_u32 s19, s17, 0x%x' % (k * 64 * 4096))
                p('buffer_load_dwordx4 %s, %s, %s, s19 offen sc1' % (R(pp, 4 * k, 4), t[1] if k == 3 else t[0], sr(S_WS)))
        def t2():
            q_ = [R(pp, i) for i in range(16)]
            p('v_min3_u32 %s, %s, %s, %s' % (mn, q_[12], q_[13], q_[14])); p('v_min_u32 %s, %s, %s' % (mn, mn, q_[15]))
            p('v_or_b32 %s, %s, %s' % (mn, mn, t[2]))
            for k in range(0, 12, 2): p('v_min3_u32 %s, %s, %s, %s' % (mn, mn, q_[k], q_[k + 1]))
            p('v_cmp_eq_u32 vcc, 0, %s' % mn)
        backoff(p, 'y')
        poll(p, 'y', l2, t2)
        for st in (8, 4):
            for k in range(0, st, 2): p('v_pk_add_f32 %s, %s, %s' % (R(pp, k, 2), R(pp, k, 2), R(pp, st + k, 2)))
        for e in range(4): ror_add(p, R(pp, e), 8)
        for e in range(2): p('v_permlane32_swap_b32 %s, %s' % (R(pp, e), R(pp, 2 + e)))
        for e in range(2): p('v_add_f32 %s, %s, %s' % (R(pp, e), R(pp, e), R(pp, 2 + e)))
        p('v_permlane16_swap_b32 %s, %s' % (R(pp, 0), R(pp, 1)))
        p('v_add_f32 %s, %s, %s' % (R(pp, 0), R(pp, 0), R(pp, 1)))
        p('v_and_b32 %s, 7, %s' % (t[0], lane)); p('v_lshlrev_b32 %s, 4, %s' % (t[0], t[0]))
        p('v_lshrrev_b32 %s, 4, %s' % (t[1], lane)); p('v_lshl_add_u32 %s, %s, 2, %s' % (t[0], t[1], t[0]))
        p('s_lshl_b32 s19, s3, 7'); p('s_add_u32 s19, s19, %d' % L_RS)
        p('v_add_u32 %s, s19, %s' % (t[0], t[0]))
        p('ds_write_b32 %s, %s' % (t[0], R(pp, 0)))
        p('v_and_b32 %s, 31, %s' % (t[0], lane)); p('v_lshlrev_b32 %s, 2, %s' % (t[0], t[0])); p('v_add_u32 %s, %d, %s' % (t[0], L_RS, t[0]))
        p('s_waitcnt lgkmcnt(0)')
        p('s_barrier')
        p('s_cmp_lg_u32 s3, 0')
        p('s_cbranch_scc1 %s_end' % name)
        for i in range(8): p('ds_read_b32 %s, %s offset:%d' % (R(pp, i), t[0], i * 128))
        for st in (4, 2, 1):
            for k in range(st): p('v_add_f32 %s, %s, %s' % (R(pp, k), R(pp, k), R(pp, st + k)))
        y = R(pp, 0)
        rb1(p, y)
        p('v_mul_f32 %s, %s, %s' % (y, y, rsel)); rb1(p, y)
        p('v_add_f32 %s, %s, %s' % (y, y, R(fin, 4))); rb1(p, y)
        p('v_mul_f32 %s, %s, %s' % (y, y, R(fin, 3))); rb1(p, y)
        p('v_add_f32 %s, %s, %s' % (y, y, R(fin, 5)))
        p('v_cvt_pk_bf16_f32 %s, %s, %s' % (y, y, y))
        p('s_mov_b64 exec, 0xffffffff')
        p('buffer_store_short %s, %s, %s, s13 offen sc1' % (y, t[3], sr(S_C)))

    def role_prog(role):
        front(role)
        if stop == 'front': return
        phase1(role)
        phase2(role)
        if stop == 'p2': return
        phase3(role)
        tail(role)
    p.alt_begin()
    role_prog('A')
    p('s_branch %s_end' % name)
    p.alt_next()
    p.label('%s_roleB' % name)
    role_prog('B')
    p.alt_end()
    p.label('%s_end' % name)
    p('s_endpgm')
    body = p.emit()
    extra = ''.join(z.emit() for z in rare)
    return body, extra, dict(vgpr=256, accum=256, sgpr=80, lds=163840, block=512, grid=256)
```

```python
from asmdsl import Prog
from layout import *
from k2 import RA, R
import struct

def f2u(x): return struct.unpack('<I', struct.pack('<f', x))[0]
LOG2E = 1.4426950408889634

def rb2(p, a, b, t):
    p('v_cvt_pk_bf16_f32 %s, %s, %s' % (t, a, b))
    p('v_lshlrev_b32 %s, 16, %s' % (a, t))
    p('v_and_b32 %s, 0xffff0000, %s' % (b, t))
def rb1(p, a):
    p('v_cvt_pk_bf16_f32 %s, %s, %s' % (a, a, a))
    p('v_lshlrev_b32 %s, 16, %s' % (a, a))
def unpack(p, lo, hi, src):
    if lo == src:
        p('v_and_b32 %s, 0xffff0000, %s' % (hi, src)); p('v_lshlrev_b32 %s, 16, %s' % (lo, src))
    else:
        p('v_lshlrev_b32 %s, 16, %s' % (lo, src)); p('v_and_b32 %s, 0xffff0000, %s' % (hi, src))
def srd(p, base, ptr_off, size, kernarg_loaded=True):
    p('s_mov_b32 s%d, 0x%x' % (base + 2, size)); p('s_mov_b32 s%d, 0x20000' % (base + 3))
def xor16_add(p, a, t, op='v_add_f32'):
    p('v_mov_b32 %s, %s' % (t, a)); p('v_permlane16_swap_b32 %s, %s' % (a, t)); p('%s %s, %s, %s' % (op, a, a, t))
def xor32_add(p, a, t, op='v_add_f32'):
    p('v_mov_b32 %s, %s' % (t, a)); p('v_permlane32_swap_b32 %s, %s' % (a, t)); p('%s %s, %s, %s' % (op, a, a, t))
def ror_add(p, a, n, op='v_add_f32'):
    p('%s_dpp %s, %s, %s row_ror:%d row_mask:0xf bank_mask:0xf' % (op, a, a, a, n))
def silu(p, x, t):
    p('v_mul_f32 %s, 0x%x, %s' % (t, f2u(-LOG2E), x))
    p('v_exp_f32 %s, %s' % (t, t))
    p('v_add_f32 %s, 1.0, %s' % (t, t))
    p('v_rcp_f32 %s, %s' % (t, t))
    p('v_mul_f32 %s, %s, %s' % (x, x, t))

def mod_strip(p, name, T, s_strip):
    NL = 1024 // (T // 4)
    RG = T // 4
    V = RA('v', 1, 256)
    v_c4 = V.alloc(1); v_rg = V.alloc(1); v_off = V.alloc(1); v_co = V.alloc(1)
    t = [V.alloc(1) for _ in range(4)]
    w = [V.alloc(4, 4) for _ in range(NL)]
    cs = [V.alloc(1) for _ in range(NL)]
    acc = V.alloc(8, 4)
    u = V.alloc(8, 4)
    p('v_and_b32 %s, 3, v0' % R(v_c4))
    p('v_lshrrev_b32 %s, 2, v0' % R(v_rg))
    p('v_mul_u32_u24 %s, 12288, %s' % (R(v_off), R(v_rg)))
    p('v_lshl_add_u32 %s, %s, 4, %s' % (R(v_off), R(v_c4), R(v_off)))
    p('s_lshl_b32 s20, %s, 6' % s_strip)
    for i in range(NL):
        p('s_add_u32 s21, s20, 0x%x' % (i * RG * 12288))
        p('buffer_load_dwordx4 %s, %s, s[4:7], s21 offen' % (R(w[i], 0, 4), R(v_off)))
    p('v_lshlrev_b32 %s, 1, %s' % (R(v_co), R(v_rg)))
    for i in range(NL):
        p('buffer_load_ushort %s, %s, s[12:15], 0 offen offset:%d' % (R(cs[i]), R(v_co), i * RG * 2))
    p.stamp(0)
    for i in range(NL):
        p('v_lshlrev_b32 %s, 16, %s' % (R(cs[i]), R(cs[i])))
        if i == 0: p.stamp(1)
        silu(p, R(cs[i]), R(t[i % 4]))
        rb1(p, R(cs[i]))
    for i in range(NL):
        for d in range(4):
            unpack(p, R(u, 2 * d), R(u, 2 * d + 1), R(w[i], d))
        for e in range(8):
            if i == 0: p('v_mul_f32 %s, %s, %s' % (R(acc, e), R(cs[i]), R(u, e)))
            else: p('v_fmac_f32 %s, %s, %s' % (R(acc, e), R(cs[i]), R(u, e)))
    p.stamp(2)
    for n in (4, 8):
        for e in range(8): ror_add(p, R(acc, e), n)
    p('v_lshrrev_b32 %s, 4, v0' % R(t[0]))
    p('v_lshlrev_b32 %s, 7, %s' % (R(t[0]), R(t[0])))
    p('v_lshl_add_u32 %s, %s, 5, %s' % (R(t[0]), R(v_c4), R(t[0])))
    p('v_and_b32 %s, 15, v0' % R(t[1]))
    p('v_cmp_gt_u32 vcc, 4, %s' % R(t[1]))
    p('s_and_saveexec_b64 s[22:23], vcc')
    p('ds_write_b128 %s, %s' % (R(t[0]), R(acc, 0, 4)))
    p('ds_write_b128 %s, %s offset:16' % (R(t[0]), R(acc, 4, 4)))
    p('s_mov_b64 exec, s[22:23]')
    p('s_waitcnt lgkmcnt(0)')
    p('s_barrier')
    p.stamp(3)
    p('v_cmp_gt_u32 vcc, 64, v0')
    p('s_and_saveexec_b64 s[22:23], vcc')
    p('s_cbranch_execz %s_end' % name)
    NR = T // 16 // 2
    p('v_and_b32 %s, 31, v0' % R(t[1]))
    p('v_lshrrev_b32 %s, 5, v0' % R(t[2]))
    p('v_mul_u32_u24 %s, %d, %s' % (R(t[2]), NR * 128, R(t[2])))
    p('v_lshl_add_u32 %s, %s, 2, %s' % (R(t[2]), R(t[1]), R(t[2])))
    for i in range(NR):
        p('ds_read_b32 %s, %s offset:%d' % (R(w[i // 4], i % 4), R(t[2]), i * 128))
    p('s_lshl_b32 s21, %s, 5' % s_strip)
    p('v_add_u32 %s, s21, %s' % (R(t[1]), R(t[1])))
    p('v_and_b32 %s, 1023, %s' % (R(t[3]), R(t[1])))
    p('v_lshlrev_b32 %s, 1, %s' % (R(t[3]), R(t[3])))
    p('buffer_load_ushort %s, %s, s[16:19], 0 offen' % (R(u, 0), R(t[3])))
    a = R(acc, 0)
    p('v_mov_b32 %s, %s' % (a, R(w[0], 0)))
    for i in range(1, NR):
        p('v_add_f32 %s, %s, %s' % (a, a, R(w[i // 4], i % 4)))
    xor32_add(p, a, R(acc, 1))
    rb1(p, a)
    p('s_lshr_b32 s24, %s, 5' % s_strip)
    p('s_cmp_eq_u32 s24, 1'); p('s_cselect_b32 s25, 1.0, 0')
    p('s_cmp_eq_u32 s24, 4'); p('s_cselect_b32 s25, 1.0, s25')
    p('v_add_f32 %s, s25, %s' % (a, a))
    rb1(p, a)
    p.stamp(4)
    p('v_lshlrev_b32 %s, 2, %s' % (R(t[2]), R(t[1])))
    p('s_mov_b32 s26, 0x%x' % WS_MOD)
    p('v_cmp_gt_u32 vcc, 32, v0')
    p('s_and_b64 exec, exec, vcc')
    p('buffer_store_dword %s, %s, s[8:11], s26 offen' % (a, R(t[2])))
    p('v_lshrrev_b32 %s, 16, %s' % (R(acc, 2), a))
    p('v_lshlrev_b32 %s, 1, %s' % (R(t[0]), R(t[1])))
    p('s_mov_b32 s26, 0x%x' % WS_MODB)
    p('buffer_store_short %s, %s, s[8:11], s26 offen' % (R(acc, 2), R(t[0])))
    p('s_cmp_lg_u32 s24, 4')
    p('s_cbranch_scc1 %s_end' % name)
    p('v_lshlrev_b32 %s, 16, %s' % (R(u, 0), R(u, 0)))
    p('v_mul_f32 %s, %s, %s' % (R(u, 1), a, R(u, 0)))
    p('s_mov_b32 s26, 0x%x' % (WS_MOD + 2 * 4096))
    p('buffer_store_dword %s, %s, s[8:11], s26 offen' % (R(u, 1), R(t[2])))
    p('s_branch %s_end' % name)
    return V.n

def load_common(p):
    p('s_load_dwordx2 s[4:5], s[0:1], %d' % KA['wmod'])
    p('s_load_dwordx2 s[8:9], s[0:1], %d' % KA['ws'])
    p('s_load_dwordx2 s[12:13], s[0:1], %d' % KA['c'])
    p('s_load_dwordx2 s[16:17], s[0:1], %d' % KA['wr'])
    srd(p, 4, 0, 1024 * 6144 * 2); srd(p, 8, 0, WS_SIZE); srd(p, 12, 0, 2048); srd(p, 16, 0, 2048)

def gen_k1a(name='k1a_kernel', NSTRIP=64):
    p = Prog()
    NWG = NSTRIP + 128
    p('s_cmp_ge_u32 s2, %d' % NWG)
    p('s_cbranch_scc1 %s_end' % name)
    load_common(p)
    p('s_load_dwordx2 s[28:29], s[0:1], %d' % KA['k'])
    p('s_load_dwordx2 s[32:33], s[0:1], %d' % KA['v'])
    srd(p, 28, 0, 2097152); srd(p, 32, 0, 2097152)
    p('s_waitcnt lgkmcnt(0)')
    p('s_cmp_ge_u32 s2, %d' % NSTRIP)
    p('s_cbranch_scc1 %s_kv' % name)
    nv = mod_strip(p, name, 512, 's2')
    p.label('%s_kv' % name)
    p.flush()
    p('s_sub_u32 s20, s2, %d' % NSTRIP)
    p('s_cmp_ge_u32 s20, 12')
    p('s_cbranch_scc1 %s_nz' % name)
    p('s_lshl_b32 s21, s20, 11')
    p('s_add_u32 s21, s21, 0x%x' % WS_STAT)
    p('v_lshlrev_b32 v1, 2, v0')
    p('v_mov_b32 v2, 0')
    p('buffer_store_dword v2, v1, s[8:11], s21 offen')
    p.label('%s_nz' % name)
    p('v_lshrrev_b32 v1, 6, v0')
    p('v_and_b32 v0, 63, v0')
    p('v_readfirstlane_b32 s21, v1')
    p('s_lshl_b32 s20, s20, 3')
    p('s_add_u32 s20, s20, s21')
    p('s_lshr_b32 s22, s20, 8')
    p('s_bfe_u32 s23, s20, 0x40004')
    p('s_and_b32 s24, s20, 15')
    p('s_lshl_b32 s25, s22, 19')
    p('s_lshl_b32 s26, s23, 13')
    p('s_add_u32 s25, s25, s26')
    p('s_add_u32 s25, s25, %d' % (1536 * 256))
    p('v_and_b32 v2, 31, v0')
    p('v_lshrrev_b32 v3, 5, v0')
    p('v_lshlrev_b32 v4, 4, v0')
    p('s_lshl_b32 s27, s20, 10')
    p('s_add_u32 s27, s27, 0x%x' % WS_KV)
    p('s_cmp_ge_u32 s24, 8')
    p('s_cbranch_scc1 %s_v' % name)
    p('v_lshlrev_b32 v5, 8, v2')
    p('v_lshl_add_u32 v5, v3, 3, v5')
    p('s_lshl_b32 s26, s24, 5')
    p('s_add_u32 s25, s25, s26')
    p('buffer_load_dwordx2 v[8:9], v5, s[28:31], s25 offen')
    p('buffer_load_dwordx2 v[10:11], v5, s[28:31], s25 offen offset:16')
    p('buffer_store_dwordx4 v[8:11], v4, s[8:11], s27 offen')
    p('s_branch %s_end' % name)
    p.label('%s_v' % name)
    p.flush()
    p('s_bfe_u32 s26, s24, 0x10002')
    p('s_lshl_b32 s26, s26, 12')
    p('s_add_u32 s25, s25, s26')
    p('s_and_b32 s26, s24, 3')
    p('s_lshl_b32 s26, s26, 6')
    p('s_add_u32 s25, s25, s26')
    p('v_lshlrev_b32 v5, 10, v3')
    p('v_lshl_add_u32 v5, v2, 1, v5')
    for e in range(8):
        p('buffer_load_ushort v%d, v5, s[32:35], s25 offen offset:%d' % (12 + e, (8 * (e // 4) + e % 4) * 256))
    for d in range(4):
        p('v_lshl_or_b32 v%d, v%d, 16, v%d' % (8 + d, 12 + 2 * d + 1, 12 + 2 * d))
    p('buffer_store_dwordx4 v[8:11], v4, s[8:11], s27 offen')
    p.label('%s_end' % name)
    p('s_endpgm')
    nv = max(nv, 24)
    return p.emit(), dict(vgpr=nv, accum=(nv + 3) // 4 * 4, sgpr=48, lds=4096, block=512, grid=NWG)

def ln_apply(p, x, n, mean_b, sd, rcp, c1, sh, t0, t1):
    for i in range(n): p('v_sub_f32 %s, %s, %s' % (x[i], x[i], mean_b))
    for i in range(0, n, 2): rb2(p, x[i], x[i + 1], t0)
    for i in range(n):
        p('v_mul_f32 %s, %s, %s' % (t1, x[i], rcp))
        p('v_fma_f32 %s, -%s, %s, %s' % (x[i], t1, sd, x[i]))
        p('v_fma_f32 %s, %s, %s, %s' % (x[i], x[i], rcp, t1))
    for i in range(0, n, 2): rb2(p, x[i], x[i + 1], t0)
    for i in range(n): p('v_mul_f32 %s, %s, %s' % (x[i], x[i], c1[i]))
    for i in range(0, n, 2): rb2(p, x[i], x[i + 1], t0)
    for i in range(n): p('v_add_f32 %s, %s, %s' % (x[i], x[i], sh[i]))

def ln_scalars(p, mean, var, sd, rcp):
    rb1(p, mean)
    rb1(p, var)
    p('v_add_f32 %s, 0x%x, %s' % (var, f2u(1e-5), var))
    rb1(p, var)
    p('v_sqrt_f32 %s, %s' % (sd, var))
    rb1(p, sd)
    p('v_rcp_f32 %s, %s' % (rcp, sd))

def gen_k1b(name='k1b_kernel', FIRST=64):
    p = Prog()
    NWG = 256 + (192 - FIRST)
    p('s_cmp_ge_u32 s2, %d' % NWG)
    p('s_cbranch_scc1 %s_end' % name)
    load_common(p)
    p('s_load_dwordx2 s[28:29], s[0:1], %d' % KA['x'])
    srd(p, 28, 0, 4194304)
    p('s_waitcnt lgkmcnt(0)')
    p('s_cmp_lt_u32 s2, %d' % (192 - FIRST))
    p('s_cbranch_scc0 %s_h' % name)
    p('s_add_u32 s3, s2, %d' % FIRST)
    nv1 = mod_strip(p, name, 256, 's3')
    p.label('%s_h' % name)
    p.flush()
    p('s_sub_u32 s3, s2, %d' % (192 - FIRST))
    V = RA('v', 1, 256)
    v_r = V.alloc(1); v_c = V.alloc(1); v_xo = V.alloc(1); v_mo = V.alloc(1); v_so = V.alloc(1); v_w = V.alloc(1)
    t = [V.alloc(1) for _ in range(6)]
    xr = [V.alloc(4, 4) for _ in range(4)]
    cr = [V.alloc(4, 4) for _ in range(4)]
    sr = [V.alloc(4, 4) for _ in range(4)]
    x = V.alloc(32, 4); c1 = V.alloc(32, 4); sh = V.alloc(32, 4)
    p('v_and_b32 %s, 7, v0' % R(v_r))
    p('v_bfe_u32 %s, v0, 3, 3' % R(v_c))
    p('v_lshrrev_b32 %s, 6, v0' % R(v_w))
    p('v_lshlrev_b32 %s, 9, %s' % (R(v_mo), R(v_w)))
    p('v_lshl_add_u32 %s, %s, 4, %s' % (R(v_mo), R(v_c), R(v_mo)))
    p('v_lshl_add_u32 %s, %s, 11, %s' % (R(v_xo), R(v_r), R(v_mo)))
    p('s_lshl_b32 s20, s3, 14')
    for i in range(4):
        p('buffer_load_dwordx4 %s, %s, s[28:31], s20 offen offset:%d' % (R(xr[i], 0, 4), R(v_xo), i * 128))
    p('s_mov_b32 s21, 0x%x' % WS_MODB)
    p('s_mov_b32 s22, 0x%x' % (WS_MODB + 2048))
    for i in range(4):
        p('buffer_load_dwordx4 %s, %s, s[8:11], s21 offen offset:%d' % (R(sr[i], 0, 4), R(v_mo), i * 128))
        p('buffer_load_dwordx4 %s, %s, s[8:11], s22 offen offset:%d' % (R(cr[i], 0, 4), R(v_mo), i * 128))
    p.stamp(0)
    for i in range(4):
        for d in range(4): unpack(p, R(x, 8 * i + 2 * d), R(x, 8 * i + 2 * d + 1), R(xr[i], d))
    p.stamp(1)
    X = [R(x, i) for i in range(32)]
    def wg_reduce(a, ldsoff):
        ror_add(p, a, 8); xor16_add(p, a, R(t[5])); xor32_add(p, a, R(t[5]))
        p('ds_write_b32 %s, %s offset:%d' % (R(v_so), a, ldsoff))
        p('s_waitcnt lgkmcnt(0)')
        p('s_barrier')
        p('ds_read_b128 %s, %s offset:%d' % (R(xr[0], 0, 4), R(t[4]), ldsoff))
        p('v_add_f32 %s, %s, %s' % (a, R(xr[0], 0), R(xr[0], 1)))
        p('v_add_f32 %s, %s, %s' % (R(xr[0], 2), R(xr[0], 2), R(xr[0], 3)))
        p('v_add_f32 %s, %s, %s' % (a, a, R(xr[0], 2)))
    p('v_lshlrev_b32 %s, 4, %s' % (R(t[4]), R(v_r)))
    p('v_lshl_add_u32 %s, %s, 2, %s' % (R(v_so), R(v_w), R(t[4])))
    mean, var, sd, rcp = R(t[0]), R(t[1]), R(t[2]), R(t[3])
    p('v_add_f32 %s, %s, %s' % (mean, X[0], X[1]))
    for i in range(2, 32): p('v_add_f32 %s, %s, %s' % (mean, mean, X[i]))
    wg_reduce(mean, 0)
    p('v_mul_f32 %s, 0x%x, %s' % (mean, f2u(1.0 / 1024), mean))
    p('v_sub_f32 %s, %s, %s' % (sd, X[0], mean))
    p('v_mul_f32 %s, %s, %s' % (var, sd, sd))
    for i in range(1, 32):
        p('v_sub_f32 %s, %s, %s' % (sd if i % 2 else rcp, X[i], mean))
        p('v_fmac_f32 %s, %s, %s' % (var, sd if i % 2 else rcp, sd if i % 2 else rcp))
    wg_reduce(var, 128)
    p('v_mul_f32 %s, 0x%x, %s' % (var, f2u(1.0 / 1024), var))
    p.stamp(2)
    p('s_lshl_b32 s23, s3, 5')
    p('s_add_u32 s23, s23, 0x%x' % (WS_STAT + 3 * 8192))
    p('v_lshlrev_b32 %s, 2, v0' % R(t[4]))
    p('v_cmp_gt_u32 vcc, 8, v0')
    p('s_and_saveexec_b64 s[24:25], vcc')
    p('buffer_store_dword %s, %s, s[8:11], s23 offen' % (mean, R(t[4])))
    p('s_mov_b64 exec, s[24:25]')
    for i in range(4):
        for d in range(4):
            unpack(p, R(c1, 8 * i + 2 * d), R(c1, 8 * i + 2 * d + 1), R(cr[i], d))
            unpack(p, R(sh, 8 * i + 2 * d), R(sh, 8 * i + 2 * d + 1), R(sr[i], d))
    p.stamp(5)
    ln_scalars(p, mean, var, sd, rcp)
    ln_apply(p, X, 32, mean, sd, rcp, [R(c1, i) for i in range(32)], [R(sh, i) for i in range(32)], R(t[4]), R(t[5]))
    p.stamp(6)
    p('v_lshlrev_b32 %s, 5, %s' % (R(v_so), R(v_mo)))
    p('v_lshl_add_u32 %s, %s, 4, %s' % (R(v_so), R(v_r), R(v_so)))
    p('s_lshr_b32 s23, s3, 2')
    p('s_lshl_b32 s23, s23, 16')
    p('s_and_b32 s24, s3, 3')
    p('s_lshl_b32 s24, s24, 7')
    p('s_add_u32 s23, s23, s24')
    if WS_H: p('s_add_u32 s23, s23, 0x%x' % WS_H)
    for i in range(4):
        for d in range(4):
            p('v_cvt_pk_bf16_f32 %s, %s, %s' % (R(xr[i], d), X[8 * i + 2 * d], X[8 * i + 2 * d + 1]))
        p('s_add_u32 s24, s23, %d' % (i * 4096))
        p('buffer_store_dwordx4 %s, %s, s[8:11], s24 offen' % (R(xr[i], 0, 4), R(v_so)))
    p.label('%s_end' % name)
    p('s_endpgm')
    nv = max(nv1, V.n)
    return p.emit(), dict(vgpr=nv, accum=(nv + 3) // 4 * 4, sgpr=48, lds=4096, block=256, grid=NWG)
```

```python
from abl_m import *
kw = dict(wopf=40, mf_at=[22,26,27,28], slp={"h": 48, "a": 32}, WD_AT=130, p1st=[0,1,2,4,6,8,12,15], qkst=[0])
noh = lambda t: t.startswith('buffer_load_dwordx4') and 'v7,' in t
nodma = lambda t: (t.startswith('buffer_load') and 'lds' in t)
variant('ab_a', 60, 7, noh, **kw)
variant('ab_b', 60, 7, nodma, **kw)
variant('ab_c', 60, 7, lambda t: noh(t) or nodma(t), **kw)
```

```python
import re
HEADER = open('adaLN_cond__sliding_block_cached__moe_arch_mod__prompt.s.ref').read().split('; Override')[0]
WS_PROF = 0x3800000
NST = 18
import os
RT = bool(os.environ.get('RT'))
KNAME = 'adaLN_cond__sliding_block_cached__moe_arch_mod__prompt_kernel'

def add_prof(name, body, extra, keep):
    slot = {s: i for i, s in enumerate(keep)}
    assert len(keep) <= NST
    pre = "    s_memrealtime s[100:101]\n    s_waitcnt lgkmcnt(0)\n    s_mov_b32 s98, s100\n    s_memtime s[100:101]\n    s_waitcnt lgkmcnt(0)\n    s_mov_b32 s99, s100\n"
    pre += ''.join("    s_mov_b32 s%d, s100\n" % (80 + i) for i in range(NST))
    def st(m):
        k = int(m.group(1))
        if k not in slot: return '; stamp %d dropped' % k
        return '%s s[100:101]\n    s_waitcnt lgkmcnt(0)\n    s_mov_b32 s%d, s100' % ('s_memrealtime' if RT else 's_memtime', 80 + slot[k])
    body = re.sub(r'; STAMP (\d+)', st, body)
    post = """    s_waitcnt vmcnt(0) lgkmcnt(0)
    s_memrealtime s[4:5]
    s_memtime s[100:101]
    s_load_dwordx2 s[8:9], s[0:1], 112
    v_readfirstlane_b32 s6, v0
    s_waitcnt lgkmcnt(0)
    s_mov_b32 s10, 0x5000000
    s_mov_b32 s11, 0x20000
    s_lshr_b32 s6, s6, 6
    s_lshl_b32 s7, s2, 3
    s_add_u32 s6, s6, s7
    s_lshl_b32 s6, s6, 7
    s_add_u32 s6, s6, 0x%x
    s_sub_u32 s100, s100, s99
    s_mov_b64 exec, 1
    v_mov_b32 v4, 0
    v_mov_b32 v8, s98
    v_mov_b32 v9, s4
    v_mov_b32 v10, s100
    v_mov_b32 v11, 0x1234
    buffer_store_dwordx4 v[8:11], v4, s[8:11], s6 offen
""" % WS_PROF
    for g in range(0, NST, 4):
        for i in range(4):
            if g + i < NST:
                post += "    s_sub_u32 s7, s%d, %s\n    v_mov_b32 v%d, s7\n" % (80 + g + i, "0" if RT else "s99", 12 + g + i)
        post += "    s_nop 1\n    buffer_store_dwordx4 v[%d:%d], v4, s[8:11], s6 offen offset:%d\n" % (12 + g, 15 + g, 16 + 4 * g)
    post += "    s_endpgm\n"
    assert body.rstrip().endswith('s_endpgm')
    body = body.replace('s_cbranch_scc1 %s_end' % name, 's_cbranch_scc1 %s_quit' % name, 1)
    body = pre + body.rstrip()[:-len('s_endpgm')].rstrip() + '\n' + post + '%s_quit:\n    s_endpgm\n' % name
    return body

def assemble(name, body, extra, info, path, prof=None, listform=False):
    sg = info['sgpr']
    if prof is not None:
        body = add_prof(name, body, extra, prof); sg = 102
    out = HEADER
    if listform: out += '; @launch kernel=%s grid=(%d,1,1) block=(%d,1,1) lds=%d\n' % (name, info['grid'], info['block'], info['lds'])
    else: out += '; @launch grid=(%d,1,1) block=(%d,1,1) lds=%d\n' % (info['grid'], info['block'], info['lds'])
    out += '.amdgcn_target "amdgcn-amd-amdhsa--gfx950"\n.text\n'
    out += '.globl %s\n.p2align 8\n.type %s,@function\n%s:\n' % (name, name, name)
    out += body + extra
    out += '.section .rodata,"a"\n.p2align 6\n.amdhsa_kernel %s\n' % name
    out += '  .amdhsa_next_free_vgpr %d\n  .amdhsa_next_free_sgpr %d\n  .amdhsa_accum_offset %d\n' % (info['vgpr'], sg, info['accum'])
    out += '  .amdhsa_group_segment_fixed_size 0\n  .amdhsa_kernarg_size 120\n  .amdhsa_user_sgpr_count 2\n'
    out += '  .amdhsa_user_sgpr_kernarg_segment_ptr 1\n  .amdhsa_system_sgpr_workgroup_id_x 1\n'
    out += '  .amdhsa_float_denorm_mode_32 3\n'
    out += '.end_amdhsa_kernel\n'
    open(path, 'w').write(out)

def add_dbg(name, body, keep, wg=77, wave=1):
    slot = {s: i for i, s in enumerate(keep)}
    assert len(keep) <= 14
    pre = "    s_memrealtime s[100:101]\n    s_waitcnt lgkmcnt(0)\n    s_mov_b32 s98, s100\n    s_memtime s[100:101]\n    s_waitcnt lgkmcnt(0)\n    s_mov_b32 s99, s100\n"
    pre += ''.join("    s_mov_b32 s%d, s100\n" % (80 + i) for i in range(14))
    def st(m):
        k = int(m.group(1))
        if k not in slot: return '; stamp %d dropped' % k
        return 's_memtime s[100:101]\n    s_waitcnt lgkmcnt(0)\n    s_mov_b32 s%d, s100' % (80 + slot[k])
    body = re.sub(r'; STAMP (\d+)', st, body)
    post = """    s_waitcnt vmcnt(0) lgkmcnt(0)
    v_readfirstlane_b32 s6, v0
    s_lshr_b32 s6, s6, 6
    s_cmp_lg_u32 s6, %d
    s_cbranch_scc1 %s_quit
    s_cmp_lg_u32 s2, %d
    s_cbranch_scc1 %s_quit
    s_memrealtime s[4:5]
    s_load_dwordx2 s[8:9], s[0:1], 104
    s_waitcnt lgkmcnt(0)
    s_mov_b32 s10, 256
    s_mov_b32 s11, 0x20000
    s_mov_b64 exec, 1
    v_mov_b32 v4, 0
""" % (wave, name, wg, name)
    for i in range(14):
        post += "    s_sub_u32 s7, s%d, s99\n    v_mov_b32 v8, s7\n    s_nop 1\n    buffer_store_dword v8, v4, s[8:11], 0 offen offset:%d\n" % (80 + i, 4 + 4 * i)
    post += "    s_sub_u32 s7, s4, s98\n    v_mov_b32 v8, s7\n    s_nop 1\n    buffer_store_dword v8, v4, s[8:11], 0 offen offset:60\n    s_endpgm\n"
    body = body.replace('s_cbranch_scc1 %s_end' % name, 's_cbranch_scc1 %s_quit' % name, 1)
    return pre + body.rstrip()[:-len('s_endpgm')].rstrip() + '\n' + post + '%s_quit:\n    s_endpgm\n' % name
```

```python
import sys
from mega import gen_mega
from build2 import assemble, KNAME
import os
KEEP = eval(os.environ.get('KEEP', '[0, 1, 2, 3, 4, 5, 6, 7, 9, 10, 11, 12, 13, 14, 15, 17, 18, 19]'))
def build(tag, final=False, **kw):
    body, extra, info = gen_mega('mega_kernel', **kw)
    assemble('mega_kernel', body, extra, info, 'exp/%s.s' % tag, listform=True)
    assemble('mega_kernel', body, extra, info, 'exp/%s_p.s' % tag, prof=KEEP, listform=True)
    if final:
        body, extra, info = gen_mega(KNAME, **kw)
        assemble(KNAME, body, extra, info, 'adaLN_cond__sliding_block_cached__moe_arch_mod__prompt.s')
if __name__ == '__main__':
    import json
    var = json.loads(sys.argv[1]) if len(sys.argv) > 1 else {'m_all': {}}
    for tag, kw in var.items(): build(tag, **kw)
```

```python
WS_H     = 0x0000000
WS_KF    = 0x0400000
WS_VF    = 0x0480000
WS_MODG  = 0x0500000
WS_STG   = 0x0520000
WS_HFLAG = 0x0528000
WS_OFLAG = 0x0570000
WS_AFLAG = 0x0530000
WS_MODB  = 0x0540000
WS_MFLAG = 0x0544000
WS_MODP  = 0x0580000
WS_MPFLAG = 0x0560000
WS_BIGV  = 0x0564000
WS_CSW   = 0x0550000
WS_Z     = 0x0600000
WS_YP    = WS_Z
WS_KEY   = WS_Z + 0xE0000
WS_GUP   = WS_Z + 0xE1000
WS_O     = 0x1000000
WS_AP    = 0x2000000
WS_SIZE  = 0x3400000

KA = dict(x=0, k=8, v=16, wq=24, wo=32, bx=40, wr=48, wg=56, wu=64, wd=72, c=80, wmod=88, out=96, dbg=104, ws=112)
```

```python
from asmdsl import Prog, Inst
from lay2 import *
from k2 import RA, R, Sched
from small import silu, rb1, rb2, unpack, ror_add, xor16_add, xor32_add, f2u, ln_scalars, ln_apply
import math

SPIN_MAX = 1 << 18
LOG2E = 1.4426950408889634
PTR = dict(x=32, k=34, v=36, wq=38, wo=40, bx=42, wr=44, wg=46, wu=48, wd=50, c=52, wmod=54, out=56, dbg=58, ws=60)
OOB = 0x7ffffff0
RING0 = 0; RING1 = 65536; NSL = 6
S_WS, S_A, S_B, S_C, S_D, S_E = 8, 4, 64, 68, 72, 76

def sr(b): return 's[%d:%d]' % (b, b + 3)

def gen_mega(name, stop=None, D1=4, D2=4, D3=4, PO=5, NH=3, prioB=False, gu_at=(1, 7), nwq0=3, MP_AT=(30, 70, 110), WD_AT=6, OF_AT=(180, 255, 1040, 1090), P3_AT=(196, 225), OST_SP=1, mc_comp=True, NWQ=4, MODL_ON=False, modsc=' sc1', ROT3=None, AP_WG=False, ROT=None, P3D=(1, 7), P3O=(2, 6), GU3_AT=None, wopf_pv=None, SPF=None, p1pf=None, p1st=None, dmaA=False, osc=' sc1', hsc=' sc1', kvsc=' sc1', wlin=False, p3st=None, do_gu=True, do_mc=True, do_wd=True, wopf=None, mf_at=(16, 20, 21, 23), qkst=None, pvst=None, slp=None, slp_loop=0, dma_split=False):
    slp = slp or {}
    def backoff(q, k):
        n = slp.get(k, 0)
        while n > 0:
            q('s_sleep %d' % min(n, 127)); n -= 127

    p = Prog()
    rare = []
    V = RA('v', 0, 256)
    v_tid = V.alloc(1); v_lane = V.alloc(1); v_l16 = V.alloc(1)
    v_wqoff = V.alloc(1); v_tr = V.alloc(1); v_tr2 = V.alloc(1); v_wq2 = V.alloc(1); v_hoff = V.alloc(1); v_kvoff = V.alloc(1)
    v_l = [V.alloc(1), V.alloc(1)]; v_xv = V.alloc(1)
    x4 = V.alloc(4, 4)
    v_t = [V.alloc(1) for _ in range(6)]
    PR = V.alloc(128, 4); QF = V.alloc(32, 4); SS = V.alloc(32, 4); negm = V.alloc(8, 4)
    NRA = 6
    FR = V.alloc(4 * NRA, 4); SP = V.alloc(8, 4)
    assert V.n <= 256
    def sub(reg, off): return (reg[0], reg[1] + off)
    fr = [sub(FR, 4 * i) for i in range(NRA)]
    qf = [sub(QF, 4 * i) for i in range(8)]
    S = [sub(SS, 0), sub(SS, 16)]
    tid, lane, l16 = R(v_tid), R(v_lane), R(v_l16)
    t = [R(x) for x in v_t]

    def mk_srd(q, base, ptr, size):
        q('s_mov_b64 s[%d:%d], s[%d:%d]' % (base, base + 1, PTR[ptr], PTR[ptr] + 1))
        q('s_mov_b32 s%d, 0x%x' % (base + 2, size)); q('s_mov_b32 s%d, 0x20000' % (base + 3))
    cnt = [0]
    def poll(q, tag, loads, test):
        cnt[0] += 1
        lab = '%s_%s%d' % (name, tag, cnt[0])
        q('s_mov_b32 s27, 0')
        q.loop_begin(); q.label(lab + 'p')
        loads(); test()
        if slp_loop: q('s_cbranch_vccz %sg' % lab); q('s_sleep %d' % slp_loop)
        q('s_add_u32 s27, s27, 1')
        q('s_cmp_ge_u32 s27, %d' % SPIN_MAX)
        q('s_cbranch_scc1 %sg' % lab)
        q('s_cbranch_vccnz %sp' % lab)
        q.loop_end()
        q.label(lab + 'g')
    def rare_poll(q, tag, test, loads, flush=True):
        cnt[0] += 1
        lab = '%s_%s%d' % (name, tag, cnt[0])
        test(q)
        q('s_cbranch_vccnz %sr' % lab)
        q.label(lab + 'b')
        z = Prog()
        z.label(lab + 'r')
        if flush: z.flush()
        z('s_mov_b32 s27, 0')
        z.loop_begin(); z.label(lab + 'p')
        loads(z); test(z)
        z('s_add_u32 s27, s27, 1')
        z('s_cmp_ge_u32 s27, %d' % SPIN_MAX)
        z('s_cbranch_scc1 %sg' % lab)
        z('s_cbranch_vccnz %sp' % lab)
        z.loop_end()
        z.label(lab + 'g'); z.flush()
        z('s_branch %sb' % lab)
        rare.append(z)

    p('s_cmp_ge_u32 s2, 256')
    p('s_cbranch_scc1 %s_end' % name)
    p('s_load_dwordx4 s[56:59], s[0:1], 96')
    p('s_load_dwordx2 s[60:61], s[0:1], 112')
    p('s_load_dwordx8 s[48:55], s[0:1], 64')
    p('s_load_dwordx16 s[32:47], s[0:1], 0')
    p('s_memrealtime s[62:63]')
    p('v_lshrrev_b32 %s, 6, %s' % (t[0], tid))
    p('v_and_b32 %s, 63, %s' % (lane, tid))
    p('v_readfirstlane_b32 s3, %s' % t[0])
    p('v_lshlrev_b32 %s, 4, %s' % (l16, lane))
    p('s_and_b32 s12, s2, 3'); p('s_lshl_b32 s12, s12, 3'); p('s_bfe_u32 s13, s2, 0x30003'); p('s_add_u32 s12, s12, s13')
    p('s_bfe_u32 s13, s2, 0x10002'); p('s_lshl_b32 s13, s13, 2'); p('s_lshr_b32 s14, s2, 6'); p('s_add_u32 s13, s13, s14')
    p('v_bfe_u32 %s, %s, 2, 2' % (t[0], lane))
    p('v_lshrrev_b32 %s, 4, %s' % (t[1], lane))
    p('v_and_b32 %s, 3, %s' % (t[2], lane))
    p('v_lshlrev_b32 %s, 6, %s' % (t[3], t[1]))
    p('v_lshl_add_u32 %s, %s, 4, %s' % (t[3], t[2], t[3]))
    p('v_lshl_add_u32 %s, %s, 13, %s' % (R(v_wqoff), t[0], t[3]))
    p('s_and_b32 s14, s3, 1'); p('s_lshl_b32 s14, s14, 5')
    p('v_xor_b32 %s, s14, %s' % (R(v_wqoff), R(v_wqoff)))
    p('v_lshlrev_b32 %s, 11, %s' % (R(v_tr), t[1]))
    p('v_lshl_add_u32 %s, %s, 6, %s' % (R(v_tr), t[0], R(v_tr)))
    p('v_lshl_add_u32 %s, %s, 3, %s' % (R(v_tr), t[2], R(v_tr)))
    p('v_and_b32 %s, 1, %s' % (t[4], t[1])); p('v_lshlrev_b32 %s, 5, %s' % (t[4], t[4]))
    p('v_sub_u32 %s, %s, %s' % (R(v_tr2), R(v_tr), t[4]))
    p('v_add_u32 %s, %s, %s' % (R(v_tr), R(v_tr), t[4]))
    p('s_lshl_b32 s14, s13, 3'); p('s_add_u32 s14, s14, s3'); p('s_lshl_b32 s14, s14, 16')
    p('v_add_u32 %s, s14, %s' % (R(v_hoff), l16))
    p('s_cmp_ge_u32 s3, 4')
    p('s_cbranch_scc1 %s_roleB' % name)

    def wq_slot(s):
        k = s % NWQ
        return RING0 + k * 16384 if k < 4 else RING1 + k * 16384
    def dma_wq(s):
        out = []
        for i in range(2):
            if ROT:
                if i == 0: out.append(('s_add_u32 s22, s25, 0x%x\ns_and_b32 s22, s22, 0x7fffff\ns_add_u32 s22, s22, s19' % (s * 64 * 8192), None))
                else: out.append(('s_add_u32 s22, s22, 32768', None))
            else:
                out.append(('s_add_u32 s22, s19, 0x%x' % (s * 64 * 8192 + i * 32768), None))
            out.append(('s_add_u32 m0, s20, 0x%x' % (wq_slot(s) + i * 1024), None))
            out.append(('buffer_load_dwordx4 %s, %s, s22 offen lds' % (R(v_wqoff), sr(S_A)), 'wq%d' % s))
        return out
    def slot(c): return RING1 + (c % NSL) * 16384
    W0 = 18
    def dma_chunk(c):
        out = []
        for i in range(2):
            if c < 8 or 10 <= c < 18:
                off = (c * 16384 if c < 8 else (WS_VF - WS_KF) + (c - 10) * 16384) + i * 1024
                out.append(('s_add_u32 s22, s21, 0x%x' % off, None))
                out.append(('s_add_u32 m0, s20, 0x%x' % (slot(c) + i * 1024), None))
                out.append(('buffer_load_dwordx4 %s, %s, s22 offen%s lds' % (l16, sr(S_WS), kvsc), 'ch%d' % c))
            elif c < 10:
                out.append(('s_add_u32 s22, s14, 0x%x' % (((c - 8) * 64 + 4 * i) * 12288), None))
                out.append(('s_add_u32 m0, s20, 0x%x' % (slot(c) + i * 1024), None))
                out.append(('buffer_load_dwordx4 %s, %s, s22 offen lds' % (R(v_wq2), sr(S_E)), 'ch%d' % c))
            else:
                s_ = c - W0
                if ROT3:
                    if i == 0: out.append(('s_lshl_b32 s22, s62, 6\ns_add_u32 s22, s22, 0x%x\ns_and_b32 s22, s22, 0x3fffff\ns_add_u32 s22, s22, s24\ns_add_u32 s22, s22, 0x%x' % ((s_ % 8) * 0x80000, (s_ // 8) * 32 * 2048), None))
                    else: out.append(('s_add_u32 s22, s22, 8192', None))
                else:
                    out.append(('s_add_u32 s22, s24, 0x%x' % (((s_ % 8) * 256 + (s_ // 8) * 32) * 2048 + i * 8192), None))
                out.append(('s_add_u32 m0, s20, 0x%x' % (slot(c) + i * 1024), None))
                out.append(('buffer_load_dwordx4 %s, %s, s22 offen lds' % (R(v_wqoff), sr(S_A)), 'ch%d' % c))
        return out

    acc3 = [[sub(PR, 64 + (n * 2 + qs) * 4) for qs in range(2)] for n in range(8)]
    OB = [[sub(PR, (k * 2 + qs) * 4) for qs in range(2)] for k in range(PO)]
    assert PO * 8 <= 64
    v_oo = v_wq2
    def oload(s, qs):
        return [('s_add_u32 s23, s62, 0x%x\ns_and_b32 s23, s23, 0xffff\ns_or_b32 s23, s23, 0x%x' % ((s % 8) * 8192, qs * 131072) if qs else
                 's_add_u32 s23, s62, 0x%x\ns_and_b32 s23, s23, 0xffff' % ((s % 8) * 8192)) if ROT3 else 's_mov_b32 s23, 0x%x' % (qs * 131072 + (s % 8) * 8192),
                'buffer_load_dwordx4 %s, %s, %s, s23 offen offset:%d%s' % (R(OB[s % PO][qs], 0, 4), R(v_oo), sr(S_WS), (s // 8) * 1024, osc)]
    of2 = R(x4, 0)
    def of_load(q): q('buffer_load_dword %s, %s, %s, s17k offen sc1'.replace('s17k', 's19') % (of2, R(x4, 1), sr(S_WS)))
    def p3_setup(q, ks):
        q('s_bfe_u32 s30, s2, 0x20001'); q('s_lshl_b32 s30, s30, 2'); q('s_bfe_u32 s17, s2, 0x20003'); q('s_add_u32 s30, s30, s17')
        q('s_lshr_b32 s31, s2, 5')
        q('s_and_b32 s17, s3, 3'); q('s_lshl_b32 s19, s30, 2'); q('s_add_u32 s19, s19, s17')
        q('s_and_b32 s16, s2, 1')
        q('s_lshl_b32 s17, s19, 18'); q('s_lshl_b32 s23, s16, 16'); q('s_add_u32 s17, s17, s23'); q('s_add_u32 s17, s17, 0x%x' % (WS_O + ks * 4096))
        q('v_add_u32 %s, s17, %s' % (R(v_oo), l16))
        q('s_lshl_b32 s19, s19, 7'); q('s_lshl_b32 s23, s16, 6'); q('s_add_u32 s19, s19, s23'); q('s_add_u32 s19, s19, 0x%x' % WS_OFLAG)
        q('v_and_b32 %s, 15, %s' % (R(x4, 1), lane)); q('v_lshlrev_b32 %s, 2, %s' % (R(x4, 1), R(x4, 1)))
        of_load(q)
    def p3_addr(ks):
        o = []
        o.append('v_bfe_u32 %s, %s, 2, 2' % (t[2], lane)); o.append('v_lshrrev_b32 %s, 4, %s' % (t[3], lane)); o.append('v_and_b32 %s, 3, %s' % (t[1], lane))
        o.append('v_lshlrev_b32 %s, 11, %s' % (t[0], t[3]))
        o.append('v_lshl_add_u32 %s, %s, 6, %s' % (t[0], t[2], t[0]))
        o.append('v_lshl_add_u32 %s, %s, 3, %s' % (t[0], t[1], t[0]))
        o.append('v_add_u32 %s, 0x%x, %s' % (t[0], 0x10000 + ks * 8192, t[0]))
        o.append('v_and_b32 %s, 1, %s' % (t[3], t[3])); o.append('v_lshlrev_b32 %s, 5, %s' % (t[3], t[3]))
        o.append('v_sub_u32 %s, %s, %s' % (R(v_tr2), t[0], t[3]))
        o.append('v_add_u32 %s, %s, %s' % (R(v_tr), t[0], t[3]))
        o.append('v_add_u32 %s, 0x10000, %s' % (R(v_hoff), R(v_tr))); o.append('v_add_u32 %s, 0x10000, %s' % (R(v_kvoff), R(v_tr2)))
        return o

    CSF = [sub(PR, 120), sub(PR, 124), sub(SP, 0), sub(SP, 4)]; MACC = sub(x4, 0); MFR = [sub(PR, 112), sub(PR, 116)]; v_m = v_hoff
    def m_setup(q):
        mk_srd(q, S_E, 'wmod', 1024 * 6144 * 2)
        q('v_bfe_u32 %s, %s, 2, 2' % (t[4], lane)); q('v_lshlrev_b32 %s, 12, %s' % (t[4], t[4]))
        q('v_add_u32 %s, %s, %s' % (R(v_wq2), R(v_wqoff), t[4]))
        q('s_lshr_b32 s16, s2, 5'); q('s_lshl_b32 s16, s16, 7'); q('s_lshl_b32 s17, s3, 3'); q('s_add_u32 s16, s16, s17'); q('s_mul_i32 s14, s16, 12288')
        q('s_and_b32 s16, s2, 31'); q('s_lshl_b32 s16, s16, 8'); q('s_add_u32 s14, s14, s16'); q('s_add_u32 s14, s14, 4096')
    def m_cs(q):
        q('v_lshrrev_b32 %s, 4, %s' % (t[4], lane)); q('v_lshlrev_b32 %s, 4, %s' % (t[5], t[4]))
        q('s_lshl_b32 s16, s2, 8'); q('s_add_u32 s16, s16, 0x%x' % WS_CSW)
        for k in range(4): q('buffer_load_dwordx4 %s, %s, %s, s16 offen offset:%d sc1' % (R(CSF[k], 0, 4), t[5], sr(S_WS), k * 64))
        vm = R(v_m)
        q('v_lshlrev_b32 %s, 11, %s' % (vm, t[4]))
        q('v_xor_b32 %s, s3, %s' % (t[4], t[4])); q('v_and_b32 %s, 1, %s' % (t[4], t[4])); q('v_lshl_add_u32 %s, %s, 5, %s' % (vm, t[4], vm))
        q('v_bfe_u32 %s, %s, 2, 2' % (t[4], lane)); q('v_lshl_add_u32 %s, %s, 6, %s' % (vm, t[4], vm))
        q('v_and_b32 %s, 3, %s' % (t[4], lane)); q('v_lshl_add_u32 %s, %s, 3, %s' % (vm, t[4], vm))
        q('s_lshr_b32 s16, s3, 1'); q('s_lshl_b32 s16, s16, 8'); q('s_add_u32 s16, s16, %d' % slot(8))
        q('v_add_u32 %s, s16, %s' % (vm, vm))
    def m_work(sc, at):
        for k in range(4):
            off = (k // 2) * 16384 + (k % 2) * 8192
            sc.place(at + 3 * k, 'ds_read_b64_tr_b16 %s, %s offset:%d' % (R(MFR[k % 2], 0, 2), R(v_m), off))
            sc.place(at + 3 * k, 'ds_read_b64_tr_b16 %s, %s offset:%d' % (R(MFR[k % 2], 2, 2), R(v_m), off + 1024))
            sc.place(at + 3 * k + 5, 'v_mfma_f32_16x16x32_bf16 %s, %s, %s, %s' % (R(MACC, 0, 4), R(MFR[k % 2], 0, 4), R(CSF[k], 0, 4), '0' if k == 0 else R(MACC, 0, 4)))
    def m_store(q):
        q('v_lshrrev_b32 %s, 4, %s' % (t[4], lane)); q('v_lshlrev_b32 %s, 4, %s' % (t[4], t[4]))
        q('s_lshr_b32 s16, s2, 5'); q('s_lshl_b32 s16, s16, 14'); q('s_and_b32 s17, s2, 31'); q('s_lshl_b32 s17, s17, 9'); q('s_add_u32 s16, s16, s17')
        q('s_lshl_b32 s17, s3, 6'); q('s_add_u32 s16, s16, s17'); q('s_add_u32 s16, s16, 0x%x' % WS_MODP)
        q('s_mov_b32 exec_lo, 0x10001'); q('s_mov_b32 exec_hi, 0x10001')
        q('buffer_store_dwordx4 %s, %s, %s, s16 offen sc1' % (R(MACC, 0, 4), t[4], sr(S_WS)), 'mst')
        q('s_mov_b64 exec, -1')
    def mc_pub(q):
        q('v_mov_b32 %s, s28' % R(SP, 3)); q('v_mov_b32 %s, 0' % R(SP, 4))
        q('s_lshl_b32 s16, s2, 2'); q('s_add_u32 s16, s16, 0x%x' % WS_MPFLAG)
        q('s_cmp_eq_u32 s3, 0'); q('s_cselect_b32 s16, s16, 0x%x' % OOB)
        q('s_mov_b64 exec, 1')
        q('buffer_store_dword %s, %s, %s, s16 offen sc1' % (R(SP, 3), R(SP, 4), sr(S_WS)))
        q('s_mov_b64 exec, -1')
    def mc_final(sc):
        mpf = R(SP, 0); mpv = R(SP, 1); va, vb = R(SP, 2), R(SP, 5); mpw = R(SP, 6)
        sc.place(MP_AT[0], mc_pub)
        def mp_load(q):
            q('buffer_load_dword %s, %s, %s, s14 offen sc1' % (mpf, va, sr(S_WS)))
        def mp_issue(q):
            q('v_and_b32 %s, 7, %s' % (va, lane)); q('v_lshlrev_b32 %s, 7, %s' % (va, va))
            q('s_lshr_b32 s14, s2, 3'); q('s_lshl_b32 s14, s14, 2'); q('s_add_u32 s14, s14, 0x%x' % WS_MPFLAG)
            mp_load(q)
        sc.place(MP_AT[1], mp_issue)
        sc.place(MP_AT[2], lambda q: rare_poll(q, 'mp', lambda z: z('v_cmp_ne_u32 vcc, s28, %s' % mpf), mp_load))
        def mp_get(q):
            q('v_lshrrev_b32 %s, 4, %s' % (va, lane)); q('v_lshlrev_b32 %s, 14, %s' % (va, va))
            q('v_and_b32 %s, 15, %s' % (vb, lane)); q('v_lshl_add_u32 %s, %s, 2, %s' % (va, vb, va))
            q('s_lshl_b32 s14, s2, 6'); q('s_add_u32 s14, s14, 0x%x' % WS_MODP)
            q('buffer_load_dword %s, %s, %s, s14 offen sc1' % (mpv, va, sr(S_WS)))
            q('s_add_u32 s14, s14, 0x10000')
            q('buffer_load_dword %s, %s, %s, s14 offen sc1' % (mpw, va, sr(S_WS)))
        sc.place(MP_AT[2] + 1, mp_get)
        def mp_fin(q):
            q('v_add_f32 %s, %s, %s' % (mpv, mpv, mpw))
            xor16_add(q, mpv, va); xor32_add(q, mpv, va)
            rb1(q, mpv)
            q('s_lshr_b32 s14, s2, 6'); q('s_cmp_eq_u32 s14, 2'); q('s_cselect_b32 s14, 1.0, 0')
            q('v_add_f32 %s, s14, %s' % (mpv, mpv))
            q('v_cvt_pk_bf16_f32 %s, %s, %s' % (mpv, mpv, mpv))
            q('v_lshlrev_b32 %s, 1, %s' % (vb, vb))
            q('s_lshl_b32 s14, s2, 5'); q('s_add_u32 s14, s14, 0x%x' % WS_MODB)
            q('s_cmp_eq_u32 s3, 0'); q('s_cselect_b32 s14, s14, 0x%x' % OOB)
            q('s_mov_b64 exec, 0xffff')
            q('buffer_store_short %s, %s, %s, s14 offen sc1' % (mpv, vb, sr(S_WS)), 'mb')
            q('s_mov_b64 exec, -1')
        sc.place(MP_AT[2] + 24, mp_fin)
        def mp_flag(q):
            q.wait_tag('mb')
            q('v_mov_b32 %s, s28' % mpf); q('v_mov_b32 %s, 0' % mpv)
            q('s_lshl_b32 s14, s2, 2'); q('s_add_u32 s14, s14, 0x%x' % WS_MFLAG)
            q('s_cmp_eq_u32 s3, 0'); q('s_cselect_b32 s14, s14, 0x%x' % OOB)
            q('s_mov_b64 exec, 1')
            q('buffer_store_dword %s, %s, %s, s14 offen sc1' % (mpf, mpv, sr(S_WS)))
            q('s_mov_b64 exec, -1')
        sc.place(MP_AT[2] + 64, mp_flag)

    def spf(q, buf, nl, lo, hi):
        q('s_lshl_b32 s0x, s2, 3'.replace('s0x', 's16')); q('s_add_u32 s16, s16, s3'); q('s_mul_i32 s16, s16, %d' % (nl * 128))
        q('s_add_u32 s76, s%d, s16' % PTR[buf]); q('s_addc_u32 s77, s%d, 0' % (PTR[buf] + 1))
        for i in range(lo, hi): q.raw('s_load_dword s62, s[76:77], 0x%x' % (i * 128))
    def front(role):
        A_ = role == 'A'
        F = RA('v', PR[1], 256)
        w0 = F.alloc(4, 4); w1 = F.alloc(4, 4); xr = [F.alloc(4, 4), F.alloc(4, 4)]; xt = [F.alloc(4, 4), F.alloc(4, 4)]
        acc = F.alloc(8, 4); X = F.alloc(16, 4); cc = F.alloc(4, 4); g4 = F.alloc(4, 4); s4 = F.alloc(4, 4); kv = F.alloc(12, 4)
        rd = [F.alloc(4, 4) for _ in range(8)]; st = F.alloc(4, 4)
        vz = F.alloc(2, 2); vn = F.alloc(1); va = F.alloc(1); vb = F.alloc(1); vc = F.alloc(1); ve = F.alloc(1); vg = F.alloc(1); vs = F.alloc(1)
        FS = RING1; MT = RING1 + 4096
        p('v_mov_b32 %s, 0' % R(vz, 0)); p('v_mov_b32 %s, 0' % R(vz, 1))
        p('v_lshrrev_b32 %s, 3, %s' % (t[0], tid)); p('v_and_b32 %s, 7, %s' % (t[1], tid))
        p('v_mul_u32_u24 %s, %d, %s' % (R(va), 2 * 12288, t[0])); p('v_lshl_add_u32 %s, %s, 4, %s' % (R(va), t[1], R(va)))
        p('v_lshlrev_b32 %s, 2, %s' % (R(vb), t[0]))
        p('s_and_b32 s14, s2, 31'); p('s_lshr_b32 s15, s2, 5')
        p('s_mul_i32 s26, s15, %d' % (128 * 12288)); p('s_lshl_b32 s16, s14, 7'); p('s_add_u32 s26, s26, s16')
        p('s_lshl_b32 s29, s15, 8')
        p('v_lshlrev_b32 %s, 3, %s' % (R(vc), tid))
        p('s_lshl_b32 s18, s2, 3'); p('s_add_u32 s18, s18, s3'); p('s_lshl_b32 s18, s18, 11')
        p('v_and_b32 %s, 15, %s' % (t[2], lane)); p('v_lshrrev_b32 %s, 4, %s' % (t[3], lane))
        p('v_lshlrev_b32 %s, 11, %s' % (R(ve), t[2])); p('v_lshl_add_u32 %s, %s, 4, %s' % (R(ve), t[3], R(ve)))
        p('s_lshr_b32 s30, s2, 4'); p('s_and_b32 s31, s2, 15')
        p('s_lshl_b32 s19, s30, 3'); p('s_add_u32 s19, s19, s3')
        p('s_lshl_b32 s22, s19, 15'); p('s_lshl_b32 s23, s31, 7'); p('s_add_u32 s22, s22, s23')
        p('s_lshl_b32 s23, s2, 12'); p('s_add_u32 s23, s23, 0x%x' % WS_Z)
        p('s_or_b32 s25, s2, s3')
        p('s_cmp_eq_u32 s25, 0'); p('s_cselect_b32 s25, 0, 0x%x' % OOB)
        p('s_waitcnt lgkmcnt(0)')
        p.stamp(0)
        mk_srd(p, S_B, 'dbg', 256)
        p('s_or_b32 s28, s62, 1')
        p('v_mov_b32 %s, s28' % R(vn))
        p('s_mov_b64 exec, 1')
        p('buffer_store_dword %s, %s, %s, s25 offen sc1' % (R(vn), R(vz, 0), sr(S_B)))
        p('s_mov_b64 exec, -1')
        mk_srd(p, S_C, 'c', 2048); mk_srd(p, S_D, 'wmod', 1024 * 6144 * 2); mk_srd(p, S_E, 'x', 4194304); mk_srd(p, S_WS, 'ws', WS_SIZE)
        p('buffer_load_dword %s, %s, %s, s29 offen' % (R(cc, 0), R(vb), sr(S_C)))
        p('buffer_load_dwordx4 %s, %s, %s, s26 offen' % (R(w0, 0, 4), R(va), sr(S_D)))
        p('s_add_u32 s26, s26, 12288')
        p('buffer_load_dwordx4 %s, %s, %s, s26 offen' % (R(w1, 0, 4), R(va), sr(S_D)))
        for i in range(2):
            p('buffer_load_dwordx4 %s, %s, %s, s18 offen offset:%d' % (R(xr[i], 0, 4), l16, sr(S_E), i * 1024))
        if A_:
            p('s_cmp_eq_u32 s3, 0'); p('s_cselect_b32 s25, 0, 0x%x' % OOB)
            p('buffer_load_dword %s, %s, %s, s25 offen sc1' % (R(vn), R(vz, 0), sr(S_B)), 'n1')
        p('buffer_store_dwordx2 %s, %s, %s, s23 offen sc1' % (R(vz, 0, 2), R(vc), sr(S_WS)))
        p('s_barrier')
        for i in range(2):
            p('buffer_load_dwordx4 %s, %s, %s, s22 offen offset:%d' % (R(xt[i], 0, 4), R(ve), sr(S_E), i * 64))
        p('s_mov_b32 s29, s19')
        if not A_:
            mk_srd(p, S_B, 'k', 2097152); mk_srd(p, S_C, 'v', 2097152)
            p('s_lshl_b32 s20, s2, 2'); p('s_add_u32 s20, s20, s3'); p('s_sub_u32 s20, s20, 4')
            p('s_lshr_b32 s22, s20, 8'); p('s_bfe_u32 s23, s20, 0x40004'); p('s_and_b32 s24, s20, 15')
            p('s_lshl_b32 s25, s22, 19'); p('s_lshl_b32 s26, s23, 13'); p('s_add_u32 s25, s25, s26'); p('s_add_u32 s25, s25, %d' % (1536 * 256))
            p('v_and_b32 %s, 15, %s' % (t[0], lane)); p('v_lshrrev_b32 %s, 4, %s' % (t[1], lane))
            p('s_lshl_b32 s21, s22, 17')
            p('s_cmp_ge_u32 s24, 8')
            p('s_cbranch_scc1 %s_kvV' % name)
            p.alt_begin()
            p('v_lshlrev_b32 %s, 8, %s' % (t[2], t[0])); p('v_lshl_add_u32 %s, %s, 3, %s' % (t[2], t[1], t[2]))
            p('s_and_b32 s26, s24, 1'); p('s_lshl_b32 s26, s26, 12'); p('s_add_u32 s25, s25, s26')
            p('s_lshr_b32 s26, s24, 1'); p('s_lshl_b32 s26, s26, 6'); p('s_add_u32 s25, s25, s26')
            p('buffer_load_dwordx2 %s, %s, %s, s25 offen' % (R(kv, 0, 2), t[2], sr(S_B)))
            p('buffer_load_dwordx2 %s, %s, %s, s25 offen offset:32' % (R(kv, 2, 2), t[2], sr(S_B)))
            p('s_lshl_b32 s26, s23, 13'); p('s_add_u32 s21, s21, s26'); p('s_lshl_b32 s26, s24, 10'); p('s_add_u32 s21, s21, s26')
            p('s_add_u32 s21, s21, 0x%x' % WS_KF)
            p('s_branch %s_kvJ' % name)
            p.alt_next()
            p.label('%s_kvV' % name)
            p('s_bfe_u32 s26, s24, 0x20001'); p('s_lshl_b32 s26, s26, 6'); p('s_add_u32 s25, s25, s26')
            p('s_and_b32 s26, s24, 1'); p('s_lshl_b32 s26, s26, 3'); p('s_add_u32 s25, s25, s26')
            p('s_add_u32 s26, s25, 4096')
            p('v_lshrrev_b32 %s, 2, %s' % (t[2], t[0])); p('v_lshlrev_b32 %s, 4, %s' % (t[2], t[2]))
            p('v_and_b32 %s, 3, %s' % (t[3], t[0])); p('v_lshl_add_u32 %s, %s, 1, %s' % (t[2], t[3], t[2]))
            p('v_lshl_add_u32 %s, %s, 10, %s' % (t[2], t[1], t[2]))
            for e in range(8):
                p('buffer_load_ushort %s, %s, %s, %s offen offset:%d' % (R(kv, 4 + e), t[2], sr(S_C), 's26' if e >= 4 else 's25', (e % 4) * 256))
            p('s_bfe_u32 s26, s24, 0x20001'); p('s_lshl_b32 s26, s26, 15'); p('s_add_u32 s21, s21, s26')
            p('s_lshl_b32 s26, s23, 11'); p('s_add_u32 s21, s21, s26')
            p('s_and_b32 s26, s24, 1'); p('s_lshl_b32 s26, s26, 10'); p('s_add_u32 s21, s21, s26')
            p('s_add_u32 s21, s21, 0x%x' % WS_VF)
            p.alt_end()
            p.label('%s_kvJ' % name)
        cs0, cs1, lo0, lo1 = R(cc, 0), R(cc, 1), R(cc, 2), R(cc, 3)
        unpack(p, cs0, cs1, cs0)
        silu(p, cs0, t[0]); silu(p, cs1, t[1])
        rb2(p, cs0, cs1, t[0])
        p('s_lshl_b32 s16, s2, 8'); p('s_add_u32 s16, s16, 0x%x' % WS_CSW)
        p('s_mov_b32 exec_lo, 0x01010101'); p('s_mov_b32 exec_hi, 0x01010101')
        p('buffer_store_dword %s, %s, %s, s16 offen sc1' % (t[0], R(vb), sr(S_WS)))
        p('s_mov_b64 exec, -1')
        p('v_lshrrev_b32 %s, 16, %s' % (lo0, cs0)); p('v_lshrrev_b32 %s, 16, %s' % (lo1, cs1))
        for d in range(4):
            p('v_dot2_f32_bf16 %s, %s, %s, 0' % (R(acc, 2 * d + 1), R(w0, d), cs0))
            p('v_dot2_f32_bf16 %s, %s, %s, 0' % (R(acc, 2 * d), R(w0, d), lo0))
        for d in range(4):
            p('v_dot2c_f32_bf16 %s, %s, %s' % (R(acc, 2 * d + 1), R(w1, d), cs1))
            p('v_dot2c_f32_bf16 %s, %s, %s' % (R(acc, 2 * d), R(w1, d), lo1))
        for e in range(4): p('v_permlane32_swap_b32 %s, %s' % (R(acc, e), R(acc, 4 + e)))
        for e in range(4): p('v_add_f32 %s, %s, %s' % (R(acc, e), R(acc, e), R(acc, 4 + e)))
        for e in range(2): p('v_permlane16_swap_b32 %s, %s' % (R(acc, e), R(acc, 2 + e)))
        for e in range(2): p('v_add_f32 %s, %s, %s' % (R(acc, e), R(acc, e), R(acc, 2 + e)))
        for e in range(2): ror_add(p, R(acc, e), 8)
        p('v_and_b32 %s, 7, %s' % (t[0], lane)); p('v_lshlrev_b32 %s, 5, %s' % (t[0], t[0]))
        p('v_lshrrev_b32 %s, 4, %s' % (t[1], lane)); p('v_lshl_add_u32 %s, %s, 3, %s' % (t[0], t[1], t[0]))
        p('s_lshl_b32 s16, s3, 8'); p('s_add_u32 s16, s16, %d' % FS)
        p('v_add_u32 %s, s16, %s' % (t[0], t[0]))
        p('ds_write_b64 %s, %s' % (t[0], R(acc, 0, 2)))
        p.stamp(20)
        for i in range(2):
            for d in range(4): unpack(p, R(X, 8 * i + 2 * d), R(X, 8 * i + 2 * d + 1), R(xr[i], d))
        Xs = [R(X, i) for i in range(16)]
        mean, sd, rcp = R(st, 0), R(st, 1), R(st, 2)
        var = t[1]
        a0, a1, b0, b1 = t[4], t[5], t[2], t[3]
        p('v_add_f32 %s, %s, %s' % (a0, Xs[0], Xs[1])); p('v_add_f32 %s, %s, %s' % (a1, Xs[2], Xs[3]))
        for i in range(4, 16, 2):
            p('v_add_f32 %s, %s, %s' % (a0, a0, Xs[i])); p('v_add_f32 %s, %s, %s' % (a1, a1, Xs[i + 1]))
        p('v_add_f32 %s, %s, %s' % (mean, a0, a1))
        for n in (1, 2, 4, 8): ror_add(p, mean, n)
        xor16_add(p, mean, a0); xor32_add(p, mean, a0)
        p('v_mul_f32 %s, 0x%x, %s' % (mean, f2u(1.0 / 1024), mean))
        p('v_sub_f32 %s, %s, %s' % (b0, Xs[0], mean)); p('v_mul_f32 %s, %s, %s' % (a0, b0, b0))
        p('v_sub_f32 %s, %s, %s' % (b1, Xs[1], mean)); p('v_mul_f32 %s, %s, %s' % (a1, b1, b1))
        for i in range(2, 16, 2):
            p('v_sub_f32 %s, %s, %s' % (b0, Xs[i], mean)); p('v_sub_f32 %s, %s, %s' % (b1, Xs[i + 1], mean))
            p('v_fmac_f32 %s, %s, %s' % (a0, b0, b0)); p('v_fmac_f32 %s, %s, %s' % (a1, b1, b1))
        p('v_add_f32 %s, %s, %s' % (var, a0, a1))
        for n in (1, 2, 4, 8): ror_add(p, var, n)
        xor16_add(p, var, a0); xor32_add(p, var, a0)
        p('v_mul_f32 %s, 0x%x, %s' % (var, f2u(1.0 / 1024), var))
        ln_scalars(p, mean, var, sd, rcp)
        p('s_lshl_b32 s16, s3, 4'); p('s_add_u32 s16, s16, %d' % (FS + 2048 + 16))
        p('v_mov_b32 %s, s16' % t[3])
        p('ds_write_b128 %s, %s' % (t[3], R(st, 0, 4)))
        p.stamp(3)
        if A_:
            def ntest(q):
                q('v_cmp_eq_u32 vcc, 0, %s' % R(vn))
                q('s_cmp_eq_u32 s3, 0'); q('s_cselect_b64 s[62:63], -1, 0'); q('s_and_b64 vcc, vcc, s[62:63]')
            rare_poll(p, 'n', ntest, lambda q: q('buffer_load_dword %s, %s, %s, 0 offen sc1' % (R(vn), R(vz, 0), sr(S_B))), flush=False)
            p('v_mov_b32 %s, %d' % (t[3], FS + 2048))
            p('s_cmp_eq_u32 s3, 0'); p('s_cselect_b64 exec, 1, 0')
            p('ds_write_b32 %s, %s' % (t[3], R(vn)))
            p('s_mov_b64 exec, -1')
        p.stamp(1)
        p('v_mov_b32 %s, %d' % (t[3], FS + 2048))
        p('v_and_b32 %s, 31, %s' % (t[1], lane)); p('v_lshlrev_b32 %s, 3, %s' % (t[2], t[1])); p('v_add_u32 %s, %d, %s' % (t[2], FS, t[2]))
        p('v_lshlrev_b32 %s, 4, %s' % (t[1], t[1]))
        p('s_waitcnt lgkmcnt(0)')
        p('s_barrier')
        p('ds_read_b32 %s, %s' % (R(vn), t[3]))
        for i in range(8): p('ds_read_b64 %s, %s offset:%d' % (R(rd[i], 0, 2), t[2], i * 256))
        p('v_readfirstlane_b32 s28, %s' % R(vn))
        p('v_and_b32 %s, 7, %s' % (t[4], lane)); p('v_lshlrev_b32 %s, 4, %s' % (t[4], t[4]))
        p('v_add_u32 %s, %d, %s' % (t[5], FS + 2048 + 16, t[4]))
        p('ds_read_b128 %s, %s' % (R(st, 0, 4), t[5]))
        p('v_mov_b32 %s, s28' % R(st, 3))
        p('s_lshl_b32 s16, s2, 7'); p('s_add_u32 s16, s16, 0x%x' % WS_STG)
        p('s_cmp_eq_u32 s3, 0'); p('s_cselect_b32 s16, s16, 0x%x' % OOB)
        p('s_mov_b64 exec, 0xff')
        p('buffer_store_dwordx4 %s, %s, %s, s16 offen sc1' % (R(st, 0, 4), t[4], sr(S_WS)))
        p('s_mov_b64 exec, -1')
        for s_ in (4, 2, 1):
            for i in range(s_): p('v_pk_add_f32 %s, %s, %s' % (R(rd[i], 0, 2), R(rd[i], 0, 2), R(rd[s_ + i], 0, 2)))
        p('v_mov_b32 %s, s28' % R(rd[0], 2)); p('v_mov_b32 %s, s28' % R(rd[0], 3))
        p('s_lshl_b32 s16, s14, 3'); p('s_add_u32 s16, s16, s15'); p('s_lshl_b32 s16, s16, 9'); p('s_add_u32 s16, s16, 0x%x' % WS_MODG)
        p('s_cmp_eq_u32 s3, 0'); p('s_cselect_b32 s16, s16, 0x%x' % OOB)
        p('s_mov_b64 exec, 0xffffffff')
        p('buffer_store_dwordx4 %s, %s, %s, s16 offen sc1' % (R(rd[0], 0, 4), t[1], sr(S_WS)))
        p('s_mov_b64 exec, -1')
        p.stamp(2)
        if not A_:
            p('s_cmp_lt_u32 s24, 8')
            p('s_cbranch_scc1 %s_kvS' % name)
            p.alt_begin()
            for d in range(4):
                p('v_lshl_or_b32 %s, %s, 16, %s' % (R(kv, d), R(kv, 4 + 2 * d + 1), R(kv, 4 + 2 * d)))
            p.alt_next()
            p.alt_end()
            p.label('%s_kvS' % name)
            p('buffer_store_dwordx4 %s, %s, %s, s21 offen sc1' % (R(kv, 0, 4), l16, sr(S_WS)))
        p('s_lshr_b32 s16, s3, 2'); p('s_lshl_b32 s16, s16, 4'); p('s_add_u32 s16, s16, s31'); p('s_lshl_b32 s16, s16, 12')
        p('s_and_b32 s17, s3, 3'); p('s_lshl_b32 s17, s17, 7'); p('s_add_u32 s16, s16, s17'); p('s_add_u32 s16, s16, 0x%x' % WS_MODG)
        p('v_lshrrev_b32 %s, 3, %s' % (R(vg), lane)); p('v_lshlrev_b32 %s, 9, %s' % (R(vg), R(vg)))
        p('v_and_b32 %s, 7, %s' % (t[0], lane)); p('v_lshl_add_u32 %s, %s, 4, %s' % (R(vg), t[0], R(vg)))
        p('v_and_b32 %s, 15, %s' % (R(vs), lane)); p('v_lshlrev_b32 %s, 4, %s' % (R(vs), R(vs)))
        p('s_lshl_b32 s17, s29, 8'); p('s_add_u32 s17, s17, 0x%x' % WS_STG)
        for i in range(2):
            for d in range(4): unpack(p, R(X, 8 * i + 2 * d), R(X, 8 * i + 2 * d + 1), R(xt[i], d))
        def gl():
            p('buffer_load_dwordx4 %s, %s, %s, s16 offen sc1' % (R(g4, 0, 4), R(vg), sr(S_WS)))
            p('buffer_load_dwordx4 %s, %s, %s, s17 offen sc1' % (R(s4, 0, 4), R(vs), sr(S_WS)))
        def gt():
            p('v_cmp_ne_u32 vcc, s28, %s' % R(g4, 2))
            p('v_cmp_ne_u32 s[62:63], s28, %s' % R(g4, 3))
            p('s_or_b64 vcc, vcc, s[62:63]')
            p('v_cmp_ne_u32 s[62:63], s28, %s' % R(s4, 3))
            p('s_or_b64 vcc, vcc, s[62:63]')
        backoff(p, 'g')
        for b_, n_, lo_, hi_ in (SPF or {}).get('w1', []): spf(p, b_, n_, lo_, hi_)
        poll(p, 'g', gl, gt)
        p.stamp(4)
        m0_, m1_ = R(g4, 0), R(g4, 1)
        ror_add(p, m0_, 8); ror_add(p, m1_, 8)
        xor16_add(p, m0_, t[1]); xor16_add(p, m1_, t[2]); xor32_add(p, m0_, t[1]); xor32_add(p, m1_, t[2])
        rb2(p, m0_, m1_, t[1])
        p('v_add_f32 %s, %s, %s' % (m0_, '0' if A_ else '1.0', m0_)); p('v_add_f32 %s, %s, %s' % (m1_, '0' if A_ else '1.0', m1_))
        if not A_: rb2(p, m0_, m1_, t[1])
        p('s_lshl_b32 s16, s3, 6'); p('s_add_u32 s16, s16, %d' % MT)
        p('v_lshl_add_u32 %s, %s, 3, s16' % (t[0], t[0]))
        p('ds_write_b64 %s, %s' % (t[0], R(g4, 0, 2)))
        p('v_lshrrev_b32 %s, 4, %s' % (t[1], lane)); p('v_lshlrev_b32 %s, 5, %s' % (t[1], t[1])); p('v_add_u32 %s, %d, %s' % (t[1], MT, t[1]))
        mean, sd, rcp = R(s4, 0), R(s4, 1), R(s4, 2)
        for i in range(16): p('v_sub_f32 %s, %s, %s' % (Xs[i], Xs[i], mean))
        for i in range(0, 16, 2): rb2(p, Xs[i], Xs[i + 1], t[2 + (i // 2) % 2])
        for i in range(16): p('v_mul_f32 %s, %s, %s' % (Xs[i], Xs[i], rcp))
        for i in range(0, 16, 2): rb2(p, Xs[i], Xs[i + 1], t[2 + (i // 2) % 2])
        p('s_lshl_b32 s16, s29, 15'); p('s_lshl_b32 s17, s31, 11'); p('s_add_u32 s16, s16, s17')
        if WS_H: p('s_add_u32 s16, s16, 0x%x' % WS_H)
        p('s_waitcnt lgkmcnt(0)')
        p('s_barrier')
        for hh in range(2):
            for k in range(2):
                p('ds_read_b128 %s, %s offset:%d' % (R(rd[4 * hh + k], 0, 4), t[1], 256 + hh * 128 + k * 16))
                p('ds_read_b128 %s, %s offset:%d' % (R(rd[4 * hh + 2 + k], 0, 4), t[1], hh * 128 + k * 16))
        for hh in range(2):
            for k in range(2):
                for e in range(0, 4, 2):
                    p('v_pk_mul_f32 %s, %s, %s' % (R(X, 8 * hh + 4 * k + e, 2), R(X, 8 * hh + 4 * k + e, 2), R(rd[4 * hh + k], e, 2)))
            for e in range(0, 8, 2): rb2(p, Xs[8 * hh + e], Xs[8 * hh + e + 1], t[2 + (e // 2) % 2])
            for k in range(2):
                for e in range(0, 4, 2):
                    p('v_pk_add_f32 %s, %s, %s' % (R(X, 8 * hh + 4 * k + e, 2), R(X, 8 * hh + 4 * k + e, 2), R(rd[4 * hh + 2 + k], e, 2)))
            o = xr[hh]
            for d in range(4): p('v_cvt_pk_bf16_f32 %s, %s, %s' % (R(o, d), Xs[8 * hh + 2 * d], Xs[8 * hh + 2 * d + 1]))
            p('buffer_store_dwordx4 %s, %s, %s, s16 offen offset:%d sc1' % (R(o, 0, 4), l16, sr(S_WS), hh * 1024), 'hst')
        if ROT:
            p('s_bfe_u32 s25, s2, 0x30003'); p('s_mul_i32 s25, s25, %d' % ROT[0]); p('s_lshr_b32 s26, s2, 6'); p('s_mul_i32 s26, s26, %d' % ROT[1])
            p('s_add_u32 s25, s25, s26'); p('s_and_b32 s25, s25, 15'); p('s_lshl_b32 s26, s25, 11'); p('s_lshl_b32 s25, s25, 19')
        p('s_lshl_b32 s19, s3, 16'); p('s_lshl_b32 s20, s3, 11'); p('s_lshl_b32 s16, s12, 8')
        p('s_add_u32 s4, s%d, s16' % PTR['wq']); p('s_addc_u32 s5, s%d, 0' % (PTR['wq'] + 1))
        p('s_sub_u32 s6, 0x800000, s16'); p('s_mov_b32 s7, 0x20000')
        for s_ in range(NWQ - 1):
            for it, tag in dma_wq(s_): p(it, tag)
        p('v_mov_b32 %s, s28' % R(vn))
        p('s_lshl_b32 s16, s29, 4'); p('s_add_u32 s16, s16, s31'); p('s_lshl_b32 s16, s16, 2'); p('s_add_u32 s16, s16, 0x%x' % WS_HFLAG)
        p('v_and_b32 %s, 31, %s' % (t[0], lane)); p('v_lshlrev_b32 %s, 2, %s' % (t[0], t[0]))
        p('s_lshl_b32 s17, s13, 3'); p('s_add_u32 s17, s17, s3'); p('s_lshl_b32 s17, s17, 7'); p('s_add_u32 s17, s17, 0x%x' % WS_HFLAG)
        p.wait_tag('hst')
        p('s_mov_b64 exec, 1')
        p('buffer_store_dword %s, %s, %s, s16 offen sc1' % (R(vn), R(vz, 0), sr(S_WS)))
        p('s_mov_b64 exec, -1')
        p.stamp(5)
        for b_, n_, lo_, hi_ in (SPF or {}).get('w2', []): spf(p, b_, n_, lo_, hi_)
        backoff(p, 'h')
        poll(p, 'h', lambda: p('buffer_load_dword %s, %s, %s, s17 offen sc1' % (t[1], t[0], sr(S_WS))),
             lambda: p('v_cmp_ne_u32 vcc, s28, %s' % t[1]))
        p.stamp(6)

    acc1 = [sub(PR, 16 * i) for i in range(4)]
    H = [[sub(PR, 64 + 16 * b + 4 * k) for k in range(4)] for b in range(NH)]
    def hload(s, k):
        return [(('s_add_u32 s23, s26, 0x%x\ns_and_b32 s23, s23, 0x7fff\ns_or_b32 s23, s23, 0x%x' % (s * 2048, WS_H + (k % 2) * 32768)) if ROT else ('s_mov_b32 s23, 0x%x' % (WS_H + s * 2048 + (k % 2) * 32768)), None),
                ('buffer_load_dwordx4 %s, %s, %s, s23 offen offset:%d%s' % (R(H[s % NH][k], 0, 4), R(v_hoff), sr(S_WS), (k // 2) * 1024, hsc), None)]
    def trread(dst, base, n, va, vb):
        a = vb if n % 2 else va
        off = base + (n // 2) * 256 + (n % 2) * 32
        return ['ds_read_b64_tr_b16 %s, %s offset:%d' % (R(dst, 0, 2), a, off),
                'ds_read_b64_tr_b16 %s, %s offset:%d' % (R(dst, 2, 2), a, off + 1024)]

    def phase1(role):
        A_ = role == 'A'
        def trr(f):
            s, T, n = f // 16, (f // 8) % 2, f % 8
            a = wq_slot(s) + T * 8192
            if a < 0x10000: return trread(fr[f % NRA], a, n, R(v_tr), R(v_tr2))
            return trread(fr[f % NRA], a - 0x20000, n, R(v_xv), R(v_wq2))
        if NWQ > 4:
            p('v_add_u32 %s, 0x20000, %s' % (R(v_xv), R(v_tr))); p('v_add_u32 %s, 0x20000, %s' % (R(v_wq2), R(v_tr2)))
        for s in range(NH - 1):
            for k in range(4):
                for it, tag in hload(s, k): p(it, tag)
        p('s_lshr_b32 s21, s12, 3'); p('s_lshl_b32 s21, s21, 17'); p('s_add_u32 s21, s21, s20'); p('s_add_u32 s21, s21, 0x%x' % WS_KF)
        p.wait_tag('wq0')
        if prioB and not A_: p('s_setprio 1')
        p('s_barrier')
        for f in range(D1):
            for x in trr(f): p(x)
        sc = Sched()
        hnext = [4 * (NH - 1)]
        for f in range(256):
            s, T, n = f // 16, (f // 8) % 2, f % 8
            for qs in range(2):
                d = R(acc1[n // 2], (n % 2) * 8 + qs * 4, 4)
                idx = sc.mfma('v_mfma_f32_16x16x32_bf16 %s, %s, %s, %s' % (d, R(fr[f % NRA], 0, 4), R(H[s % NH][T * 2 + qs], 0, 4), '0' if f < 8 else d))
            g = f + D1
            if g < 256:
                if g % 16 == 0:
                    sn = g // 16
                    sc.place(idx, lambda q, sn=sn: q.wait_tag('wq%d' % sn))
                    sc.place(idx, 's_barrier')
                    nxt = dma_wq(sn + NWQ - 2) if sn + NWQ - 2 < 16 else []
                    for i in range(len(nxt) // 3):
                        for it, tag in nxt[3 * i:3 * i + 3]: sc.place(idx + (1 + 4 * i) * 2, it, tag)
                tr = trr(g)
                if g % 16 != 0:
                    sc.place(idx - 1, tr[0]); sc.place(idx, tr[1])
                else:
                    for x in tr: sc.place(idx, x)
            if f % 4 in (1, 3):
                tq = (f // 4) % 4
                lim = min(64, (s + NH - 1) * 4 + tq + 1)
                if hnext[0] < lim:
                    for it, tag in hload(hnext[0] // 4, hnext[0] % 4): sc.place(idx, it, tag)
                    hnext[0] += 1
        if True:
            fl4 = x4
            def kvf_load(q):
                q('buffer_load_dwordx4 %s, %s, %s, s18 offen sc1' % (R(fl4, 0, 4), t[5], sr(S_WS)))
            def kvf_issue(q):
                q('v_lshrrev_b32 %s, 4, %s' % (t[5], lane)); q('v_lshlrev_b32 %s, 9, %s' % (t[5], t[5]))
                q('v_and_b32 %s, 15, %s' % (t[4], lane)); q('v_lshl_add_u32 %s, %s, 4, %s' % (t[5], t[4], t[5]))
                q('s_lshr_b32 s18, s12, 3'); q('s_lshl_b32 s18, s18, 11'); q('s_add_u32 s18, s18, 0x%x' % (WS_HFLAG + 256))
                kvf_load(q)
            def kvf_test(q):
                a_, b_ = R(v_kvoff), t[4]
                q('v_xor_b32 %s, s28, %s' % (a_, R(fl4, 0))); q('v_xor_b32 %s, s28, %s' % (b_, R(fl4, 1)))
                q('v_or_b32 %s, %s, %s' % (a_, a_, b_))
                q('v_xor_b32 %s, s28, %s' % (b_, R(fl4, 2))); q('v_or_b32 %s, %s, %s' % (a_, a_, b_))
                q('v_xor_b32 %s, s28, %s' % (b_, R(fl4, 3))); q('v_or_b32 %s, %s, %s' % (a_, a_, b_))
                q('v_cmp_ne_u32 vcc, 0, %s' % a_)
            sc.place(2 * (16 * 6 + 6), kvf_issue)
            sc.place(2 * (16 * 9 + 6), lambda q: rare_poll(q, 'kv', kvf_test, kvf_load))
            for c in range(4):
                ch = dma_chunk(c)
                for i in range(2):
                    for it, tag in ch[3 * i:3 * i + 3]: sc.place(2 * (16 * (10 + c) + 8 + 2 * i), it, tag)
        if p1pf:
            SZ = dict(wg=7340032, wu=7340032, wd=7340032, wo=8388608, wmod=1024 * 6144 * 2)
            rounds = [(b, k) for b in p1pf['bufs'] for k in range(4)]
            mine = [(i, r) for i, r in enumerate(rounds) if (i % 2 == 0) == A_]
            def pf_setup(q):
                q('v_lshlrev_b32 %s, 7, %s' % (t[1], lane)); q('s_lshl_b32 s16, s2, 13'); q('v_add_u32 %s, s16, %s' % (t[3], t[1]))
            sc.place(1, pf_setup)
            lo, hi = p1pf['at']
            for i, (b, k) in mine:
                at = lo + (i * (hi - lo)) // len(rounds)
                wv = (i // 2) % 4 + (0 if A_ else 4)
                def one(q, b=b, k=k, wv=wv):
                    mk_srd(q, S_B, b, SZ[b])
                    if b == 'wmod':
                        q('s_add_u32 s16, s2, %d' % (k * 256)); q('s_mul_i32 s16, s16, 12288'); q('s_add_u32 s16, s16, 4096')
                    else:
                        q('s_mov_b32 s16, 0x%x' % (k * 0x200000))
                    q('s_cmp_eq_u32 s3, %d' % wv); q('s_cselect_b32 s16, s16, 0x%x' % OOB)
                    q('buffer_load_dword %s, %s, %s, s16 offen' % (t[2], t[1] if b == 'wmod' else t[3], sr(S_B)), 'pf')
                sc.place(at, one)
        if p1st:
            for i_, s_ in enumerate(p1st): sc.place(32 * s_, lambda q, i_=i_: q.stamp(60 + i_))
        sc.emit(p)
        p.stamp(7)
        p('s_mov_b32 s23, 0x%x' % f2u((128 ** -0.5) * LOG2E))
        for dt in range(4):
            for r in range(0, 16, 2):
                ta, tb = t[(r // 2 % 2) * 2], t[(r // 2 % 2) * 2 + 1]
                p('v_mul_f32 %s, s23, %s' % (ta, R(acc1[dt], r)))
                p('v_mul_f32 %s, s23, %s' % (tb, R(acc1[dt], r + 1)))
                p('v_cvt_pk_bf16_f32 %s, %s, %s' % (R(qf[((r // 4) % 2) * 4 + dt], (r // 8) * 2 + (r % 4) // 2), ta, tb))
        p.stamp(8)

    v_l16b = v_tr; v_l16c = v_tr2
    P = [[sub(PR, 8 * j + 4 * qs) for qs in range(2)] for j in range(16)]
    def lds_read(dst, addr):
        if addr >= 0x20000: return 'ds_read_b128 %s, %s offset:%d' % (R(dst, 0, 4), R(v_l16c), addr - 0x20000)
        return 'ds_read_b128 %s, %s offset:%d' % (R(dst, 0, 4), R(v_l16b), addr - 0x10000)
    def softmax_ops(j, sub_, first, s=None):
        ops = []
        s = S[j % 2] if s is None else s
        for r in range(0, 16, 2):
            a, qs = r // 8, (r // 4) % 2
            if sub_:
                ops.append('v_add_f32 %s, %s, %s' % (R(s, r), R(s, r), R(negm, 4 * qs)))
                ops.append('v_add_f32 %s, %s, %s' % (R(s, r + 1), R(s, r + 1), R(negm, 4 * qs)))
            ops.append('v_exp_f32 %s, %s' % (R(s, r), R(s, r)))
            ops.append('v_exp_f32 %s, %s' % (R(s, r + 1), R(s, r + 1)))
            if first and r % 4 == 0 and a == 0:
                ops.append('v_add_f32 %s, %s, %s' % (R(v_l[qs]), R(s, r), R(s, r + 1)))
            else:
                ops.append('v_add_f32 %s, %s, %s' % (R(v_l[qs]), R(v_l[qs]), R(s, r)))
                ops.append('v_add_f32 %s, %s, %s' % (R(v_l[qs]), R(v_l[qs]), R(s, r + 1)))
            ops.append('v_cvt_pk_bf16_f32 %s, %s, %s' % (R(P[j][qs], a * 2 + (r % 4) // 2), R(s, r), R(s, r + 1)))
        return ops
    def xl_red(m, m2, op):
        return ['v_mov_b32 %s, %s' % (m2, m), 'v_permlane16_swap_b32 %s, %s' % (m, m2), '%s %s, %s, %s' % (op, m, m, m2),
                'v_mov_b32 %s, %s' % (m2, m), 'v_permlane32_swap_b32 %s, %s' % (m, m2), '%s %s, %s, %s' % (op, m, m, m2)]
    def finish_max(ms, m2s):
        ops = []
        a, b = xl_red(ms[0], m2s[0], 'v_max_f32'), xl_red(ms[1], m2s[1], 'v_max_f32')
        for x, y in zip(a, b): ops += [x, y]
        for r in range(8): ops.append('v_sub_f32 %s, 0, %s' % (R(negm, r), ms[r // 4]))
        return ops
    def mf_k(sreg, f, frag, cz):
        T, a = f // 2, f % 2
        out = []
        for qs in range(2):
            d = R(sreg, (a * 2 + qs) * 4, 4)
            c = d if T > 0 else ('0' if cz else R(negm, 4 * qs, 4))
            out.append('v_mfma_f32_16x16x32_bf16 %s, %s, %s, %s' % (d, frag, R(qf[qs * 4 + T], 0, 4), c))
        return out
    accO = [sub(SS, 0), sub(SS, 16)]
    stg = [sub(negm, 0), sub(negm, 4)]
    WD = [sub(QF, 4 * i) for i in range(8)]

    def phase2(role):
        A_ = role == 'A'
        p('v_add_u32 %s, 0x10000, %s' % (R(v_l16b), l16))
        p('v_add_u32 %s, 0x20000, %s' % (R(v_l16c), l16))
        seq = [(j, f) for j in range(16) for f in range(8)]
        sc = Sched()
        for n, (j, f) in enumerate(seq):
            for m_ in mf_k(S[j % 2], f, R(fr[n % NRA], 0, 4), j < 2): sc.mfma(m_)
        def place_reads(sc, nfr, addr_of, chunk_of, n0):
            last = None
            for n in range(nfr):
                at = 2 * (n - D2) + 1 if n - D2 >= 0 else -1
                c = chunk_of(n)
                if c != last:
                    last = c
                    for cw in ([7, 8, 9] if c == 7 else [c]): sc.place(at, lambda q, cw=cw: q.wait_tag('ch%d' % cw))
                    sc.place(at, 's_barrier')
                    nx = sum((dma_chunk(ci) for ci in ([12, 13, 14] if c == 10 else [c + 4])), [])
                    for q_ in range(len(nx) // 3):
                        for it, tag in nx[3 * q_:3 * q_ + 3]: sc.place(max(at, 0) + 2 + (8 if len(nx) == 6 else 4) * q_, it, tag)
                sc.place(at, lds_read(fr[(n0 + n) % NRA], addr_of(n)))
        place_reads(sc, 128, lambda n: slot(n // 16) + (n % 16) * 1024, lambda n: n // 16, 0)
        ms, m2s = [t[0], t[1]], [t[2], t[3]]
        ops = []
        for qs in range(2):
            rg = [R(S[0], (a * 2 + qs) * 4 + k) for a in range(2) for k in range(4)]
            ops.append('v_max3_f32 %s, %s, %s, %s' % (ms[qs], rg[0], rg[1], rg[2]))
            for i in range(3, 7, 2): ops.append('v_max3_f32 %s, %s, %s, %s' % (ms[qs], ms[qs], rg[i], rg[i + 1]))
            ops.append('v_max_f32 %s, %s, %s' % (ms[qs], ms[qs], rg[7]))
        for i, o in enumerate(ops): sc.place(22 + i, o)
        ops = []
        for qs in range(2):
            rg = [R(S[1], (a * 2 + qs) * 4 + k) for a in range(2) for k in range(4)]
            for i in range(0, 8, 2): ops.append('v_max3_f32 %s, %s, %s, %s' % (ms[qs], ms[qs], rg[i], rg[i + 1]))
        ops += finish_max(ms, m2s) + softmax_ops(0, True, True)
        for o in ops: sc.place(31, o)
        for j in range(1, 15):
            lo, hi = 16 * (j + 1) + 1, 16 * (j + 2) - 1
            ops = softmax_ops(j, j < 2, False)
            nm = hi - lo + 1
            for i, o in enumerate(ops): sc.place(lo + min(nm - 1, (i * nm) // len(ops)), o)
        if not A_:
            def gu_setup(q):
                mk_srd(q, S_B, 'wg', 7340032); mk_srd(q, S_C, 'wu', 7340032)
                q('s_cmp_lt_u32 s2, 224'); q('s_cselect_b32 s66, 7340032, 0'); q('s_cselect_b32 s70, 7340032, 0')
                q('s_and_b32 s29, s2, 7'); q('s_mul_i32 s29, s29, 28'); q('s_lshr_b32 s16, s2, 3'); q('s_add_u32 s29, s29, s16')
                q('s_sub_u32 s16, s3, 4')
                q('v_lshrrev_b32 %s, 3, %s' % (t[4], lane)); q('v_lshlrev_b32 %s, 3, %s' % (t[4], t[4]))
                q('s_lshl_b32 s17, s16, 6'); q('v_add_u32 %s, s17, %s' % (t[4], t[4]))
                q('s_mov_b32 s17, 7168'); q('v_mul_lo_u32 %s, s17, %s' % (R(v_xv), t[4]))
                q('v_and_b32 %s, 7, %s' % (t[4], lane)); q('v_lshl_add_u32 %s, %s, 4, %s' % (R(v_xv), t[4], R(v_xv)))
                q('s_and_b32 s17, s29, 3'); q('s_mul_i32 s18, s17, %d' % (256 * 7168))
                q('s_lshr_b32 s17, s29, 2'); q('s_lshl_b32 s17, s17, 7'); q('s_add_u32 s18, s18, s17')
                q('s_lshl_b32 s15, s16, 13')
            sc.place(1, gu_setup)
            if wopf is not None:
                def wo_pf(q):
                    mk_srd(q, S_D, 'wo', 0x800000)
                    q('v_lshlrev_b32 %s, 7, %s' % (t[5], lane))
                    q('s_lshl_b32 s16, s2, 2'); q('s_add_u32 s16, s16, s3'); q('s_sub_u32 s16, s16, 4'); q('s_lshl_b32 s16, s16, 13')
                    q('buffer_load_dword %s, %s, %s, s16 offen' % (R(x4, 3), t[5], sr(S_D)), 'pf')
                sc.place(wopf, wo_pf)
            items = [(m, i) for i in range(8) for m in range(2)]
            lo, hi = 2 * (16 * gu_at[0] + 2), 2 * (16 * gu_at[1])
            if GU3_AT is not None: items = [x for x in items if x[0] == 0]
            for k, (m, i) in enumerate(items if do_gu else []):
                at = lo + (k * (hi - lo)) // len(items)
                sc.place(at, 's_add_u32 s22, s18, %d' % (i * 7168))
                sc.place(at, 's_add_u32 m0, s15, %d' % (m * 32768 + i * 1024))
                sc.place(at, 'buffer_load_dwordx4 %s, %s, s22 offen lds' % (R(v_xv), sr(S_B if m == 0 else S_C)), 'gu')
        else:
            sc.place(1, lambda q: (q('s_and_b32 s29, s2, 7'), q('s_mul_i32 s29, s29, 28'), q('s_lshr_b32 s16, s2, 3'), q('s_add_u32 s29, s29, s16')))
        def wo_setup(q):
            mk_srd(q, S_A, 'wo', 0x800000)
            q('v_bfe_u32 %s, %s, 2, 2' % (t[4], lane))
            q('v_lshlrev_b32 %s, 13, %s' % (t[5], t[4])); q('v_sub_u32 %s, %s, %s' % (R(v_wqoff), R(v_wqoff), t[5]))
            q('v_lshl_add_u32 %s, %s, 11, %s' % (R(v_wqoff), t[4], R(v_wqoff)))
            q('s_and_b32 s16, s2, 1'); q('s_lshl_b32 s24, s16, 22')
            q('s_lshr_b32 s16, s2, 5'); q('s_lshl_b32 s16, s16, 8'); q('s_add_u32 s24, s24, s16')
            q('s_lshl_b32 s16, s3, 14'); q('s_add_u32 s24, s24, s16')
            if ROT3:
                q('s_lshr_b32 s62, s2, 5'); q('s_mul_i32 s62, s62, %d' % ROT3[0]); q('s_bfe_u32 s16, s2, 0x20003'); q('s_mul_i32 s16, s16, %d' % ROT3[1])
                q('s_add_u32 s62, s62, s16'); q('s_and_b32 s62, s62, 7'); q('s_lshl_b32 s62, s62, 13')
            if not A_: q('s_add_u32 s24, s24, %d' % (96 * 2048))
        sc.place(2, m_setup)
        sc.place(16 * 2 + 5, wo_setup)
        sc.place(16 * 11 + 5, m_cs)
        m_work(sc, 16 * 14 - 2 * D2 + 3)
        sc.place(16 * 15 + 1, m_store)
        if qkst:
            for i_, s_ in enumerate(qkst): sc.place(s_, lambda q, i_=i_: q.stamp(40 + i_))
        sc.emit(p)
        p.stamp(9)
        pv = [(T, hh, jj, b) for T in range(4) for hh in range(2) for jj in range(8) for b in range(2)]
        sc = Sched()
        for n, (T, hh, jj, b) in enumerate(pv):
            for qs in range(2):
                d = R(accO[T % 2], b * 8 + qs * 4, 4)
                sc.mfma('v_mfma_f32_16x16x32_bf16 %s, %s, %s, %s' % (d, R(fr[(128 + n) % NRA], 0, 4), R(P[8 * hh + jj][qs], 0, 4), '0' if (hh == 0 and jj == 0) else d))
        place_reads(sc, 128, lambda n: slot(10 + n // 16) + (n % 16) * 1024, lambda n: 10 + n // 16, 128)
        l0, l1 = R(v_l[0]), R(v_l[1])
        def mid(q):
            for o in softmax_ops(15, False, False): q(o)
            for x, y in zip(xl_red(l0, t[0], 'v_add_f32'), xl_red(l1, t[2], 'v_add_f32')): q(x); q(y)
            q('v_max_f32 %s, %s, %s' % (t[1], l0, l1))
            q('s_mov_b32 s16, 0x%x' % f2u(2.0 ** 100))
            q('v_cmp_ngt_f32 vcc, s16, %s' % t[1])
            q('v_cmp_u_f32 s[76:77], %s, %s' % (l0, l1))
            q('s_or_b64 vcc, vcc, s[76:77]')
            lab = '%s_fix%s' % (name, role)
            q('s_cbranch_vccnz %s' % lab)
            q.label(lab + 'b')
            q('v_rcp_f32 %s, %s' % (l0, l0)); q('v_rcp_f32 %s, %s' % (l1, l1))
            q('s_lshl_b32 s25, s13, 3'); q('s_add_u32 s25, s25, s3'); q('s_lshl_b32 s25, s25, 18')
            q('s_lshl_b32 s26, s12, 12'); q('s_add_u32 s25, s25, s26'); q('s_add_u32 s25, s25, 0x%x' % WS_O)
            q('s_add_u32 s26, s25, 131072')
            q('s_lshl_b32 s63, s13, 3'); q('s_add_u32 s63, s63, s3'); q('s_lshl_b32 s63, s63, 5'); q('s_add_u32 s63, s63, s12'); q('s_lshl_b32 s63, s63, 2')
            z = Prog()
            z.label(lab); z.flush()
            z('s_lshr_b32 s16, s12, 3'); z('s_lshl_b32 s16, s16, 17'); z('s_add_u32 s16, s16, 0x%x' % WS_KF)
            z('v_add_u32 %s, s16, %s' % (R(v_kvoff), l16))
            z('v_mov_b32 %s, 0xff7fffff' % ms[0]); z('v_mov_b32 %s, 0xff7fffff' % ms[1])
            KF = [sub(S[1], 4 * i) for i in range(4)]
            def ktile(z, j, cz):
                for hf in range(2):
                    z('s_mov_b32 s17, 0x%x' % (j * 8192 + hf * 4096))
                    for i in range(4): z('buffer_load_dwordx4 %s, %s, %s, s17 offen offset:%d' % (R(KF[i], 0, 4), R(v_kvoff), sr(S_WS), i * 1024))
                    for i in range(4):
                        for m_ in mf_k(S[0], hf * 4 + i, R(KF[i], 0, 4), cz): z(m_)
            z('s_mov_b32 s16, 0')
            z.loop_begin(); z.label(lab + 'm')
            for hf in range(2):
                z('s_add_u32 s17, s16, %d' % (hf * 4096))
                for i in range(4): z('buffer_load_dwordx4 %s, %s, %s, s17 offen offset:%d' % (R(KF[i], 0, 4), R(v_kvoff), sr(S_WS), i * 1024))
                for i in range(4):
                    for m_ in mf_k(S[0], hf * 4 + i, R(KF[i], 0, 4), True): z(m_)
            for r in range(0, 16, 2): z('v_max3_f32 %s, %s, %s, %s' % (ms[(r // 4) % 2], ms[(r // 4) % 2], R(S[0], r), R(S[0], r + 1)))
            z('s_add_u32 s16, s16, 8192'); z('s_cmp_lt_u32 s16, 0x20000'); z('s_cbranch_scc1 %sm' % lab)
            z.loop_end()
            for o in finish_max(ms, m2s): z(o)
            for j in range(16):
                ktile(z, j, False)
                for o in softmax_ops(j, False, j == 0, S[0]): z(o)
            for x, y in zip(xl_red(l0, t[0], 'v_add_f32'), xl_red(l1, t[2], 'v_add_f32')): z(x); z(y)
            z.flush()
            z('s_branch %sb' % lab)
            rare.append(z)
        sc.place(-1, mid)
        def ostore(T):
            ops = []
            a = accO[T % 2]
            for qs in range(2):
                for b in range(2):
                    for k in range(4): ops.append(('v_mul_f32 %s, %s, %s' % (R(a, b * 8 + qs * 4 + k), R(a, b * 8 + qs * 4 + k), R(v_l[qs])), None))
                for b in range(2):
                    for k in range(0, 4, 2):
                        ops.append(('v_cvt_pk_bf16_f32 %s, %s, %s' % (R(stg[qs], b * 2 + k // 2), R(a, b * 8 + qs * 4 + k), R(a, b * 8 + qs * 4 + k + 1)), None))
                ops.append(('buffer_store_dwordx4 %s, %s, %s, %s offen offset:%d sc1' % (R(stg[qs], 0, 4), l16, sr(S_WS), 's26' if qs else 's25', T * 1024), 'ost%d' % T))
            return ops
        for T in range(3):
            ops = ostore(T)
            lo = 64 * (T + 1) + 3
            for i, (o, tag) in enumerate(ops): sc.place(lo + OST_SP * i, o, tag)
        if not A_ and do_wd and WD_AT >= 0: sc.place(WD_AT, wd_loads)
        if not A_ and wopf_pv is not None:
            def wo_pf2(q):
                mk_srd(q, S_D, 'wo', 0x800000)
                q('v_lshlrev_b32 %s, 7, %s' % (t[5], lane))
                q('s_lshl_b32 s16, s2, 2'); q('s_add_u32 s16, s16, s3'); q('s_sub_u32 s16, s16, 4'); q('s_lshl_b32 s16, s16, 13')
                q('buffer_load_dword %s, %s, %s, s16 offen' % (t[4], t[5], sr(S_D)), 'pf')
            sc.place(wopf_pv, wo_pf2)
        assert (MP_AT[0] + 2 * D2 - 1) % 32 in range(1, 8)
        sc.place(MP_AT[0] - 8, lambda q: q.wait_tag('mst'))
        if A_: mc_final(sc)
        for T_, at_ in enumerate(OF_AT):
            if at_ < 1000: sc.place(at_, lambda q, T_=T_: oflag(q, T_))
        ks_ = 0 if A_ else 1
        sc.place(P3_AT[0], lambda q: p3_setup(q, ks_))
        sc.place(P3_AT[1], lambda q: rare_poll(q, 'o', lambda z: z('v_cmp_ne_u32 vcc, s28, %s' % of2), of_load))
        k_ = 0
        for s_ in range(PO - 1):
            for qs in range(2):
                for l_ in oload(s_, qs): sc.place(P3_AT[1] + 1 + 3 * k_, l_)
                k_ += 1
        for i_, o_ in enumerate(p3_addr(ks_)): sc.place(248 + i_ // 2, o_)
        if pvst:
            for i_, s_ in enumerate(pvst): sc.place(s_, lambda q, i_=i_: q.stamp(50 + i_))
        sc.emit(p)
        for o, tag in ostore(3): p(o, tag)
        p.stamp(10)

    gu_defer = []
    last_ostore = [None]
    def oflag(q, T):
        q.wait_tag('ost%d' % T)
        q('s_add_u32 s16, s63, 0x%x' % (WS_OFLAG + T * 8192))
        a_, b_ = (R(x4, 2), R(x4, 3)) if T > 0 else (R(v_hoff), R(v_kvoff))
        q('v_mov_b32 %s, s28' % a_); q('v_mov_b32 %s, 0' % b_)
        q('s_mov_b64 exec, 1')
        q('buffer_store_dword %s, %s, %s, s16 offen sc1' % (a_, b_, sr(S_WS)))
        q('s_mov_b64 exec, -1')
    def gu_late(sc):
        def setup(q):
            mk_srd(q, S_D, 'wu', 7340032)
            q('s_cmp_lt_u32 s2, 224'); q('s_cselect_b32 s74, 7340032, 0')
            q('s_sub_u32 s16, s3, 4')
            q('v_lshrrev_b32 %s, 3, %s' % (t[4], lane)); q('v_lshlrev_b32 %s, 3, %s' % (t[4], t[4]))
            q('s_lshl_b32 s17, s16, 6'); q('v_add_u32 %s, s17, %s' % (t[4], t[4]))
            q('s_mov_b32 s17, 7168'); q('v_mul_lo_u32 %s, s17, %s' % (t[5], t[4]))
            q('v_and_b32 %s, 7, %s' % (t[4], lane)); q('v_lshl_add_u32 %s, %s, 4, %s' % (t[5], t[4], t[5]))
            q('s_and_b32 s17, s29, 3'); q('s_mul_i32 s18, s17, %d' % (256 * 7168))
            q('s_lshr_b32 s17, s29, 2'); q('s_lshl_b32 s17, s17, 7'); q('s_add_u32 s18, s18, s17')
            q('s_lshl_b32 s16, s16, 13')
            for i in range(8):
                q('s_add_u32 s22, s18, %d' % (i * 7168))
                q('s_add_u32 m0, s16, %d' % (32768 + i * 1024))
                q('buffer_load_dwordx4 %s, %s, s22 offen lds' % (t[5], sr(S_D)), 'gu')
        sc.place(GU3_AT, setup)
    def wd_loads(q):
        mk_srd(q, S_D, 'wd', 7340032)
        q('s_cmp_lt_u32 s2, 224'); q('s_cselect_b32 s74, 7340032, 0')
        q('s_lshl_b32 s17, s29, 4'); q('s_sub_u32 s16, s3, 4'); q('s_lshl_b32 s16, s16, 2'); q('s_add_u32 s16, s16, s17'); q('s_lshl_b32 s16, s16, 11')
        for i in range(4):
            q('s_add_u32 s17, s16, %d' % (i * 2048))
            for hf in range(2):
                q('buffer_load_dwordx4 %s, %s, %s, s17 offen offset:%d' % (R(WD[2 * i + hf], 0, 4), l16, sr(S_D), hf * 1024))

    XROW = negm; MOD = SS; GA = SP
    MSB, MC1, MGB, MWR = 0, 8, 16, 24
    MODL = RING1 + 16384
    def phase3(role):
        A_ = role == 'A'; ks = 0 if A_ else 1
        p('s_and_b32 s15, s2, 1')
        def rd(f):
            s, n = f // 8, f % 8
            k = (W0 + s) % NSL
            if k < 4: return trread(fr[f % NRA], k * 16384, n, R(v_tr), R(v_tr2))
            return trread(fr[f % NRA], (k - 4) * 16384, n, R(v_hoff), R(v_kvoff))
        sc = Sched()
        NF = 256
        for T_, at_ in enumerate(OF_AT):
            if at_ >= 1000: sc.place(at_ - 1000, lambda q, T_=T_: oflag(q, T_))
        for f in range(NF):
            s, n = f // 8, f % 8
            for qs in range(2):
                d = R(acc3[n][qs], 0, 4)
                sc.mfma('v_mfma_f32_16x16x32_bf16 %s, %s, %s, %s' % (d, R(fr[f % NRA], 0, 4), R(OB[s % PO][qs], 0, 4), '0' if s == 0 else d))
        for f in range(NF):
            at = 2 * (f - D3) + 1 if f - D3 >= 0 else -1
            s, n = f // 8, f % 8
            if n == 0:
                c = W0 + s
                sc.place(at, lambda q, c=c: q.wait_tag('ch%d' % c))
                sc.place(at, 's_barrier')
                if c + 4 < W0 + 32:
                    nx = dma_chunk(c + 4)
                    for q_ in range(2):
                        for it, tag in nx[3 * q_:3 * q_ + 3]: sc.place(max(at, 0) + P3D[0] + P3D[1] * q_, it, tag)
            tr = rd(f)
            if at > 0 and n != 0:
                sc.place(at - 1, tr[0]); sc.place(at, tr[1])
            else:
                for x in tr: sc.place(at, x)
        for s in range(32):
            sn = s + PO - 1
            if sn < 32:
                for qs in range(2):
                    for l_ in oload(sn, qs): sc.place(16 * s + P3O[0] + P3O[1] * qs, l_)
        fl = sub(SS, 0)
        def mfl(q):
            q('s_mov_b32 s16, 0x%x' % WS_MFLAG)
            q('buffer_load_dwordx4 %s, %s, %s, s16 offen sc1' % (R(fl, 0, 4), l16, sr(S_WS)))
        def mft(q):
            q('v_xor_b32 %s, s28, %s' % (t[0], R(fl, 0))); q('v_xor_b32 %s, s28, %s' % (t[1], R(fl, 1)))
            q('v_xor_b32 %s, s28, %s' % (t[2], R(fl, 2))); q('v_xor_b32 %s, s28, %s' % (t[3], R(fl, 3)))
            q('v_or3_b32 %s, %s, %s, %s' % (t[0], t[0], t[1], t[2])); q('v_or_b32 %s, %s, %s' % (t[0], t[0], t[3]))
            q('v_cmp_ne_u32 vcc, 0, %s' % t[0])
        for T_ in range(1, 4):
            chk = 8 * T_ - (PO - 1)
            sc.place(16 * (chk - 2) + 9, lambda q: (q('s_add_u32 s19, s19, 8192'), of_load(q)))
            sc.place(16 * chk - 1, lambda q: rare_poll(q, 'o2', lambda z: z('v_cmp_ne_u32 vcc, s28, %s' % of2), of_load))
        sc.place(16 * mf_at[0] + 5, mfl)
        if mc_comp: sc.place(16 * mf_at[1] + 5, lambda q: rare_poll(q, 'mf', mft, mfl))
        def side(q):
            q('v_lshrrev_b32 %s, 4, %s' % (t[0], lane)); q('v_lshlrev_b32 %s, 3, %s' % (t[0], t[0]))
            q('s_lshl_b32 s16, s31, 8'); q('s_add_u32 s16, s16, 0x%x' % (WS_MODB + ks * 128))
            for i in range(4):
                q('buffer_load_dwordx2 %s, %s, %s, s16 offen offset:%d sc1' % (R(GA, 2 * i, 2), t[0], sr(S_WS), i * 32))
        sc.place(16 * mf_at[2] + 5, side)
        def side2(q):
            mk_srd(q, S_B, 'wr', 2048); mk_srd(q, S_E, 'x', 4194304); mk_srd(q, S_C, 'out', 4194304)
            q('s_lshl_b32 s14, s31, 1'); q('s_add_u32 s14, s14, s15'); q('s_lshl_b32 s14, s14, 3'); q('s_add_u32 s14, s14, s3')
            q('s_lshl_b32 s16, s30, 7'); q('s_add_u32 s14, s14, s16')
            q('s_lshl_b32 s16, s14, 11')
            for hf in range(2): q('buffer_load_dwordx4 %s, %s, %s, s16 offen offset:%d' % (R(XROW, 4 * hf, 4), l16, sr(S_E), hf * 1024))
            if MODL_ON:
                q('s_lshl_b32 s16, s3, 10'); q('s_add_u32 m0, s16, %d' % MODL)
                if role == 'A':
                    q('s_add_u32 s16, s16, 0x%x' % (WS_MODB + 2048))
                    q('buffer_load_dwordx4 %s, %s, s16 offen sc1 lds' % (l16, sr(S_WS)), 'ml')
                else:
                    q('s_add_u32 s17, s16, 0x%x' % (WS_MODB + 2048)); q('s_cmp_lt_u32 s3, 6'); q('s_cselect_b32 s17, s17, 0x%x' % OOB)
                    q('s_sub_u32 s23, s16, 6144'); q('s_cmp_ge_u32 s3, 6'); q('s_cselect_b32 s23, s23, 0x%x' % OOB)
                    q('s_cbranch_scc1 %s_mlw' % name)
                    q.alt_begin()
                    q('buffer_load_dwordx4 %s, %s, s17 offen sc1 lds' % (l16, sr(S_WS)), 'ml')
                    q('s_branch %s_mlj' % name)
                    q.alt_next()
                    q.label('%s_mlw' % name)
                    q('buffer_load_dwordx4 %s, %s, s23 offen lds' % (l16, sr(S_B)), 'ml')
                    q.alt_end()
                    q.label('%s_mlj' % name)
            else:
                for off, mo in ((2048, MSB), (4096, MC1), (6144, MGB)):
                    q('s_mov_b32 s16, 0x%x' % (WS_MODB + off))
                    for hf in range(2): q('buffer_load_dwordx4 %s, %s, %s, s16 offen offset:%d%s' % (R(MOD, mo + 4 * hf, 4), l16, sr(S_WS), hf * 1024, modsc))
                for hf in range(2): q('buffer_load_dwordx4 %s, %s, %s, 0 offen offset:%d' % (R(MOD, MWR + 4 * hf, 4), l16, sr(S_B), hf * 1024))
        if mf_at[3] < 32: sc.place(16 * mf_at[3] + 5, side2)
        if not A_ and WD_AT <= -1000: sc.place(-WD_AT - 1000, wd_loads)
        if not A_ and GU3_AT is not None:
            gu_late(sc)
        if p3st:
            for i_, s_ in enumerate(p3st): sc.place(16 * s_, lambda q, i_=i_: q.stamp(30 + i_))
        sc.emit(p)
        p.stamp(13)
        XB = RING1 + 2 * 16384
        p('s_lshl_b32 s16, s3, 13'); p('s_xor_b32 s17, s16, 0x8000'); p('s_add_u32 s16, s16, 0x%x' % XB); p('s_add_u32 s17, s17, 0x%x' % XB)
        p('v_add_u32 %s, s16, %s' % (t[0], l16))
        p('s_mov_b32 s16, s17')
        p('v_add_u32 %s, s16, %s' % (t[1], l16))
        o_ = 4 * (1 - ks)
        for i in range(4):
            for qs in range(2): p('ds_write_b128 %s, %s offset:%d' % (t[0], R(acc3[o_ + i][qs], 0, 4), (i * 2 + qs) * 1024))
        gaf = sub(PR, 0)
        for i in range(4):
            for d in range(2): unpack(p, R(gaf, 4 * i + 2 * d), R(gaf, 4 * i + 2 * d + 1), R(GA, 2 * i + d))
        p('v_and_b32 %s, 15, %s' % (t[2], lane)); p('v_lshlrev_b32 %s, 6, %s' % (t[2], t[2]))
        p('v_lshrrev_b32 %s, 4, %s' % (t[3], lane))
        p('v_and_b32 %s, 1, %s' % (t[4], t[3])); p('v_lshl_add_u32 %s, %s, 5, %s' % (t[2], t[4], t[2]))
        p('v_lshrrev_b32 %s, 1, %s' % (t[3], t[3])); p('v_lshl_add_u32 %s, %s, 4, %s' % (t[2], t[3], t[2]))
        p('s_and_b32 s17, s3, 3'); p('s_lshl_b32 s18, s30, 2'); p('s_add_u32 s18, s18, s17'); p('s_lshl_b32 s18, s18, 16')
        p('s_lshl_b32 s19, s15, 22'); p('s_add_u32 s18, s18, s19'); p('s_lshl_b32 s19, s31, 12'); p('s_add_u32 s18, s18, s19')
        p('s_add_u32 s18, s18, 0x%x' % (WS_AP + ks * 2048)); p('s_add_u32 s19, s18, 32768')
        p('s_waitcnt lgkmcnt(0)')
        p('s_barrier')
        p.stamp(22)
        rx = [sub(PR, 16 + 4 * i) for i in range(8)]
        for i in range(4):
            for qs in range(2): p('ds_read_b128 %s, %s offset:%d' % (R(rx[i * 2 + qs], 0, 4), t[1], (i * 2 + qs) * 1024))
        st4 = [sub(FR, 4 * i) for i in range(4)]
        for mm in range(2):
            for qs in range(2):
                q4 = st4[mm * 2 + qs]
                for b in range(2):
                    i = 2 * mm + b
                    a = acc3[4 * ks + i][qs]
                    for k in range(0, 4, 2): p('v_pk_add_f32 %s, %s, %s' % (R(a, k, 2), R(a, k, 2), R(rx[i * 2 + qs], k, 2)))
                    for k in range(0, 4, 2): p('v_pk_mul_f32 %s, %s, %s' % (R(a, k, 2), R(a, k, 2), R(gaf, 4 * i + k, 2)))
                    for k in range(0, 4, 2): p('v_cvt_pk_bf16_f32 %s, %s, %s' % (R(q4, 2 * b + k // 2), R(a, k), R(a, k + 1)))
                for d in range(2): p('v_permlane16_swap_b32 %s, %s' % (R(q4, d), R(q4, 2 + d)))
                p('buffer_store_dwordx4 %s, %s, %s, %s offen offset:%d sc1' % (R(q4, 0, 4), t[2], sr(S_WS), 's19' if qs else 's18', mm * 1024), 'ap')
        if mf_at[3] >= 32: side2(p)
        if not A_ and WD_AT == -1: wd_loads(p)
        p.stamp(14)

    def tail(role):
        A_ = role == 'A'; ks = 0 if A_ else 1
        T = RA('v', PR[1], PR[1] + 128)
        gr = T.alloc(4, 4); xf = T.alloc(16, 4); raw = T.alloc(16, 4); uf = T.alloc(16, 4)
        u8 = T.alloc(8, 4); acc = T.alloc(8, 4); fin = T.alloc(8, 4); sl = T.alloc(8, 4)
        w = [sub(uf, 4 * i) for i in range(4)] + [T.alloc(4, 4) for _ in range(4)]
        LB = RING1
        L_KEY = LB; L_BEST = LB + 256; L_XS = LB + 1024; L_X2 = LB + 3072; L_GS = LB + 5120; L_YS = LB + 8192; L_RS = LB + 24576 + 1024
        a0, a1, b0, b1 = R(u8, 0), R(u8, 1), R(u8, 2), R(u8, 3)
        a01, b01 = R(u8, 0, 2), R(u8, 2, 2)
        b0v = R(fin, 2)
        usum = R(fin, 3)
        def products():
            p('v_mov_b32 %s, 0' % b0v); p('v_mov_b32 %s, 0' % usum)
            for d in range(8):
                unpack(p, a0, a1, R(MOD, MC1 + d)); unpack(p, b0, b1, R(MOD, MWR + d))
                p('v_pk_mul_f32 %s, %s, %s' % (R(uf, 2 * d, 2), a01, b01))
                unpack(p, a0, a1, R(MOD, MSB + d))
                p('v_fmac_f32 %s, %s, %s' % (b0v, a0, b0)); p('v_fmac_f32 %s, %s, %s' % (b0v, a1, b1))
                p('v_add_f32 %s, %s, %s' % (usum, usum, R(uf, 2 * d))); p('v_add_f32 %s, %s, %s' % (usum, usum, R(uf, 2 * d + 1)))
            for n in (1, 2, 4, 8):
                ror_add(p, b0v, n); ror_add(p, usum, n)
            xor16_add(p, b0v, a0); xor16_add(p, usum, a1); xor32_add(p, b0v, a0); xor32_add(p, usum, a1)
            for d in range(8): unpack(p, R(xf, 2 * d), R(xf, 2 * d + 1), R(XROW, d))
        if not MODL_ON: products()
        if AP_WG:
            p('s_lshl_b32 s16, s30, 5'); p('s_lshl_b32 s17, s31, 1'); p('s_add_u32 s16, s16, s17'); p('s_add_u32 s16, s16, s15')
            p('s_lshl_b32 s16, s16, 2'); p('s_add_u32 s16, s16, 0x%x' % WS_AFLAG)
            p('s_cmp_eq_u32 s3, 0'); p('s_cselect_b32 s16, s16, 0x%x' % OOB)
        else:
            p('s_and_b32 s17, s3, 3'); p('s_lshl_b32 s16, s30, 2'); p('s_add_u32 s16, s16, s17'); p('s_lshl_b32 s16, s16, 5')
            p('s_lshl_b32 s17, s31, 2'); p('s_add_u32 s16, s16, s17'); p('s_lshl_b32 s17, s15, 1'); p('s_add_u32 s16, s16, s17')
            p('s_add_u32 s16, s16, %d' % ks); p('s_lshl_b32 s16, s16, 2'); p('s_add_u32 s16, s16, 0x%x' % WS_AFLAG)
        p('v_mov_b32 %s, s28' % t[0]); p('v_mov_b32 %s, 0' % t[1])
        p('s_lshr_b32 s18, s14, 4'); p('s_lshl_b32 s18, s18, 15'); p('s_and_b32 s19, s14, 15'); p('s_lshl_b32 s19, s19, 6')
        p('s_add_u32 s18, s18, s19'); p('s_add_u32 s18, s18, 0x%x' % WS_AP); p('s_add_u32 s19, s18, 16384')
        p('v_lshrrev_b32 %s, 2, %s' % (t[2], lane)); p('v_lshlrev_b32 %s, 10, %s' % (t[2], t[2]))
        p('v_and_b32 %s, 3, %s' % (t[3], lane)); p('v_lshl_add_u32 %s, %s, 4, %s' % (t[2], t[3], t[2]))
        p('v_add_u32 %s, 0x400000, %s' % (t[3], t[2]))
        if AP_WG:
            p('s_lshl_b32 s25, s30, 7'); p('s_add_u32 s25, s25, 0x%x' % WS_AFLAG)
            p('v_and_b32 %s, 15, %s' % (t[4], lane)); p('v_lshlrev_b32 %s, 2, %s' % (t[4], t[4]))
        else:
            p('s_lshr_b32 s25, s14, 5'); p('s_lshl_b32 s25, s25, 7'); p('s_add_u32 s25, s25, 0x%x' % WS_AFLAG)
            p('v_and_b32 %s, 31, %s' % (t[4], lane)); p('v_lshlrev_b32 %s, 2, %s' % (t[4], t[4]))
        p.wait_tag('ap')
        if MODL_ON: p.wait_tag('ml')
        if AP_WG: p('s_barrier')
        p('s_mov_b64 exec, 1')
        p('buffer_store_dword %s, %s, %s, s16 offen sc1' % (t[0], t[1], sr(S_WS)))
        p('s_mov_b64 exec, -1')
        if MODL_ON:
            assert AP_WG
            p('v_add_u32 %s, %d, %s' % (t[0], MODL, l16))
            for k in range(8): p('ds_read_b128 %s, %s offset:%d' % (R(MOD, 4 * k, 4), t[0], k * 1024))
            products()
        p.stamp(15)
        backoff(p, 'a')
        poll(p, 'a', lambda: p('buffer_load_dword %s, %s, %s, s25 offen sc1' % (a0, t[4], sr(S_WS))),
             lambda: p('v_cmp_ne_u32 vcc, s28, %s' % a0))
        for hf in range(2):
            p('buffer_load_dwordx4 %s, %s, %s, s%d offen sc1' % (R(raw, 4 * hf, 4), t[2], sr(S_WS), 18 + hf))
            p('buffer_load_dwordx4 %s, %s, %s, s%d offen sc1' % (R(raw, 8 + 4 * hf, 4), t[3], sr(S_WS), 18 + hf))
        p('v_lshlrev_b32 %s, 2, %s' % (t[5], tid))
        p('s_mov_b32 s16, 0x%x' % (WS_MODB + 2048))
        p('buffer_load_dword %s, %s, %s, s16 offen sc1' % (R(sl, 6), t[5], sr(S_WS)))
        p('buffer_load_dword %s, %s, %s, s16 offen offset:2048 sc1' % (R(sl, 4), t[5], sr(S_WS)))
        p.stamp(16)
        for d in range(8):
            k = (d % 2) * 4
            A0, A1, B0_, B1 = [R(u8, k + i) for i in range(4)]
            unpack(p, A0, A1, R(raw, d)); unpack(p, B0_, B1, R(raw, 8 + d))
            p('v_pk_add_f32 %s, %s, %s' % (R(u8, k, 2), R(u8, k, 2), R(u8, k + 2, 2)))
            p('v_pk_add_f32 %s, %s, %s' % (R(xf, 2 * d, 2), R(xf, 2 * d, 2), R(u8, k, 2)))
            rb2(p, R(xf, 2 * d), R(xf, 2 * d + 1), t[d % 2])
        mean, var, s3v, rcp = R(fin, 4), R(fin, 5), R(fin, 6), R(fin, 7)
        c01 = R(u8, 4, 2)
        p('v_pk_add_f32 %s, %s, %s' % (a01, R(xf, 0, 2), R(xf, 2, 2)))
        p('v_pk_mul_f32 %s, %s, %s' % (b01, R(xf, 0, 2), R(xf, 0, 2)))
        p('v_pk_mul_f32 %s, %s, %s' % (c01, R(xf, 0, 2), R(uf, 0, 2)))
        p('v_pk_fma_f32 %s, %s, %s, %s' % (b01, R(xf, 2, 2), R(xf, 2, 2), b01))
        p('v_pk_fma_f32 %s, %s, %s, %s' % (c01, R(xf, 2, 2), R(uf, 2, 2), c01))
        for d in range(2, 8):
            p('v_pk_add_f32 %s, %s, %s' % (a01, a01, R(xf, 2 * d, 2)))
            p('v_pk_fma_f32 %s, %s, %s, %s' % (b01, R(xf, 2 * d, 2), R(xf, 2 * d, 2), b01))
            p('v_pk_fma_f32 %s, %s, %s, %s' % (c01, R(xf, 2 * d, 2), R(uf, 2 * d, 2), c01))
        p('v_add_f32 %s, %s, %s' % (mean, a0, a1)); p('v_add_f32 %s, %s, %s' % (var, b0, b1)); p('v_add_f32 %s, %s, %s' % (s3v, R(u8, 4), R(u8, 5)))
        for n in (1, 2, 4, 8):
            ror_add(p, mean, n); ror_add(p, var, n); ror_add(p, s3v, n)
        xor16_add(p, mean, a0); xor16_add(p, var, a1); xor16_add(p, s3v, b0)
        xor32_add(p, mean, a0); xor32_add(p, var, a1); xor32_add(p, s3v, b0)
        p('v_mul_f32 %s, 0x%x, %s' % (mean, f2u(1.0 / 1024), mean))
        p('v_mul_f32 %s, 0x%x, %s' % (var, f2u(1.0 / 1024), var))
        p('v_fma_f32 %s, -%s, %s, %s' % (var, mean, mean, var))
        p('v_max_f32 %s, 0, %s' % (var, var))
        p('v_fma_f32 %s, -%s, %s, %s' % (s3v, mean, usum, s3v))
        p('v_add_f32 %s, 0x%x, %s' % (a0, f2u(1e-5), var))
        p('v_rsq_f32 %s, %s' % (a0, a0))
        p('v_fma_f32 %s, %s, %s, %s' % (R(gr, 3), s3v, a0, b0v))
        sd = s3v
        ln_scalars(p, mean, var, sd, rcp)
        p('v_mov_b32 %s, %s' % (R(gr, 1), mean))
        p('v_mov_b32 %s, %s' % (R(gr, 2), sd))
        p('v_ashrrev_i32 %s, 31, %s' % (t[0], R(gr, 3)))
        p('v_or_b32 %s, 0x80000000, %s' % (t[0], t[0]))
        p('v_xor_b32 %s, %s, %s' % (R(gr, 0), R(gr, 3), t[0]))
        p('v_and_b32 %s, 0xfffff800, %s' % (R(gr, 0), R(gr, 0)))
        p('v_max_u32 %s, 0x800, %s' % (R(gr, 0), R(gr, 0)))
        p('s_sub_u32 s16, 2047, s14')
        p('v_or_b32 %s, s16, %s' % (R(gr, 0), R(gr, 0)))
        p('s_lshl_b32 s16, s3, 4'); p('s_add_u32 s16, s16, %d' % L_KEY)
        p('v_mov_b32 %s, s16' % t[0])
        p('ds_write_b128 %s, %s' % (t[0], R(gr, 0, 4)))
        p('s_waitcnt lgkmcnt(0)')
        p('s_barrier')
        def best_of(ldsoff, n):
            p('v_and_b32 %s, %d, %s' % (t[0], n - 1, lane))
            p('v_lshlrev_b32 %s, 4, %s' % (t[0], t[0])); p('v_add_u32 %s, %d, %s' % (t[0], ldsoff, t[0]))
            p('ds_read_b32 %s, %s' % (a0, t[0]))
            p('v_mov_b32 %s, %s' % (a1, a0))
            for k in ((1, 2, 4) if n == 8 else (1, 2)): ror_add(p, a1, k, 'v_max_u32')
            p('v_cmp_eq_u32 vcc, %s, %s' % (a0, a1))
            p('s_ff1_i32_b64 s16, vcc')
            p('s_lshl_b32 s16, s16, 4'); p('s_add_u32 s16, s16, %d' % ldsoff)
            p('v_mov_b32 %s, s16' % t[0])
            p('ds_read_b128 %s, %s' % (R(gr, 0, 4), t[0]))
        best_of(L_KEY, 8)
        p('s_lshl_b32 s16, s2, 4'); p('s_add_u32 s16, s16, 0x%x' % WS_KEY)
        p('s_cmp_eq_u32 s3, 0'); p('s_cselect_b32 s16, s16, 0x%x' % OOB)
        p('v_mov_b32 %s, 0' % t[1])
        p('s_mov_b64 exec, 1')
        p('buffer_store_dwordx4 %s, %s, %s, s16 offen sc1' % (R(gr, 0, 4), t[1], sr(S_WS)))
        p('s_mov_b64 exec, -1')
        if not A_ and WD_AT == -2: wd_loads(p)
        p.stamp(17)
        for hf in range(2):
            X = [R(raw, i) for i in range(8)]
            c1 = [R(raw, 8 + i) for i in range(8)]
            for i in range(8): p('v_sub_f32 %s, %s, %s' % (X[i], R(xf, 8 * hf + i), mean))
            for i in range(0, 8, 2): rb2(p, X[i], X[i + 1], t[0])
            for i in range(8): p('v_mul_f32 %s, %s, %s' % (c1[i], X[i], rcp))
            for i in range(8): p('v_fma_f32 %s, -%s, %s, %s' % (X[i], c1[i], sd, X[i]))
            for i in range(8): p('v_fma_f32 %s, %s, %s, %s' % (X[i], X[i], rcp, c1[i]))
            for i in range(0, 8, 2): rb2(p, X[i], X[i + 1], t[0])
            for op, mo in (('v_pk_mul_f32', MC1), ('v_pk_add_f32', MSB), ('v_pk_mul_f32', MGB)):
                for d in range(4): unpack(p, c1[2 * d], c1[2 * d + 1], R(MOD, mo + 4 * hf + d))
                for d in range(4): p('%s %s, %s, %s' % (op, R(raw, 2 * d, 2), R(raw, 2 * d, 2), R(raw, 8 + 2 * d, 2)))
                for i in range(0, 8, 2): rb2(p, X[i], X[i + 1], t[0])
            for d in range(4): p('v_pk_add_f32 %s, %s, %s' % (R(raw, 2 * d, 2), R(raw, 2 * d, 2), R(xf, 8 * hf + 2 * d, 2)))
            for d in range(4): p('v_cvt_pk_bf16_f32 %s, %s, %s' % (R(xf, 8 * hf + d), X[2 * d], X[2 * d + 1]))
        if A_:
            p('v_lshlrev_b32 %s, 4, %s' % (t[2], tid))
            p('s_mov_b32 s16, 0x%x' % WS_KEY)
            backoff(p, 'w')
            poll(p, 'w', lambda: p('buffer_load_dwordx4 %s, %s, %s, s16 offen sc1' % (R(gr, 0, 4), t[2], sr(S_WS))),
                 lambda: p('v_cmp_eq_u32 vcc, 0, %s' % R(gr, 0)))
            p('v_mov_b32 %s, %s' % (a0, R(gr, 0)))
            for n in (1, 2, 4, 8): ror_add(p, a0, n, 'v_max_u32')
            xor16_add(p, a0, a1, 'v_max_u32'); xor32_add(p, a0, a1, 'v_max_u32')
            p('v_cmp_eq_u32 vcc, %s, %s' % (a0, R(gr, 0)))
            p('s_lshl_b32 s16, s3, 4'); p('s_add_u32 s16, s16, %d' % L_BEST)
            p('v_mov_b32 %s, s16' % t[0])
            p('s_and_saveexec_b64 s[62:63], vcc')
            p('ds_write_b128 %s, %s' % (t[0], R(gr, 0, 4)))
            p('s_mov_b64 exec, s[62:63]')
            p('s_waitcnt lgkmcnt(0)')
        p('s_barrier')
        best_of(L_BEST, 4)
        p('v_and_b32 %s, 0x7ff, %s' % (a0, R(gr, 0)))
        p('v_sub_u32 %s, 2047, %s' % (a0, a0))
        p('v_readfirstlane_b32 s12, %s' % a0)
        p('v_rcp_f32 %s, %s' % (R(sl, 3), R(gr, 2)))
        p.stamp(18)
        p('s_lshr_b32 s18, s12, 4'); p('s_lshl_b32 s18, s18, 15'); p('s_and_b32 s19, s12, 15'); p('s_lshl_b32 s19, s19, 6')
        p('s_add_u32 s18, s18, s19'); p('s_add_u32 s18, s18, 0x%x' % WS_AP); p('s_add_u32 s19, s18, 0x400000')
        p('v_lshrrev_b32 %s, 4, %s' % (t[2], tid)); p('v_lshlrev_b32 %s, 10, %s' % (t[2], t[2]))
        p('v_and_b32 %s, 15, %s' % (t[3], tid)); p('v_lshl_add_u32 %s, %s, 2, %s' % (t[2], t[3], t[2]))
        p('s_lshl_b32 s13, s12, 11')
        p('buffer_load_dword %s, %s, %s, s18 offen sc1' % (R(sl, 0), t[2], sr(S_WS)))
        p('buffer_load_dword %s, %s, %s, s19 offen sc1' % (R(sl, 1), t[2], sr(S_WS)))
        p('buffer_load_dword %s, %s, %s, s13 offen' % (R(sl, 2), t[5], sr(S_E)))
        p('s_lshl_b32 s16, s14, 11'); p('s_cmp_lg_u32 s12, s14'); p('s_cselect_b32 s16, s16, 0x%x' % OOB)
        for hf in range(2):
            p('buffer_store_dwordx4 %s, %s, %s, s16 offen offset:%d sc1' % (R(xf, 8 * hf, 4), l16, sr(S_C), hf * 1024))
        p('s_lshl_b32 s16, s3, 13'); p('v_add_u32 %s, s16, %s' % (t[4], l16))
        p.wait_tag('gu')
        X = [R(fin, 0), R(fin, 1)]
        unpack(p, a0, a1, R(sl, 0)); unpack(p, b0, b1, R(sl, 1))
        p('v_pk_add_f32 %s, %s, %s' % (a01, a01, b01))
        unpack(p, b0, b1, R(sl, 2))
        p('v_pk_add_f32 %s, %s, %s' % (R(fin, 0, 2), b01, a01))
        rb2(p, X[0], X[1], a0)
        p('v_cvt_pk_bf16_f32 %s, %s, %s' % (R(sl, 0), X[0], X[1]))
        unpack(p, R(sl, 4), R(sl, 5), R(sl, 4)); unpack(p, R(sl, 6), R(sl, 7), R(sl, 6))
        ln_apply(p, X, 2, R(gr, 1), R(gr, 2), R(sl, 3), [R(sl, 4), R(sl, 5)], [R(sl, 6), R(sl, 7)], a0, a1)
        p('v_cvt_pk_bf16_f32 %s, %s, %s' % (R(sl, 1), X[0], X[1]))
        p('v_add_u32 %s, %d, %s' % (t[0], L_XS, t[5]))
        p('ds_write_b32 %s, %s' % (t[0], R(sl, 1)))
        p('ds_write_b32 %s, %s offset:2048' % (t[0], R(sl, 0)))
        p('s_waitcnt lgkmcnt(0)')
        p('s_barrier')
        p.stamp(23)
        for i in range(8): p('ds_read_b128 %s, %s offset:%d' % (R(w[i], 0, 4), t[4], i * 1024))
        p('s_and_b32 s16, s3, 3'); p('s_lshl_b32 s16, s16, 7'); p('s_and_b32 s17, s29, 3'); p('s_lshl_b32 s17, s17, 9')
        p('s_add_u32 s16, s16, s17'); p('s_add_u32 s16, s16, %d' % L_XS)
        p('v_lshrrev_b32 %s, 3, %s' % (t[0], lane)); p('v_lshlrev_b32 %s, 4, %s' % (t[0], t[0])); p('v_add_u32 %s, s16, %s' % (t[0], t[0]))
        x8 = sub(sl, 4)
        p('ds_read_b128 %s, %s' % (R(x8, 0, 4), t[0]))
        for i in range(8):
            hi, lo = R(u8, (i % 4) * 2), R(u8, (i % 4) * 2 + 1)
            if i % 2 == 0:
                p('v_lshlrev_b32 %s, 16, %s' % (hi, R(x8, i // 2))); p('v_and_b32 %s, 0xffff, %s' % (lo, R(x8, i // 2)))
            else:
                p('v_and_b32 %s, 0xffff0000, %s' % (hi, R(x8, i // 2))); p('v_lshrrev_b32 %s, 16, %s' % (lo, R(x8, i // 2)))
            for d in range(4):
                for h, xx in ((1, hi), (0, lo)):
                    if i == 0: p('v_dot2_f32_bf16 %s, %s, %s, 0' % (R(acc, 2 * d + h), R(w[i], d), xx))
                    else: p('v_dot2c_f32_bf16 %s, %s, %s' % (R(acc, 2 * d + h), R(w[i], d), xx))
        for e in range(4): p('v_permlane32_swap_b32 %s, %s' % (R(acc, e), R(acc, 4 + e)))
        for e in range(4): p('v_add_f32 %s, %s, %s' % (R(acc, e), R(acc, e), R(acc, 4 + e)))
        for e in range(2): p('v_permlane16_swap_b32 %s, %s' % (R(acc, e), R(acc, 2 + e)))
        for e in range(2): p('v_add_f32 %s, %s, %s' % (R(acc, e), R(acc, e), R(acc, 2 + e)))
        for e in range(2): ror_add(p, R(acc, e), 8)
        p('v_and_b32 %s, 7, %s' % (t[0], lane)); p('v_lshlrev_b32 %s, 5, %s' % (t[0], t[0]))
        p('v_lshrrev_b32 %s, 4, %s' % (t[1], lane)); p('v_lshl_add_u32 %s, %s, 3, %s' % (t[0], t[1], t[0]))
        p('s_lshl_b32 s16, s3, 8'); p('s_add_u32 s16, s16, %d' % L_GS)
        p('v_add_u32 %s, s16, %s' % (t[0], t[0]))
        p('ds_write_b64 %s, %s' % (t[0], R(acc, 0, 2)))
        p('s_lshr_b32 s16, s3, 2'); p('s_lshl_b32 s17, s16, 10'); p('s_add_u32 s17, s17, %d' % L_GS)
        p('v_lshlrev_b32 %s, 2, %s' % (t[1], lane)); p('v_add_u32 %s, s17, %s' % (t[0], t[1]))
        p('s_and_b32 s17, s29, 3'); p('s_lshl_b32 s17, s17, 1'); p('s_add_u32 s17, s17, s16'); p('s_mul_i32 s17, s17, %d' % (3584 * 4))
        p('s_lshr_b32 s16, s29, 2'); p('s_lshl_b32 s16, s16, 8'); p('s_add_u32 s17, s17, s16'); p('s_add_u32 s17, s17, 0x%x' % WS_GUP)
        p('s_and_b32 s16, s3, 3'); p('s_cmp_eq_u32 s16, 0'); p('s_cselect_b32 s17, s17, 0x%x' % OOB)
        p('s_cmp_lt_u32 s2, 224'); p('s_cselect_b32 s17, s17, 0x%x' % OOB)
        p('s_waitcnt lgkmcnt(0)')
        p('s_barrier')
        for b in range(4): p('ds_read_b32 %s, %s offset:%d' % (R(acc, b), t[0], b * 256))
        p('v_add_f32 %s, %s, %s' % (R(acc, 0), R(acc, 0), R(acc, 1))); p('v_add_f32 %s, %s, %s' % (R(acc, 2), R(acc, 2), R(acc, 3)))
        p('v_add_f32 %s, %s, %s' % (R(acc, 0), R(acc, 0), R(acc, 2)))
        p('v_or_b32 %s, 1, %s' % (R(acc, 0), R(acc, 0)))
        p('buffer_store_dword %s, %s, %s, s17 offen sc1' % (R(acc, 0), t[1], sr(S_WS)))
        p.stamp(19)
        if not A_:
            p('v_lshrrev_b32 %s, 4, %s' % (t[0], lane)); p('v_mul_u32_u24 %s, %d, %s' % (t[0], 2 * 3584 * 4, t[0]))
            p('v_and_b32 %s, 15, %s' % (t[1], lane)); p('v_lshl_add_u32 %s, %s, 2, %s' % (t[0], t[1], t[0]))
            p('s_lshl_b32 s16, s29, 6'); p('s_add_u32 s16, s16, 0x%x' % WS_GUP); p('s_add_u32 s17, s16, %d' % (3584 * 4))
            g_, u_ = R(acc, 0), R(acc, 1)
            def gl2():
                p('buffer_load_dword %s, %s, %s, s16 offen sc1' % (g_, t[0], sr(S_WS)))
                p('buffer_load_dword %s, %s, %s, s17 offen sc1' % (u_, t[0], sr(S_WS)))
            def gt2():
                p('v_min_u32 %s, %s, %s' % (R(acc, 2), g_, u_))
                p('v_cmp_eq_u32 vcc, 0, %s' % R(acc, 2))
                p('s_cmp_lt_u32 s2, 224'); p('s_cselect_b64 s[62:63], -1, 0'); p('s_and_b64 vcc, vcc, s[62:63]')
            backoff(p, 'gu')
            poll(p, 'gu', gl2, gt2)
            p.stamp(24)
            xor16_add(p, g_, R(acc, 2)); xor16_add(p, u_, R(acc, 3)); xor32_add(p, g_, R(acc, 2)); xor32_add(p, u_, R(acc, 3))
            rb2(p, g_, u_, R(acc, 2))
            silu(p, g_, R(acc, 2)); rb1(p, g_)
            p('v_mul_f32 %s, %s, %s' % (g_, g_, u_)); rb1(p, g_)
            p('s_sub_u32 s16, s3, 4'); p('s_lshl_b32 s16, s16, 2')
            for i in range(4):
                p('s_add_u32 s17, s16, %d' % i)
                p('v_readlane_b32 s%d, %s, s17' % (20 + i, g_))
                p('s_lshr_b32 s%d, s%d, 16' % (4 + i, 20 + i))
            y = raw
            for i in range(4):
                for hf in range(2):
                    for d in range(4):
                        for h, xx in ((1, 's%d' % (20 + i)), (0, 's%d' % (4 + i))):
                            dst = R(y, 8 * hf + 2 * d + h)
                            if i == 0: p('v_dot2_f32_bf16 %s, %s, %s, 0' % (dst, R(WD[2 * i + hf], d), xx))
                            else: p('v_dot2c_f32_bf16 %s, %s, %s' % (dst, xx, R(WD[2 * i + hf], d)))
            p('s_sub_u32 s16, s3, 4'); p('s_lshl_b32 s16, s16, 12'); p('s_add_u32 s16, s16, %d' % L_YS)
            p('v_lshlrev_b32 %s, 5, %s' % (t[0], lane)); p('v_add_u32 %s, s16, %s' % (t[0], t[0]))
            for hf in range(2):
                for k in range(2): p('ds_write_b128 %s, %s offset:%d' % (t[0], R(y, 8 * hf + 4 * k, 4), hf * 2048 + k * 16))
            p('s_waitcnt lgkmcnt(0)')
        p('s_barrier')
        p('v_lshlrev_b32 %s, 3, %s' % (t[0], tid)); p('v_add_u32 %s, %d, %s' % (t[1], L_YS, t[0]))
        for b in range(4): p('ds_read_b64 %s, %s offset:%d' % (R(acc, 2 * b, 2), t[1], b * 4096))
        p('v_pk_add_f32 %s, %s, %s' % (R(acc, 0, 2), R(acc, 0, 2), R(acc, 2, 2)))
        p('v_pk_add_f32 %s, %s, %s' % (R(acc, 4, 2), R(acc, 4, 2), R(acc, 6, 2)))
        p('v_pk_add_f32 %s, %s, %s' % (R(acc, 0, 2), R(acc, 0, 2), R(acc, 4, 2)))
        p('v_or_b32 %s, 1, %s' % (R(acc, 0), R(acc, 0))); p('v_or_b32 %s, 1, %s' % (R(acc, 1), R(acc, 1)))
        p('s_lshl_b32 s16, s29, 12'); p('s_add_u32 s16, s16, 0x%x' % WS_YP)
        p('s_cmp_lt_u32 s2, 224'); p('s_cselect_b32 s16, s16, 0x%x' % OOB)
        p('buffer_store_dwordx2 %s, %s, %s, s16 offen sc1' % (R(acc, 0, 2), t[0], sr(S_WS)))
        p.stamp(25)
        p('s_cmp_lt_u32 s2, 224')
        p('s_cbranch_scc1 %s_end' % name)
        pp = raw
        p('s_sub_u32 s16, s2, 224'); p('s_lshl_b32 s17, s16, 7'); p('s_add_u32 s17, s17, 0x%x' % WS_YP)
        p('v_lshrrev_b32 %s, 3, %s' % (t[0], tid)); p('v_lshlrev_b32 %s, 12, %s' % (t[0], t[0]))
        p('v_and_b32 %s, 7, %s' % (t[1], tid)); p('v_lshl_add_u32 %s, %s, 4, %s' % (t[0], t[1], t[0]))
        p('v_cmp_gt_u32 vcc, 256, %s' % tid)
        p('v_bfrev_b32 %s, -2' % t[1])
        p('v_cndmask_b32 %s, %s, %s, vcc' % (t[1], t[1], t[0]))
        p('v_mov_b32 %s, 0' % t[3])
        p('v_cndmask_b32 %s, 1, %s, vcc' % (t[2], t[3]))
        p('s_lshl_b32 s18, s16, 6')
        p('v_and_b32 %s, 31, %s' % (t[3], lane)); p('v_lshlrev_b32 %s, 1, %s' % (t[3], t[3])); p('v_add_u32 %s, s18, %s' % (t[3], t[3]))
        p('s_mov_b32 s19, 0x%x' % (WS_MODB + 6144))
        p('buffer_load_ushort %s, %s, %s, s19 offen sc1' % (R(fin, 3), t[3], sr(S_WS)))
        p('v_add_u32 %s, %d, %s' % (t[4], L_XS, t[3]))
        p('ds_read_u16 %s, %s' % (R(fin, 4), t[4])); p('ds_read_u16 %s, %s offset:2048' % (R(fin, 5), t[4]))
        rsel = R(fin, 2)
        p('v_mov_b32 %s, %s' % (rsel, R(gr, 3)))
        rb1(p, rsel)
        p('v_mul_f32 %s, 0x%x, %s' % (rsel, f2u(-LOG2E), rsel))
        p('v_exp_f32 %s, %s' % (rsel, rsel))
        p('v_add_f32 %s, 1.0, %s' % (rsel, rsel))
        p('v_rcp_f32 %s, %s' % (rsel, rsel))
        rb1(p, rsel)
        for r_ in (R(fin, 3), R(fin, 4), R(fin, 5)): p('v_lshlrev_b32 %s, 16, %s' % (r_, r_))
        mn = R(fin, 6)
        def l2():
            for k in range(4):
                p('s_add_u32 s19, s17, 0x%x' % (k * 64 * 4096))
                p('buffer_load_dwordx4 %s, %s, %s, s19 offen sc1' % (R(pp, 4 * k, 4), t[1] if k == 3 else t[0], sr(S_WS)))
        def t2():
            q_ = [R(pp, i) for i in range(16)]
            p('v_min3_u32 %s, %s, %s, %s' % (mn, q_[12], q_[13], q_[14])); p('v_min_u32 %s, %s, %s' % (mn, mn, q_[15]))
            p('v_or_b32 %s, %s, %s' % (mn, mn, t[2]))
            for k in range(0, 12, 2): p('v_min3_u32 %s, %s, %s, %s' % (mn, mn, q_[k], q_[k + 1]))
            p('v_cmp_eq_u32 vcc, 0, %s' % mn)
        backoff(p, 'y')
        poll(p, 'y', l2, t2)
        for st in (8, 4):
            for k in range(0, st, 2): p('v_pk_add_f32 %s, %s, %s' % (R(pp, k, 2), R(pp, k, 2), R(pp, st + k, 2)))
        for e in range(4): ror_add(p, R(pp, e), 8)
        for e in range(2): p('v_permlane32_swap_b32 %s, %s' % (R(pp, e), R(pp, 2 + e)))
        for e in range(2): p('v_add_f32 %s, %s, %s' % (R(pp, e), R(pp, e), R(pp, 2 + e)))
        p('v_permlane16_swap_b32 %s, %s' % (R(pp, 0), R(pp, 1)))
        p('v_add_f32 %s, %s, %s' % (R(pp, 0), R(pp, 0), R(pp, 1)))
        p('v_and_b32 %s, 7, %s' % (t[0], lane)); p('v_lshlrev_b32 %s, 4, %s' % (t[0], t[0]))
        p('v_lshrrev_b32 %s, 4, %s' % (t[1], lane)); p('v_lshl_add_u32 %s, %s, 2, %s' % (t[0], t[1], t[0]))
        p('s_lshl_b32 s19, s3, 7'); p('s_add_u32 s19, s19, %d' % L_RS)
        p('v_add_u32 %s, s19, %s' % (t[0], t[0]))
        p('ds_write_b32 %s, %s' % (t[0], R(pp, 0)))
        p('v_and_b32 %s, 31, %s' % (t[0], lane)); p('v_lshlrev_b32 %s, 2, %s' % (t[0], t[0])); p('v_add_u32 %s, %d, %s' % (t[0], L_RS, t[0]))
        p('s_waitcnt lgkmcnt(0)')
        p('s_barrier')
        p('s_cmp_lg_u32 s3, 0')
        p('s_cbranch_scc1 %s_end' % name)
        for i in range(8): p('ds_read_b32 %s, %s offset:%d' % (R(pp, i), t[0], i * 128))
        for st in (4, 2, 1):
            for k in range(st): p('v_add_f32 %s, %s, %s' % (R(pp, k), R(pp, k), R(pp, st + k)))
        y = R(pp, 0)
        rb1(p, y)
        p('v_mul_f32 %s, %s, %s' % (y, y, rsel)); rb1(p, y)
        p('v_add_f32 %s, %s, %s' % (y, y, R(fin, 4))); rb1(p, y)
        p('v_mul_f32 %s, %s, %s' % (y, y, R(fin, 3))); rb1(p, y)
        p('v_add_f32 %s, %s, %s' % (y, y, R(fin, 5)))
        p('v_cvt_pk_bf16_f32 %s, %s, %s' % (y, y, y))
        p('s_mov_b64 exec, 0xffffffff')
        p('buffer_store_short %s, %s, %s, s13 offen sc1' % (y, t[3], sr(S_C)))

    def role_prog(role):
        front(role)
        if stop == 'front': return
        phase1(role)
        phase2(role)
        if stop == 'p2': return
        phase3(role)
        tail(role)
    p.alt_begin()
    role_prog('A')
    p('s_branch %s_end' % name)
    p.alt_next()
    p.label('%s_roleB' % name)
    role_prog('B')
    p.alt_end()
    p.label('%s_end' % name)
    p('s_endpgm')
    body = p.emit()
    extra = ''.join(z.emit() for z in rare)
    return body, extra, dict(vgpr=256, accum=256, sgpr=80, lds=163840, block=512, grid=256)
```

```python
import sys, json
from gen_mega import build
CFG = dict(D1=3, OF_AT=[120, 220, 1030, 1090], wopf=30, gu_at=[4, 8], AP_WG=True, MPV=True, mf_at=[25, 26, 27, 32], WD_AT=-2, GU3_AT=456, MODL_ON=True, slp={}, H_WAITDMA=True, WQ_LATE=False, WQ_BAR=True, XFIRST=True, SMPIPE=True, NWQ=4, NH=4, PO=6, P3_AT=[212, 232], P3D=[1, 3], P3O=[2, 3], P3B=[[8, 3], [10, 3]], LMF='qk', QCONV=True, WARM={'step': 2097152, 'entry': 2})
if __name__ == '__main__':
    if len(sys.argv) > 1: CFG.update(json.loads(sys.argv[1]))
    build('fin', final=True, **CFG)
```

```python
from asmdsl import Prog, Inst
from lay2 import *
from k2 import RA, R, Sched
from small import silu, rb1, rb2, unpack, ror_add, xor16_add, xor32_add, f2u, ln_scalars, ln_apply
import math

SPIN_MAX = 1 << 18
LOG2E = 1.4426950408889634
PTR = dict(x=32, k=34, v=36, wq=38, wo=40, bx=42, wr=44, wg=46, wu=48, wd=50, c=52, wmod=54, out=56, dbg=58, ws=60)
OOB = 0x7ffffff0
RING0 = 0; RING1 = 65536; NSL = 6
S_WS, S_A, S_B, S_C, S_D, S_E = 8, 4, 64, 68, 72, 76

def sr(b): return 's[%d:%d]' % (b, b + 3)

def gen_mega(name, stop=None, D1=4, D2=4, D3=4, PO=5, NH=3, prioB=False, gu_at=(1, 7), nwq0=3, MP_AT=(30, 70, 110), WD_AT=6, OF_AT=(180, 255, 1040, 1090), P3_AT=(196, 225), OST_SP=1, mc_comp=True, NWQ=4, P3B=None, P1B=(0, 0), P2B=0, OST2_LATE=False, WQ_LATE=False, MODL_ON=False, modsc=' sc1', ROT3=None, AP_WG=False, ROT=None, P3D=(1, 7), P3O=(2, 6), GU3_AT=None, wopf_pv=None, SPF=None, p1pf=None, p1st=None, dmaA=False, osc=' sc1', hsc=' sc1', kvsc=' sc1', wlin=False, p3st=None, do_gu=True, do_mc=True, do_wd=True, wopf=None, mf_at=(16, 20, 21, 23), qkst=None, pvst=None, slp=None, slp_loop=0, dma_split=False):
    slp = slp or {}
    def backoff(q, k):
        n = slp.get(k, 0)
        while n > 0:
            q('s_sleep %d' % min(n, 127)); n -= 127

    p = Prog()
    rare = []
    V = RA('v', 0, 256)
    v_tid = V.alloc(1); v_lane = V.alloc(1); v_l16 = V.alloc(1)
    v_wqoff = V.alloc(1); v_tr = V.alloc(1); v_tr2 = V.alloc(1); v_wq2 = V.alloc(1); v_hoff = V.alloc(1); v_kvoff = V.alloc(1)
    v_l = [V.alloc(1), V.alloc(1)]; v_xv = V.alloc(1)
    x4 = V.alloc(4, 4)
    v_t = [V.alloc(1) for _ in range(6)]
    PR = V.alloc(128, 4); QF = V.alloc(32, 4); SS = V.alloc(32, 4); negm = V.alloc(8, 4)
    NRA = 6
    FR = V.alloc(4 * NRA, 4); SP = V.alloc(8, 4)
    assert V.n <= 256
    def sub(reg, off): return (reg[0], reg[1] + off)
    fr = [sub(FR, 4 * i) for i in range(NRA)]
    qf = [sub(QF, 4 * i) for i in range(8)]
    S = [sub(SS, 0), sub(SS, 16)]
    tid, lane, l16 = R(v_tid), R(v_lane), R(v_l16)
    t = [R(x) for x in v_t]

    def mk_srd(q, base, ptr, size):
        q('s_mov_b64 s[%d:%d], s[%d:%d]' % (base, base + 1, PTR[ptr], PTR[ptr] + 1))
        q('s_mov_b32 s%d, 0x%x' % (base + 2, size)); q('s_mov_b32 s%d, 0x20000' % (base + 3))
    cnt = [0]
    def poll(q, tag, loads, test):
        cnt[0] += 1
        lab = '%s_%s%d' % (name, tag, cnt[0])
        q('s_mov_b32 s27, 0')
        q.loop_begin(); q.label(lab + 'p')
        loads(); test()
        if slp_loop: q('s_cbranch_vccz %sg' % lab); q('s_sleep %d' % slp_loop)
        q('s_add_u32 s27, s27, 1')
        q('s_cmp_ge_u32 s27, %d' % SPIN_MAX)
        q('s_cbranch_scc1 %sg' % lab)
        q('s_cbranch_vccnz %sp' % lab)
        q.loop_end()
        q.label(lab + 'g')
    def rare_poll(q, tag, test, loads, flush=True):
        cnt[0] += 1
        lab = '%s_%s%d' % (name, tag, cnt[0])
        test(q)
        q('s_cbranch_vccnz %sr' % lab)
        q.label(lab + 'b')
        z = Prog()
        z.label(lab + 'r')
        if flush: z.flush()
        z('s_mov_b32 s27, 0')
        z.loop_begin(); z.label(lab + 'p')
        loads(z); test(z)
        z('s_add_u32 s27, s27, 1')
        z('s_cmp_ge_u32 s27, %d' % SPIN_MAX)
        z('s_cbranch_scc1 %sg' % lab)
        z('s_cbranch_vccnz %sp' % lab)
        z.loop_end()
        z.label(lab + 'g'); z.flush()
        z('s_branch %sb' % lab)
        rare.append(z)

    p('s_cmp_ge_u32 s2, 256')
    p('s_cbranch_scc1 %s_end' % name)
    p('s_load_dwordx4 s[56:59], s[0:1], 96')
    p('s_load_dwordx2 s[60:61], s[0:1], 112')
    p('s_load_dwordx8 s[48:55], s[0:1], 64')
    p('s_load_dwordx16 s[32:47], s[0:1], 0')
    p('s_memrealtime s[62:63]')
    p('v_lshrrev_b32 %s, 6, %s' % (t[0], tid))
    p('v_and_b32 %s, 63, %s' % (lane, tid))
    p('v_readfirstlane_b32 s3, %s' % t[0])
    p('v_lshlrev_b32 %s, 4, %s' % (l16, lane))
    p('s_and_b32 s12, s2, 3'); p('s_lshl_b32 s12, s12, 3'); p('s_bfe_u32 s13, s2, 0x30003'); p('s_add_u32 s12, s12, s13')
    p('s_bfe_u32 s13, s2, 0x10002'); p('s_lshl_b32 s13, s13, 2'); p('s_lshr_b32 s14, s2, 6'); p('s_add_u32 s13, s13, s14')
    p('v_bfe_u32 %s, %s, 2, 2' % (t[0], lane))
    p('v_lshrrev_b32 %s, 4, %s' % (t[1], lane))
    p('v_and_b32 %s, 3, %s' % (t[2], lane))
    p('v_lshlrev_b32 %s, 6, %s' % (t[3], t[1]))
    p('v_lshl_add_u32 %s, %s, 4, %s' % (t[3], t[2], t[3]))
    p('v_lshl_add_u32 %s, %s, 13, %s' % (R(v_wqoff), t[0], t[3]))
    p('s_and_b32 s14, s3, 1'); p('s_lshl_b32 s14, s14, 5')
    p('v_xor_b32 %s, s14, %s' % (R(v_wqoff), R(v_wqoff)))
    p('v_lshlrev_b32 %s, 11, %s' % (R(v_tr), t[1]))
    p('v_lshl_add_u32 %s, %s, 6, %s' % (R(v_tr), t[0], R(v_tr)))
    p('v_lshl_add_u32 %s, %s, 3, %s' % (R(v_tr), t[2], R(v_tr)))
    p('v_and_b32 %s, 1, %s' % (t[4], t[1])); p('v_lshlrev_b32 %s, 5, %s' % (t[4], t[4]))
    p('v_sub_u32 %s, %s, %s' % (R(v_tr2), R(v_tr), t[4]))
    p('v_add_u32 %s, %s, %s' % (R(v_tr), R(v_tr), t[4]))
    p('s_lshl_b32 s14, s13, 3'); p('s_add_u32 s14, s14, s3'); p('s_lshl_b32 s14, s14, 16')
    p('v_add_u32 %s, s14, %s' % (R(v_hoff), l16))
    p('s_cmp_ge_u32 s3, 4')
    p('s_cbranch_scc1 %s_roleB' % name)

    def wq_slot(s):
        k = s % NWQ
        return RING0 + k * 16384 if k < 4 else RING1 + k * 16384
    def dma_wq(s):
        out = []
        for i in range(2):
            if ROT:
                if i == 0: out.append(('s_add_u32 s22, s25, 0x%x\ns_and_b32 s22, s22, 0x7fffff\ns_add_u32 s22, s22, s19' % (s * 64 * 8192), None))
                else: out.append(('s_add_u32 s22, s22, 32768', None))
            else:
                out.append(('s_add_u32 s22, s19, 0x%x' % (s * 64 * 8192 + i * 32768), None))
            out.append(('s_add_u32 m0, s20, 0x%x' % (wq_slot(s) + i * 1024), None))
            out.append(('buffer_load_dwordx4 %s, %s, s22 offen lds' % (R(v_wqoff), sr(S_A)), 'wq%d' % s))
        return out
    def slot(c): return RING1 + (c % NSL) * 16384
    W0 = 18
    def dma_chunk(c):
        out = []
        for i in range(2):
            if c < 8 or 10 <= c < 18:
                off = (c * 16384 if c < 8 else (WS_VF - WS_KF) + (c - 10) * 16384) + i * 1024
                out.append(('s_add_u32 s22, s21, 0x%x' % off, None))
                out.append(('s_add_u32 m0, s20, 0x%x' % (slot(c) + i * 1024), None))
                out.append(('buffer_load_dwordx4 %s, %s, s22 offen%s lds' % (l16, sr(S_WS), kvsc), 'ch%d' % c))
            elif c < 10:
                out.append(('s_add_u32 s22, s14, 0x%x' % (((c - 8) * 64 + 4 * i) * 12288), None))
                out.append(('s_add_u32 m0, s20, 0x%x' % (slot(c) + i * 1024), None))
                out.append(('buffer_load_dwordx4 %s, %s, s22 offen lds' % (R(v_wq2), sr(S_E)), 'ch%d' % c))
            else:
                s_ = c - W0
                if ROT3:
                    if i == 0: out.append(('s_lshl_b32 s22, s62, 6\ns_add_u32 s22, s22, 0x%x\ns_and_b32 s22, s22, 0x3fffff\ns_add_u32 s22, s22, s24\ns_add_u32 s22, s22, 0x%x' % ((s_ % 8) * 0x80000, (s_ // 8) * 32 * 2048), None))
                    else: out.append(('s_add_u32 s22, s22, 8192', None))
                else:
                    out.append(('s_add_u32 s22, s24, 0x%x' % (((s_ % 8) * 256 + (s_ // 8) * 32) * 2048 + i * 8192), None))
                out.append(('s_add_u32 m0, s20, 0x%x' % (slot(c) + i * 1024), None))
                out.append(('buffer_load_dwordx4 %s, %s, s22 offen lds' % (R(v_wqoff), sr(S_A)), 'ch%d' % c))
        return out

    acc3 = [[sub(PR, 64 + (n * 2 + qs) * 4) for qs in range(2)] for n in range(8)]
    OB = [[sub(PR, (k * 2 + qs) * 4) for qs in range(2)] for k in range(PO)]
    assert PO * 8 <= 64
    v_oo = v_wq2
    def oload(s, qs):
        return [('s_add_u32 s23, s62, 0x%x\ns_and_b32 s23, s23, 0xffff\ns_or_b32 s23, s23, 0x%x' % ((s % 8) * 8192, qs * 131072) if qs else
                 's_add_u32 s23, s62, 0x%x\ns_and_b32 s23, s23, 0xffff' % ((s % 8) * 8192)) if ROT3 else 's_mov_b32 s23, 0x%x' % (qs * 131072 + (s % 8) * 8192),
                'buffer_load_dwordx4 %s, %s, %s, s23 offen offset:%d%s' % (R(OB[s % PO][qs], 0, 4), R(v_oo), sr(S_WS), (s // 8) * 1024, osc)]
    of2 = R(x4, 0)
    def of_load(q): q('buffer_load_dword %s, %s, %s, s17k offen sc1'.replace('s17k', 's19') % (of2, R(x4, 1), sr(S_WS)))
    def p3_setup(q, ks):
        q('s_bfe_u32 s30, s2, 0x20001'); q('s_lshl_b32 s30, s30, 2'); q('s_bfe_u32 s17, s2, 0x20003'); q('s_add_u32 s30, s30, s17')
        q('s_lshr_b32 s31, s2, 5')
        q('s_and_b32 s17, s3, 3'); q('s_lshl_b32 s19, s30, 2'); q('s_add_u32 s19, s19, s17')
        q('s_and_b32 s16, s2, 1')
        q('s_lshl_b32 s17, s19, 18'); q('s_lshl_b32 s23, s16, 16'); q('s_add_u32 s17, s17, s23'); q('s_add_u32 s17, s17, 0x%x' % (WS_O + ks * 4096))
        q('v_add_u32 %s, s17, %s' % (R(v_oo), l16))
        q('s_lshl_b32 s19, s19, 7'); q('s_lshl_b32 s23, s16, 6'); q('s_add_u32 s19, s19, s23'); q('s_add_u32 s19, s19, 0x%x' % WS_OFLAG)
        q('v_and_b32 %s, 15, %s' % (R(x4, 1), lane)); q('v_lshlrev_b32 %s, 2, %s' % (R(x4, 1), R(x4, 1)))
        of_load(q)
    def p3_addr(ks):
        o = []
        o.append('v_bfe_u32 %s, %s, 2, 2' % (t[2], lane)); o.append('v_lshrrev_b32 %s, 4, %s' % (t[3], lane)); o.append('v_and_b32 %s, 3, %s' % (t[1], lane))
        o.append('v_lshlrev_b32 %s, 11, %s' % (t[0], t[3]))
        o.append('v_lshl_add_u32 %s, %s, 6, %s' % (t[0], t[2], t[0]))
        o.append('v_lshl_add_u32 %s, %s, 3, %s' % (t[0], t[1], t[0]))
        o.append('v_add_u32 %s, 0x%x, %s' % (t[0], 0x10000 + ks * 8192, t[0]))
        o.append('v_and_b32 %s, 1, %s' % (t[3], t[3])); o.append('v_lshlrev_b32 %s, 5, %s' % (t[3], t[3]))
        o.append('v_sub_u32 %s, %s, %s' % (R(v_tr2), t[0], t[3]))
        o.append('v_add_u32 %s, %s, %s' % (R(v_tr), t[0], t[3]))
        o.append('v_add_u32 %s, 0x10000, %s' % (R(v_hoff), R(v_tr))); o.append('v_add_u32 %s, 0x10000, %s' % (R(v_kvoff), R(v_tr2)))
        return o

    CSF = [sub(PR, 120), sub(PR, 124), sub(SP, 0), sub(SP, 4)]; MACC = sub(x4, 0); MFR = [sub(PR, 112), sub(PR, 116)]; v_m = v_hoff
    def m_setup(q):
        mk_srd(q, S_E, 'wmod', 1024 * 6144 * 2)
        q('v_bfe_u32 %s, %s, 2, 2' % (t[4], lane)); q('v_lshlrev_b32 %s, 12, %s' % (t[4], t[4]))
        q('v_add_u32 %s, %s, %s' % (R(v_wq2), R(v_wqoff), t[4]))
        q('s_lshr_b32 s16, s2, 5'); q('s_lshl_b32 s16, s16, 7'); q('s_lshl_b32 s17, s3, 3'); q('s_add_u32 s16, s16, s17'); q('s_mul_i32 s14, s16, 12288')
        q('s_and_b32 s16, s2, 31'); q('s_lshl_b32 s16, s16, 8'); q('s_add_u32 s14, s14, s16'); q('s_add_u32 s14, s14, 4096')
    def m_cs(q):
        q('v_lshrrev_b32 %s, 4, %s' % (t[4], lane)); q('v_lshlrev_b32 %s, 4, %s' % (t[5], t[4]))
        q('s_lshl_b32 s16, s2, 8'); q('s_add_u32 s16, s16, 0x%x' % WS_CSW)
        for k in range(4): q('buffer_load_dwordx4 %s, %s, %s, s16 offen offset:%d sc1' % (R(CSF[k], 0, 4), t[5], sr(S_WS), k * 64))
        vm = R(v_m)
        q('v_lshlrev_b32 %s, 11, %s' % (vm, t[4]))
        q('v_xor_b32 %s, s3, %s' % (t[4], t[4])); q('v_and_b32 %s, 1, %s' % (t[4], t[4])); q('v_lshl_add_u32 %s, %s, 5, %s' % (vm, t[4], vm))
        q('v_bfe_u32 %s, %s, 2, 2' % (t[4], lane)); q('v_lshl_add_u32 %s, %s, 6, %s' % (vm, t[4], vm))
        q('v_and_b32 %s, 3, %s' % (t[4], lane)); q('v_lshl_add_u32 %s, %s, 3, %s' % (vm, t[4], vm))
        q('s_lshr_b32 s16, s3, 1'); q('s_lshl_b32 s16, s16, 8'); q('s_add_u32 s16, s16, %d' % slot(8))
        q('v_add_u32 %s, s16, %s' % (vm, vm))
    def m_work(sc, at):
        for k in range(4):
            off = (k // 2) * 16384 + (k % 2) * 8192
            sc.place(at + 3 * k, 'ds_read_b64_tr_b16 %s, %s offset:%d' % (R(MFR[k % 2], 0, 2), R(v_m), off))
            sc.place(at + 3 * k, 'ds_read_b64_tr_b16 %s, %s offset:%d' % (R(MFR[k % 2], 2, 2), R(v_m), off + 1024))
            sc.place(at + 3 * k + 5, 'v_mfma_f32_16x16x32_bf16 %s, %s, %s, %s' % (R(MACC, 0, 4), R(MFR[k % 2], 0, 4), R(CSF[k], 0, 4), '0' if k == 0 else R(MACC, 0, 4)))
    def m_store(q):
        q('v_lshrrev_b32 %s, 4, %s' % (t[4], lane)); q('v_lshlrev_b32 %s, 4, %s' % (t[4], t[4]))
        q('s_lshr_b32 s16, s2, 5'); q('s_lshl_b32 s16, s16, 14'); q('s_and_b32 s17, s2, 31'); q('s_lshl_b32 s17, s17, 9'); q('s_add_u32 s16, s16, s17')
        q('s_lshl_b32 s17, s3, 6'); q('s_add_u32 s16, s16, s17'); q('s_add_u32 s16, s16, 0x%x' % WS_MODP)
        q('s_mov_b32 exec_lo, 0x10001'); q('s_mov_b32 exec_hi, 0x10001')
        q('buffer_store_dwordx4 %s, %s, %s, s16 offen sc1' % (R(MACC, 0, 4), t[4], sr(S_WS)), 'mst')
        q('s_mov_b64 exec, -1')
    def mc_pub(q):
        q('v_mov_b32 %s, s28' % R(SP, 3)); q('v_mov_b32 %s, 0' % R(SP, 4))
        q('s_lshl_b32 s16, s2, 2'); q('s_add_u32 s16, s16, 0x%x' % WS_MPFLAG)
        q('s_cmp_eq_u32 s3, 0'); q('s_cselect_b32 s16, s16, 0x%x' % OOB)
        q('s_mov_b64 exec, 1')
        q('buffer_store_dword %s, %s, %s, s16 offen sc1' % (R(SP, 3), R(SP, 4), sr(S_WS)))
        q('s_mov_b64 exec, -1')
    def mc_final(sc):
        mpf = R(SP, 0); mpv = R(SP, 1); va, vb = R(SP, 2), R(SP, 5); mpw = R(SP, 6)
        sc.place(MP_AT[0], mc_pub)
        def mp_load(q):
            q('buffer_load_dword %s, %s, %s, s14 offen sc1' % (mpf, va, sr(S_WS)))
        def mp_issue(q):
            q('v_and_b32 %s, 7, %s' % (va, lane)); q('v_lshlrev_b32 %s, 7, %s' % (va, va))
            q('s_lshr_b32 s14, s2, 3'); q('s_lshl_b32 s14, s14, 2'); q('s_add_u32 s14, s14, 0x%x' % WS_MPFLAG)
            mp_load(q)
        sc.place(MP_AT[1], mp_issue)
        sc.place(MP_AT[2], lambda q: rare_poll(q, 'mp', lambda z: z('v_cmp_ne_u32 vcc, s28, %s' % mpf), mp_load))
        def mp_get(q):
            q('v_lshrrev_b32 %s, 4, %s' % (va, lane)); q('v_lshlrev_b32 %s, 14, %s' % (va, va))
            q('v_and_b32 %s, 15, %s' % (vb, lane)); q('v_lshl_add_u32 %s, %s, 2, %s' % (va, vb, va))
            q('s_lshl_b32 s14, s2, 6'); q('s_add_u32 s14, s14, 0x%x' % WS_MODP)
            q('buffer_load_dword %s, %s, %s, s14 offen sc1' % (mpv, va, sr(S_WS)))
            q('s_add_u32 s14, s14, 0x10000')
            q('buffer_load_dword %s, %s, %s, s14 offen sc1' % (mpw, va, sr(S_WS)))
        sc.place(MP_AT[2] + 1, mp_get)
        def mp_fin(q):
            q('v_add_f32 %s, %s, %s' % (mpv, mpv, mpw))
            xor16_add(q, mpv, va); xor32_add(q, mpv, va)
            rb1(q, mpv)
            q('s_lshr_b32 s14, s2, 6'); q('s_cmp_eq_u32 s14, 2'); q('s_cselect_b32 s14, 1.0, 0')
            q('v_add_f32 %s, s14, %s' % (mpv, mpv))
            q('v_cvt_pk_bf16_f32 %s, %s, %s' % (mpv, mpv, mpv))
            q('v_lshlrev_b32 %s, 1, %s' % (vb, vb))
            q('s_lshl_b32 s14, s2, 5'); q('s_add_u32 s14, s14, 0x%x' % WS_MODB)
            q('s_cmp_eq_u32 s3, 0'); q('s_cselect_b32 s14, s14, 0x%x' % OOB)
            q('s_mov_b64 exec, 0xffff')
            q('buffer_store_short %s, %s, %s, s14 offen sc1' % (mpv, vb, sr(S_WS)), 'mb')
            q('s_mov_b64 exec, -1')
        sc.place(MP_AT[2] + 24, mp_fin)
        def mp_flag(q):
            q.wait_tag('mb')
            q('v_mov_b32 %s, s28' % mpf); q('v_mov_b32 %s, 0' % mpv)
            q('s_lshl_b32 s14, s2, 2'); q('s_add_u32 s14, s14, 0x%x' % WS_MFLAG)
            q('s_cmp_eq_u32 s3, 0'); q('s_cselect_b32 s14, s14, 0x%x' % OOB)
            q('s_mov_b64 exec, 1')
            q('buffer_store_dword %s, %s, %s, s14 offen sc1' % (mpf, mpv, sr(S_WS)))
            q('s_mov_b64 exec, -1')
        sc.place(MP_AT[2] + 64, mp_flag)

    def spf(q, buf, nl, lo, hi):
        q('s_lshl_b32 s0x, s2, 3'.replace('s0x', 's16')); q('s_add_u32 s16, s16, s3'); q('s_mul_i32 s16, s16, %d' % (nl * 128))
        q('s_add_u32 s76, s%d, s16' % PTR[buf]); q('s_addc_u32 s77, s%d, 0' % (PTR[buf] + 1))
        for i in range(lo, hi): q.raw('s_load_dword s62, s[76:77], 0x%x' % (i * 128))
    def front(role):
        A_ = role == 'A'
        F = RA('v', PR[1], 256)
        w0 = F.alloc(4, 4); w1 = F.alloc(4, 4); xr = [F.alloc(4, 4), F.alloc(4, 4)]; xt = [F.alloc(4, 4), F.alloc(4, 4)]
        acc = F.alloc(8, 4); X = F.alloc(16, 4); cc = F.alloc(4, 4); g4 = F.alloc(4, 4); s4 = F.alloc(4, 4); kv = F.alloc(12, 4)
        rd = [F.alloc(4, 4) for _ in range(8)]; st = F.alloc(4, 4)
        vz = F.alloc(2, 2); vn = F.alloc(1); va = F.alloc(1); vb = F.alloc(1); vc = F.alloc(1); ve = F.alloc(1); vg = F.alloc(1); vs = F.alloc(1)
        FS = RING1; MT = RING1 + 4096
        p('v_mov_b32 %s, 0' % R(vz, 0)); p('v_mov_b32 %s, 0' % R(vz, 1))
        p('v_lshrrev_b32 %s, 3, %s' % (t[0], tid)); p('v_and_b32 %s, 7, %s' % (t[1], tid))
        p('v_mul_u32_u24 %s, %d, %s' % (R(va), 2 * 12288, t[0])); p('v_lshl_add_u32 %s, %s, 4, %s' % (R(va), t[1], R(va)))
        p('v_lshlrev_b32 %s, 2, %s' % (R(vb), t[0]))
        p('s_and_b32 s14, s2, 31'); p('s_lshr_b32 s15, s2, 5')
        p('s_mul_i32 s26, s15, %d' % (128 * 12288)); p('s_lshl_b32 s16, s14, 7'); p('s_add_u32 s26, s26, s16')
        p('s_lshl_b32 s29, s15, 8')
        p('v_lshlrev_b32 %s, 3, %s' % (R(vc), tid))
        p('s_lshl_b32 s18, s2, 3'); p('s_add_u32 s18, s18, s3'); p('s_lshl_b32 s18, s18, 11')
        p('v_and_b32 %s, 15, %s' % (t[2], lane)); p('v_lshrrev_b32 %s, 4, %s' % (t[3], lane))
        p('v_lshlrev_b32 %s, 11, %s' % (R(ve), t[2])); p('v_lshl_add_u32 %s, %s, 4, %s' % (R(ve), t[3], R(ve)))
        p('s_lshr_b32 s30, s2, 4'); p('s_and_b32 s31, s2, 15')
        p('s_lshl_b32 s19, s30, 3'); p('s_add_u32 s19, s19, s3')
        p('s_lshl_b32 s22, s19, 15'); p('s_lshl_b32 s23, s31, 7'); p('s_add_u32 s22, s22, s23')
        p('s_lshl_b32 s23, s2, 12'); p('s_add_u32 s23, s23, 0x%x' % WS_Z)
        p('s_or_b32 s25, s2, s3')
        p('s_cmp_eq_u32 s25, 0'); p('s_cselect_b32 s25, 0, 0x%x' % OOB)
        p('s_waitcnt lgkmcnt(0)')
        p.stamp(0)
        mk_srd(p, S_B, 'dbg', 256)
        p('s_or_b32 s28, s62, 1')
        p('v_mov_b32 %s, s28' % R(vn))
        p('s_mov_b64 exec, 1')
        p('buffer_store_dword %s, %s, %s, s25 offen sc1' % (R(vn), R(vz, 0), sr(S_B)))
        p('s_mov_b64 exec, -1')
        mk_srd(p, S_C, 'c', 2048); mk_srd(p, S_D, 'wmod', 1024 * 6144 * 2); mk_srd(p, S_E, 'x', 4194304); mk_srd(p, S_WS, 'ws', WS_SIZE)
        p('buffer_load_dword %s, %s, %s, s29 offen' % (R(cc, 0), R(vb), sr(S_C)))
        p('buffer_load_dwordx4 %s, %s, %s, s26 offen' % (R(w0, 0, 4), R(va), sr(S_D)))
        p('s_add_u32 s26, s26, 12288')
        p('buffer_load_dwordx4 %s, %s, %s, s26 offen' % (R(w1, 0, 4), R(va), sr(S_D)))
        for i in range(2):
            p('buffer_load_dwordx4 %s, %s, %s, s18 offen offset:%d' % (R(xr[i], 0, 4), l16, sr(S_E), i * 1024))
        if A_:
            p('s_cmp_eq_u32 s3, 0'); p('s_cselect_b32 s25, 0, 0x%x' % OOB)
            p('buffer_load_dword %s, %s, %s, s25 offen sc1' % (R(vn), R(vz, 0), sr(S_B)), 'n1')
        p('buffer_store_dwordx2 %s, %s, %s, s23 offen sc1' % (R(vz, 0, 2), R(vc), sr(S_WS)))
        p('s_barrier')
        for i in range(2):
            p('buffer_load_dwordx4 %s, %s, %s, s22 offen offset:%d' % (R(xt[i], 0, 4), R(ve), sr(S_E), i * 64))
        p('s_mov_b32 s29, s19')
        if not A_:
            mk_srd(p, S_B, 'k', 2097152); mk_srd(p, S_C, 'v', 2097152)
            p('s_lshl_b32 s20, s2, 2'); p('s_add_u32 s20, s20, s3'); p('s_sub_u32 s20, s20, 4')
            p('s_lshr_b32 s22, s20, 8'); p('s_bfe_u32 s23, s20, 0x40004'); p('s_and_b32 s24, s20, 15')
            p('s_lshl_b32 s25, s22, 19'); p('s_lshl_b32 s26, s23, 13'); p('s_add_u32 s25, s25, s26'); p('s_add_u32 s25, s25, %d' % (1536 * 256))
            p('v_and_b32 %s, 15, %s' % (t[0], lane)); p('v_lshrrev_b32 %s, 4, %s' % (t[1], lane))
            p('s_lshl_b32 s21, s22, 17')
            p('s_cmp_ge_u32 s24, 8')
            p('s_cbranch_scc1 %s_kvV' % name)
            p.alt_begin()
            p('v_lshlrev_b32 %s, 8, %s' % (t[2], t[0])); p('v_lshl_add_u32 %s, %s, 3, %s' % (t[2], t[1], t[2]))
            p('s_and_b32 s26, s24, 1'); p('s_lshl_b32 s26, s26, 12'); p('s_add_u32 s25, s25, s26')
            p('s_lshr_b32 s26, s24, 1'); p('s_lshl_b32 s26, s26, 6'); p('s_add_u32 s25, s25, s26')
            p('buffer_load_dwordx2 %s, %s, %s, s25 offen' % (R(kv, 0, 2), t[2], sr(S_B)))
            p('buffer_load_dwordx2 %s, %s, %s, s25 offen offset:32' % (R(kv, 2, 2), t[2], sr(S_B)))
            p('s_lshl_b32 s26, s23, 13'); p('s_add_u32 s21, s21, s26'); p('s_lshl_b32 s26, s24, 10'); p('s_add_u32 s21, s21, s26')
            p('s_add_u32 s21, s21, 0x%x' % WS_KF)
            p('s_branch %s_kvJ' % name)
            p.alt_next()
            p.label('%s_kvV' % name)
            p('s_bfe_u32 s26, s24, 0x20001'); p('s_lshl_b32 s26, s26, 6'); p('s_add_u32 s25, s25, s26')
            p('s_and_b32 s26, s24, 1'); p('s_lshl_b32 s26, s26, 3'); p('s_add_u32 s25, s25, s26')
            p('s_add_u32 s26, s25, 4096')
            p('v_lshrrev_b32 %s, 2, %s' % (t[2], t[0])); p('v_lshlrev_b32 %s, 4, %s' % (t[2], t[2]))
            p('v_and_b32 %s, 3, %s' % (t[3], t[0])); p('v_lshl_add_u32 %s, %s, 1, %s' % (t[2], t[3], t[2]))
            p('v_lshl_add_u32 %s, %s, 10, %s' % (t[2], t[1], t[2]))
            for e in range(8):
                p('buffer_load_ushort %s, %s, %s, %s offen offset:%d' % (R(kv, 4 + e), t[2], sr(S_C), 's26' if e >= 4 else 's25', (e % 4) * 256))
            p('s_bfe_u32 s26, s24, 0x20001'); p('s_lshl_b32 s26, s26, 15'); p('s_add_u32 s21, s21, s26')
            p('s_lshl_b32 s26, s23, 11'); p('s_add_u32 s21, s21, s26')
            p('s_and_b32 s26, s24, 1'); p('s_lshl_b32 s26, s26, 10'); p('s_add_u32 s21, s21, s26')
            p('s_add_u32 s21, s21, 0x%x' % WS_VF)
            p.alt_end()
            p.label('%s_kvJ' % name)
        cs0, cs1, lo0, lo1 = R(cc, 0), R(cc, 1), R(cc, 2), R(cc, 3)
        unpack(p, cs0, cs1, cs0)
        silu(p, cs0, t[0]); silu(p, cs1, t[1])
        rb2(p, cs0, cs1, t[0])
        p('s_lshl_b32 s16, s2, 8'); p('s_add_u32 s16, s16, 0x%x' % WS_CSW)
        p('s_mov_b32 exec_lo, 0x01010101'); p('s_mov_b32 exec_hi, 0x01010101')
        p('buffer_store_dword %s, %s, %s, s16 offen sc1' % (t[0], R(vb), sr(S_WS)))
        p('s_mov_b64 exec, -1')
        p('v_lshrrev_b32 %s, 16, %s' % (lo0, cs0)); p('v_lshrrev_b32 %s, 16, %s' % (lo1, cs1))
        for d in range(4):
            p('v_dot2_f32_bf16 %s, %s, %s, 0' % (R(acc, 2 * d + 1), R(w0, d), cs0))
            p('v_dot2_f32_bf16 %s, %s, %s, 0' % (R(acc, 2 * d), R(w0, d), lo0))
        for d in range(4):
            p('v_dot2c_f32_bf16 %s, %s, %s' % (R(acc, 2 * d + 1), R(w1, d), cs1))
            p('v_dot2c_f32_bf16 %s, %s, %s' % (R(acc, 2 * d), R(w1, d), lo1))
        for e in range(4): p('v_permlane32_swap_b32 %s, %s' % (R(acc, e), R(acc, 4 + e)))
        for e in range(4): p('v_add_f32 %s, %s, %s' % (R(acc, e), R(acc, e), R(acc, 4 + e)))
        for e in range(2): p('v_permlane16_swap_b32 %s, %s' % (R(acc, e), R(acc, 2 + e)))
        for e in range(2): p('v_add_f32 %s, %s, %s' % (R(acc, e), R(acc, e), R(acc, 2 + e)))
        for e in range(2): ror_add(p, R(acc, e), 8)
        p('v_and_b32 %s, 7, %s' % (t[0], lane)); p('v_lshlrev_b32 %s, 5, %s' % (t[0], t[0]))
        p('v_lshrrev_b32 %s, 4, %s' % (t[1], lane)); p('v_lshl_add_u32 %s, %s, 3, %s' % (t[0], t[1], t[0]))
        p('s_lshl_b32 s16, s3, 8'); p('s_add_u32 s16, s16, %d' % FS)
        p('v_add_u32 %s, s16, %s' % (t[0], t[0]))
        p('ds_write_b64 %s, %s' % (t[0], R(acc, 0, 2)))
        p.stamp(20)
        for i in range(2):
            for d in range(4): unpack(p, R(X, 8 * i + 2 * d), R(X, 8 * i + 2 * d + 1), R(xr[i], d))
        Xs = [R(X, i) for i in range(16)]
        mean, sd, rcp = R(st, 0), R(st, 1), R(st, 2)
        var = t[1]
        a0, a1, b0, b1 = t[4], t[5], t[2], t[3]
        p('v_add_f32 %s, %s, %s' % (a0, Xs[0], Xs[1])); p('v_add_f32 %s, %s, %s' % (a1, Xs[2], Xs[3]))
        for i in range(4, 16, 2):
            p('v_add_f32 %s, %s, %s' % (a0, a0, Xs[i])); p('v_add_f32 %s, %s, %s' % (a1, a1, Xs[i + 1]))
        p('v_add_f32 %s, %s, %s' % (mean, a0, a1))
        for n in (1, 2, 4, 8): ror_add(p, mean, n)
        xor16_add(p, mean, a0); xor32_add(p, mean, a0)
        p('v_mul_f32 %s, 0x%x, %s' % (mean, f2u(1.0 / 1024), mean))
        p('v_sub_f32 %s, %s, %s' % (b0, Xs[0], mean)); p('v_mul_f32 %s, %s, %s' % (a0, b0, b0))
        p('v_sub_f32 %s, %s, %s' % (b1, Xs[1], mean)); p('v_mul_f32 %s, %s, %s' % (a1, b1, b1))
        for i in range(2, 16, 2):
            p('v_sub_f32 %s, %s, %s' % (b0, Xs[i], mean)); p('v_sub_f32 %s, %s, %s' % (b1, Xs[i + 1], mean))
            p('v_fmac_f32 %s, %s, %s' % (a0, b0, b0)); p('v_fmac_f32 %s, %s, %s' % (a1, b1, b1))
        p('v_add_f32 %s, %s, %s' % (var, a0, a1))
        for n in (1, 2, 4, 8): ror_add(p, var, n)
        xor16_add(p, var, a0); xor32_add(p, var, a0)
        p('v_mul_f32 %s, 0x%x, %s' % (var, f2u(1.0 / 1024), var))
        ln_scalars(p, mean, var, sd, rcp)
        p('s_lshl_b32 s16, s3, 4'); p('s_add_u32 s16, s16, %d' % (FS + 2048 + 16))
        p('v_mov_b32 %s, s16' % t[3])
        p('ds_write_b128 %s, %s' % (t[3], R(st, 0, 4)))
        p.stamp(3)
        if A_:
            def ntest(q):
                q('v_cmp_eq_u32 vcc, 0, %s' % R(vn))
                q('s_cmp_eq_u32 s3, 0'); q('s_cselect_b64 s[62:63], -1, 0'); q('s_and_b64 vcc, vcc, s[62:63]')
            rare_poll(p, 'n', ntest, lambda q: q('buffer_load_dword %s, %s, %s, 0 offen sc1' % (R(vn), R(vz, 0), sr(S_B))), flush=False)
            p('v_mov_b32 %s, %d' % (t[3], FS + 2048))
            p('s_cmp_eq_u32 s3, 0'); p('s_cselect_b64 exec, 1, 0')
            p('ds_write_b32 %s, %s' % (t[3], R(vn)))
            p('s_mov_b64 exec, -1')
        p.stamp(1)
        p('v_mov_b32 %s, %d' % (t[3], FS + 2048))
        p('v_and_b32 %s, 31, %s' % (t[1], lane)); p('v_lshlrev_b32 %s, 3, %s' % (t[2], t[1])); p('v_add_u32 %s, %d, %s' % (t[2], FS, t[2]))
        p('v_lshlrev_b32 %s, 4, %s' % (t[1], t[1]))
        p('s_waitcnt lgkmcnt(0)')
        p('s_barrier')
        p('ds_read_b32 %s, %s' % (R(vn), t[3]))
        for i in range(8): p('ds_read_b64 %s, %s offset:%d' % (R(rd[i], 0, 2), t[2], i * 256))
        p('v_readfirstlane_b32 s28, %s' % R(vn))
        p('v_and_b32 %s, 7, %s' % (t[4], lane)); p('v_lshlrev_b32 %s, 4, %s' % (t[4], t[4]))
        p('v_add_u32 %s, %d, %s' % (t[5], FS + 2048 + 16, t[4]))
        p('ds_read_b128 %s, %s' % (R(st, 0, 4), t[5]))
        p('v_mov_b32 %s, s28' % R(st, 3))
        p('s_lshl_b32 s16, s2, 7'); p('s_add_u32 s16, s16, 0x%x' % WS_STG)
        p('s_cmp_eq_u32 s3, 0'); p('s_cselect_b32 s16, s16, 0x%x' % OOB)
        p('s_mov_b64 exec, 0xff')
        p('buffer_store_dwordx4 %s, %s, %s, s16 offen sc1' % (R(st, 0, 4), t[4], sr(S_WS)))
        p('s_mov_b64 exec, -1')
        for s_ in (4, 2, 1):
            for i in range(s_): p('v_pk_add_f32 %s, %s, %s' % (R(rd[i], 0, 2), R(rd[i], 0, 2), R(rd[s_ + i], 0, 2)))
        p('v_mov_b32 %s, s28' % R(rd[0], 2)); p('v_mov_b32 %s, s28' % R(rd[0], 3))
        p('s_lshl_b32 s16, s14, 3'); p('s_add_u32 s16, s16, s15'); p('s_lshl_b32 s16, s16, 9'); p('s_add_u32 s16, s16, 0x%x' % WS_MODG)
        p('s_cmp_eq_u32 s3, 0'); p('s_cselect_b32 s16, s16, 0x%x' % OOB)
        p('s_mov_b64 exec, 0xffffffff')
        p('buffer_store_dwordx4 %s, %s, %s, s16 offen sc1' % (R(rd[0], 0, 4), t[1], sr(S_WS)))
        p('s_mov_b64 exec, -1')
        p.stamp(2)
        if not A_:
            p('s_cmp_lt_u32 s24, 8')
            p('s_cbranch_scc1 %s_kvS' % name)
            p.alt_begin()
            for d in range(4):
                p('v_lshl_or_b32 %s, %s, 16, %s' % (R(kv, d), R(kv, 4 + 2 * d + 1), R(kv, 4 + 2 * d)))
            for e in range(8): p('v_and_b32 %s, 0x7fff, %s' % (R(kv, 4 + e), R(kv, 4 + e)))
            p('v_max3_u32 %s, %s, %s, %s' % (R(kv, 4), R(kv, 4), R(kv, 5), R(kv, 6))); p('v_max3_u32 %s, %s, %s, %s' % (R(kv, 7), R(kv, 7), R(kv, 8), R(kv, 9)))
            p('v_max3_u32 %s, %s, %s, %s' % (R(kv, 4), R(kv, 4), R(kv, 10), R(kv, 11))); p('v_max_u32 %s, %s, %s' % (R(kv, 4), R(kv, 4), R(kv, 7)))
            p('v_cmp_le_u32 vcc, 0x4980, %s' % R(kv, 4))
            p('v_mov_b32 %s, s28' % R(kv, 5))
            p('s_mov_b32 s16, 0x%x' % WS_BIGV)
            p('s_and_saveexec_b64 s[62:63], vcc')
            p('buffer_store_dword %s, %s, %s, s16 offen sc1' % (R(kv, 5), R(vz, 0), sr(S_WS)))
            p('s_mov_b64 exec, s[62:63]')
            p.alt_next()
            p.alt_end()
            p.label('%s_kvS' % name)
            p('buffer_store_dwordx4 %s, %s, %s, s21 offen sc1' % (R(kv, 0, 4), l16, sr(S_WS)))
        p('s_lshr_b32 s16, s3, 2'); p('s_lshl_b32 s16, s16, 4'); p('s_add_u32 s16, s16, s31'); p('s_lshl_b32 s16, s16, 12')
        p('s_and_b32 s17, s3, 3'); p('s_lshl_b32 s17, s17, 7'); p('s_add_u32 s16, s16, s17'); p('s_add_u32 s16, s16, 0x%x' % WS_MODG)
        p('v_lshrrev_b32 %s, 3, %s' % (R(vg), lane)); p('v_lshlrev_b32 %s, 9, %s' % (R(vg), R(vg)))
        p('v_and_b32 %s, 7, %s' % (t[0], lane)); p('v_lshl_add_u32 %s, %s, 4, %s' % (R(vg), t[0], R(vg)))
        p('v_and_b32 %s, 15, %s' % (R(vs), lane)); p('v_lshlrev_b32 %s, 4, %s' % (R(vs), R(vs)))
        p('s_lshl_b32 s17, s29, 8'); p('s_add_u32 s17, s17, 0x%x' % WS_STG)
        for i in range(2):
            for d in range(4): unpack(p, R(X, 8 * i + 2 * d), R(X, 8 * i + 2 * d + 1), R(xt[i], d))
        def gl():
            p('buffer_load_dwordx4 %s, %s, %s, s16 offen sc1' % (R(g4, 0, 4), R(vg), sr(S_WS)))
            p('buffer_load_dwordx4 %s, %s, %s, s17 offen sc1' % (R(s4, 0, 4), R(vs), sr(S_WS)))
        def gt():
            p('v_cmp_ne_u32 vcc, s28, %s' % R(g4, 2))
            p('v_cmp_ne_u32 s[62:63], s28, %s' % R(g4, 3))
            p('s_or_b64 vcc, vcc, s[62:63]')
            p('v_cmp_ne_u32 s[62:63], s28, %s' % R(s4, 3))
            p('s_or_b64 vcc, vcc, s[62:63]')
        backoff(p, 'g')
        for b_, n_, lo_, hi_ in (SPF or {}).get('w1', []): spf(p, b_, n_, lo_, hi_)
        poll(p, 'g', gl, gt)
        p.stamp(4)
        m0_, m1_ = R(g4, 0), R(g4, 1)
        ror_add(p, m0_, 8); ror_add(p, m1_, 8)
        xor16_add(p, m0_, t[1]); xor16_add(p, m1_, t[2]); xor32_add(p, m0_, t[1]); xor32_add(p, m1_, t[2])
        rb2(p, m0_, m1_, t[1])
        p('v_add_f32 %s, %s, %s' % (m0_, '0' if A_ else '1.0', m0_)); p('v_add_f32 %s, %s, %s' % (m1_, '0' if A_ else '1.0', m1_))
        if not A_: rb2(p, m0_, m1_, t[1])
        p('s_lshl_b32 s16, s3, 6'); p('s_add_u32 s16, s16, %d' % MT)
        p('v_lshl_add_u32 %s, %s, 3, s16' % (t[0], t[0]))
        p('ds_write_b64 %s, %s' % (t[0], R(g4, 0, 2)))
        p('v_lshrrev_b32 %s, 4, %s' % (t[1], lane)); p('v_lshlrev_b32 %s, 5, %s' % (t[1], t[1])); p('v_add_u32 %s, %d, %s' % (t[1], MT, t[1]))
        mean, sd, rcp = R(s4, 0), R(s4, 1), R(s4, 2)
        for i in range(16): p('v_sub_f32 %s, %s, %s' % (Xs[i], Xs[i], mean))
        for i in range(0, 16, 2): rb2(p, Xs[i], Xs[i + 1], t[2 + (i // 2) % 2])
        for i in range(16): p('v_mul_f32 %s, %s, %s' % (Xs[i], Xs[i], rcp))
        for i in range(0, 16, 2): rb2(p, Xs[i], Xs[i + 1], t[2 + (i // 2) % 2])
        p('s_lshl_b32 s16, s29, 15'); p('s_lshl_b32 s17, s31, 11'); p('s_add_u32 s16, s16, s17')
        if WS_H: p('s_add_u32 s16, s16, 0x%x' % WS_H)
        p('s_waitcnt lgkmcnt(0)')
        p('s_barrier')
        for hh in range(2):
            for k in range(2):
                p('ds_read_b128 %s, %s offset:%d' % (R(rd[4 * hh + k], 0, 4), t[1], 256 + hh * 128 + k * 16))
                p('ds_read_b128 %s, %s offset:%d' % (R(rd[4 * hh + 2 + k], 0, 4), t[1], hh * 128 + k * 16))
        for hh in range(2):
            for k in range(2):
                for e in range(0, 4, 2):
                    p('v_pk_mul_f32 %s, %s, %s' % (R(X, 8 * hh + 4 * k + e, 2), R(X, 8 * hh + 4 * k + e, 2), R(rd[4 * hh + k], e, 2)))
            for e in range(0, 8, 2): rb2(p, Xs[8 * hh + e], Xs[8 * hh + e + 1], t[2 + (e // 2) % 2])
            for k in range(2):
                for e in range(0, 4, 2):
                    p('v_pk_add_f32 %s, %s, %s' % (R(X, 8 * hh + 4 * k + e, 2), R(X, 8 * hh + 4 * k + e, 2), R(rd[4 * hh + 2 + k], e, 2)))
            o = xr[hh]
            for d in range(4): p('v_cvt_pk_bf16_f32 %s, %s, %s' % (R(o, d), Xs[8 * hh + 2 * d], Xs[8 * hh + 2 * d + 1]))
            p('buffer_store_dwordx4 %s, %s, %s, s16 offen offset:%d sc1' % (R(o, 0, 4), l16, sr(S_WS), hh * 1024), 'hst')
        if ROT:
            p('s_bfe_u32 s25, s2, 0x30003'); p('s_mul_i32 s25, s25, %d' % ROT[0]); p('s_lshr_b32 s26, s2, 6'); p('s_mul_i32 s26, s26, %d' % ROT[1])
            p('s_add_u32 s25, s25, s26'); p('s_and_b32 s25, s25, 15'); p('s_lshl_b32 s26, s25, 11'); p('s_lshl_b32 s25, s25, 19')
        p('s_lshl_b32 s19, s3, 16'); p('s_lshl_b32 s20, s3, 11'); p('s_lshl_b32 s16, s12, 8')
        p('s_add_u32 s4, s%d, s16' % PTR['wq']); p('s_addc_u32 s5, s%d, 0' % (PTR['wq'] + 1))
        p('s_sub_u32 s6, 0x800000, s16'); p('s_mov_b32 s7, 0x20000')
        if not WQ_LATE:
            for s_ in range(NWQ - 1):
                for it, tag in dma_wq(s_): p(it, tag)
        p('v_mov_b32 %s, s28' % R(vn))
        p('s_lshl_b32 s16, s29, 4'); p('s_add_u32 s16, s16, s31'); p('s_lshl_b32 s16, s16, 2'); p('s_add_u32 s16, s16, 0x%x' % WS_HFLAG)
        p('v_and_b32 %s, 31, %s' % (t[0], lane)); p('v_lshlrev_b32 %s, 2, %s' % (t[0], t[0]))
        p('s_lshl_b32 s17, s13, 3'); p('s_add_u32 s17, s17, s3'); p('s_lshl_b32 s17, s17, 7'); p('s_add_u32 s17, s17, 0x%x' % WS_HFLAG)
        p.wait_tag('hst')
        p('s_mov_b64 exec, 1')
        p('buffer_store_dword %s, %s, %s, s16 offen sc1' % (R(vn), R(vz, 0), sr(S_WS)))
        p('s_mov_b64 exec, -1')
        if WQ_LATE:
            for s_ in range(NWQ - 1):
                for it, tag in dma_wq(s_): p(it, tag)
        p.stamp(5)
        for b_, n_, lo_, hi_ in (SPF or {}).get('w2', []): spf(p, b_, n_, lo_, hi_)
        backoff(p, 'h')
        poll(p, 'h', lambda: p('buffer_load_dword %s, %s, %s, s17 offen sc1' % (t[1], t[0], sr(S_WS))),
             lambda: p('v_cmp_ne_u32 vcc, s28, %s' % t[1]))
        p.stamp(6)

    acc1 = [sub(PR, 16 * i) for i in range(4)]
    H = [[sub(PR, 64 + 16 * b + 4 * k) for k in range(4)] for b in range(NH)]
    def hload(s, k):
        return [(('s_add_u32 s23, s26, 0x%x\ns_and_b32 s23, s23, 0x7fff\ns_or_b32 s23, s23, 0x%x' % (s * 2048, WS_H + (k % 2) * 32768)) if ROT else ('s_mov_b32 s23, 0x%x' % (WS_H + s * 2048 + (k % 2) * 32768)), None),
                ('buffer_load_dwordx4 %s, %s, %s, s23 offen offset:%d%s' % (R(H[s % NH][k], 0, 4), R(v_hoff), sr(S_WS), (k // 2) * 1024, hsc), None)]
    def trread(dst, base, n, va, vb):
        a = vb if n % 2 else va
        off = base + (n // 2) * 256 + (n % 2) * 32
        return ['ds_read_b64_tr_b16 %s, %s offset:%d' % (R(dst, 0, 2), a, off),
                'ds_read_b64_tr_b16 %s, %s offset:%d' % (R(dst, 2, 2), a, off + 1024)]

    def phase1(role):
        A_ = role == 'A'
        def trr(f):
            s, T, n = f // 16, (f // 8) % 2, f % 8
            a = wq_slot(s) + T * 8192
            if a < 0x10000: return trread(fr[f % NRA], a, n, R(v_tr), R(v_tr2))
            return trread(fr[f % NRA], a - 0x20000, n, R(v_xv), R(v_wq2))
        if NWQ > 4:
            p('v_add_u32 %s, 0x20000, %s' % (R(v_xv), R(v_tr))); p('v_add_u32 %s, 0x20000, %s' % (R(v_wq2), R(v_tr2)))
        for s in range(NH - 1):
            for k in range(4):
                for it, tag in hload(s, k): p(it, tag)
        p('s_lshr_b32 s21, s12, 3'); p('s_lshl_b32 s21, s21, 17'); p('s_add_u32 s21, s21, s20'); p('s_add_u32 s21, s21, 0x%x' % WS_KF)
        p.wait_tag('wq0')
        if prioB and not A_: p('s_setprio 1')
        p('s_barrier')
        for f in range(D1):
            for x in trr(f): p(x)
        sc = Sched()
        hnext = [4 * (NH - 1)]
        for f in range(256):
            s, T, n = f // 16, (f // 8) % 2, f % 8
            for qs in range(2):
                d = R(acc1[n // 2], (n % 2) * 8 + qs * 4, 4)
                idx = sc.mfma('v_mfma_f32_16x16x32_bf16 %s, %s, %s, %s' % (d, R(fr[f % NRA], 0, 4), R(H[s % NH][T * 2 + qs], 0, 4), '0' if f < 8 else d))
            g = f + D1
            if g < 256:
                if g % 16 == 0:
                    sn = g // 16
                    sc.place(idx, lambda q, sn=sn: q.wait_tag('wq%d' % sn))
                    sc.place(idx, 's_barrier')
                    nxt = dma_wq(sn + NWQ - 2) if sn + NWQ - 2 < 16 else []
                    for i in range(len(nxt) // 3):
                        for it, tag in nxt[3 * i:3 * i + 3]: sc.place(idx + (1 + 4 * i) * 2 + (0 if A_ else P1B[0]), it, tag)
                tr = trr(g)
                if g % 16 != 0:
                    sc.place(idx - 1, tr[0]); sc.place(idx, tr[1])
                else:
                    for x in tr: sc.place(idx, x)
            if f % 4 in ((1, 3) if A_ or not P1B[1] else (0, 2)):
                tq = (f // 4) % 4
                lim = min(64, (s + NH - 1) * 4 + tq + 1)
                if hnext[0] < lim:
                    for it, tag in hload(hnext[0] // 4, hnext[0] % 4): sc.place(idx, it, tag)
                    hnext[0] += 1
        if True:
            fl4 = x4
            def kvf_load(q):
                q('buffer_load_dwordx4 %s, %s, %s, s18 offen sc1' % (R(fl4, 0, 4), t[5], sr(S_WS)))
            def kvf_issue(q):
                q('v_lshrrev_b32 %s, 4, %s' % (t[5], lane)); q('v_lshlrev_b32 %s, 9, %s' % (t[5], t[5]))
                q('v_and_b32 %s, 15, %s' % (t[4], lane)); q('v_lshl_add_u32 %s, %s, 4, %s' % (t[5], t[4], t[5]))
                q('s_lshr_b32 s18, s12, 3'); q('s_lshl_b32 s18, s18, 11'); q('s_add_u32 s18, s18, 0x%x' % (WS_HFLAG + 256))
                kvf_load(q)
            def kvf_test(q):
                a_, b_ = R(v_kvoff), t[4]
                q('v_xor_b32 %s, s28, %s' % (a_, R(fl4, 0))); q('v_xor_b32 %s, s28, %s' % (b_, R(fl4, 1)))
                q('v_or_b32 %s, %s, %s' % (a_, a_, b_))
                q('v_xor_b32 %s, s28, %s' % (b_, R(fl4, 2))); q('v_or_b32 %s, %s, %s' % (a_, a_, b_))
                q('v_xor_b32 %s, s28, %s' % (b_, R(fl4, 3))); q('v_or_b32 %s, %s, %s' % (a_, a_, b_))
                q('v_cmp_ne_u32 vcc, 0, %s' % a_)
            sc.place(2 * (16 * 6 + 6), kvf_issue)
            sc.place(2 * (16 * 9 + 6), lambda q: rare_poll(q, 'kv', kvf_test, kvf_load))
            sc.place(2 * (16 * 9 + 6) + 1, lambda q: (q('v_mov_b32 %s, 0' % t[4]), q('s_mov_b32 s16, 0x%x' % WS_BIGV), q('buffer_load_dword %s, %s, %s, s16 offen sc1' % (R(v_kvoff), t[4], sr(S_WS)))))
            for c in range(4):
                ch = dma_chunk(c)
                for i in range(2):
                    for it, tag in ch[3 * i:3 * i + 3]: sc.place(2 * (16 * (10 + c) + 8 + 2 * i), it, tag)
        if p1pf:
            SZ = dict(wg=7340032, wu=7340032, wd=7340032, wo=8388608, wmod=1024 * 6144 * 2)
            rounds = [(b, k) for b in p1pf['bufs'] for k in range(4)]
            mine = [(i, r) for i, r in enumerate(rounds) if (i % 2 == 0) == A_]
            def pf_setup(q):
                q('v_lshlrev_b32 %s, 7, %s' % (t[1], lane)); q('s_lshl_b32 s16, s2, 13'); q('v_add_u32 %s, s16, %s' % (t[3], t[1]))
            sc.place(1, pf_setup)
            lo, hi = p1pf['at']
            for i, (b, k) in mine:
                at = lo + (i * (hi - lo)) // len(rounds)
                wv = (i // 2) % 4 + (0 if A_ else 4)
                def one(q, b=b, k=k, wv=wv):
                    mk_srd(q, S_B, b, SZ[b])
                    if b == 'wmod':
                        q('s_add_u32 s16, s2, %d' % (k * 256)); q('s_mul_i32 s16, s16, 12288'); q('s_add_u32 s16, s16, 4096')
                    else:
                        q('s_mov_b32 s16, 0x%x' % (k * 0x200000))
                    q('s_cmp_eq_u32 s3, %d' % wv); q('s_cselect_b32 s16, s16, 0x%x' % OOB)
                    q('buffer_load_dword %s, %s, %s, s16 offen' % (t[2], t[1] if b == 'wmod' else t[3], sr(S_B)), 'pf')
                sc.place(at, one)
        if p1st:
            for i_, s_ in enumerate(p1st): sc.place(32 * s_, lambda q, i_=i_: q.stamp(60 + i_))
        sc.emit(p)
        p.stamp(7)
        p('s_mov_b32 s23, 0x%x' % f2u((128 ** -0.5) * LOG2E))
        for dt in range(4):
            for r in range(0, 16, 2):
                ta, tb = t[(r // 2 % 2) * 2], t[(r // 2 % 2) * 2 + 1]
                p('v_mul_f32 %s, s23, %s' % (ta, R(acc1[dt], r)))
                p('v_mul_f32 %s, s23, %s' % (tb, R(acc1[dt], r + 1)))
                p('v_cvt_pk_bf16_f32 %s, %s, %s' % (R(qf[((r // 4) % 2) * 4 + dt], (r // 8) * 2 + (r % 4) // 2), ta, tb))
        p.stamp(8)

    v_l16b = v_tr; v_l16c = v_tr2
    P = [[sub(PR, 8 * j + 4 * qs) for qs in range(2)] for j in range(16)]
    def lds_read(dst, addr):
        if addr >= 0x20000: return 'ds_read_b128 %s, %s offset:%d' % (R(dst, 0, 4), R(v_l16c), addr - 0x20000)
        return 'ds_read_b128 %s, %s offset:%d' % (R(dst, 0, 4), R(v_l16b), addr - 0x10000)
    def softmax_ops(j, sub_, first, s=None):
        ops = []
        s = S[j % 2] if s is None else s
        for r in range(0, 16, 2):
            a, qs = r // 8, (r // 4) % 2
            if sub_:
                ops.append('v_add_f32 %s, %s, %s' % (R(s, r), R(s, r), R(negm, 4 * qs)))
                ops.append('v_add_f32 %s, %s, %s' % (R(s, r + 1), R(s, r + 1), R(negm, 4 * qs)))
            ops.append('v_exp_f32 %s, %s' % (R(s, r), R(s, r)))
            ops.append('v_exp_f32 %s, %s' % (R(s, r + 1), R(s, r + 1)))
            if first and r % 4 == 0 and a == 0:
                ops.append('v_add_f32 %s, %s, %s' % (R(v_l[qs]), R(s, r), R(s, r + 1)))
            else:
                ops.append('v_add_f32 %s, %s, %s' % (R(v_l[qs]), R(v_l[qs]), R(s, r)))
                ops.append('v_add_f32 %s, %s, %s' % (R(v_l[qs]), R(v_l[qs]), R(s, r + 1)))
            ops.append('v_cvt_pk_bf16_f32 %s, %s, %s' % (R(P[j][qs], a * 2 + (r % 4) // 2), R(s, r), R(s, r + 1)))
        return ops
    def xl_red(m, m2, op):
        return ['v_mov_b32 %s, %s' % (m2, m), 'v_permlane16_swap_b32 %s, %s' % (m, m2), '%s %s, %s, %s' % (op, m, m, m2),
                'v_mov_b32 %s, %s' % (m2, m), 'v_permlane32_swap_b32 %s, %s' % (m, m2), '%s %s, %s, %s' % (op, m, m, m2)]
    def finish_max(ms, m2s):
        ops = []
        a, b = xl_red(ms[0], m2s[0], 'v_max_f32'), xl_red(ms[1], m2s[1], 'v_max_f32')
        for x, y in zip(a, b): ops += [x, y]
        for r in range(8): ops.append('v_sub_f32 %s, 0, %s' % (R(negm, r), ms[r // 4]))
        return ops
    def mf_k(sreg, f, frag, cz):
        T, a = f // 2, f % 2
        out = []
        for qs in range(2):
            d = R(sreg, (a * 2 + qs) * 4, 4)
            c = d if T > 0 else ('0' if cz else R(negm, 4 * qs, 4))
            out.append('v_mfma_f32_16x16x32_bf16 %s, %s, %s, %s' % (d, frag, R(qf[qs * 4 + T], 0, 4), c))
        return out
    accO = [sub(SS, 0), sub(SS, 16)]
    stg = [sub(negm, 0), sub(negm, 4)]
    WD = [sub(QF, 4 * i) for i in range(8)]

    def phase2(role):
        A_ = role == 'A'
        p('v_add_u32 %s, 0x10000, %s' % (R(v_l16b), l16))
        p('v_add_u32 %s, 0x20000, %s' % (R(v_l16c), l16))
        seq = [(j, f) for j in range(16) for f in range(8)]
        sc = Sched()
        for n, (j, f) in enumerate(seq):
            for m_ in mf_k(S[j % 2], f, R(fr[n % NRA], 0, 4), j < 2): sc.mfma(m_)
        def place_reads(sc, nfr, addr_of, chunk_of, n0):
            last = None
            for n in range(nfr):
                at = 2 * (n - D2) + 1 if n - D2 >= 0 else -1
                c = chunk_of(n)
                if c != last:
                    last = c
                    for cw in ([7, 8, 9] if c == 7 else [c]): sc.place(at, lambda q, cw=cw: q.wait_tag('ch%d' % cw))
                    sc.place(at, 's_barrier')
                    nx = sum((dma_chunk(ci) for ci in ([12, 13, 14] if c == 10 else [c + 4])), [])
                    for q_ in range(len(nx) // 3):
                        for it, tag in nx[3 * q_:3 * q_ + 3]: sc.place(max(at, 0) + 2 + (0 if A_ else P2B) + (8 if len(nx) == 6 else 4) * q_, it, tag)
                sc.place(at, lds_read(fr[(n0 + n) % NRA], addr_of(n)))
        place_reads(sc, 128, lambda n: slot(n // 16) + (n % 16) * 1024, lambda n: n // 16, 0)
        ms, m2s = [t[0], t[1]], [t[2], t[3]]
        ops = []
        for qs in range(2):
            rg = [R(S[0], (a * 2 + qs) * 4 + k) for a in range(2) for k in range(4)]
            ops.append('v_max3_f32 %s, %s, %s, %s' % (ms[qs], rg[0], rg[1], rg[2]))
            for i in range(3, 7, 2): ops.append('v_max3_f32 %s, %s, %s, %s' % (ms[qs], ms[qs], rg[i], rg[i + 1]))
            ops.append('v_max_f32 %s, %s, %s' % (ms[qs], ms[qs], rg[7]))
        for i, o in enumerate(ops): sc.place(22 + i, o)
        ops = []
        for qs in range(2):
            rg = [R(S[1], (a * 2 + qs) * 4 + k) for a in range(2) for k in range(4)]
            for i in range(0, 8, 2): ops.append('v_max3_f32 %s, %s, %s, %s' % (ms[qs], ms[qs], rg[i], rg[i + 1]))
        ops += finish_max(ms, m2s) + softmax_ops(0, True, True)
        for o in ops: sc.place(31, o)
        for j in range(1, 15):
            lo, hi = 16 * (j + 1) + 1, 16 * (j + 2) - 1
            ops = softmax_ops(j, j < 2, False)
            nm = hi - lo + 1
            for i, o in enumerate(ops): sc.place(lo + min(nm - 1, (i * nm) // len(ops)), o)
        if not A_:
            def gu_setup(q):
                mk_srd(q, S_B, 'wg', 7340032); mk_srd(q, S_C, 'wu', 7340032)
                q('s_cmp_lt_u32 s2, 224'); q('s_cselect_b32 s66, 7340032, 0'); q('s_cselect_b32 s70, 7340032, 0')
                q('s_and_b32 s29, s2, 7'); q('s_mul_i32 s29, s29, 28'); q('s_lshr_b32 s16, s2, 3'); q('s_add_u32 s29, s29, s16')
                q('s_sub_u32 s16, s3, 4')
                q('v_lshrrev_b32 %s, 3, %s' % (t[4], lane)); q('v_lshlrev_b32 %s, 3, %s' % (t[4], t[4]))
                q('s_lshl_b32 s17, s16, 6'); q('v_add_u32 %s, s17, %s' % (t[4], t[4]))
                q('s_mov_b32 s17, 7168'); q('v_mul_lo_u32 %s, s17, %s' % (R(v_xv), t[4]))
                q('v_and_b32 %s, 7, %s' % (t[4], lane)); q('v_lshl_add_u32 %s, %s, 4, %s' % (R(v_xv), t[4], R(v_xv)))
                q('s_and_b32 s17, s29, 3'); q('s_mul_i32 s18, s17, %d' % (256 * 7168))
                q('s_lshr_b32 s17, s29, 2'); q('s_lshl_b32 s17, s17, 7'); q('s_add_u32 s18, s18, s17')
                q('s_lshl_b32 s15, s16, 13')
            sc.place(1, gu_setup)
            if wopf is not None:
                def wo_pf(q):
                    mk_srd(q, S_D, 'wo', 0x800000)
                    q('v_lshlrev_b32 %s, 7, %s' % (t[5], lane))
                    q('s_lshl_b32 s16, s2, 2'); q('s_add_u32 s16, s16, s3'); q('s_sub_u32 s16, s16, 4'); q('s_lshl_b32 s16, s16, 13')
                    q('buffer_load_dword %s, %s, %s, s16 offen' % (R(x4, 3), t[5], sr(S_D)), 'pf')
                sc.place(wopf, wo_pf)
            items = [(m, i) for i in range(8) for m in range(2)]
            lo, hi = 2 * (16 * gu_at[0] + 2), 2 * (16 * gu_at[1])
            if GU3_AT is not None: items = [x for x in items if x[0] == 0]
            for k, (m, i) in enumerate(items if do_gu else []):
                at = lo + (k * (hi - lo)) // len(items)
                sc.place(at, 's_add_u32 s22, s18, %d' % (i * 7168))
                sc.place(at, 's_add_u32 m0, s15, %d' % (m * 32768 + i * 1024))
                sc.place(at, 'buffer_load_dwordx4 %s, %s, s22 offen lds' % (R(v_xv), sr(S_B if m == 0 else S_C)), 'gu')
        else:
            sc.place(1, lambda q: (q('s_and_b32 s29, s2, 7'), q('s_mul_i32 s29, s29, 28'), q('s_lshr_b32 s16, s2, 3'), q('s_add_u32 s29, s29, s16')))
        def wo_setup(q):
            mk_srd(q, S_A, 'wo', 0x800000)
            q('v_bfe_u32 %s, %s, 2, 2' % (t[4], lane))
            q('v_lshlrev_b32 %s, 13, %s' % (t[5], t[4])); q('v_sub_u32 %s, %s, %s' % (R(v_wqoff), R(v_wqoff), t[5]))
            q('v_lshl_add_u32 %s, %s, 11, %s' % (R(v_wqoff), t[4], R(v_wqoff)))
            q('s_and_b32 s16, s2, 1'); q('s_lshl_b32 s24, s16, 22')
            q('s_lshr_b32 s16, s2, 5'); q('s_lshl_b32 s16, s16, 8'); q('s_add_u32 s24, s24, s16')
            q('s_lshl_b32 s16, s3, 14'); q('s_add_u32 s24, s24, s16')
            if ROT3:
                q('s_lshr_b32 s62, s2, 5'); q('s_mul_i32 s62, s62, %d' % ROT3[0]); q('s_bfe_u32 s16, s2, 0x20003'); q('s_mul_i32 s16, s16, %d' % ROT3[1])
                q('s_add_u32 s62, s62, s16'); q('s_and_b32 s62, s62, 7'); q('s_lshl_b32 s62, s62, 13')
            if not A_: q('s_add_u32 s24, s24, %d' % (96 * 2048))
        sc.place(2, m_setup)
        sc.place(16 * 2 + 5, wo_setup)
        sc.place(16 * 11 + 5, m_cs)
        m_work(sc, 16 * 14 - 2 * D2 + 3)
        sc.place(16 * 15 + 1, m_store)
        if qkst:
            for i_, s_ in enumerate(qkst): sc.place(s_, lambda q, i_=i_: q.stamp(40 + i_))
        sc.emit(p)
        p.stamp(9)
        pv = [(T, hh, jj, b) for T in range(4) for hh in range(2) for jj in range(8) for b in range(2)]
        sc = Sched()
        for n, (T, hh, jj, b) in enumerate(pv):
            for qs in range(2):
                d = R(accO[T % 2], b * 8 + qs * 4, 4)
                sc.mfma('v_mfma_f32_16x16x32_bf16 %s, %s, %s, %s' % (d, R(fr[(128 + n) % NRA], 0, 4), R(P[8 * hh + jj][qs], 0, 4), '0' if (hh == 0 and jj == 0) else d))
        place_reads(sc, 128, lambda n: slot(10 + n // 16) + (n % 16) * 1024, lambda n: 10 + n // 16, 128)
        l0, l1 = R(v_l[0]), R(v_l[1])
        def mid(q):
            for o in softmax_ops(15, False, False): q(o)
            for x, y in zip(xl_red(l0, t[0], 'v_add_f32'), xl_red(l1, t[2], 'v_add_f32')): q(x); q(y)
            q('v_max_f32 %s, %s, %s' % (t[1], l0, l1))
            q('v_readfirstlane_b32 s17, %s' % R(v_kvoff))
            q('s_cmp_eq_u32 s17, s28'); q('s_cselect_b32 s16, 0, 0x%x' % f2u(2.0 ** 100))
            q('v_cmp_ngt_f32 vcc, s16, %s' % t[1])
            q('v_cmp_u_f32 s[76:77], %s, %s' % (l0, l1))
            q('s_or_b64 vcc, vcc, s[76:77]')
            lab = '%s_fix%s' % (name, role)
            q('s_cbranch_vccnz %s' % lab)
            q.label(lab + 'b')
            q('v_rcp_f32 %s, %s' % (l0, l0)); q('v_rcp_f32 %s, %s' % (l1, l1))
            q('s_lshl_b32 s25, s13, 3'); q('s_add_u32 s25, s25, s3'); q('s_lshl_b32 s25, s25, 18')
            q('s_lshl_b32 s26, s12, 12'); q('s_add_u32 s25, s25, s26'); q('s_add_u32 s25, s25, 0x%x' % WS_O)
            q('s_add_u32 s26, s25, 131072')
            q('s_lshl_b32 s63, s13, 3'); q('s_add_u32 s63, s63, s3'); q('s_lshl_b32 s63, s63, 5'); q('s_add_u32 s63, s63, s12'); q('s_lshl_b32 s63, s63, 2')
            z = Prog()
            z.label(lab); z.flush()
            z('s_lshr_b32 s16, s12, 3'); z('s_lshl_b32 s16, s16, 17'); z('s_add_u32 s16, s16, 0x%x' % WS_KF)
            z('v_add_u32 %s, s16, %s' % (R(v_kvoff), l16))
            z('v_mov_b32 %s, 0xff7fffff' % ms[0]); z('v_mov_b32 %s, 0xff7fffff' % ms[1])
            KF = [sub(S[1], 4 * i) for i in range(4)]
            def ktile(z, j, cz):
                for hf in range(2):
                    z('s_mov_b32 s17, 0x%x' % (j * 8192 + hf * 4096))
                    for i in range(4): z('buffer_load_dwordx4 %s, %s, %s, s17 offen offset:%d' % (R(KF[i], 0, 4), R(v_kvoff), sr(S_WS), i * 1024))
                    for i in range(4):
                        for m_ in mf_k(S[0], hf * 4 + i, R(KF[i], 0, 4), cz): z(m_)
            z('s_mov_b32 s16, 0')
            z.loop_begin(); z.label(lab + 'm')
            for hf in range(2):
                z('s_add_u32 s17, s16, %d' % (hf * 4096))
                for i in range(4): z('buffer_load_dwordx4 %s, %s, %s, s17 offen offset:%d' % (R(KF[i], 0, 4), R(v_kvoff), sr(S_WS), i * 1024))
                for i in range(4):
                    for m_ in mf_k(S[0], hf * 4 + i, R(KF[i], 0, 4), True): z(m_)
            for r in range(0, 16, 2): z('v_max3_f32 %s, %s, %s, %s' % (ms[(r // 4) % 2], ms[(r // 4) % 2], R(S[0], r), R(S[0], r + 1)))
            z('s_add_u32 s16, s16, 8192'); z('s_cmp_lt_u32 s16, 0x20000'); z('s_cbranch_scc1 %sm' % lab)
            z.loop_end()
            for o in finish_max(ms, m2s): z(o)
            for j in range(16):
                ktile(z, j, False)
                for o in softmax_ops(j, False, j == 0, S[0]): z(o)
            for x, y in zip(xl_red(l0, t[0], 'v_add_f32'), xl_red(l1, t[2], 'v_add_f32')): z(x); z(y)
            z.flush()
            z('s_branch %sb' % lab)
            rare.append(z)
        sc.place(-1, mid)
        def ostore(T):
            ops = []
            a = accO[T % 2]
            for qs in range(2):
                for b in range(2):
                    for k in range(4): ops.append(('v_mul_f32 %s, %s, %s' % (R(a, b * 8 + qs * 4 + k), R(a, b * 8 + qs * 4 + k), R(v_l[qs])), None))
                for b in range(2):
                    for k in range(0, 4, 2):
                        ops.append(('v_cvt_pk_bf16_f32 %s, %s, %s' % (R(stg[qs], b * 2 + k // 2), R(a, b * 8 + qs * 4 + k), R(a, b * 8 + qs * 4 + k + 1)), None))
                ops.append(('buffer_store_dwordx4 %s, %s, %s, %s offen offset:%d sc1' % (R(stg[qs], 0, 4), l16, sr(S_WS), 's26' if qs else 's25', T * 1024), 'ost%d' % T))
            return ops
        for T in range(3):
            ops = ostore(T)
            lo = 64 * (T + 1) + 3
            for i, (o, tag) in enumerate(ops):
                if T == 2 and OST2_LATE and o.startswith('buffer_store'): sc.place(252 + (tag is None) + (i > 13), o, tag)
                else: sc.place(lo + OST_SP * i, o, tag)
        if not A_ and do_wd and WD_AT >= 0: sc.place(WD_AT, wd_loads)
        if not A_ and wopf_pv is not None:
            def wo_pf2(q):
                mk_srd(q, S_D, 'wo', 0x800000)
                q('v_lshlrev_b32 %s, 7, %s' % (t[5], lane))
                q('s_lshl_b32 s16, s2, 2'); q('s_add_u32 s16, s16, s3'); q('s_sub_u32 s16, s16, 4'); q('s_lshl_b32 s16, s16, 13')
                q('buffer_load_dword %s, %s, %s, s16 offen' % (t[4], t[5], sr(S_D)), 'pf')
            sc.place(wopf_pv, wo_pf2)
        assert (MP_AT[0] + 2 * D2 - 1) % 32 in range(1, 8)
        sc.place(MP_AT[0] - 8, lambda q: q.wait_tag('mst'))
        if A_: mc_final(sc)
        for T_, at_ in enumerate(OF_AT):
            if at_ < 1000: sc.place(at_, lambda q, T_=T_: oflag(q, T_))
        ks_ = 0 if A_ else 1
        sc.place(P3_AT[0], lambda q: p3_setup(q, ks_))
        sc.place(P3_AT[1], lambda q: rare_poll(q, 'o', lambda z: z('v_cmp_ne_u32 vcc, s28, %s' % of2), of_load))
        k_ = 0
        for s_ in range(PO - 1):
            for qs in range(2):
                for l_ in oload(s_, qs): sc.place(P3_AT[1] + 1 + 3 * k_, l_)
                k_ += 1
        for i_, o_ in enumerate(p3_addr(ks_)): sc.place(248 + i_ // 2, o_)
        if pvst:
            for i_, s_ in enumerate(pvst): sc.place(s_, lambda q, i_=i_: q.stamp(50 + i_))
        sc.emit(p)
        for o, tag in ostore(3): p(o, tag)
        p.stamp(10)

    gu_defer = []
    last_ostore = [None]
    def oflag(q, T):
        q.wait_tag('ost%d' % T)
        q('s_add_u32 s16, s63, 0x%x' % (WS_OFLAG + T * 8192))
        a_, b_ = (R(x4, 2), R(x4, 3)) if T > 0 else (R(v_hoff), R(v_kvoff))
        q('v_mov_b32 %s, s28' % a_); q('v_mov_b32 %s, 0' % b_)
        q('s_mov_b64 exec, 1')
        q('buffer_store_dword %s, %s, %s, s16 offen sc1' % (a_, b_, sr(S_WS)))
        q('s_mov_b64 exec, -1')
    def gu_late(sc):
        def setup(q):
            mk_srd(q, S_D, 'wu', 7340032)
            q('s_cmp_lt_u32 s2, 224'); q('s_cselect_b32 s74, 7340032, 0')
            q('s_sub_u32 s16, s3, 4')
            q('v_lshrrev_b32 %s, 3, %s' % (t[4], lane)); q('v_lshlrev_b32 %s, 3, %s' % (t[4], t[4]))
            q('s_lshl_b32 s17, s16, 6'); q('v_add_u32 %s, s17, %s' % (t[4], t[4]))
            q('s_mov_b32 s17, 7168'); q('v_mul_lo_u32 %s, s17, %s' % (t[5], t[4]))
            q('v_and_b32 %s, 7, %s' % (t[4], lane)); q('v_lshl_add_u32 %s, %s, 4, %s' % (t[5], t[4], t[5]))
            q('s_and_b32 s17, s29, 3'); q('s_mul_i32 s18, s17, %d' % (256 * 7168))
            q('s_lshr_b32 s17, s29, 2'); q('s_lshl_b32 s17, s17, 7'); q('s_add_u32 s18, s18, s17')
            q('s_lshl_b32 s16, s16, 13')
            for i in range(8):
                q('s_add_u32 s22, s18, %d' % (i * 7168))
                q('s_add_u32 m0, s16, %d' % (32768 + i * 1024))
                q('buffer_load_dwordx4 %s, %s, s22 offen lds' % (t[5], sr(S_D)), 'gu')
        sc.place(GU3_AT, setup)
    def wd_loads(q, rows=(0, 1, 2, 3)):
        mk_srd(q, S_D, 'wd', 7340032)
        q('s_cmp_lt_u32 s2, 224'); q('s_cselect_b32 s74, 7340032, 0')
        q('s_lshl_b32 s17, s29, 4'); q('s_sub_u32 s16, s3, 4'); q('s_lshl_b32 s16, s16, 2'); q('s_add_u32 s16, s16, s17'); q('s_lshl_b32 s16, s16, 11')
        for i in rows:
            q('s_add_u32 s17, s16, %d' % (i * 2048))
            for hf in range(2):
                q('buffer_load_dwordx4 %s, %s, %s, s17 offen offset:%d' % (R(WD[2 * i + hf], 0, 4), l16, sr(S_D), hf * 1024))

    XROW = negm; MOD = SS; GA = SP
    MSB, MC1, MGB, MWR = 0, 8, 16, 24
    MODL = RING1 + 16384
    def phase3(role):
        A_ = role == 'A'; ks = 0 if A_ else 1
        p('s_and_b32 s15, s2, 1')
        def rd(f):
            s, n = f // 8, f % 8
            k = (W0 + s) % NSL
            if k < 4: return trread(fr[f % NRA], k * 16384, n, R(v_tr), R(v_tr2))
            return trread(fr[f % NRA], (k - 4) * 16384, n, R(v_hoff), R(v_kvoff))
        sc = Sched()
        NF = 256
        for T_, at_ in enumerate(OF_AT):
            if at_ >= 1000: sc.place(at_ - 1000, lambda q, T_=T_: oflag(q, T_))
        for f in range(NF):
            s, n = f // 8, f % 8
            for qs in range(2):
                d = R(acc3[n][qs], 0, 4)
                sc.mfma('v_mfma_f32_16x16x32_bf16 %s, %s, %s, %s' % (d, R(fr[f % NRA], 0, 4), R(OB[s % PO][qs], 0, 4), '0' if s == 0 else d))
        for f in range(NF):
            at = 2 * (f - D3) + 1 if f - D3 >= 0 else -1
            s, n = f // 8, f % 8
            if n == 0:
                c = W0 + s
                sc.place(at, lambda q, c=c: q.wait_tag('ch%d' % c))
                sc.place(at, 's_barrier')
                if c + 4 < W0 + 32:
                    nx = dma_chunk(c + 4)
                    for q_ in range(2):
                        for it, tag in nx[3 * q_:3 * q_ + 3]: sc.place(max(at, 0) + (P3D if A_ or not P3B else P3B[0])[0] + (P3D if A_ or not P3B else P3B[0])[1] * q_, it, tag)
            tr = rd(f)
            if at > 0 and n != 0:
                sc.place(at - 1, tr[0]); sc.place(at, tr[1])
            else:
                for x in tr: sc.place(at, x)
        for s in range(32):
            sn = s + PO - 1
            if sn < 32:
                for qs in range(2):
                    for l_ in oload(sn, qs): sc.place(16 * s + (P3O if A_ or not P3B else P3B[1])[0] + (P3O if A_ or not P3B else P3B[1])[1] * qs, l_)
        fl = sub(SS, 0)
        def mfl(q):
            q('s_mov_b32 s16, 0x%x' % WS_MFLAG)
            q('buffer_load_dwordx4 %s, %s, %s, s16 offen sc1' % (R(fl, 0, 4), l16, sr(S_WS)))
        def mft(q):
            q('v_xor_b32 %s, s28, %s' % (t[0], R(fl, 0))); q('v_xor_b32 %s, s28, %s' % (t[1], R(fl, 1)))
            q('v_xor_b32 %s, s28, %s' % (t[2], R(fl, 2))); q('v_xor_b32 %s, s28, %s' % (t[3], R(fl, 3)))
            q('v_or3_b32 %s, %s, %s, %s' % (t[0], t[0], t[1], t[2])); q('v_or_b32 %s, %s, %s' % (t[0], t[0], t[3]))
            q('v_cmp_ne_u32 vcc, 0, %s' % t[0])
        for T_ in range(1, 4):
            chk = 8 * T_ - (PO - 1)
            sc.place(16 * (chk - 2) + 9, lambda q: (q('s_add_u32 s19, s19, 8192'), of_load(q)))
            sc.place(16 * chk - 1, lambda q: rare_poll(q, 'o2', lambda z: z('v_cmp_ne_u32 vcc, s28, %s' % of2), of_load))
        sc.place(16 * mf_at[0] + 5, mfl)
        if mc_comp: sc.place(16 * mf_at[1] + 5, lambda q: rare_poll(q, 'mf', mft, mfl))
        def side(q):
            q('v_lshrrev_b32 %s, 4, %s' % (t[0], lane)); q('v_lshlrev_b32 %s, 3, %s' % (t[0], t[0]))
            q('s_lshl_b32 s16, s31, 8'); q('s_add_u32 s16, s16, 0x%x' % (WS_MODB + ks * 128))
            for i in range(4):
                q('buffer_load_dwordx2 %s, %s, %s, s16 offen offset:%d sc1' % (R(GA, 2 * i, 2), t[0], sr(S_WS), i * 32))
        sc.place(16 * mf_at[2] + 5, side)
        def side2(q):
            mk_srd(q, S_B, 'wr', 2048); mk_srd(q, S_E, 'x', 4194304); mk_srd(q, S_C, 'out', 4194304)
            q('s_lshl_b32 s14, s31, 1'); q('s_add_u32 s14, s14, s15'); q('s_lshl_b32 s14, s14, 3'); q('s_add_u32 s14, s14, s3')
            q('s_lshl_b32 s16, s30, 7'); q('s_add_u32 s14, s14, s16')
            q('s_lshl_b32 s16, s14, 11')
            for hf in range(2): q('buffer_load_dwordx4 %s, %s, %s, s16 offen offset:%d' % (R(XROW, 4 * hf, 4), l16, sr(S_E), hf * 1024))
            if MODL_ON:
                q('s_lshl_b32 s16, s3, 10'); q('s_add_u32 m0, s16, %d' % MODL)
                if role == 'A':
                    q('s_add_u32 s16, s16, 0x%x' % (WS_MODB + 2048))
                    q('buffer_load_dwordx4 %s, %s, s16 offen sc1 lds' % (l16, sr(S_WS)), 'ml')
                else:
                    q('s_add_u32 s17, s16, 0x%x' % (WS_MODB + 2048)); q('s_cmp_lt_u32 s3, 6'); q('s_cselect_b32 s17, s17, 0x%x' % OOB)
                    q('s_sub_u32 s23, s16, 6144'); q('s_cmp_ge_u32 s3, 6'); q('s_cselect_b32 s23, s23, 0x%x' % OOB)
                    q('s_cbranch_scc1 %s_mlw' % name)
                    q.alt_begin()
                    q('buffer_load_dwordx4 %s, %s, s17 offen sc1 lds' % (l16, sr(S_WS)), 'ml')
                    q('s_branch %s_mlj' % name)
                    q.alt_next()
                    q.label('%s_mlw' % name)
                    q('buffer_load_dwordx4 %s, %s, s23 offen lds' % (l16, sr(S_B)), 'ml')
                    q.alt_end()
                    q.label('%s_mlj' % name)
            else:
                for off, mo in ((2048, MSB), (4096, MC1), (6144, MGB)):
                    q('s_mov_b32 s16, 0x%x' % (WS_MODB + off))
                    for hf in range(2): q('buffer_load_dwordx4 %s, %s, %s, s16 offen offset:%d%s' % (R(MOD, mo + 4 * hf, 4), l16, sr(S_WS), hf * 1024, modsc))
                for hf in range(2): q('buffer_load_dwordx4 %s, %s, %s, 0 offen offset:%d' % (R(MOD, MWR + 4 * hf, 4), l16, sr(S_B), hf * 1024))
        if mf_at[3] < 32: sc.place(16 * mf_at[3] + 5, side2)
        if not A_ and WD_AT <= -1000: sc.place(-WD_AT - 1000, wd_loads)
        if not A_ and GU3_AT is not None and GU3_AT >= 0:
            gu_late(sc)
        if p3st:
            for i_, s_ in enumerate(p3st): sc.place(16 * s_, lambda q, i_=i_: q.stamp(30 + i_))
        sc.emit(p)
        p.stamp(13)
        XB = RING1 + 2 * 16384
        p('s_lshl_b32 s16, s3, 13'); p('s_xor_b32 s17, s16, 0x8000'); p('s_add_u32 s16, s16, 0x%x' % XB); p('s_add_u32 s17, s17, 0x%x' % XB)
        p('v_add_u32 %s, s16, %s' % (t[0], l16))
        p('s_mov_b32 s16, s17')
        p('v_add_u32 %s, s16, %s' % (t[1], l16))
        o_ = 4 * (1 - ks)
        for i in range(4):
            for qs in range(2): p('ds_write_b128 %s, %s offset:%d' % (t[0], R(acc3[o_ + i][qs], 0, 4), (i * 2 + qs) * 1024))
        gaf = sub(PR, 0)
        for i in range(4):
            for d in range(2): unpack(p, R(gaf, 4 * i + 2 * d), R(gaf, 4 * i + 2 * d + 1), R(GA, 2 * i + d))
        p('v_and_b32 %s, 15, %s' % (t[2], lane)); p('v_lshlrev_b32 %s, 6, %s' % (t[2], t[2]))
        p('v_lshrrev_b32 %s, 4, %s' % (t[3], lane))
        p('v_and_b32 %s, 1, %s' % (t[4], t[3])); p('v_lshl_add_u32 %s, %s, 5, %s' % (t[2], t[4], t[2]))
        p('v_lshrrev_b32 %s, 1, %s' % (t[3], t[3])); p('v_lshl_add_u32 %s, %s, 4, %s' % (t[2], t[3], t[2]))
        p('s_and_b32 s17, s3, 3'); p('s_lshl_b32 s18, s30, 2'); p('s_add_u32 s18, s18, s17'); p('s_lshl_b32 s18, s18, 16')
        p('s_lshl_b32 s19, s15, 22'); p('s_add_u32 s18, s18, s19'); p('s_lshl_b32 s19, s31, 12'); p('s_add_u32 s18, s18, s19')
        p('s_add_u32 s18, s18, 0x%x' % (WS_AP + ks * 2048)); p('s_add_u32 s19, s18, 32768')
        p('s_waitcnt lgkmcnt(0)')
        p('s_barrier')
        p.stamp(22)
        rx = [sub(PR, 16 + 4 * i) for i in range(8)]
        for i in range(4):
            for qs in range(2): p('ds_read_b128 %s, %s offset:%d' % (R(rx[i * 2 + qs], 0, 4), t[1], (i * 2 + qs) * 1024))
        st4 = [sub(FR, 4 * i) for i in range(4)]
        for mm in range(2):
            for qs in range(2):
                q4 = st4[mm * 2 + qs]
                for b in range(2):
                    i = 2 * mm + b
                    a = acc3[4 * ks + i][qs]
                    for k in range(0, 4, 2): p('v_pk_add_f32 %s, %s, %s' % (R(a, k, 2), R(a, k, 2), R(rx[i * 2 + qs], k, 2)))
                    for k in range(0, 4, 2): p('v_pk_mul_f32 %s, %s, %s' % (R(a, k, 2), R(a, k, 2), R(gaf, 4 * i + k, 2)))
                    for k in range(0, 4, 2): p('v_cvt_pk_bf16_f32 %s, %s, %s' % (R(q4, 2 * b + k // 2), R(a, k), R(a, k + 1)))
                for d in range(2): p('v_permlane16_swap_b32 %s, %s' % (R(q4, d), R(q4, 2 + d)))
                p('buffer_store_dwordx4 %s, %s, %s, %s offen offset:%d sc1' % (R(q4, 0, 4), t[2], sr(S_WS), 's19' if qs else 's18', mm * 1024), 'ap')
        if mf_at[3] >= 32: side2(p)
        if not A_ and GU3_AT == -1:
            class _S:
                def place(self, at, f): f(p)
            gu_late(_S())
        if not A_ and WD_AT == -1: wd_loads(p)
        if not A_ and WD_AT == -3: wd_loads(p, (0, 1))
        p.stamp(14)

    def tail(role):
        A_ = role == 'A'; ks = 0 if A_ else 1
        T = RA('v', PR[1], PR[1] + 128)
        gr = T.alloc(4, 4); xf = T.alloc(16, 4); raw = T.alloc(16, 4); uf = T.alloc(16, 4)
        u8 = T.alloc(8, 4); acc = T.alloc(8, 4); fin = T.alloc(8, 4); sl = T.alloc(8, 4)
        w = [sub(uf, 4 * i) for i in range(4)] + [T.alloc(4, 4) for _ in range(4)]
        LB = RING1
        L_KEY = LB; L_BEST = LB + 256; L_XS = LB + 1024; L_X2 = LB + 3072; L_GS = LB + 5120; L_YS = LB + 8192; L_RS = LB + 24576 + 1024
        a0, a1, b0, b1 = R(u8, 0), R(u8, 1), R(u8, 2), R(u8, 3)
        a01, b01 = R(u8, 0, 2), R(u8, 2, 2)
        b0v = R(fin, 2)
        usum = R(fin, 3)
        def products():
            p('v_mov_b32 %s, 0' % b0v); p('v_mov_b32 %s, 0' % usum)
            for d in range(8):
                unpack(p, a0, a1, R(MOD, MC1 + d)); unpack(p, b0, b1, R(MOD, MWR + d))
                p('v_pk_mul_f32 %s, %s, %s' % (R(uf, 2 * d, 2), a01, b01))
                unpack(p, a0, a1, R(MOD, MSB + d))
                p('v_fmac_f32 %s, %s, %s' % (b0v, a0, b0)); p('v_fmac_f32 %s, %s, %s' % (b0v, a1, b1))
                p('v_add_f32 %s, %s, %s' % (usum, usum, R(uf, 2 * d))); p('v_add_f32 %s, %s, %s' % (usum, usum, R(uf, 2 * d + 1)))
            for n in (1, 2, 4, 8):
                ror_add(p, b0v, n); ror_add(p, usum, n)
            xor16_add(p, b0v, a0); xor16_add(p, usum, a1); xor32_add(p, b0v, a0); xor32_add(p, usum, a1)
            for d in range(8): unpack(p, R(xf, 2 * d), R(xf, 2 * d + 1), R(XROW, d))
        if not MODL_ON: products()
        if AP_WG:
            p('s_lshl_b32 s16, s30, 5'); p('s_lshl_b32 s17, s31, 1'); p('s_add_u32 s16, s16, s17'); p('s_add_u32 s16, s16, s15')
            p('s_lshl_b32 s16, s16, 2'); p('s_add_u32 s16, s16, 0x%x' % WS_AFLAG)
            p('s_cmp_eq_u32 s3, 0'); p('s_cselect_b32 s16, s16, 0x%x' % OOB)
        else:
            p('s_and_b32 s17, s3, 3'); p('s_lshl_b32 s16, s30, 2'); p('s_add_u32 s16, s16, s17'); p('s_lshl_b32 s16, s16, 5')
            p('s_lshl_b32 s17, s31, 2'); p('s_add_u32 s16, s16, s17'); p('s_lshl_b32 s17, s15, 1'); p('s_add_u32 s16, s16, s17')
            p('s_add_u32 s16, s16, %d' % ks); p('s_lshl_b32 s16, s16, 2'); p('s_add_u32 s16, s16, 0x%x' % WS_AFLAG)
        p('v_mov_b32 %s, s28' % t[0]); p('v_mov_b32 %s, 0' % t[1])
        p('s_lshr_b32 s18, s14, 4'); p('s_lshl_b32 s18, s18, 15'); p('s_and_b32 s19, s14, 15'); p('s_lshl_b32 s19, s19, 6')
        p('s_add_u32 s18, s18, s19'); p('s_add_u32 s18, s18, 0x%x' % WS_AP); p('s_add_u32 s19, s18, 16384')
        p('v_lshrrev_b32 %s, 2, %s' % (t[2], lane)); p('v_lshlrev_b32 %s, 10, %s' % (t[2], t[2]))
        p('v_and_b32 %s, 3, %s' % (t[3], lane)); p('v_lshl_add_u32 %s, %s, 4, %s' % (t[2], t[3], t[2]))
        p('v_add_u32 %s, 0x400000, %s' % (t[3], t[2]))
        if AP_WG:
            p('s_lshl_b32 s25, s30, 7'); p('s_add_u32 s25, s25, 0x%x' % WS_AFLAG)
            p('v_and_b32 %s, 15, %s' % (t[4], lane)); p('v_lshlrev_b32 %s, 2, %s' % (t[4], t[4]))
        else:
            p('s_lshr_b32 s25, s14, 5'); p('s_lshl_b32 s25, s25, 7'); p('s_add_u32 s25, s25, 0x%x' % WS_AFLAG)
            p('v_and_b32 %s, 31, %s' % (t[4], lane)); p('v_lshlrev_b32 %s, 2, %s' % (t[4], t[4]))
        p.wait_tag('ap')
        if MODL_ON: p.wait_tag('ml')
        if AP_WG: p('s_barrier')
        p('s_mov_b64 exec, 1')
        p('buffer_store_dword %s, %s, %s, s16 offen sc1' % (t[0], t[1], sr(S_WS)))
        p('s_mov_b64 exec, -1')
        if MODL_ON:
            assert AP_WG
            p('v_add_u32 %s, %d, %s' % (t[0], MODL, l16))
            for k in range(8): p('ds_read_b128 %s, %s offset:%d' % (R(MOD, 4 * k, 4), t[0], k * 1024))
            products()
        p.stamp(15)
        backoff(p, 'a')
        poll(p, 'a', lambda: p('buffer_load_dword %s, %s, %s, s25 offen sc1' % (a0, t[4], sr(S_WS))),
             lambda: p('v_cmp_ne_u32 vcc, s28, %s' % a0))
        for hf in range(2):
            p('buffer_load_dwordx4 %s, %s, %s, s%d offen sc1' % (R(raw, 4 * hf, 4), t[2], sr(S_WS), 18 + hf))
            p('buffer_load_dwordx4 %s, %s, %s, s%d offen sc1' % (R(raw, 8 + 4 * hf, 4), t[3], sr(S_WS), 18 + hf))
        p('v_lshlrev_b32 %s, 2, %s' % (t[5], tid))
        p('s_mov_b32 s16, 0x%x' % (WS_MODB + 2048))
        p('buffer_load_dword %s, %s, %s, s16 offen sc1' % (R(sl, 6), t[5], sr(S_WS)))
        p('buffer_load_dword %s, %s, %s, s16 offen offset:2048 sc1' % (R(sl, 4), t[5], sr(S_WS)))
        p.stamp(16)
        for d in range(8):
            k = (d % 2) * 4
            A0, A1, B0_, B1 = [R(u8, k + i) for i in range(4)]
            unpack(p, A0, A1, R(raw, d)); unpack(p, B0_, B1, R(raw, 8 + d))
            p('v_pk_add_f32 %s, %s, %s' % (R(u8, k, 2), R(u8, k, 2), R(u8, k + 2, 2)))
            p('v_pk_add_f32 %s, %s, %s' % (R(xf, 2 * d, 2), R(xf, 2 * d, 2), R(u8, k, 2)))
            rb2(p, R(xf, 2 * d), R(xf, 2 * d + 1), t[d % 2])
        mean, var, s3v, rcp = R(fin, 4), R(fin, 5), R(fin, 6), R(fin, 7)
        c01 = R(u8, 4, 2)
        p('v_pk_add_f32 %s, %s, %s' % (a01, R(xf, 0, 2), R(xf, 2, 2)))
        p('v_pk_mul_f32 %s, %s, %s' % (b01, R(xf, 0, 2), R(xf, 0, 2)))
        p('v_pk_mul_f32 %s, %s, %s' % (c01, R(xf, 0, 2), R(uf, 0, 2)))
        p('v_pk_fma_f32 %s, %s, %s, %s' % (b01, R(xf, 2, 2), R(xf, 2, 2), b01))
        p('v_pk_fma_f32 %s, %s, %s, %s' % (c01, R(xf, 2, 2), R(uf, 2, 2), c01))
        for d in range(2, 8):
            p('v_pk_add_f32 %s, %s, %s' % (a01, a01, R(xf, 2 * d, 2)))
            p('v_pk_fma_f32 %s, %s, %s, %s' % (b01, R(xf, 2 * d, 2), R(xf, 2 * d, 2), b01))
            p('v_pk_fma_f32 %s, %s, %s, %s' % (c01, R(xf, 2 * d, 2), R(uf, 2 * d, 2), c01))
        p('v_add_f32 %s, %s, %s' % (mean, a0, a1)); p('v_add_f32 %s, %s, %s' % (var, b0, b1)); p('v_add_f32 %s, %s, %s' % (s3v, R(u8, 4), R(u8, 5)))
        for n in (1, 2, 4, 8):
            ror_add(p, mean, n); ror_add(p, var, n); ror_add(p, s3v, n)
        xor16_add(p, mean, a0); xor16_add(p, var, a1); xor16_add(p, s3v, b0)
        xor32_add(p, mean, a0); xor32_add(p, var, a1); xor32_add(p, s3v, b0)
        p('v_mul_f32 %s, 0x%x, %s' % (mean, f2u(1.0 / 1024), mean))
        p('v_mul_f32 %s, 0x%x, %s' % (var, f2u(1.0 / 1024), var))
        p('v_fma_f32 %s, -%s, %s, %s' % (var, mean, mean, var))
        p('v_max_f32 %s, 0, %s' % (var, var))
        p('v_fma_f32 %s, -%s, %s, %s' % (s3v, mean, usum, s3v))
        p('v_add_f32 %s, 0x%x, %s' % (a0, f2u(1e-5), var))
        p('v_rsq_f32 %s, %s' % (a0, a0))
        p('v_fma_f32 %s, %s, %s, %s' % (R(gr, 3), s3v, a0, b0v))
        sd = s3v
        ln_scalars(p, mean, var, sd, rcp)
        p('v_mov_b32 %s, %s' % (R(gr, 1), mean))
        p('v_mov_b32 %s, %s' % (R(gr, 2), sd))
        p('v_ashrrev_i32 %s, 31, %s' % (t[0], R(gr, 3)))
        p('v_or_b32 %s, 0x80000000, %s' % (t[0], t[0]))
        p('v_xor_b32 %s, %s, %s' % (R(gr, 0), R(gr, 3), t[0]))
        p('v_and_b32 %s, 0xfffff800, %s' % (R(gr, 0), R(gr, 0)))
        p('v_max_u32 %s, 0x800, %s' % (R(gr, 0), R(gr, 0)))
        p('s_sub_u32 s16, 2047, s14')
        p('v_or_b32 %s, s16, %s' % (R(gr, 0), R(gr, 0)))
        p('s_lshl_b32 s16, s3, 4'); p('s_add_u32 s16, s16, %d' % L_KEY)
        p('v_mov_b32 %s, s16' % t[0])
        p('ds_write_b128 %s, %s' % (t[0], R(gr, 0, 4)))
        p('s_waitcnt lgkmcnt(0)')
        p('s_barrier')
        def best_of(ldsoff, n):
            p('v_and_b32 %s, %d, %s' % (t[0], n - 1, lane))
            p('v_lshlrev_b32 %s, 4, %s' % (t[0], t[0])); p('v_add_u32 %s, %d, %s' % (t[0], ldsoff, t[0]))
            p('ds_read_b32 %s, %s' % (a0, t[0]))
            p('v_mov_b32 %s, %s' % (a1, a0))
            for k in ((1, 2, 4) if n == 8 else (1, 2)): ror_add(p, a1, k, 'v_max_u32')
            p('v_cmp_eq_u32 vcc, %s, %s' % (a0, a1))
            p('s_ff1_i32_b64 s16, vcc')
            p('s_lshl_b32 s16, s16, 4'); p('s_add_u32 s16, s16, %d' % ldsoff)
            p('v_mov_b32 %s, s16' % t[0])
            p('ds_read_b128 %s, %s' % (R(gr, 0, 4), t[0]))
        best_of(L_KEY, 8)
        p('s_lshl_b32 s16, s2, 4'); p('s_add_u32 s16, s16, 0x%x' % WS_KEY)
        p('s_cmp_eq_u32 s3, 0'); p('s_cselect_b32 s16, s16, 0x%x' % OOB)
        p('v_mov_b32 %s, 0' % t[1])
        p('s_mov_b64 exec, 1')
        p('buffer_store_dwordx4 %s, %s, %s, s16 offen sc1' % (R(gr, 0, 4), t[1], sr(S_WS)))
        p('s_mov_b64 exec, -1')
        if not A_ and WD_AT == -2: wd_loads(p)
        if not A_ and WD_AT == -3: wd_loads(p, (2, 3))
        p.stamp(17)
        for hf in range(2):
            X = [R(raw, i) for i in range(8)]
            c1 = [R(raw, 8 + i) for i in range(8)]
            for i in range(8): p('v_sub_f32 %s, %s, %s' % (X[i], R(xf, 8 * hf + i), mean))
            for i in range(0, 8, 2): rb2(p, X[i], X[i + 1], t[0])
            for i in range(8): p('v_mul_f32 %s, %s, %s' % (c1[i], X[i], rcp))
            for i in range(8): p('v_fma_f32 %s, -%s, %s, %s' % (X[i], c1[i], sd, X[i]))
            for i in range(8): p('v_fma_f32 %s, %s, %s, %s' % (X[i], X[i], rcp, c1[i]))
            for i in range(0, 8, 2): rb2(p, X[i], X[i + 1], t[0])
            for op, mo in (('v_pk_mul_f32', MC1), ('v_pk_add_f32', MSB), ('v_pk_mul_f32', MGB)):
                for d in range(4): unpack(p, c1[2 * d], c1[2 * d + 1], R(MOD, mo + 4 * hf + d))
                for d in range(4): p('%s %s, %s, %s' % (op, R(raw, 2 * d, 2), R(raw, 2 * d, 2), R(raw, 8 + 2 * d, 2)))
                for i in range(0, 8, 2): rb2(p, X[i], X[i + 1], t[0])
            for d in range(4): p('v_pk_add_f32 %s, %s, %s' % (R(raw, 2 * d, 2), R(raw, 2 * d, 2), R(xf, 8 * hf + 2 * d, 2)))
            for d in range(4): p('v_cvt_pk_bf16_f32 %s, %s, %s' % (R(xf, 8 * hf + d), X[2 * d], X[2 * d + 1]))
        if A_:
            p('v_lshlrev_b32 %s, 4, %s' % (t[2], tid))
            p('s_mov_b32 s16, 0x%x' % WS_KEY)
            backoff(p, 'w')
            poll(p, 'w', lambda: p('buffer_load_dwordx4 %s, %s, %s, s16 offen sc1' % (R(gr, 0, 4), t[2], sr(S_WS))),
                 lambda: p('v_cmp_eq_u32 vcc, 0, %s' % R(gr, 0)))
            p('v_mov_b32 %s, %s' % (a0, R(gr, 0)))
            for n in (1, 2, 4, 8): ror_add(p, a0, n, 'v_max_u32')
            xor16_add(p, a0, a1, 'v_max_u32'); xor32_add(p, a0, a1, 'v_max_u32')
            p('v_cmp_eq_u32 vcc, %s, %s' % (a0, R(gr, 0)))
            p('s_lshl_b32 s16, s3, 4'); p('s_add_u32 s16, s16, %d' % L_BEST)
            p('v_mov_b32 %s, s16' % t[0])
            p('s_and_saveexec_b64 s[62:63], vcc')
            p('ds_write_b128 %s, %s' % (t[0], R(gr, 0, 4)))
            p('s_mov_b64 exec, s[62:63]')
            p('s_waitcnt lgkmcnt(0)')
        p('s_barrier')
        best_of(L_BEST, 4)
        p('v_and_b32 %s, 0x7ff, %s' % (a0, R(gr, 0)))
        p('v_sub_u32 %s, 2047, %s' % (a0, a0))
        p('v_readfirstlane_b32 s12, %s' % a0)
        p('v_rcp_f32 %s, %s' % (R(sl, 3), R(gr, 2)))
        p.stamp(18)
        p('s_lshr_b32 s18, s12, 4'); p('s_lshl_b32 s18, s18, 15'); p('s_and_b32 s19, s12, 15'); p('s_lshl_b32 s19, s19, 6')
        p('s_add_u32 s18, s18, s19'); p('s_add_u32 s18, s18, 0x%x' % WS_AP); p('s_add_u32 s19, s18, 0x400000')
        p('v_lshrrev_b32 %s, 4, %s' % (t[2], tid)); p('v_lshlrev_b32 %s, 10, %s' % (t[2], t[2]))
        p('v_and_b32 %s, 15, %s' % (t[3], tid)); p('v_lshl_add_u32 %s, %s, 2, %s' % (t[2], t[3], t[2]))
        p('s_lshl_b32 s13, s12, 11')
        p('buffer_load_dword %s, %s, %s, s18 offen sc1' % (R(sl, 0), t[2], sr(S_WS)))
        p('buffer_load_dword %s, %s, %s, s19 offen sc1' % (R(sl, 1), t[2], sr(S_WS)))
        p('buffer_load_dword %s, %s, %s, s13 offen' % (R(sl, 2), t[5], sr(S_E)))
        p('s_lshl_b32 s16, s14, 11'); p('s_cmp_lg_u32 s12, s14'); p('s_cselect_b32 s16, s16, 0x%x' % OOB)
        for hf in range(2):
            p('buffer_store_dwordx4 %s, %s, %s, s16 offen offset:%d sc1' % (R(xf, 8 * hf, 4), l16, sr(S_C), hf * 1024))
        p('s_lshl_b32 s16, s3, 13'); p('v_add_u32 %s, s16, %s' % (t[4], l16))
        p.wait_tag('gu')
        X = [R(fin, 0), R(fin, 1)]
        unpack(p, a0, a1, R(sl, 0)); unpack(p, b0, b1, R(sl, 1))
        p('v_pk_add_f32 %s, %s, %s' % (a01, a01, b01))
        unpack(p, b0, b1, R(sl, 2))
        p('v_pk_add_f32 %s, %s, %s' % (R(fin, 0, 2), b01, a01))
        rb2(p, X[0], X[1], a0)
        p('v_cvt_pk_bf16_f32 %s, %s, %s' % (R(sl, 0), X[0], X[1]))
        unpack(p, R(sl, 4), R(sl, 5), R(sl, 4)); unpack(p, R(sl, 6), R(sl, 7), R(sl, 6))
        ln_apply(p, X, 2, R(gr, 1), R(gr, 2), R(sl, 3), [R(sl, 4), R(sl, 5)], [R(sl, 6), R(sl, 7)], a0, a1)
        p('v_cvt_pk_bf16_f32 %s, %s, %s' % (R(sl, 1), X[0], X[1]))
        p('v_add_u32 %s, %d, %s' % (t[0], L_XS, t[5]))
        p('ds_write_b32 %s, %s' % (t[0], R(sl, 1)))
        p('ds_write_b32 %s, %s offset:2048' % (t[0], R(sl, 0)))
        p('s_waitcnt lgkmcnt(0)')
        p('s_barrier')
        p.stamp(23)
        for i in range(8): p('ds_read_b128 %s, %s offset:%d' % (R(w[i], 0, 4), t[4], i * 1024))
        p('s_and_b32 s16, s3, 3'); p('s_lshl_b32 s16, s16, 7'); p('s_and_b32 s17, s29, 3'); p('s_lshl_b32 s17, s17, 9')
        p('s_add_u32 s16, s16, s17'); p('s_add_u32 s16, s16, %d' % L_XS)
        p('v_lshrrev_b32 %s, 3, %s' % (t[0], lane)); p('v_lshlrev_b32 %s, 4, %s' % (t[0], t[0])); p('v_add_u32 %s, s16, %s' % (t[0], t[0]))
        x8 = sub(sl, 4)
        p('ds_read_b128 %s, %s' % (R(x8, 0, 4), t[0]))
        for i in range(8):
            hi, lo = R(u8, (i % 4) * 2), R(u8, (i % 4) * 2 + 1)
            if i % 2 == 0:
                p('v_lshlrev_b32 %s, 16, %s' % (hi, R(x8, i // 2))); p('v_and_b32 %s, 0xffff, %s' % (lo, R(x8, i // 2)))
            else:
                p('v_and_b32 %s, 0xffff0000, %s' % (hi, R(x8, i // 2))); p('v_lshrrev_b32 %s, 16, %s' % (lo, R(x8, i // 2)))
            for d in range(4):
                for h, xx in ((1, hi), (0, lo)):
                    if i == 0: p('v_dot2_f32_bf16 %s, %s, %s, 0' % (R(acc, 2 * d + h), R(w[i], d), xx))
                    else: p('v_dot2c_f32_bf16 %s, %s, %s' % (R(acc, 2 * d + h), R(w[i], d), xx))
        for e in range(4): p('v_permlane32_swap_b32 %s, %s' % (R(acc, e), R(acc, 4 + e)))
        for e in range(4): p('v_add_f32 %s, %s, %s' % (R(acc, e), R(acc, e), R(acc, 4 + e)))
        for e in range(2): p('v_permlane16_swap_b32 %s, %s' % (R(acc, e), R(acc, 2 + e)))
        for e in range(2): p('v_add_f32 %s, %s, %s' % (R(acc, e), R(acc, e), R(acc, 2 + e)))
        for e in range(2): ror_add(p, R(acc, e), 8)
        p('v_and_b32 %s, 7, %s' % (t[0], lane)); p('v_lshlrev_b32 %s, 5, %s' % (t[0], t[0]))
        p('v_lshrrev_b32 %s, 4, %s' % (t[1], lane)); p('v_lshl_add_u32 %s, %s, 3, %s' % (t[0], t[1], t[0]))
        p('s_lshl_b32 s16, s3, 8'); p('s_add_u32 s16, s16, %d' % L_GS)
        p('v_add_u32 %s, s16, %s' % (t[0], t[0]))
        p('ds_write_b64 %s, %s' % (t[0], R(acc, 0, 2)))
        p('s_lshr_b32 s16, s3, 2'); p('s_lshl_b32 s17, s16, 10'); p('s_add_u32 s17, s17, %d' % L_GS)
        p('v_lshlrev_b32 %s, 2, %s' % (t[1], lane)); p('v_add_u32 %s, s17, %s' % (t[0], t[1]))
        p('s_and_b32 s17, s29, 3'); p('s_lshl_b32 s17, s17, 1'); p('s_add_u32 s17, s17, s16'); p('s_mul_i32 s17, s17, %d' % (3584 * 4))
        p('s_lshr_b32 s16, s29, 2'); p('s_lshl_b32 s16, s16, 8'); p('s_add_u32 s17, s17, s16'); p('s_add_u32 s17, s17, 0x%x' % WS_GUP)
        p('s_and_b32 s16, s3, 3'); p('s_cmp_eq_u32 s16, 0'); p('s_cselect_b32 s17, s17, 0x%x' % OOB)
        p('s_cmp_lt_u32 s2, 224'); p('s_cselect_b32 s17, s17, 0x%x' % OOB)
        p('s_waitcnt lgkmcnt(0)')
        p('s_barrier')
        for b in range(4): p('ds_read_b32 %s, %s offset:%d' % (R(acc, b), t[0], b * 256))
        p('v_add_f32 %s, %s, %s' % (R(acc, 0), R(acc, 0), R(acc, 1))); p('v_add_f32 %s, %s, %s' % (R(acc, 2), R(acc, 2), R(acc, 3)))
        p('v_add_f32 %s, %s, %s' % (R(acc, 0), R(acc, 0), R(acc, 2)))
        p('v_or_b32 %s, 1, %s' % (R(acc, 0), R(acc, 0)))
        p('buffer_store_dword %s, %s, %s, s17 offen sc1' % (R(acc, 0), t[1], sr(S_WS)))
        p.stamp(19)
        if not A_:
            p('v_lshrrev_b32 %s, 4, %s' % (t[0], lane)); p('v_mul_u32_u24 %s, %d, %s' % (t[0], 2 * 3584 * 4, t[0]))
            p('v_and_b32 %s, 15, %s' % (t[1], lane)); p('v_lshl_add_u32 %s, %s, 2, %s' % (t[0], t[1], t[0]))
            p('s_lshl_b32 s16, s29, 6'); p('s_add_u32 s16, s16, 0x%x' % WS_GUP); p('s_add_u32 s17, s16, %d' % (3584 * 4))
            g_, u_ = R(acc, 0), R(acc, 1)
            def gl2():
                p('buffer_load_dword %s, %s, %s, s16 offen sc1' % (g_, t[0], sr(S_WS)))
                p('buffer_load_dword %s, %s, %s, s17 offen sc1' % (u_, t[0], sr(S_WS)))
            def gt2():
                p('v_min_u32 %s, %s, %s' % (R(acc, 2), g_, u_))
                p('v_cmp_eq_u32 vcc, 0, %s' % R(acc, 2))
                p('s_cmp_lt_u32 s2, 224'); p('s_cselect_b64 s[62:63], -1, 0'); p('s_and_b64 vcc, vcc, s[62:63]')
            backoff(p, 'gu')
            poll(p, 'gu', gl2, gt2)
            p.stamp(24)
            xor16_add(p, g_, R(acc, 2)); xor16_add(p, u_, R(acc, 3)); xor32_add(p, g_, R(acc, 2)); xor32_add(p, u_, R(acc, 3))
            rb2(p, g_, u_, R(acc, 2))
            silu(p, g_, R(acc, 2)); rb1(p, g_)
            p('v_mul_f32 %s, %s, %s' % (g_, g_, u_)); rb1(p, g_)
            p('s_sub_u32 s16, s3, 4'); p('s_lshl_b32 s16, s16, 2')
            for i in range(4):
                p('s_add_u32 s17, s16, %d' % i)
                p('v_readlane_b32 s%d, %s, s17' % (20 + i, g_))
                p('s_lshr_b32 s%d, s%d, 16' % (4 + i, 20 + i))
            y = raw
            for i in range(4):
                for hf in range(2):
                    for d in range(4):
                        for h, xx in ((1, 's%d' % (20 + i)), (0, 's%d' % (4 + i))):
                            dst = R(y, 8 * hf + 2 * d + h)
                            if i == 0: p('v_dot2_f32_bf16 %s, %s, %s, 0' % (dst, R(WD[2 * i + hf], d), xx))
                            else: p('v_dot2c_f32_bf16 %s, %s, %s' % (dst, xx, R(WD[2 * i + hf], d)))
            p('s_sub_u32 s16, s3, 4'); p('s_lshl_b32 s16, s16, 12'); p('s_add_u32 s16, s16, %d' % L_YS)
            p('v_lshlrev_b32 %s, 5, %s' % (t[0], lane)); p('v_add_u32 %s, s16, %s' % (t[0], t[0]))
            for hf in range(2):
                for k in range(2): p('ds_write_b128 %s, %s offset:%d' % (t[0], R(y, 8 * hf + 4 * k, 4), hf * 2048 + k * 16))
            p('s_waitcnt lgkmcnt(0)')
        p('s_barrier')
        p('v_lshlrev_b32 %s, 3, %s' % (t[0], tid)); p('v_add_u32 %s, %d, %s' % (t[1], L_YS, t[0]))
        for b in range(4): p('ds_read_b64 %s, %s offset:%d' % (R(acc, 2 * b, 2), t[1], b * 4096))
        p('v_pk_add_f32 %s, %s, %s' % (R(acc, 0, 2), R(acc, 0, 2), R(acc, 2, 2)))
        p('v_pk_add_f32 %s, %s, %s' % (R(acc, 4, 2), R(acc, 4, 2), R(acc, 6, 2)))
        p('v_pk_add_f32 %s, %s, %s' % (R(acc, 0, 2), R(acc, 0, 2), R(acc, 4, 2)))
        p('v_or_b32 %s, 1, %s' % (R(acc, 0), R(acc, 0))); p('v_or_b32 %s, 1, %s' % (R(acc, 1), R(acc, 1)))
        p('s_lshl_b32 s16, s29, 12'); p('s_add_u32 s16, s16, 0x%x' % WS_YP)
        p('s_cmp_lt_u32 s2, 224'); p('s_cselect_b32 s16, s16, 0x%x' % OOB)
        p('buffer_store_dwordx2 %s, %s, %s, s16 offen sc1' % (R(acc, 0, 2), t[0], sr(S_WS)))
        p.stamp(25)
        p('s_cmp_lt_u32 s2, 224')
        p('s_cbranch_scc1 %s_end' % name)
        pp = raw
        p('s_sub_u32 s16, s2, 224'); p('s_lshl_b32 s17, s16, 7'); p('s_add_u32 s17, s17, 0x%x' % WS_YP)
        p('v_lshrrev_b32 %s, 3, %s' % (t[0], tid)); p('v_lshlrev_b32 %s, 12, %s' % (t[0], t[0]))
        p('v_and_b32 %s, 7, %s' % (t[1], tid)); p('v_lshl_add_u32 %s, %s, 4, %s' % (t[0], t[1], t[0]))
        p('v_cmp_gt_u32 vcc, 256, %s' % tid)
        p('v_bfrev_b32 %s, -2' % t[1])
        p('v_cndmask_b32 %s, %s, %s, vcc' % (t[1], t[1], t[0]))
        p('v_mov_b32 %s, 0' % t[3])
        p('v_cndmask_b32 %s, 1, %s, vcc' % (t[2], t[3]))
        p('s_lshl_b32 s18, s16, 6')
        p('v_and_b32 %s, 31, %s' % (t[3], lane)); p('v_lshlrev_b32 %s, 1, %s' % (t[3], t[3])); p('v_add_u32 %s, s18, %s' % (t[3], t[3]))
        p('s_mov_b32 s19, 0x%x' % (WS_MODB + 6144))
        p('buffer_load_ushort %s, %s, %s, s19 offen sc1' % (R(fin, 3), t[3], sr(S_WS)))
        p('v_add_u32 %s, %d, %s' % (t[4], L_XS, t[3]))
        p('ds_read_u16 %s, %s' % (R(fin, 4), t[4])); p('ds_read_u16 %s, %s offset:2048' % (R(fin, 5), t[4]))
        rsel = R(fin, 2)
        p('v_mov_b32 %s, %s' % (rsel, R(gr, 3)))
        rb1(p, rsel)
        p('v_mul_f32 %s, 0x%x, %s' % (rsel, f2u(-LOG2E), rsel))
        p('v_exp_f32 %s, %s' % (rsel, rsel))
        p('v_add_f32 %s, 1.0, %s' % (rsel, rsel))
        p('v_rcp_f32 %s, %s' % (rsel, rsel))
        rb1(p, rsel)
        for r_ in (R(fin, 3), R(fin, 4), R(fin, 5)): p('v_lshlrev_b32 %s, 16, %s' % (r_, r_))
        mn = R(fin, 6)
        def l2():
            for k in range(4):
                p('s_add_u32 s19, s17, 0x%x' % (k * 64 * 4096))
                p('buffer_load_dwordx4 %s, %s, %s, s19 offen sc1' % (R(pp, 4 * k, 4), t[1] if k == 3 else t[0], sr(S_WS)))
        def t2():
            q_ = [R(pp, i) for i in range(16)]
            p('v_min3_u32 %s, %s, %s, %s' % (mn, q_[12], q_[13], q_[14])); p('v_min_u32 %s, %s, %s' % (mn, mn, q_[15]))
            p('v_or_b32 %s, %s, %s' % (mn, mn, t[2]))
            for k in range(0, 12, 2): p('v_min3_u32 %s, %s, %s, %s' % (mn, mn, q_[k], q_[k + 1]))
            p('v_cmp_eq_u32 vcc, 0, %s' % mn)
        backoff(p, 'y')
        poll(p, 'y', l2, t2)
        for st in (8, 4):
            for k in range(0, st, 2): p('v_pk_add_f32 %s, %s, %s' % (R(pp, k, 2), R(pp, k, 2), R(pp, st + k, 2)))
        for e in range(4): ror_add(p, R(pp, e), 8)
        for e in range(2): p('v_permlane32_swap_b32 %s, %s' % (R(pp, e), R(pp, 2 + e)))
        for e in range(2): p('v_add_f32 %s, %s, %s' % (R(pp, e), R(pp, e), R(pp, 2 + e)))
        p('v_permlane16_swap_b32 %s, %s' % (R(pp, 0), R(pp, 1)))
        p('v_add_f32 %s, %s, %s' % (R(pp, 0), R(pp, 0), R(pp, 1)))
        p('v_and_b32 %s, 7, %s' % (t[0], lane)); p('v_lshlrev_b32 %s, 4, %s' % (t[0], t[0]))
        p('v_lshrrev_b32 %s, 4, %s' % (t[1], lane)); p('v_lshl_add_u32 %s, %s, 2, %s' % (t[0], t[1], t[0]))
        p('s_lshl_b32 s19, s3, 7'); p('s_add_u32 s19, s19, %d' % L_RS)
        p('v_add_u32 %s, s19, %s' % (t[0], t[0]))
        p('ds_write_b32 %s, %s' % (t[0], R(pp, 0)))
        p('v_and_b32 %s, 31, %s' % (t[0], lane)); p('v_lshlrev_b32 %s, 2, %s' % (t[0], t[0])); p('v_add_u32 %s, %d, %s' % (t[0], L_RS, t[0]))
        p('s_waitcnt lgkmcnt(0)')
        p('s_barrier')
        p('s_cmp_lg_u32 s3, 0')
        p('s_cbranch_scc1 %s_end' % name)
        for i in range(8): p('ds_read_b32 %s, %s offset:%d' % (R(pp, i), t[0], i * 128))
        for st in (4, 2, 1):
            for k in range(st): p('v_add_f32 %s, %s, %s' % (R(pp, k), R(pp, k), R(pp, st + k)))
        y = R(pp, 0)
        rb1(p, y)
        p('v_mul_f32 %s, %s, %s' % (y, y, rsel)); rb1(p, y)
        p('v_add_f32 %s, %s, %s' % (y, y, R(fin, 4))); rb1(p, y)
        p('v_mul_f32 %s, %s, %s' % (y, y, R(fin, 3))); rb1(p, y)
        p('v_add_f32 %s, %s, %s' % (y, y, R(fin, 5)))
        p('v_cvt_pk_bf16_f32 %s, %s, %s' % (y, y, y))
        p('s_mov_b64 exec, 0xffffffff')
        p('buffer_store_short %s, %s, %s, s13 offen sc1' % (y, t[3], sr(S_C)))

    def role_prog(role):
        front(role)
        if stop == 'front': return
        phase1(role)
        phase2(role)
        if stop == 'p2': return
        phase3(role)
        tail(role)
    p.alt_begin()
    role_prog('A')
    p('s_branch %s_end' % name)
    p.alt_next()
    p.label('%s_roleB' % name)
    role_prog('B')
    p.alt_end()
    p.label('%s_end' % name)
    p('s_endpgm')
    body = p.emit()
    extra = ''.join(z.emit() for z in rare)
    return body, extra, dict(vgpr=256, accum=256, sgpr=80, lds=163840, block=512, grid=256)
```

```python
from asmdsl import Prog, Inst
from lay2 import *
from k2 import RA, R, Sched
from small import silu, rb1, rb2, unpack, ror_add, xor16_add, xor32_add, f2u, ln_scalars, ln_apply
import math

SPIN_MAX = 1 << 18
LOG2E = 1.4426950408889634
PTR = dict(x=32, k=34, v=36, wq=38, wo=40, bx=42, wr=44, wg=46, wu=48, wd=50, c=52, wmod=54, out=56, dbg=58, ws=60)
OOB = 0x7ffffff0
RING0 = 0; RING1 = 65536; NSL = 6
S_WS, S_A, S_B, S_C, S_D, S_E = 8, 4, 64, 68, 72, 76

def sr(b): return 's[%d:%d]' % (b, b + 3)

def gen_mega(name, stop=None, D1=4, D2=4, D3=4, PO=5, NH=3, prioB=False, gu_at=(1, 7), nwq0=3, MP_AT=(94, 10, 44), WD_AT=6, OF_AT=(180, 255, 1040, 1090), P3_AT=(196, 225), OST_SP=1, mc_comp=True, NWQ=4, CPF1=None, LMF=False, QCONV=False, P3B=None, P1B=(0, 0), P2B=0, OST2_LATE=False, WQ_LATE=False, MODL_ON=False, modsc=' sc1', ROT3=None, AP_WG=False, ROT=None, P3D=(1, 7), P3O=(2, 6), GU3_AT=None, wopf_pv=None, SPF=None, p1pf=None, p1st=None, dmaA=False, osc=' sc1', hsc=' sc1', kvsc=' sc1', wlin=False, p3st=None, do_gu=True, do_mc=True, do_wd=True, wopf=None, mf_at=(16, 20, 21, 23), qkst=None, pvst=None, slp=None, slp_loop=0, dma_split=False):
    slp = slp or {}
    def backoff(q, k):
        n = slp.get(k, 0)
        while n > 0:
            q('s_sleep %d' % min(n, 127)); n -= 127

    p = Prog()
    rare = []
    V = RA('v', 0, 256)
    v_tid = V.alloc(1); v_lane = V.alloc(1); v_l16 = V.alloc(1)
    v_wqoff = V.alloc(1); v_tr = V.alloc(1); v_tr2 = V.alloc(1); v_wq2 = V.alloc(1); v_hoff = V.alloc(1); v_kvoff = V.alloc(1)
    v_l = [V.alloc(1), V.alloc(1)]; v_xv = V.alloc(1)
    x4 = V.alloc(4, 4)
    v_t = [V.alloc(1) for _ in range(6)]
    PR = V.alloc(128, 4); QF = V.alloc(32, 4); SS = V.alloc(32, 4); negm = V.alloc(8, 4)
    NRA = 6
    FR = V.alloc(4 * NRA, 4); SP = V.alloc(8, 4)
    assert V.n <= 256
    def sub(reg, off): return (reg[0], reg[1] + off)
    fr = [sub(FR, 4 * i) for i in range(NRA)]
    qf = [sub(QF, 4 * i) for i in range(8)]
    S = [sub(SS, 0), sub(SS, 16)]
    tid, lane, l16 = R(v_tid), R(v_lane), R(v_l16)
    t = [R(x) for x in v_t]

    def mk_srd(q, base, ptr, size):
        q('s_mov_b64 s[%d:%d], s[%d:%d]' % (base, base + 1, PTR[ptr], PTR[ptr] + 1))
        q('s_mov_b32 s%d, 0x%x' % (base + 2, size)); q('s_mov_b32 s%d, 0x20000' % (base + 3))
    cnt = [0]
    def poll(q, tag, loads, test):
        cnt[0] += 1
        lab = '%s_%s%d' % (name, tag, cnt[0])
        q('s_mov_b32 s27, 0')
        q.loop_begin(); q.label(lab + 'p')
        loads(); test()
        if slp_loop: q('s_cbranch_vccz %sg' % lab); q('s_sleep %d' % slp_loop)
        q('s_add_u32 s27, s27, 1')
        q('s_cmp_ge_u32 s27, %d' % SPIN_MAX)
        q('s_cbranch_scc1 %sg' % lab)
        q('s_cbranch_vccnz %sp' % lab)
        q.loop_end()
        q.label(lab + 'g')
    def rare_poll(q, tag, test, loads, flush=True):
        cnt[0] += 1
        lab = '%s_%s%d' % (name, tag, cnt[0])
        test(q)
        q('s_cbranch_vccnz %sr' % lab)
        q.label(lab + 'b')
        z = Prog()
        z.label(lab + 'r')
        if flush: z.flush()
        z('s_mov_b32 s27, 0')
        z.loop_begin(); z.label(lab + 'p')
        loads(z); test(z)
        z('s_add_u32 s27, s27, 1')
        z('s_cmp_ge_u32 s27, %d' % SPIN_MAX)
        z('s_cbranch_scc1 %sg' % lab)
        z('s_cbranch_vccnz %sp' % lab)
        z.loop_end()
        z.label(lab + 'g'); z.flush()
        z('s_branch %sb' % lab)
        rare.append(z)

    p('s_cmp_ge_u32 s2, 256')
    p('s_cbranch_scc1 %s_end' % name)
    p('s_load_dwordx4 s[56:59], s[0:1], 96')
    p('s_load_dwordx2 s[60:61], s[0:1], 112')
    p('s_load_dwordx8 s[48:55], s[0:1], 64')
    p('s_load_dwordx16 s[32:47], s[0:1], 0')
    p('s_memrealtime s[62:63]')
    p('v_lshrrev_b32 %s, 6, %s' % (t[0], tid))
    p('v_and_b32 %s, 63, %s' % (lane, tid))
    p('v_readfirstlane_b32 s3, %s' % t[0])
    p('v_lshlrev_b32 %s, 4, %s' % (l16, lane))
    p('s_and_b32 s12, s2, 3'); p('s_lshl_b32 s12, s12, 3'); p('s_bfe_u32 s13, s2, 0x30003'); p('s_add_u32 s12, s12, s13')
    p('s_bfe_u32 s13, s2, 0x10002'); p('s_lshl_b32 s13, s13, 2'); p('s_lshr_b32 s14, s2, 6'); p('s_add_u32 s13, s13, s14')
    p('v_bfe_u32 %s, %s, 2, 2' % (t[0], lane))
    p('v_lshrrev_b32 %s, 4, %s' % (t[1], lane))
    p('v_and_b32 %s, 3, %s' % (t[2], lane))
    p('v_lshlrev_b32 %s, 6, %s' % (t[3], t[1]))
    p('v_lshl_add_u32 %s, %s, 4, %s' % (t[3], t[2], t[3]))
    p('v_lshl_add_u32 %s, %s, 13, %s' % (R(v_wqoff), t[0], t[3]))
    p('s_and_b32 s14, s3, 1'); p('s_lshl_b32 s14, s14, 5')
    p('v_xor_b32 %s, s14, %s' % (R(v_wqoff), R(v_wqoff)))
    p('v_lshlrev_b32 %s, 11, %s' % (R(v_tr), t[1]))
    p('v_lshl_add_u32 %s, %s, 6, %s' % (R(v_tr), t[0], R(v_tr)))
    p('v_lshl_add_u32 %s, %s, 3, %s' % (R(v_tr), t[2], R(v_tr)))
    p('v_and_b32 %s, 1, %s' % (t[4], t[1])); p('v_lshlrev_b32 %s, 5, %s' % (t[4], t[4]))
    p('v_sub_u32 %s, %s, %s' % (R(v_tr2), R(v_tr), t[4]))
    p('v_add_u32 %s, %s, %s' % (R(v_tr), R(v_tr), t[4]))
    p('s_lshl_b32 s14, s13, 3'); p('s_add_u32 s14, s14, s3'); p('s_lshl_b32 s14, s14, 16')
    p('v_add_u32 %s, s14, %s' % (R(v_hoff), l16))
    p('s_cmp_ge_u32 s3, 4')
    p('s_cbranch_scc1 %s_roleB' % name)

    def wq_slot(s):
        k = s % NWQ
        return RING0 + k * 16384 if k < 4 else RING1 + k * 16384
    def dma_wq(s):
        out = []
        for i in range(2):
            if ROT:
                if i == 0: out.append(('s_add_u32 s22, s25, 0x%x\ns_and_b32 s22, s22, 0x7fffff\ns_add_u32 s22, s22, s19' % (s * 64 * 8192), None))
                else: out.append(('s_add_u32 s22, s22, 32768', None))
            else:
                out.append(('s_add_u32 s22, s19, 0x%x' % (s * 64 * 8192 + i * 32768), None))
            out.append(('s_add_u32 m0, s20, 0x%x' % (wq_slot(s) + i * 1024), None))
            out.append(('buffer_load_dwordx4 %s, %s, s22 offen lds' % (R(v_wqoff), sr(S_A)), 'wq%d' % s))
        return out
    def slot(c): return RING1 + (c % NSL) * 16384
    W0 = 18
    def dma_chunk(c):
        out = []
        for i in range(2):
            if 2 <= c < 18:
                off = ((c - 2) * 16384 if c < 10 else (WS_VF - WS_KF) + (c - 10) * 16384) + i * 1024
                out.append(('s_add_u32 s22, s21, 0x%x' % off, None))
                out.append(('s_add_u32 m0, s20, 0x%x' % (slot(c) + i * 1024), None))
                out.append(('buffer_load_dwordx4 %s, %s, s22 offen%s lds' % (l16, sr(S_WS), kvsc), 'ch%d' % c))
            elif c < 2:
                out.append(('s_add_u32 s22, s14, 0x%x' % ((c * 64 + 4 * i) * 12288), None))
                out.append(('s_add_u32 m0, s20, 0x%x' % (slot(c) + i * 1024), None))
                out.append(('buffer_load_dwordx4 %s, %s, s22 offen lds' % (R(v_wq2), sr(S_E)), 'ch%d' % c))
            else:
                s_ = c - W0
                if ROT3:
                    if i == 0: out.append(('s_lshl_b32 s22, s62, 6\ns_add_u32 s22, s22, 0x%x\ns_and_b32 s22, s22, 0x3fffff\ns_add_u32 s22, s22, s24\ns_add_u32 s22, s22, 0x%x' % ((s_ % 8) * 0x80000, (s_ // 8) * 32 * 2048), None))
                    else: out.append(('s_add_u32 s22, s22, 8192', None))
                else:
                    out.append(('s_add_u32 s22, s24, 0x%x' % (((s_ % 8) * 256 + (s_ // 8) * 32) * 2048 + i * 8192), None))
                out.append(('s_add_u32 m0, s20, 0x%x' % (slot(c) + i * 1024), None))
                out.append(('buffer_load_dwordx4 %s, %s, s22 offen lds' % (R(v_wqoff), sr(S_A)), 'ch%d' % c))
        return out

    acc3 = [[sub(PR, 64 + (n * 2 + qs) * 4) for qs in range(2)] for n in range(8)]
    OB = [[sub(PR, (k * 2 + qs) * 4) for qs in range(2)] for k in range(PO)]
    assert PO * 8 <= 64
    v_oo = v_wq2
    def oload(s, qs):
        return [('s_add_u32 s23, s62, 0x%x\ns_and_b32 s23, s23, 0xffff\ns_or_b32 s23, s23, 0x%x' % ((s % 8) * 8192, qs * 131072) if qs else
                 's_add_u32 s23, s62, 0x%x\ns_and_b32 s23, s23, 0xffff' % ((s % 8) * 8192)) if ROT3 else 's_mov_b32 s23, 0x%x' % (qs * 131072 + (s % 8) * 8192),
                'buffer_load_dwordx4 %s, %s, %s, s23 offen offset:%d%s' % (R(OB[s % PO][qs], 0, 4), R(v_oo), sr(S_WS), (s // 8) * 1024, osc)]
    of2 = R(x4, 0)
    def of_load(q): q('buffer_load_dword %s, %s, %s, s17k offen sc1'.replace('s17k', 's19') % (of2, R(x4, 1), sr(S_WS)))
    def p3_setup(q, ks):
        q('s_bfe_u32 s30, s2, 0x20001'); q('s_lshl_b32 s30, s30, 2'); q('s_bfe_u32 s17, s2, 0x20003'); q('s_add_u32 s30, s30, s17')
        q('s_lshr_b32 s31, s2, 5')
        q('s_and_b32 s17, s3, 3'); q('s_lshl_b32 s19, s30, 2'); q('s_add_u32 s19, s19, s17')
        q('s_and_b32 s16, s2, 1')
        q('s_lshl_b32 s17, s19, 18'); q('s_lshl_b32 s23, s16, 16'); q('s_add_u32 s17, s17, s23'); q('s_add_u32 s17, s17, 0x%x' % (WS_O + ks * 4096))
        q('v_add_u32 %s, s17, %s' % (R(v_oo), l16))
        q('s_lshl_b32 s19, s19, 7'); q('s_lshl_b32 s23, s16, 6'); q('s_add_u32 s19, s19, s23'); q('s_add_u32 s19, s19, 0x%x' % WS_OFLAG)
        q('v_and_b32 %s, 15, %s' % (R(x4, 1), lane)); q('v_lshlrev_b32 %s, 2, %s' % (R(x4, 1), R(x4, 1)))
        of_load(q)
    def p3_addr(ks):
        o = []
        o.append('v_bfe_u32 %s, %s, 2, 2' % (t[2], lane)); o.append('v_lshrrev_b32 %s, 4, %s' % (t[3], lane)); o.append('v_and_b32 %s, 3, %s' % (t[1], lane))
        o.append('v_lshlrev_b32 %s, 11, %s' % (t[0], t[3]))
        o.append('v_lshl_add_u32 %s, %s, 6, %s' % (t[0], t[2], t[0]))
        o.append('v_lshl_add_u32 %s, %s, 3, %s' % (t[0], t[1], t[0]))
        o.append('v_add_u32 %s, 0x%x, %s' % (t[0], 0x10000 + ks * 8192, t[0]))
        o.append('v_and_b32 %s, 1, %s' % (t[3], t[3])); o.append('v_lshlrev_b32 %s, 5, %s' % (t[3], t[3]))
        o.append('v_sub_u32 %s, %s, %s' % (R(v_tr2), t[0], t[3]))
        o.append('v_add_u32 %s, %s, %s' % (R(v_tr), t[0], t[3]))
        o.append('v_add_u32 %s, 0x10000, %s' % (R(v_hoff), R(v_tr))); o.append('v_add_u32 %s, 0x10000, %s' % (R(v_kvoff), R(v_tr2)))
        return o

    CSF = [sub(PR, 112 + 4 * k) for k in range(4)]; MACC = sub(PR, 80); MFR = [sub(PR, 64 + 4 * k) for k in range(4)]; v_m = v_xv
    assert NWQ == 4 and NH == 3
    def m_setup(q):
        mk_srd(q, S_E, 'wmod', 1024 * 6144 * 2)
        q('v_bfe_u32 %s, %s, 2, 2' % (t[4], lane)); q('v_lshlrev_b32 %s, 12, %s' % (t[4], t[4]))
        q('v_add_u32 %s, %s, %s' % (R(v_wq2), R(v_wqoff), t[4]))
        q('s_lshr_b32 s16, s2, 5'); q('s_lshl_b32 s16, s16, 7'); q('s_lshl_b32 s17, s3, 3'); q('s_add_u32 s16, s16, s17'); q('s_mul_i32 s14, s16, 12288')
        q('s_and_b32 s16, s2, 31'); q('s_lshl_b32 s16, s16, 8'); q('s_add_u32 s14, s14, s16'); q('s_add_u32 s14, s14, 4096')
    def m_cs(q):
        q('v_lshrrev_b32 %s, 4, %s' % (t[4], lane)); q('v_lshlrev_b32 %s, 4, %s' % (t[5], t[4]))
        q('s_lshl_b32 s16, s2, 8'); q('s_add_u32 s16, s16, 0x%x' % WS_CSW)
        for k in range(4): q('buffer_load_dwordx4 %s, %s, %s, s16 offen offset:%d sc1' % (R(CSF[k], 0, 4), t[5], sr(S_WS), k * 64))
        vm = R(v_m)
        q('v_lshlrev_b32 %s, 11, %s' % (vm, t[4]))
        q('v_xor_b32 %s, s3, %s' % (t[4], t[4])); q('v_and_b32 %s, 1, %s' % (t[4], t[4])); q('v_lshl_add_u32 %s, %s, 5, %s' % (vm, t[4], vm))
        q('v_bfe_u32 %s, %s, 2, 2' % (t[4], lane)); q('v_lshl_add_u32 %s, %s, 6, %s' % (vm, t[4], vm))
        q('v_and_b32 %s, 3, %s' % (t[4], lane)); q('v_lshl_add_u32 %s, %s, 3, %s' % (vm, t[4], vm))
        q('s_lshr_b32 s16, s3, 1'); q('s_lshl_b32 s16, s16, 8'); q('s_add_u32 s16, s16, %d' % slot(0))
        q('v_add_u32 %s, s16, %s' % (vm, vm))
    def m_reads(q):
        for k in range(4):
            off = (k // 2) * 16384 + (k % 2) * 8192
            q('ds_read_b64_tr_b16 %s, %s offset:%d' % (R(MFR[k], 0, 2), R(v_m), off))
            q('ds_read_b64_tr_b16 %s, %s offset:%d' % (R(MFR[k], 2, 2), R(v_m), off + 1024))
    def m_mfma(q):
        for k in range(4):
            q('v_mfma_f32_16x16x32_bf16 %s, %s, %s, %s' % (R(MACC, 0, 4), R(MFR[k], 0, 4), R(CSF[k], 0, 4), '0' if k == 0 else R(MACC, 0, 4)))
    def m_store(q):
        q('v_lshrrev_b32 %s, 4, %s' % (t[4], lane)); q('v_lshlrev_b32 %s, 4, %s' % (t[4], t[4]))
        q('s_lshr_b32 s16, s2, 5'); q('s_lshl_b32 s16, s16, 14'); q('s_and_b32 s17, s2, 31'); q('s_lshl_b32 s17, s17, 9'); q('s_add_u32 s16, s16, s17')
        q('s_lshl_b32 s17, s3, 6'); q('s_add_u32 s16, s16, s17'); q('s_add_u32 s16, s16, 0x%x' % WS_MODP)
        q('s_mov_b32 exec_lo, 0x10001'); q('s_mov_b32 exec_hi, 0x10001')
        q('buffer_store_dwordx4 %s, %s, %s, s16 offen sc1' % (R(MACC, 0, 4), t[4], sr(S_WS)), 'mst')
        q('s_mov_b64 exec, -1')
    def mc_pub(q):
        q('v_mov_b32 %s, s28' % t[4]); q('v_mov_b32 %s, 0' % t[5])
        q('s_lshl_b32 s16, s2, 2'); q('s_add_u32 s16, s16, 0x%x' % WS_MPFLAG)
        q('s_cmp_eq_u32 s3, 0'); q('s_cselect_b32 s16, s16, 0x%x' % OOB)
        q('s_mov_b64 exec, 1')
        q('buffer_store_dword %s, %s, %s, s16 offen sc1' % (t[4], t[5], sr(S_WS)))
        q('s_mov_b64 exec, -1')
    def mc_final(sc):
        mpf = R(SP, 0); mpv = R(SP, 1); va, vb = R(SP, 2), R(SP, 5); mpw = R(SP, 6)
        def mp_load(q):
            q('buffer_load_dword %s, %s, %s, s14 offen sc1' % (mpf, va, sr(S_WS)))
        def mp_issue(q):
            q('v_and_b32 %s, 7, %s' % (va, lane)); q('v_lshlrev_b32 %s, 7, %s' % (va, va))
            q('s_lshr_b32 s14, s2, 3'); q('s_lshl_b32 s14, s14, 2'); q('s_add_u32 s14, s14, 0x%x' % WS_MPFLAG)
            mp_load(q)
        sc.place(MP_AT[1], mp_issue)
        sc.place(MP_AT[2], lambda q: rare_poll(q, 'mp', lambda z: z('v_cmp_ne_u32 vcc, s28, %s' % mpf), mp_load))
        def mp_get(q):
            q('v_lshrrev_b32 %s, 4, %s' % (va, lane)); q('v_lshlrev_b32 %s, 14, %s' % (va, va))
            q('v_and_b32 %s, 15, %s' % (vb, lane)); q('v_lshl_add_u32 %s, %s, 2, %s' % (va, vb, va))
            q('s_lshl_b32 s14, s2, 6'); q('s_add_u32 s14, s14, 0x%x' % WS_MODP)
            q('buffer_load_dword %s, %s, %s, s14 offen sc1' % (mpv, va, sr(S_WS)))
            q('s_add_u32 s14, s14, 0x10000')
            q('buffer_load_dword %s, %s, %s, s14 offen sc1' % (mpw, va, sr(S_WS)))
        sc.place(MP_AT[2] + 1, mp_get)
        def mp_fin(q):
            q('v_add_f32 %s, %s, %s' % (mpv, mpv, mpw))
            xor16_add(q, mpv, va); xor32_add(q, mpv, va)
            rb1(q, mpv)
            q('s_lshr_b32 s14, s2, 6'); q('s_cmp_eq_u32 s14, 2'); q('s_cselect_b32 s14, 1.0, 0')
            q('v_add_f32 %s, s14, %s' % (mpv, mpv))
            q('v_cvt_pk_bf16_f32 %s, %s, %s' % (mpv, mpv, mpv))
            q('v_lshlrev_b32 %s, 1, %s' % (vb, vb))
            q('s_lshl_b32 s14, s2, 5'); q('s_add_u32 s14, s14, 0x%x' % WS_MODB)
            q('s_cmp_eq_u32 s3, 0'); q('s_cselect_b32 s14, s14, 0x%x' % OOB)
            q('s_mov_b64 exec, 0xffff')
            q('buffer_store_short %s, %s, %s, s14 offen sc1' % (mpv, vb, sr(S_WS)), 'mb')
            q('s_mov_b64 exec, -1')
        sc.place(MP_AT[2] + 24, mp_fin)
        def mp_flag(q):
            q.wait_tag('mb')
            q('v_mov_b32 %s, s28' % mpf); q('v_mov_b32 %s, 0' % mpv)
            q('s_lshl_b32 s14, s2, 2'); q('s_add_u32 s14, s14, 0x%x' % WS_MFLAG)
            q('s_cmp_eq_u32 s3, 0'); q('s_cselect_b32 s14, s14, 0x%x' % OOB)
            q('s_mov_b64 exec, 1')
            q('buffer_store_dword %s, %s, %s, s14 offen sc1' % (mpf, mpv, sr(S_WS)))
            q('s_mov_b64 exec, -1')
        sc.place(MP_AT[2] + 64, mp_flag)

    def spf(q, buf, nl, lo, hi):
        q('s_lshl_b32 s0x, s2, 3'.replace('s0x', 's16')); q('s_add_u32 s16, s16, s3'); q('s_mul_i32 s16, s16, %d' % (nl * 128))
        q('s_add_u32 s76, s%d, s16' % PTR[buf]); q('s_addc_u32 s77, s%d, 0' % (PTR[buf] + 1))
        for i in range(lo, hi): q.raw('s_load_dword s62, s[76:77], 0x%x' % (i * 128))
    def front(role):
        A_ = role == 'A'
        F = RA('v', PR[1], 256)
        w0 = F.alloc(4, 4); w1 = F.alloc(4, 4); xr = [F.alloc(4, 4), F.alloc(4, 4)]; xt = [F.alloc(4, 4), F.alloc(4, 4)]
        acc = F.alloc(8, 4); X = F.alloc(16, 4); cc = F.alloc(4, 4); g4 = F.alloc(4, 4); s4 = F.alloc(4, 4); kv = F.alloc(12, 4)
        rd = [F.alloc(4, 4) for _ in range(8)]; st = F.alloc(4, 4)
        vz = F.alloc(2, 2); vn = F.alloc(1); va = F.alloc(1); vb = F.alloc(1); vc = F.alloc(1); ve = F.alloc(1); vg = F.alloc(1); vs = F.alloc(1)
        FS = RING1; MT = RING1 + 4096
        p('v_mov_b32 %s, 0' % R(vz, 0)); p('v_mov_b32 %s, 0' % R(vz, 1))
        p('v_lshrrev_b32 %s, 3, %s' % (t[0], tid)); p('v_and_b32 %s, 7, %s' % (t[1], tid))
        p('v_mul_u32_u24 %s, %d, %s' % (R(va), 2 * 12288, t[0])); p('v_lshl_add_u32 %s, %s, 4, %s' % (R(va), t[1], R(va)))
        p('v_lshlrev_b32 %s, 2, %s' % (R(vb), t[0]))
        p('s_and_b32 s14, s2, 31'); p('s_lshr_b32 s15, s2, 5')
        p('s_mul_i32 s26, s15, %d' % (128 * 12288)); p('s_lshl_b32 s16, s14, 7'); p('s_add_u32 s26, s26, s16')
        p('s_lshl_b32 s29, s15, 8')
        p('v_lshlrev_b32 %s, 3, %s' % (R(vc), tid))
        p('s_lshl_b32 s18, s2, 3'); p('s_add_u32 s18, s18, s3'); p('s_lshl_b32 s18, s18, 11')
        p('v_and_b32 %s, 15, %s' % (t[2], lane)); p('v_lshrrev_b32 %s, 4, %s' % (t[3], lane))
        p('v_lshlrev_b32 %s, 11, %s' % (R(ve), t[2])); p('v_lshl_add_u32 %s, %s, 4, %s' % (R(ve), t[3], R(ve)))
        p('s_lshr_b32 s30, s2, 4'); p('s_and_b32 s31, s2, 15')
        p('s_lshl_b32 s19, s30, 3'); p('s_add_u32 s19, s19, s3')
        p('s_lshl_b32 s22, s19, 15'); p('s_lshl_b32 s23, s31, 7'); p('s_add_u32 s22, s22, s23')
        p('s_lshl_b32 s23, s2, 12'); p('s_add_u32 s23, s23, 0x%x' % WS_Z)
        p('s_or_b32 s25, s2, s3')
        p('s_cmp_eq_u32 s25, 0'); p('s_cselect_b32 s25, 0, 0x%x' % OOB)
        p('s_waitcnt lgkmcnt(0)')
        p.stamp(0)
        mk_srd(p, S_B, 'dbg', 256)
        p('s_or_b32 s28, s62, 1')
        p('v_mov_b32 %s, s28' % R(vn))
        p('s_mov_b64 exec, 1')
        p('buffer_store_dword %s, %s, %s, s25 offen sc1' % (R(vn), R(vz, 0), sr(S_B)))
        p('s_mov_b64 exec, -1')
        mk_srd(p, S_C, 'c', 2048); mk_srd(p, S_D, 'wmod', 1024 * 6144 * 2); mk_srd(p, S_E, 'x', 4194304); mk_srd(p, S_WS, 'ws', WS_SIZE)
        p('buffer_load_dword %s, %s, %s, s29 offen' % (R(cc, 0), R(vb), sr(S_C)))
        p('buffer_load_dwordx4 %s, %s, %s, s26 offen' % (R(w0, 0, 4), R(va), sr(S_D)))
        p('s_add_u32 s26, s26, 12288')
        p('buffer_load_dwordx4 %s, %s, %s, s26 offen' % (R(w1, 0, 4), R(va), sr(S_D)))
        for i in range(2):
            p('buffer_load_dwordx4 %s, %s, %s, s18 offen offset:%d' % (R(xr[i], 0, 4), l16, sr(S_E), i * 1024))
        if A_:
            p('s_cmp_eq_u32 s3, 0'); p('s_cselect_b32 s25, 0, 0x%x' % OOB)
            p('buffer_load_dword %s, %s, %s, s25 offen sc1' % (R(vn), R(vz, 0), sr(S_B)), 'n1')
        p('buffer_store_dwordx2 %s, %s, %s, s23 offen sc1' % (R(vz, 0, 2), R(vc), sr(S_WS)))
        p('s_barrier')
        for i in range(2):
            p('buffer_load_dwordx4 %s, %s, %s, s22 offen offset:%d' % (R(xt[i], 0, 4), R(ve), sr(S_E), i * 64))
        p('s_mov_b32 s29, s19')
        if not A_:
            mk_srd(p, S_B, 'k', 2097152); mk_srd(p, S_C, 'v', 2097152)
            p('s_lshl_b32 s20, s2, 2'); p('s_add_u32 s20, s20, s3'); p('s_sub_u32 s20, s20, 4')
            p('s_lshr_b32 s22, s20, 8'); p('s_bfe_u32 s23, s20, 0x40004'); p('s_and_b32 s24, s20, 15')
            p('s_lshl_b32 s25, s22, 19'); p('s_lshl_b32 s26, s23, 13'); p('s_add_u32 s25, s25, s26'); p('s_add_u32 s25, s25, %d' % (1536 * 256))
            p('v_and_b32 %s, 15, %s' % (t[0], lane)); p('v_lshrrev_b32 %s, 4, %s' % (t[1], lane))
            p('s_lshl_b32 s21, s22, 17')
            p('s_cmp_ge_u32 s24, 8')
            p('s_cbranch_scc1 %s_kvV' % name)
            p.alt_begin()
            p('v_lshlrev_b32 %s, 8, %s' % (t[2], t[0])); p('v_lshl_add_u32 %s, %s, 3, %s' % (t[2], t[1], t[2]))
            p('s_and_b32 s26, s24, 1'); p('s_lshl_b32 s26, s26, 12'); p('s_add_u32 s25, s25, s26')
            p('s_lshr_b32 s26, s24, 1'); p('s_lshl_b32 s26, s26, 6'); p('s_add_u32 s25, s25, s26')
            p('buffer_load_dwordx2 %s, %s, %s, s25 offen' % (R(kv, 0, 2), t[2], sr(S_B)))
            p('buffer_load_dwordx2 %s, %s, %s, s25 offen offset:32' % (R(kv, 2, 2), t[2], sr(S_B)))
            p('s_lshl_b32 s26, s23, 13'); p('s_add_u32 s21, s21, s26'); p('s_lshl_b32 s26, s24, 10'); p('s_add_u32 s21, s21, s26')
            p('s_add_u32 s21, s21, 0x%x' % WS_KF)
            p('s_branch %s_kvJ' % name)
            p.alt_next()
            p.label('%s_kvV' % name)
            p('s_bfe_u32 s26, s24, 0x20001'); p('s_lshl_b32 s26, s26, 6'); p('s_add_u32 s25, s25, s26')
            p('s_and_b32 s26, s24, 1'); p('s_lshl_b32 s26, s26, 3'); p('s_add_u32 s25, s25, s26')
            p('s_add_u32 s26, s25, 4096')
            p('v_lshrrev_b32 %s, 2, %s' % (t[2], t[0])); p('v_lshlrev_b32 %s, 4, %s' % (t[2], t[2]))
            p('v_and_b32 %s, 3, %s' % (t[3], t[0])); p('v_lshl_add_u32 %s, %s, 1, %s' % (t[2], t[3], t[2]))
            p('v_lshl_add_u32 %s, %s, 10, %s' % (t[2], t[1], t[2]))
            for e in range(8):
                p('buffer_load_ushort %s, %s, %s, %s offen offset:%d' % (R(kv, 4 + e), t[2], sr(S_C), 's26' if e >= 4 else 's25', (e % 4) * 256))
            p('s_bfe_u32 s26, s24, 0x20001'); p('s_lshl_b32 s26, s26, 15'); p('s_add_u32 s21, s21, s26')
            p('s_lshl_b32 s26, s23, 11'); p('s_add_u32 s21, s21, s26')
            p('s_and_b32 s26, s24, 1'); p('s_lshl_b32 s26, s26, 10'); p('s_add_u32 s21, s21, s26')
            p('s_add_u32 s21, s21, 0x%x' % WS_VF)
            p.alt_end()
            p.label('%s_kvJ' % name)
        cs0, cs1, lo0, lo1 = R(cc, 0), R(cc, 1), R(cc, 2), R(cc, 3)
        unpack(p, cs0, cs1, cs0)
        silu(p, cs0, t[0]); silu(p, cs1, t[1])
        rb2(p, cs0, cs1, t[0])
        p('s_lshl_b32 s16, s2, 8'); p('s_add_u32 s16, s16, 0x%x' % WS_CSW)
        p('s_mov_b32 exec_lo, 0x01010101'); p('s_mov_b32 exec_hi, 0x01010101')
        p('buffer_store_dword %s, %s, %s, s16 offen sc1' % (t[0], R(vb), sr(S_WS)))
        p('s_mov_b64 exec, -1')
        p('v_lshrrev_b32 %s, 16, %s' % (lo0, cs0)); p('v_lshrrev_b32 %s, 16, %s' % (lo1, cs1))
        for d in range(4):
            p('v_dot2_f32_bf16 %s, %s, %s, 0' % (R(acc, 2 * d + 1), R(w0, d), cs0))
            p('v_dot2_f32_bf16 %s, %s, %s, 0' % (R(acc, 2 * d), R(w0, d), lo0))
        for d in range(4):
            p('v_dot2c_f32_bf16 %s, %s, %s' % (R(acc, 2 * d + 1), R(w1, d), cs1))
            p('v_dot2c_f32_bf16 %s, %s, %s' % (R(acc, 2 * d), R(w1, d), lo1))
        for e in range(4): p('v_permlane32_swap_b32 %s, %s' % (R(acc, e), R(acc, 4 + e)))
        for e in range(4): p('v_add_f32 %s, %s, %s' % (R(acc, e), R(acc, e), R(acc, 4 + e)))
        for e in range(2): p('v_permlane16_swap_b32 %s, %s' % (R(acc, e), R(acc, 2 + e)))
        for e in range(2): p('v_add_f32 %s, %s, %s' % (R(acc, e), R(acc, e), R(acc, 2 + e)))
        for e in range(2): ror_add(p, R(acc, e), 8)
        p('v_and_b32 %s, 7, %s' % (t[0], lane)); p('v_lshlrev_b32 %s, 5, %s' % (t[0], t[0]))
        p('v_lshrrev_b32 %s, 4, %s' % (t[1], lane)); p('v_lshl_add_u32 %s, %s, 3, %s' % (t[0], t[1], t[0]))
        p('s_lshl_b32 s16, s3, 8'); p('s_add_u32 s16, s16, %d' % FS)
        p('v_add_u32 %s, s16, %s' % (t[0], t[0]))
        p('ds_write_b64 %s, %s' % (t[0], R(acc, 0, 2)))
        p.stamp(20)
        for i in range(2):
            for d in range(4): unpack(p, R(X, 8 * i + 2 * d), R(X, 8 * i + 2 * d + 1), R(xr[i], d))
        Xs = [R(X, i) for i in range(16)]
        mean, sd, rcp = R(st, 0), R(st, 1), R(st, 2)
        var = t[1]
        a0, a1, b0, b1 = t[4], t[5], t[2], t[3]
        p('v_add_f32 %s, %s, %s' % (a0, Xs[0], Xs[1])); p('v_add_f32 %s, %s, %s' % (a1, Xs[2], Xs[3]))
        for i in range(4, 16, 2):
            p('v_add_f32 %s, %s, %s' % (a0, a0, Xs[i])); p('v_add_f32 %s, %s, %s' % (a1, a1, Xs[i + 1]))
        p('v_add_f32 %s, %s, %s' % (mean, a0, a1))
        for n in (1, 2, 4, 8): ror_add(p, mean, n)
        xor16_add(p, mean, a0); xor32_add(p, mean, a0)
        p('v_mul_f32 %s, 0x%x, %s' % (mean, f2u(1.0 / 1024), mean))
        p('v_sub_f32 %s, %s, %s' % (b0, Xs[0], mean)); p('v_mul_f32 %s, %s, %s' % (a0, b0, b0))
        p('v_sub_f32 %s, %s, %s' % (b1, Xs[1], mean)); p('v_mul_f32 %s, %s, %s' % (a1, b1, b1))
        for i in range(2, 16, 2):
            p('v_sub_f32 %s, %s, %s' % (b0, Xs[i], mean)); p('v_sub_f32 %s, %s, %s' % (b1, Xs[i + 1], mean))
            p('v_fmac_f32 %s, %s, %s' % (a0, b0, b0)); p('v_fmac_f32 %s, %s, %s' % (a1, b1, b1))
        p('v_add_f32 %s, %s, %s' % (var, a0, a1))
        for n in (1, 2, 4, 8): ror_add(p, var, n)
        xor16_add(p, var, a0); xor32_add(p, var, a0)
        p('v_mul_f32 %s, 0x%x, %s' % (var, f2u(1.0 / 1024), var))
        ln_scalars(p, mean, var, sd, rcp)
        p('s_lshl_b32 s16, s3, 4'); p('s_add_u32 s16, s16, %d' % (FS + 2048 + 16))
        p('v_mov_b32 %s, s16' % t[3])
        p('ds_write_b128 %s, %s' % (t[3], R(st, 0, 4)))
        p.stamp(3)
        if A_:
            def ntest(q):
                q('v_cmp_eq_u32 vcc, 0, %s' % R(vn))
                q('s_cmp_eq_u32 s3, 0'); q('s_cselect_b64 s[62:63], -1, 0'); q('s_and_b64 vcc, vcc, s[62:63]')
            rare_poll(p, 'n', ntest, lambda q: q('buffer_load_dword %s, %s, %s, 0 offen sc1' % (R(vn), R(vz, 0), sr(S_B))), flush=False)
            p('v_mov_b32 %s, %d' % (t[3], FS + 2048))
            p('s_cmp_eq_u32 s3, 0'); p('s_cselect_b64 exec, 1, 0')
            p('ds_write_b32 %s, %s' % (t[3], R(vn)))
            p('s_mov_b64 exec, -1')
        p.stamp(1)
        p('v_mov_b32 %s, %d' % (t[3], FS + 2048))
        p('v_and_b32 %s, 31, %s' % (t[1], lane)); p('v_lshlrev_b32 %s, 3, %s' % (t[2], t[1])); p('v_add_u32 %s, %d, %s' % (t[2], FS, t[2]))
        p('v_lshlrev_b32 %s, 4, %s' % (t[1], t[1]))
        p('s_waitcnt lgkmcnt(0)')
        p('s_barrier')
        p('ds_read_b32 %s, %s' % (R(vn), t[3]))
        for i in range(8): p('ds_read_b64 %s, %s offset:%d' % (R(rd[i], 0, 2), t[2], i * 256))
        p('v_readfirstlane_b32 s28, %s' % R(vn))
        p('v_and_b32 %s, 7, %s' % (t[4], lane)); p('v_lshlrev_b32 %s, 4, %s' % (t[4], t[4]))
        p('v_add_u32 %s, %d, %s' % (t[5], FS + 2048 + 16, t[4]))
        p('ds_read_b128 %s, %s' % (R(st, 0, 4), t[5]))
        p('v_mov_b32 %s, s28' % R(st, 3))
        p('s_lshl_b32 s16, s2, 7'); p('s_add_u32 s16, s16, 0x%x' % WS_STG)
        p('s_cmp_eq_u32 s3, 0'); p('s_cselect_b32 s16, s16, 0x%x' % OOB)
        p('s_mov_b64 exec, 0xff')
        p('buffer_store_dwordx4 %s, %s, %s, s16 offen sc1' % (R(st, 0, 4), t[4], sr(S_WS)))
        p('s_mov_b64 exec, -1')
        for s_ in (4, 2, 1):
            for i in range(s_): p('v_pk_add_f32 %s, %s, %s' % (R(rd[i], 0, 2), R(rd[i], 0, 2), R(rd[s_ + i], 0, 2)))
        p('v_mov_b32 %s, s28' % R(rd[0], 2)); p('v_mov_b32 %s, s28' % R(rd[0], 3))
        p('s_lshl_b32 s16, s14, 3'); p('s_add_u32 s16, s16, s15'); p('s_lshl_b32 s16, s16, 9'); p('s_add_u32 s16, s16, 0x%x' % WS_MODG)
        p('s_cmp_eq_u32 s3, 0'); p('s_cselect_b32 s16, s16, 0x%x' % OOB)
        p('s_mov_b64 exec, 0xffffffff')
        p('buffer_store_dwordx4 %s, %s, %s, s16 offen sc1' % (R(rd[0], 0, 4), t[1], sr(S_WS)))
        p('s_mov_b64 exec, -1')
        p.stamp(2)
        if not A_:
            p('s_cmp_lt_u32 s24, 8')
            p('s_cbranch_scc1 %s_kvS' % name)
            p.alt_begin()
            for d in range(4):
                p('v_lshl_or_b32 %s, %s, 16, %s' % (R(kv, d), R(kv, 4 + 2 * d + 1), R(kv, 4 + 2 * d)))
            for e in range(8): p('v_and_b32 %s, 0x7fff, %s' % (R(kv, 4 + e), R(kv, 4 + e)))
            p('v_max3_u32 %s, %s, %s, %s' % (R(kv, 4), R(kv, 4), R(kv, 5), R(kv, 6))); p('v_max3_u32 %s, %s, %s, %s' % (R(kv, 7), R(kv, 7), R(kv, 8), R(kv, 9)))
            p('v_max3_u32 %s, %s, %s, %s' % (R(kv, 4), R(kv, 4), R(kv, 10), R(kv, 11))); p('v_max_u32 %s, %s, %s' % (R(kv, 4), R(kv, 4), R(kv, 7)))
            p('v_cmp_le_u32 vcc, 0x4980, %s' % R(kv, 4))
            p('v_mov_b32 %s, s28' % R(kv, 5))
            p('s_mov_b32 s16, 0x%x' % WS_BIGV)
            p('s_and_saveexec_b64 s[62:63], vcc')
            p('buffer_store_dword %s, %s, %s, s16 offen sc1' % (R(kv, 5), R(vz, 0), sr(S_WS)))
            p('s_mov_b64 exec, s[62:63]')
            p.alt_next()
            p.alt_end()
            p.label('%s_kvS' % name)
            p('buffer_store_dwordx4 %s, %s, %s, s21 offen sc1' % (R(kv, 0, 4), l16, sr(S_WS)))
        p('s_lshr_b32 s16, s3, 2'); p('s_lshl_b32 s16, s16, 4'); p('s_add_u32 s16, s16, s31'); p('s_lshl_b32 s16, s16, 12')
        p('s_and_b32 s17, s3, 3'); p('s_lshl_b32 s17, s17, 7'); p('s_add_u32 s16, s16, s17'); p('s_add_u32 s16, s16, 0x%x' % WS_MODG)
        p('v_lshrrev_b32 %s, 3, %s' % (R(vg), lane)); p('v_lshlrev_b32 %s, 9, %s' % (R(vg), R(vg)))
        p('v_and_b32 %s, 7, %s' % (t[0], lane)); p('v_lshl_add_u32 %s, %s, 4, %s' % (R(vg), t[0], R(vg)))
        p('v_and_b32 %s, 15, %s' % (R(vs), lane)); p('v_lshlrev_b32 %s, 4, %s' % (R(vs), R(vs)))
        p('s_lshl_b32 s17, s29, 8'); p('s_add_u32 s17, s17, 0x%x' % WS_STG)
        for i in range(2):
            for d in range(4): unpack(p, R(X, 8 * i + 2 * d), R(X, 8 * i + 2 * d + 1), R(xt[i], d))
        def gl():
            p('buffer_load_dwordx4 %s, %s, %s, s16 offen sc1' % (R(g4, 0, 4), R(vg), sr(S_WS)))
            p('buffer_load_dwordx4 %s, %s, %s, s17 offen sc1' % (R(s4, 0, 4), R(vs), sr(S_WS)))
        def gt():
            p('v_cmp_ne_u32 vcc, s28, %s' % R(g4, 2))
            p('v_cmp_ne_u32 s[62:63], s28, %s' % R(g4, 3))
            p('s_or_b64 vcc, vcc, s[62:63]')
            p('v_cmp_ne_u32 s[62:63], s28, %s' % R(s4, 3))
            p('s_or_b64 vcc, vcc, s[62:63]')
        backoff(p, 'g')
        for b_, n_, lo_, hi_ in (SPF or {}).get('w1', []): spf(p, b_, n_, lo_, hi_)
        poll(p, 'g', gl, gt)
        p.stamp(4)
        m0_, m1_ = R(g4, 0), R(g4, 1)
        ror_add(p, m0_, 8); ror_add(p, m1_, 8)
        xor16_add(p, m0_, t[1]); xor16_add(p, m1_, t[2]); xor32_add(p, m0_, t[1]); xor32_add(p, m1_, t[2])
        rb2(p, m0_, m1_, t[1])
        p('v_add_f32 %s, %s, %s' % (m0_, '0' if A_ else '1.0', m0_)); p('v_add_f32 %s, %s, %s' % (m1_, '0' if A_ else '1.0', m1_))
        if not A_: rb2(p, m0_, m1_, t[1])
        p('s_lshl_b32 s16, s3, 6'); p('s_add_u32 s16, s16, %d' % MT)
        p('v_lshl_add_u32 %s, %s, 3, s16' % (t[0], t[0]))
        p('ds_write_b64 %s, %s' % (t[0], R(g4, 0, 2)))
        p('v_lshrrev_b32 %s, 4, %s' % (t[1], lane)); p('v_lshlrev_b32 %s, 5, %s' % (t[1], t[1])); p('v_add_u32 %s, %d, %s' % (t[1], MT, t[1]))
        mean, sd, rcp = R(s4, 0), R(s4, 1), R(s4, 2)
        for i in range(16): p('v_sub_f32 %s, %s, %s' % (Xs[i], Xs[i], mean))
        for i in range(0, 16, 2): rb2(p, Xs[i], Xs[i + 1], t[2 + (i // 2) % 2])
        for i in range(16): p('v_mul_f32 %s, %s, %s' % (Xs[i], Xs[i], rcp))
        for i in range(0, 16, 2): rb2(p, Xs[i], Xs[i + 1], t[2 + (i // 2) % 2])
        p('s_lshl_b32 s16, s29, 15'); p('s_lshl_b32 s17, s31, 11'); p('s_add_u32 s16, s16, s17')
        if WS_H: p('s_add_u32 s16, s16, 0x%x' % WS_H)
        p('s_waitcnt lgkmcnt(0)')
        p('s_barrier')
        for hh in range(2):
            for k in range(2):
                p('ds_read_b128 %s, %s offset:%d' % (R(rd[4 * hh + k], 0, 4), t[1], 256 + hh * 128 + k * 16))
                p('ds_read_b128 %s, %s offset:%d' % (R(rd[4 * hh + 2 + k], 0, 4), t[1], hh * 128 + k * 16))
        for hh in range(2):
            for k in range(2):
                for e in range(0, 4, 2):
                    p('v_pk_mul_f32 %s, %s, %s' % (R(X, 8 * hh + 4 * k + e, 2), R(X, 8 * hh + 4 * k + e, 2), R(rd[4 * hh + k], e, 2)))
            for e in range(0, 8, 2): rb2(p, Xs[8 * hh + e], Xs[8 * hh + e + 1], t[2 + (e // 2) % 2])
            for k in range(2):
                for e in range(0, 4, 2):
                    p('v_pk_add_f32 %s, %s, %s' % (R(X, 8 * hh + 4 * k + e, 2), R(X, 8 * hh + 4 * k + e, 2), R(rd[4 * hh + 2 + k], e, 2)))
            o = xr[hh]
            for d in range(4): p('v_cvt_pk_bf16_f32 %s, %s, %s' % (R(o, d), Xs[8 * hh + 2 * d], Xs[8 * hh + 2 * d + 1]))
            p('buffer_store_dwordx4 %s, %s, %s, s16 offen offset:%d sc1' % (R(o, 0, 4), l16, sr(S_WS), hh * 1024), 'hst')
        if ROT:
            p('s_bfe_u32 s25, s2, 0x30003'); p('s_mul_i32 s25, s25, %d' % ROT[0]); p('s_lshr_b32 s26, s2, 6'); p('s_mul_i32 s26, s26, %d' % ROT[1])
            p('s_add_u32 s25, s25, s26'); p('s_and_b32 s25, s25, 15'); p('s_lshl_b32 s26, s25, 11'); p('s_lshl_b32 s25, s25, 19')
        p('s_lshl_b32 s19, s3, 16'); p('s_lshl_b32 s20, s3, 11'); p('s_lshl_b32 s16, s12, 8')
        p('s_add_u32 s4, s%d, s16' % PTR['wq']); p('s_addc_u32 s5, s%d, 0' % (PTR['wq'] + 1))
        p('s_sub_u32 s6, 0x800000, s16'); p('s_mov_b32 s7, 0x20000')
        if not WQ_LATE:
            for s_ in range(NWQ - 1):
                for it, tag in dma_wq(s_): p(it, tag)
        p('v_mov_b32 %s, s28' % R(vn))
        p('s_lshl_b32 s16, s29, 4'); p('s_add_u32 s16, s16, s31'); p('s_lshl_b32 s16, s16, 2'); p('s_add_u32 s16, s16, 0x%x' % WS_HFLAG)
        p('v_and_b32 %s, 31, %s' % (t[0], lane)); p('v_lshlrev_b32 %s, 2, %s' % (t[0], t[0]))
        p('s_lshl_b32 s17, s13, 3'); p('s_add_u32 s17, s17, s3'); p('s_lshl_b32 s17, s17, 7'); p('s_add_u32 s17, s17, 0x%x' % WS_HFLAG)
        p.wait_tag('hst')
        p('s_mov_b64 exec, 1')
        p('buffer_store_dword %s, %s, %s, s16 offen sc1' % (R(vn), R(vz, 0), sr(S_WS)))
        p('s_mov_b64 exec, -1')
        if WQ_LATE:
            for s_ in range(NWQ - 1):
                for it, tag in dma_wq(s_): p(it, tag)
        p.stamp(5)
        for b_, n_, lo_, hi_ in (SPF or {}).get('w2', []): spf(p, b_, n_, lo_, hi_)
        backoff(p, 'h')
        poll(p, 'h', lambda: p('buffer_load_dword %s, %s, %s, s17 offen sc1' % (t[1], t[0], sr(S_WS))),
             lambda: p('v_cmp_ne_u32 vcc, s28, %s' % t[1]))
        p.stamp(6)

    acc1 = [sub(PR, 16 * i) for i in range(4)]
    H = [[sub(PR, 64 + 16 * b + 4 * k) for k in range(4)] for b in range(NH)]
    def hload(s, k):
        return [(('s_add_u32 s23, s26, 0x%x\ns_and_b32 s23, s23, 0x7fff\ns_or_b32 s23, s23, 0x%x' % (s * 2048, WS_H + (k % 2) * 32768)) if ROT else ('s_mov_b32 s23, 0x%x' % (WS_H + s * 2048 + (k % 2) * 32768)), None),
                ('buffer_load_dwordx4 %s, %s, %s, s23 offen offset:%d%s' % (R(H[s % NH][k], 0, 4), R(v_hoff), sr(S_WS), (k // 2) * 1024, hsc), None)]
    def trread(dst, base, n, va, vb):
        a = vb if n % 2 else va
        off = base + (n // 2) * 256 + (n % 2) * 32
        return ['ds_read_b64_tr_b16 %s, %s offset:%d' % (R(dst, 0, 2), a, off),
                'ds_read_b64_tr_b16 %s, %s offset:%d' % (R(dst, 2, 2), a, off + 1024)]

    def phase1(role):
        A_ = role == 'A'
        def trr(f):
            s, T, n = f // 16, (f // 8) % 2, f % 8
            a = wq_slot(s) + T * 8192
            if a < 0x10000: return trread(fr[f % NRA], a, n, R(v_tr), R(v_tr2))
            return trread(fr[f % NRA], a - 0x20000, n, R(v_xv), R(v_wq2))
        if NWQ > 4:
            p('v_add_u32 %s, 0x20000, %s' % (R(v_xv), R(v_tr))); p('v_add_u32 %s, 0x20000, %s' % (R(v_wq2), R(v_tr2)))
        for s in range(NH - 1):
            for k in range(4):
                for it, tag in hload(s, k): p(it, tag)
        p('s_lshr_b32 s21, s12, 3'); p('s_lshl_b32 s21, s21, 17'); p('s_add_u32 s21, s21, s20'); p('s_add_u32 s21, s21, 0x%x' % WS_KF)
        p.wait_tag('wq0')
        if prioB and not A_: p('s_setprio 1')
        p('s_barrier')
        for f in range(D1):
            for x in trr(f): p(x)
        sc = Sched()
        hnext = [4 * (NH - 1)]
        for f in range(256):
            s, T, n = f // 16, (f // 8) % 2, f % 8
            for qs in range(2):
                d = R(acc1[n // 2], (n % 2) * 8 + qs * 4, 4)
                idx = sc.mfma('v_mfma_f32_16x16x32_bf16 %s, %s, %s, %s' % (d, R(fr[f % NRA], 0, 4), R(H[s % NH][T * 2 + qs], 0, 4), '0' if f < 8 else d))
            g = f + D1
            if g < 256:
                if g % 16 == 0:
                    sn = g // 16
                    sc.place(idx, lambda q, sn=sn: q.wait_tag('wq%d' % sn))
                    sc.place(idx, 's_barrier')
                    nxt = dma_wq(sn + NWQ - 2) if sn + NWQ - 2 < 16 else []
                    for i in range(len(nxt) // 3):
                        for it, tag in nxt[3 * i:3 * i + 3]: sc.place(idx + (1 + 4 * i) * 2 + (0 if A_ else P1B[0]), it, tag)
                tr = trr(g)
                if g % 16 != 0:
                    sc.place(idx - 1, tr[0]); sc.place(idx, tr[1])
                else:
                    for x in tr: sc.place(idx, x)
            if f % 4 in ((1, 3) if A_ or not P1B[1] else (0, 2)):
                tq = (f // 4) % 4
                lim = min(64, (s + NH - 1) * 4 + tq + 1)
                if hnext[0] < lim:
                    for it, tag in hload(hnext[0] // 4, hnext[0] % 4): sc.place(idx, it, tag)
                    hnext[0] += 1
        if True:
            fl4 = x4
            def kvf_load(q):
                q('buffer_load_dwordx4 %s, %s, %s, s18 offen sc1' % (R(fl4, 0, 4), t[5], sr(S_WS)))
            def kvf_issue(q):
                q('v_lshrrev_b32 %s, 4, %s' % (t[5], lane)); q('v_lshlrev_b32 %s, 9, %s' % (t[5], t[5]))
                q('v_and_b32 %s, 15, %s' % (t[4], lane)); q('v_lshl_add_u32 %s, %s, 4, %s' % (t[5], t[4], t[5]))
                q('s_lshr_b32 s18, s12, 3'); q('s_lshl_b32 s18, s18, 11'); q('s_add_u32 s18, s18, 0x%x' % (WS_HFLAG + 256))
                kvf_load(q)
            def kvf_test(q):
                a_, b_ = R(v_kvoff), t[4]
                q('v_xor_b32 %s, s28, %s' % (a_, R(fl4, 0))); q('v_xor_b32 %s, s28, %s' % (b_, R(fl4, 1)))
                q('v_or_b32 %s, %s, %s' % (a_, a_, b_))
                q('v_xor_b32 %s, s28, %s' % (b_, R(fl4, 2))); q('v_or_b32 %s, %s, %s' % (a_, a_, b_))
                q('v_xor_b32 %s, s28, %s' % (b_, R(fl4, 3))); q('v_or_b32 %s, %s, %s' % (a_, a_, b_))
                q('v_cmp_ne_u32 vcc, 0, %s' % a_)
            sc.place(2 * (16 * 6 + 6), kvf_issue)
            sc.place(2 * (16 * 9 + 6), lambda q: rare_poll(q, 'kv', kvf_test, kvf_load))
            sc.place(2 * (16 * 9 + 6) + 1, lambda q: (q('v_mov_b32 %s, 0' % t[4]), q('s_mov_b32 s16, 0x%x' % WS_BIGV), q('buffer_load_dword %s, %s, %s, s16 offen sc1' % (R(v_kvoff), t[4], sr(S_WS)))))
            sc.place(2 * (16 * 9 + 10), m_setup)
            sc.place(2 * (16 * 13 + 2), m_cs)
            for c in range(4):
                ch = dma_chunk(c)
                for i in range(2):
                    for it, tag in ch[3 * i:3 * i + 3]: sc.place(2 * (16 * (10 + c) + 8 + 2 * i), it, tag)
        if CPF1 and A_:
            va_, vb_, vd_ = R(SS, 0), R(SS, 1), R(SS, 2)
            def cp_setup(q):
                q('v_and_b32 %s, 31, %s' % (vd_, lane))
                q('v_lshrrev_b32 %s, 1, %s' % (va_, vd_)); q('s_lshr_b32 s16, s2, 6'); q('s_lshl_b32 s16, s16, 4'); q('v_add_u32 %s, s16, %s' % (va_, va_))
                q('v_lshlrev_b32 %s, 13, %s' % (va_, va_)); q('v_and_b32 %s, 1, %s' % (vb_, vd_)); q('v_lshl_add_u32 %s, %s, 7, %s' % (va_, vb_, va_))
                q('v_lshrrev_b32 %s, 4, %s' % (vb_, vd_)); q('s_bfe_u32 s16, s2, 0x30003'); q('s_lshl_b32 s16, s16, 1'); q('s_lshl_b32 s17, s13, 4'); q('s_add_u32 s16, s16, s17')
                q('v_add_u32 %s, s16, %s' % (vb_, vb_)); q('v_lshlrev_b32 %s, 15, %s' % (vb_, vb_))
                q('v_and_b32 %s, 15, %s' % (vd_, vd_)); q('v_lshl_add_u32 %s, %s, 7, %s' % (vb_, vd_, vb_))
            sc.place(0, cp_setup)
            for s_ in range(16 - CPF1[0]):
                st_ = s_ + CPF1[0]
                def one(q, st_=st_):
                    q('s_mov_b32 s16, 0x%x' % (st_ * 64 * 8192)); q('s_cmp_eq_u32 s3, %d' % CPF1[1]); q('s_cselect_b32 s16, s16, 0x%x' % OOB)
                    q('s_mov_b32 s17, 0x%x' % (WS_H + st_ * 2048)); q('s_cselect_b32 s17, s17, 0x%x' % OOB)
                    q('s_mov_b64 exec, 0xffffffff')
                    q('buffer_load_dword %s, %s, %s, s16 offen' % (vd_, va_, sr(S_A)), 'pf')
                    q('buffer_load_dword %s, %s, %s, s17 offen' % (vd_, vb_, sr(S_WS)), 'pf')
                    q('s_mov_b64 exec, -1')
                sc.place(32 * s_ + CPF1[2], one)
        if p1pf:
            SZ = dict(wg=7340032, wu=7340032, wd=7340032, wo=8388608, wmod=1024 * 6144 * 2)
            rounds = [(b, k) for b in p1pf['bufs'] for k in range(4)]
            mine = [(i, r) for i, r in enumerate(rounds) if (i % 2 == 0) == A_]
            def pf_setup(q):
                q('v_lshlrev_b32 %s, 7, %s' % (t[1], lane)); q('s_lshl_b32 s16, s2, 13'); q('v_add_u32 %s, s16, %s' % (t[3], t[1]))
            sc.place(1, pf_setup)
            lo, hi = p1pf['at']
            for i, (b, k) in mine:
                at = lo + (i * (hi - lo)) // len(rounds)
                wv = (i // 2) % 4 + (0 if A_ else 4)
                def one(q, b=b, k=k, wv=wv):
                    mk_srd(q, S_B, b, SZ[b])
                    if b == 'wmod':
                        q('s_add_u32 s16, s2, %d' % (k * 256)); q('s_mul_i32 s16, s16, 12288'); q('s_add_u32 s16, s16, 4096')
                    else:
                        q('s_mov_b32 s16, 0x%x' % (k * 0x200000))
                    q('s_cmp_eq_u32 s3, %d' % wv); q('s_cselect_b32 s16, s16, 0x%x' % OOB)
                    q('buffer_load_dword %s, %s, %s, s16 offen' % (t[2], t[1] if b == 'wmod' else t[3], sr(S_B)), 'pf')
                sc.place(at, one)
        if p1st:
            for i_, s_ in enumerate(p1st): sc.place(32 * s_, lambda q, i_=i_: q.stamp(60 + i_))
        sc.emit(p)
        p.stamp(7)
        p.wait_tag('ch0'); p.wait_tag('ch1')
        p('s_barrier')
        for c_ in (4, 5):
            for it, tag in dma_chunk(c_): p(it, tag)
        m_reads(p)
        p('s_mov_b32 s23, 0x%x' % f2u((128 ** -0.5) * LOG2E))
        for dt in range(1 if QCONV else 4):
            for o in qconv(dt): p(o)
            if dt == 0: m_mfma(p)
        p.stamp(8)
    def qconv(dt):
        ops = []
        for r in range(0, 16, 2):
            ta, tb = R(acc1[dt], r), R(acc1[dt], r + 1)
            ops.append('v_mul_f32 %s, s23, %s' % (ta, ta)); ops.append('v_mul_f32 %s, s23, %s' % (tb, tb))
        for r in range(0, 16, 2):
            ops.append('v_cvt_pk_bf16_f32 %s, %s, %s' % (R(qf[((r // 4) % 2) * 4 + dt], (r // 8) * 2 + (r % 4) // 2), R(acc1[dt], r), R(acc1[dt], r + 1)))
        return ops

    v_l16b = v_tr; v_l16c = v_tr2
    P = [[sub(PR, 8 * j + 4 * qs) for qs in range(2)] for j in range(16)]
    def lds_read(dst, addr):
        if addr >= 0x20000: return 'ds_read_b128 %s, %s offset:%d' % (R(dst, 0, 4), R(v_l16c), addr - 0x20000)
        return 'ds_read_b128 %s, %s offset:%d' % (R(dst, 0, 4), R(v_l16b), addr - 0x10000)
    def softmax_ops(j, sub_, first, s=None, lsum=None):
        lsum = (not LMF) if lsum is None else lsum
        ops = []
        s = S[j % 2] if s is None else s
        for r in range(0, 16, 2):
            a, qs = r // 8, (r // 4) % 2
            if sub_:
                ops.append('v_add_f32 %s, %s, %s' % (R(s, r), R(s, r), R(negm, 4 * qs)))
                ops.append('v_add_f32 %s, %s, %s' % (R(s, r + 1), R(s, r + 1), R(negm, 4 * qs)))
            ops.append('v_exp_f32 %s, %s' % (R(s, r), R(s, r)))
            ops.append('v_exp_f32 %s, %s' % (R(s, r + 1), R(s, r + 1)))
            if not lsum: pass
            elif first and r % 4 == 0 and a == 0:
                ops.append('v_add_f32 %s, %s, %s' % (R(v_l[qs]), R(s, r), R(s, r + 1)))
            else:
                ops.append('v_add_f32 %s, %s, %s' % (R(v_l[qs]), R(v_l[qs]), R(s, r)))
                ops.append('v_add_f32 %s, %s, %s' % (R(v_l[qs]), R(v_l[qs]), R(s, r + 1)))
            ops.append('v_cvt_pk_bf16_f32 %s, %s, %s' % (R(P[j][qs], a * 2 + (r % 4) // 2), R(s, r), R(s, r + 1)))
        return ops
    def xl_red(m, m2, op):
        return ['v_mov_b32 %s, %s' % (m2, m), 'v_permlane16_swap_b32 %s, %s' % (m, m2), '%s %s, %s, %s' % (op, m, m, m2),
                'v_mov_b32 %s, %s' % (m2, m), 'v_permlane32_swap_b32 %s, %s' % (m, m2), '%s %s, %s, %s' % (op, m, m, m2)]
    def finish_max(ms, m2s):
        ops = []
        a, b = xl_red(ms[0], m2s[0], 'v_max_f32'), xl_red(ms[1], m2s[1], 'v_max_f32')
        for x, y in zip(a, b): ops += [x, y]
        for r in range(8): ops.append('v_sub_f32 %s, 0, %s' % (R(negm, r), ms[r // 4]))
        return ops
    def mf_k(sreg, f, frag, cz):
        T, a = f // 2, f % 2
        out = []
        for qs in range(2):
            d = R(sreg, (a * 2 + qs) * 4, 4)
            c = d if T > 0 else ('0' if cz else R(negm, 4 * qs, 4))
            out.append('v_mfma_f32_16x16x32_bf16 %s, %s, %s, %s' % (d, frag, R(qf[qs * 4 + T], 0, 4), c))
        return out
    accO = [sub(SS, 0), sub(SS, 16)]
    stg = [sub(negm, 0), sub(negm, 4)]
    WD = [sub(QF, 4 * i) for i in range(8)]

    def lmf(j, qs):
        d = R(SP, 4 * qs, 4)
        return 'v_mfma_f32_16x16x32_bf16 %s, %s, %s, %s' % (d, R(x4, 0, 4), R(P[j][qs], 0, 4), '0' if j == 0 else d)
    def phase2(role):
        A_ = role == 'A'
        p('v_add_u32 %s, 0x10000, %s' % (R(v_l16b), l16))
        p('v_add_u32 %s, 0x20000, %s' % (R(v_l16c), l16))
        seq = [(j, f) for j in range(16) for f in range(8)]
        sc = Sched()
        for n, (j, f) in enumerate(seq):
            for m_ in mf_k(S[j % 2], f, R(fr[n % NRA], 0, 4), j < 2): sc.mfma(m_)
        def place_reads(sc, nfr, addr_of, chunk_of, n0):
            last = None
            for n in range(nfr):
                at = 2 * (n - D2) + 1 if n - D2 >= 0 else -1
                c = chunk_of(n)
                if c != last:
                    last = c
                    sc.place(at, lambda q, c=c: q.wait_tag('ch%d' % c))
                    sc.place(at, 's_barrier')
                    nx = dma_chunk(c + 4)
                    for q_ in range(len(nx) // 3):
                        for it, tag in nx[3 * q_:3 * q_ + 3]: sc.place(max(at, 0) + 2 + (0 if A_ else P2B) + (8 if len(nx) == 6 else 4) * q_, it, tag)
                sc.place(at, lds_read(fr[(n0 + n) % NRA], addr_of(n)))
        place_reads(sc, 128, lambda n: slot(2 + n // 16) + (n % 16) * 1024, lambda n: 2 + n // 16, 0)
        if QCONV:
            for dt in range(1, 4):
                ops = qconv(dt)
                for i, o in enumerate(ops): sc.place(4 * (dt - 1) + (i * 4) // len(ops), o)
        ms, m2s = [t[0], t[1]], [t[2], t[3]]
        ops = []
        for qs in range(2):
            rg = [R(S[0], (a * 2 + qs) * 4 + k) for a in range(2) for k in range(4)]
            ops.append('v_max3_f32 %s, %s, %s, %s' % (ms[qs], rg[0], rg[1], rg[2]))
            for i in range(3, 7, 2): ops.append('v_max3_f32 %s, %s, %s, %s' % (ms[qs], ms[qs], rg[i], rg[i + 1]))
            ops.append('v_max_f32 %s, %s, %s' % (ms[qs], ms[qs], rg[7]))
        for i, o in enumerate(ops): sc.place(22 + i, o)
        ops = []
        for qs in range(2):
            rg = [R(S[1], (a * 2 + qs) * 4 + k) for a in range(2) for k in range(4)]
            for i in range(0, 8, 2): ops.append('v_max3_f32 %s, %s, %s, %s' % (ms[qs], ms[qs], rg[i], rg[i + 1]))
        ops += finish_max(ms, m2s) + softmax_ops(0, True, True)
        for o in ops: sc.place(31, o)
        for j in range(1, 15):
            lo, hi = 16 * (j + 1) + 1, 16 * (j + 2) - 1
            ops = softmax_ops(j, j < 2, False)
            nm = hi - lo + 1
            for i, o in enumerate(ops): sc.place(lo + min(nm - 1, (i * nm) // len(ops)), o)
        if not A_:
            def gu_setup(q):
                mk_srd(q, S_B, 'wg', 7340032); mk_srd(q, S_C, 'wu', 7340032)
                q('s_cmp_lt_u32 s2, 224'); q('s_cselect_b32 s66, 7340032, 0'); q('s_cselect_b32 s70, 7340032, 0')
                q('s_and_b32 s29, s2, 7'); q('s_mul_i32 s29, s29, 28'); q('s_lshr_b32 s16, s2, 3'); q('s_add_u32 s29, s29, s16')
                q('s_sub_u32 s16, s3, 4')
                q('v_lshrrev_b32 %s, 3, %s' % (t[4], lane)); q('v_lshlrev_b32 %s, 3, %s' % (t[4], t[4]))
                q('s_lshl_b32 s17, s16, 6'); q('v_add_u32 %s, s17, %s' % (t[4], t[4]))
                q('s_mov_b32 s17, 7168'); q('v_mul_lo_u32 %s, s17, %s' % (R(v_xv), t[4]))
                q('v_and_b32 %s, 7, %s' % (t[4], lane)); q('v_lshl_add_u32 %s, %s, 4, %s' % (R(v_xv), t[4], R(v_xv)))
                q('s_and_b32 s17, s29, 3'); q('s_mul_i32 s18, s17, %d' % (256 * 7168))
                q('s_lshr_b32 s17, s29, 2'); q('s_lshl_b32 s17, s17, 7'); q('s_add_u32 s18, s18, s17')
                q('s_lshl_b32 s15, s16, 13')
            sc.place(1, gu_setup)
            if wopf is not None:
                def wo_pf(q):
                    mk_srd(q, S_D, 'wo', 0x800000)
                    q('v_lshlrev_b32 %s, 7, %s' % (t[5], lane))
                    q('s_lshl_b32 s16, s2, 2'); q('s_add_u32 s16, s16, s3'); q('s_sub_u32 s16, s16, 4'); q('s_lshl_b32 s16, s16, 13')
                    q('buffer_load_dword %s, %s, %s, s16 offen' % (R(v_hoff), t[5], sr(S_D)), 'pf')
                sc.place(wopf, wo_pf)
            items = [(m, i) for i in range(8) for m in range(2)]
            lo, hi = 2 * (16 * gu_at[0] + 2), 2 * (16 * gu_at[1])
            if GU3_AT is not None: items = [x for x in items if x[0] == 0]
            for k, (m, i) in enumerate(items if do_gu else []):
                at = lo + (k * (hi - lo)) // len(items)
                sc.place(at, 's_add_u32 s22, s18, %d' % (i * 7168))
                sc.place(at, 's_add_u32 m0, s15, %d' % (m * 32768 + i * 1024))
                sc.place(at, 'buffer_load_dwordx4 %s, %s, s22 offen lds' % (R(v_xv), sr(S_B if m == 0 else S_C)), 'gu')
        else:
            sc.place(1, lambda q: (q('s_and_b32 s29, s2, 7'), q('s_mul_i32 s29, s29, 28'), q('s_lshr_b32 s16, s2, 3'), q('s_add_u32 s29, s29, s16')))
        def wo_setup(q):
            mk_srd(q, S_A, 'wo', 0x800000)
            q('v_bfe_u32 %s, %s, 2, 2' % (t[4], lane))
            q('v_lshlrev_b32 %s, 13, %s' % (t[5], t[4])); q('v_sub_u32 %s, %s, %s' % (R(v_wqoff), R(v_wqoff), t[5]))
            q('v_lshl_add_u32 %s, %s, 11, %s' % (R(v_wqoff), t[4], R(v_wqoff)))
            q('s_and_b32 s16, s2, 1'); q('s_lshl_b32 s24, s16, 22')
            q('s_lshr_b32 s16, s2, 5'); q('s_lshl_b32 s16, s16, 8'); q('s_add_u32 s24, s24, s16')
            q('s_lshl_b32 s16, s3, 14'); q('s_add_u32 s24, s24, s16')
            if ROT3:
                q('s_lshr_b32 s62, s2, 5'); q('s_mul_i32 s62, s62, %d' % ROT3[0]); q('s_bfe_u32 s16, s2, 0x20003'); q('s_mul_i32 s16, s16, %d' % ROT3[1])
                q('s_add_u32 s62, s62, s16'); q('s_and_b32 s62, s62, 7'); q('s_lshl_b32 s62, s62, 13')
            if not A_: q('s_add_u32 s24, s24, %d' % (96 * 2048))
        sc.place(16 * 2 + 5, wo_setup)
        sc.place(0, m_store)
        assert (MP_AT[0] + 2 * D2 - 1) % 32 in range(1, 8)
        sc.place(MP_AT[0] - 8, lambda q: q.wait_tag('mst'))
        if A_: sc.place(MP_AT[0], mc_pub)
        if LMF == 'qk':
            sc.place(-1, lambda q: [q('v_mov_b32 %s, 0x3f803f80' % R(x4, k)) for k in range(4)])
            for j in range(14):
                for qs in range(2): sc.place(16 * (j + 2) + 1 + 2 * qs, lmf(j, qs))
        if qkst:
            for i_, s_ in enumerate(qkst): sc.place(s_, lambda q, i_=i_: q.stamp(40 + i_))
        sc.emit(p)
        p.stamp(9)
        pv = [(T, hh, jj, b) for T in range(4) for hh in range(2) for jj in range(8) for b in range(2)]
        sc = Sched()
        for n, (T, hh, jj, b) in enumerate(pv):
            for qs in range(2):
                d = R(accO[T % 2], b * 8 + qs * 4, 4)
                sc.mfma('v_mfma_f32_16x16x32_bf16 %s, %s, %s, %s' % (d, R(fr[(128 + n) % NRA], 0, 4), R(P[8 * hh + jj][qs], 0, 4), '0' if (hh == 0 and jj == 0) else d))
        place_reads(sc, 128, lambda n: slot(10 + n // 16) + (n % 16) * 1024, lambda n: 10 + n // 16, 128)
        l0, l1 = R(v_l[0]), R(v_l[1])
        def mid(q):
            if LMF == 'qk':
                for qs in range(2): q(lmf(14, qs))
            for o in softmax_ops(15, False, False): q(o)
            if LMF == 'qk':
                for qs in range(2): q(lmf(15, qs))
                guard(q)
                return
            if LMF:
                for k in range(4): q('v_mov_b32 %s, 0x3f803f80' % R(x4, k))
                return
            for x, y in zip(xl_red(l0, t[0], 'v_add_f32'), xl_red(l1, t[2], 'v_add_f32')): q(x); q(y)
            guard(q)
        def guard(q):
            if LMF == 'qk':
                q('v_mov_b32 %s, %s' % (l0, R(SP, 0))); q('v_mov_b32 %s, %s' % (l1, R(SP, 4)))
            elif LMF:
                q('v_mov_b32 %s, %s' % (l0, R(negm, 0))); q('v_mov_b32 %s, %s' % (l1, R(negm, 4)))
            q('v_max_f32 %s, %s, %s' % (t[1], l0, l1))
            q('v_readfirstlane_b32 s17, %s' % R(v_kvoff))
            q('s_cmp_eq_u32 s17, s28'); q('s_cselect_b32 s16, 0, 0x%x' % f2u(2.0 ** 100))
            q('v_cmp_ngt_f32 vcc, s16, %s' % t[1])
            q('v_cmp_u_f32 s[76:77], %s, %s' % (l0, l1))
            q('s_or_b64 vcc, vcc, s[76:77]')
            lab = '%s_fix%s' % (name, role)
            q('s_cbranch_vccnz %s' % lab)
            q.label(lab + 'b')
            q('v_rcp_f32 %s, %s' % (l0, l0)); q('v_rcp_f32 %s, %s' % (l1, l1))
            q('s_lshl_b32 s25, s13, 3'); q('s_add_u32 s25, s25, s3'); q('s_lshl_b32 s25, s25, 18')
            q('s_lshl_b32 s26, s12, 12'); q('s_add_u32 s25, s25, s26'); q('s_add_u32 s25, s25, 0x%x' % WS_O)
            q('s_add_u32 s26, s25, 131072')
            q('s_lshl_b32 s63, s13, 3'); q('s_add_u32 s63, s63, s3'); q('s_lshl_b32 s63, s63, 5'); q('s_add_u32 s63, s63, s12'); q('s_lshl_b32 s63, s63, 2')
            z = Prog()
            z.label(lab); z.flush()
            z('s_lshr_b32 s16, s12, 3'); z('s_lshl_b32 s16, s16, 17'); z('s_add_u32 s16, s16, 0x%x' % WS_KF)
            z('v_add_u32 %s, s16, %s' % (R(v_kvoff), l16))
            z('v_mov_b32 %s, 0xff7fffff' % ms[0]); z('v_mov_b32 %s, 0xff7fffff' % ms[1])
            KF = [sub(S[1], 4 * i) for i in range(4)]
            def ktile(z, j, cz):
                for hf in range(2):
                    z('s_mov_b32 s17, 0x%x' % (j * 8192 + hf * 4096))
                    for i in range(4): z('buffer_load_dwordx4 %s, %s, %s, s17 offen offset:%d' % (R(KF[i], 0, 4), R(v_kvoff), sr(S_WS), i * 1024))
                    for i in range(4):
                        for m_ in mf_k(S[0], hf * 4 + i, R(KF[i], 0, 4), cz): z(m_)
            z('s_mov_b32 s16, 0')
            z.loop_begin(); z.label(lab + 'm')
            for hf in range(2):
                z('s_add_u32 s17, s16, %d' % (hf * 4096))
                for i in range(4): z('buffer_load_dwordx4 %s, %s, %s, s17 offen offset:%d' % (R(KF[i], 0, 4), R(v_kvoff), sr(S_WS), i * 1024))
                for i in range(4):
                    for m_ in mf_k(S[0], hf * 4 + i, R(KF[i], 0, 4), True): z(m_)
            for r in range(0, 16, 2): z('v_max3_f32 %s, %s, %s, %s' % (ms[(r // 4) % 2], ms[(r // 4) % 2], R(S[0], r), R(S[0], r + 1)))
            z('s_add_u32 s16, s16, 8192'); z('s_cmp_lt_u32 s16, 0x20000'); z('s_cbranch_scc1 %sm' % lab)
            z.loop_end()
            for o in finish_max(ms, m2s): z(o)
            for j in range(16):
                ktile(z, j, False)
                for o in softmax_ops(j, False, j == 0, S[0], lsum=True): z(o)
            for x, y in zip(xl_red(l0, t[0], 'v_add_f32'), xl_red(l1, t[2], 'v_add_f32')): z(x); z(y)
            if LMF is True:
                z.flush()
                z('s_lshr_b32 s16, s12, 3'); z('s_lshl_b32 s16, s16, 17'); z('s_add_u32 s16, s16, 0x%x' % WS_VF)
                z('v_add_u32 %s, s16, %s' % (R(v_kvoff), l16))
                for j2 in range(0, 16, 2):
                    z('s_mov_b32 s17, 0x%x' % (j2 * 2048))
                    for i in range(4): z('buffer_load_dwordx4 %s, %s, %s, s17 offen offset:%d' % (R(KF[i], 0, 4), R(v_kvoff), sr(S_WS), i * 1024))
                    for i in range(4):
                        j_, b_ = j2 + i // 2, i % 2
                        for qs in range(2):
                            d = R(accO[0], b_ * 8 + qs * 4, 4)
                            z('v_mfma_f32_16x16x32_bf16 %s, %s, %s, %s' % (d, R(KF[i], 0, 4), R(P[j_][qs], 0, 4), '0' if j_ == 0 else d))
            z.flush()
            z('s_branch %sb' % lab)
            rare.append(z)
        sc.place(-1, mid)
        if LMF is True:
            for j in range(16):
                for qs in range(2):
                    d = R(negm, 4 * qs, 4)
                    sc.place(4 * j + 1 + 2 * qs, 'v_mfma_f32_16x16x32_bf16 %s, %s, %s, %s' % (d, R(x4, 0, 4), R(P[j][qs], 0, 4), '0' if j == 0 else d))
            sc.place(63, guard)
        def ostore(T):
            ops = []
            a = accO[T % 2]
            for qs in range(2):
                for b in range(2):
                    for k in range(4): ops.append(('v_mul_f32 %s, %s, %s' % (R(a, b * 8 + qs * 4 + k), R(a, b * 8 + qs * 4 + k), R(v_l[qs])), None))
                for b in range(2):
                    for k in range(0, 4, 2):
                        ops.append(('v_cvt_pk_bf16_f32 %s, %s, %s' % (R(stg[qs], b * 2 + k // 2), R(a, b * 8 + qs * 4 + k), R(a, b * 8 + qs * 4 + k + 1)), None))
                ops.append(('buffer_store_dwordx4 %s, %s, %s, %s offen offset:%d sc1' % (R(stg[qs], 0, 4), l16, sr(S_WS), 's26' if qs else 's25', T * 1024), 'ost%d' % T))
            return ops
        for T in range(3):
            ops = ostore(T)
            lo = 64 * (T + 1) + 3
            for i, (o, tag) in enumerate(ops):
                if T == 2 and OST2_LATE and o.startswith('buffer_store'): sc.place(252 + (tag is None) + (i > 13), o, tag)
                else: sc.place(lo + OST_SP * i, o, tag)
        if not A_ and do_wd and WD_AT >= 0: sc.place(WD_AT, wd_loads)
        if not A_ and wopf_pv is not None:
            def wo_pf2(q):
                mk_srd(q, S_D, 'wo', 0x800000)
                q('v_lshlrev_b32 %s, 7, %s' % (t[5], lane))
                q('s_lshl_b32 s16, s2, 2'); q('s_add_u32 s16, s16, s3'); q('s_sub_u32 s16, s16, 4'); q('s_lshl_b32 s16, s16, 13')
                q('buffer_load_dword %s, %s, %s, s16 offen' % (t[4], t[5], sr(S_D)), 'pf')
            sc.place(wopf_pv, wo_pf2)
        if A_: mc_final(sc)
        for T_, at_ in enumerate(OF_AT):
            if at_ < 1000: sc.place(at_, lambda q, T_=T_: oflag(q, T_))
        ks_ = 0 if A_ else 1
        sc.place(P3_AT[0], lambda q: p3_setup(q, ks_))
        sc.place(P3_AT[1], lambda q: rare_poll(q, 'o', lambda z: z('v_cmp_ne_u32 vcc, s28, %s' % of2), of_load))
        k_ = 0
        for s_ in range(PO - 1):
            for qs in range(2):
                for l_ in oload(s_, qs): sc.place(P3_AT[1] + 1 + (29 * k_) // (2 * (PO - 1)), l_)
                k_ += 1
        for i_, o_ in enumerate(p3_addr(ks_)): sc.place(248 + i_ // 2, o_)
        if pvst:
            for i_, s_ in enumerate(pvst): sc.place(s_, lambda q, i_=i_: q.stamp(50 + i_))
        sc.emit(p)
        for o, tag in ostore(3): p(o, tag)
        p.stamp(10)

    gu_defer = []
    last_ostore = [None]
    def oflag(q, T):
        q.wait_tag('ost%d' % T)
        q('s_add_u32 s16, s63, 0x%x' % (WS_OFLAG + T * 8192))
        a_, b_ = (R(x4, 2), R(x4, 3)) if T > 0 else (R(v_hoff), R(v_kvoff))
        q('v_mov_b32 %s, s28' % a_); q('v_mov_b32 %s, 0' % b_)
        q('s_mov_b64 exec, 1')
        q('buffer_store_dword %s, %s, %s, s16 offen sc1' % (a_, b_, sr(S_WS)))
        q('s_mov_b64 exec, -1')
    def gu_late(sc):
        def setup(q):
            mk_srd(q, S_D, 'wu', 7340032)
            q('s_cmp_lt_u32 s2, 224'); q('s_cselect_b32 s74, 7340032, 0')
            q('s_sub_u32 s16, s3, 4')
            q('v_lshrrev_b32 %s, 3, %s' % (t[4], lane)); q('v_lshlrev_b32 %s, 3, %s' % (t[4], t[4]))
            q('s_lshl_b32 s17, s16, 6'); q('v_add_u32 %s, s17, %s' % (t[4], t[4]))
            q('s_mov_b32 s17, 7168'); q('v_mul_lo_u32 %s, s17, %s' % (t[5], t[4]))
            q('v_and_b32 %s, 7, %s' % (t[4], lane)); q('v_lshl_add_u32 %s, %s, 4, %s' % (t[5], t[4], t[5]))
            q('s_and_b32 s17, s29, 3'); q('s_mul_i32 s18, s17, %d' % (256 * 7168))
            q('s_lshr_b32 s17, s29, 2'); q('s_lshl_b32 s17, s17, 7'); q('s_add_u32 s18, s18, s17')
            q('s_lshl_b32 s16, s16, 13')
            for i in range(8):
                q('s_add_u32 s22, s18, %d' % (i * 7168))
                q('s_add_u32 m0, s16, %d' % (32768 + i * 1024))
                q('buffer_load_dwordx4 %s, %s, s22 offen lds' % (t[5], sr(S_D)), 'gu')
        sc.place(GU3_AT, setup)
    def wd_loads(q, rows=(0, 1, 2, 3)):
        mk_srd(q, S_D, 'wd', 7340032)
        q('s_cmp_lt_u32 s2, 224'); q('s_cselect_b32 s74, 7340032, 0')
        q('s_lshl_b32 s17, s29, 4'); q('s_sub_u32 s16, s3, 4'); q('s_lshl_b32 s16, s16, 2'); q('s_add_u32 s16, s16, s17'); q('s_lshl_b32 s16, s16, 11')
        for i in rows:
            q('s_add_u32 s17, s16, %d' % (i * 2048))
            for hf in range(2):
                q('buffer_load_dwordx4 %s, %s, %s, s17 offen offset:%d' % (R(WD[2 * i + hf], 0, 4), l16, sr(S_D), hf * 1024))

    XROW = negm; MOD = SS; GA = SP
    MSB, MC1, MGB, MWR = 0, 8, 16, 24
    MODL = RING1 + 16384
    def phase3(role):
        A_ = role == 'A'; ks = 0 if A_ else 1
        p('s_and_b32 s15, s2, 1')
        def rd(f):
            s, n = f // 8, f % 8
            k = (W0 + s) % NSL
            if k < 4: return trread(fr[f % NRA], k * 16384, n, R(v_tr), R(v_tr2))
            return trread(fr[f % NRA], (k - 4) * 16384, n, R(v_hoff), R(v_kvoff))
        sc = Sched()
        NF = 256
        for T_, at_ in enumerate(OF_AT):
            if at_ >= 1000: sc.place(at_ - 1000, lambda q, T_=T_: oflag(q, T_))
        for f in range(NF):
            s, n = f // 8, f % 8
            for qs in range(2):
                d = R(acc3[n][qs], 0, 4)
                sc.mfma('v_mfma_f32_16x16x32_bf16 %s, %s, %s, %s' % (d, R(fr[f % NRA], 0, 4), R(OB[s % PO][qs], 0, 4), '0' if s == 0 else d))
        for f in range(NF):
            at = 2 * (f - D3) + 1 if f - D3 >= 0 else -1
            s, n = f // 8, f % 8
            if n == 0:
                c = W0 + s
                sc.place(at, lambda q, c=c: q.wait_tag('ch%d' % c))
                sc.place(at, 's_barrier')
                if c + 4 < W0 + 32:
                    nx = dma_chunk(c + 4)
                    for q_ in range(2):
                        for it, tag in nx[3 * q_:3 * q_ + 3]: sc.place(max(at, 0) + (P3D if A_ or not P3B else P3B[0])[0] + (P3D if A_ or not P3B else P3B[0])[1] * q_, it, tag)
            tr = rd(f)
            if at > 0 and n != 0:
                sc.place(at - 1, tr[0]); sc.place(at, tr[1])
            else:
                for x in tr: sc.place(at, x)
        for s in range(32):
            sn = s + PO - 1
            if sn < 32:
                for qs in range(2):
                    for l_ in oload(sn, qs): sc.place(16 * s + (P3O if A_ or not P3B else P3B[1])[0] + (P3O if A_ or not P3B else P3B[1])[1] * qs, l_)
        fl = sub(SS, 0)
        def mfl(q):
            q('s_mov_b32 s16, 0x%x' % WS_MFLAG)
            q('buffer_load_dwordx4 %s, %s, %s, s16 offen sc1' % (R(fl, 0, 4), l16, sr(S_WS)))
        def mft(q):
            q('v_xor_b32 %s, s28, %s' % (t[0], R(fl, 0))); q('v_xor_b32 %s, s28, %s' % (t[1], R(fl, 1)))
            q('v_xor_b32 %s, s28, %s' % (t[2], R(fl, 2))); q('v_xor_b32 %s, s28, %s' % (t[3], R(fl, 3)))
            q('v_or3_b32 %s, %s, %s, %s' % (t[0], t[0], t[1], t[2])); q('v_or_b32 %s, %s, %s' % (t[0], t[0], t[3]))
            q('v_cmp_ne_u32 vcc, 0, %s' % t[0])
        for T_ in range(1, 4):
            chk = 8 * T_ - (PO - 1)
            sc.place(16 * (chk - 2) + 9, lambda q: (q('s_add_u32 s19, s19, 8192'), of_load(q)))
            sc.place(16 * chk - 1, lambda q: rare_poll(q, 'o2', lambda z: z('v_cmp_ne_u32 vcc, s28, %s' % of2), of_load))
        sc.place(16 * mf_at[0] + 5, mfl)
        if mc_comp: sc.place(16 * mf_at[1] + 5, lambda q: rare_poll(q, 'mf', mft, mfl))
        def side(q):
            q('v_lshrrev_b32 %s, 4, %s' % (t[0], lane)); q('v_lshlrev_b32 %s, 3, %s' % (t[0], t[0]))
            q('s_lshl_b32 s16, s31, 8'); q('s_add_u32 s16, s16, 0x%x' % (WS_MODB + ks * 128))
            for i in range(4):
                q('buffer_load_dwordx2 %s, %s, %s, s16 offen offset:%d sc1' % (R(GA, 2 * i, 2), t[0], sr(S_WS), i * 32))
        sc.place(16 * mf_at[2] + 5, side)
        def side2(q):
            mk_srd(q, S_B, 'wr', 2048); mk_srd(q, S_E, 'x', 4194304); mk_srd(q, S_C, 'out', 4194304)
            q('s_lshl_b32 s14, s31, 1'); q('s_add_u32 s14, s14, s15'); q('s_lshl_b32 s14, s14, 3'); q('s_add_u32 s14, s14, s3')
            q('s_lshl_b32 s16, s30, 7'); q('s_add_u32 s14, s14, s16')
            q('s_lshl_b32 s16, s14, 11')
            for hf in range(2): q('buffer_load_dwordx4 %s, %s, %s, s16 offen offset:%d' % (R(XROW, 4 * hf, 4), l16, sr(S_E), hf * 1024))
            if MODL_ON:
                q('s_lshl_b32 s16, s3, 10'); q('s_add_u32 m0, s16, %d' % MODL)
                if role == 'A':
                    q('s_add_u32 s16, s16, 0x%x' % (WS_MODB + 2048))
                    q('buffer_load_dwordx4 %s, %s, s16 offen sc1 lds' % (l16, sr(S_WS)), 'ml')
                else:
                    q('s_add_u32 s17, s16, 0x%x' % (WS_MODB + 2048)); q('s_cmp_lt_u32 s3, 6'); q('s_cselect_b32 s17, s17, 0x%x' % OOB)
                    q('s_sub_u32 s23, s16, 6144'); q('s_cmp_ge_u32 s3, 6'); q('s_cselect_b32 s23, s23, 0x%x' % OOB)
                    q('s_cbranch_scc1 %s_mlw' % name)
                    q.alt_begin()
                    q('buffer_load_dwordx4 %s, %s, s17 offen sc1 lds' % (l16, sr(S_WS)), 'ml')
                    q('s_branch %s_mlj' % name)
                    q.alt_next()
                    q.label('%s_mlw' % name)
                    q('buffer_load_dwordx4 %s, %s, s23 offen lds' % (l16, sr(S_B)), 'ml')
                    q.alt_end()
                    q.label('%s_mlj' % name)
            else:
                for off, mo in ((2048, MSB), (4096, MC1), (6144, MGB)):
                    q('s_mov_b32 s16, 0x%x' % (WS_MODB + off))
                    for hf in range(2): q('buffer_load_dwordx4 %s, %s, %s, s16 offen offset:%d%s' % (R(MOD, mo + 4 * hf, 4), l16, sr(S_WS), hf * 1024, modsc))
                for hf in range(2): q('buffer_load_dwordx4 %s, %s, %s, 0 offen offset:%d' % (R(MOD, MWR + 4 * hf, 4), l16, sr(S_B), hf * 1024))
        if mf_at[3] < 32: sc.place(16 * mf_at[3] + 5, side2)
        if not A_ and WD_AT <= -1000: sc.place(-WD_AT - 1000, wd_loads)
        if not A_ and GU3_AT is not None and GU3_AT >= 0:
            gu_late(sc)
        if p3st:
            for i_, s_ in enumerate(p3st): sc.place(int(16 * s_), lambda q, i_=i_: q.stamp(30 + i_))
        sc.emit(p)
        p.stamp(13)
        XB = RING1 + 2 * 16384
        p('s_lshl_b32 s16, s3, 13'); p('s_xor_b32 s17, s16, 0x8000'); p('s_add_u32 s16, s16, 0x%x' % XB); p('s_add_u32 s17, s17, 0x%x' % XB)
        p('v_add_u32 %s, s16, %s' % (t[0], l16))
        p('s_mov_b32 s16, s17')
        p('v_add_u32 %s, s16, %s' % (t[1], l16))
        o_ = 4 * (1 - ks)
        for i in range(4):
            for qs in range(2): p('ds_write_b128 %s, %s offset:%d' % (t[0], R(acc3[o_ + i][qs], 0, 4), (i * 2 + qs) * 1024))
        gaf = sub(PR, 0)
        for i in range(4):
            for d in range(2): unpack(p, R(gaf, 4 * i + 2 * d), R(gaf, 4 * i + 2 * d + 1), R(GA, 2 * i + d))
        p('v_and_b32 %s, 15, %s' % (t[2], lane)); p('v_lshlrev_b32 %s, 6, %s' % (t[2], t[2]))
        p('v_lshrrev_b32 %s, 4, %s' % (t[3], lane))
        p('v_and_b32 %s, 1, %s' % (t[4], t[3])); p('v_lshl_add_u32 %s, %s, 5, %s' % (t[2], t[4], t[2]))
        p('v_lshrrev_b32 %s, 1, %s' % (t[3], t[3])); p('v_lshl_add_u32 %s, %s, 4, %s' % (t[2], t[3], t[2]))
        p('s_and_b32 s17, s3, 3'); p('s_lshl_b32 s18, s30, 2'); p('s_add_u32 s18, s18, s17'); p('s_lshl_b32 s18, s18, 16')
        p('s_lshl_b32 s19, s15, 22'); p('s_add_u32 s18, s18, s19'); p('s_lshl_b32 s19, s31, 12'); p('s_add_u32 s18, s18, s19')
        p('s_add_u32 s18, s18, 0x%x' % (WS_AP + ks * 2048)); p('s_add_u32 s19, s18, 32768')
        p('s_waitcnt lgkmcnt(0)')
        p('s_barrier')
        p.stamp(22)
        rx = [sub(PR, 16 + 4 * i) for i in range(8)]
        for i in range(4):
            for qs in range(2): p('ds_read_b128 %s, %s offset:%d' % (R(rx[i * 2 + qs], 0, 4), t[1], (i * 2 + qs) * 1024))
        st4 = [sub(FR, 4 * i) for i in range(4)]
        for mm in range(2):
            for qs in range(2):
                q4 = st4[mm * 2 + qs]
                for b in range(2):
                    i = 2 * mm + b
                    a = acc3[4 * ks + i][qs]
                    for k in range(0, 4, 2): p('v_pk_add_f32 %s, %s, %s' % (R(a, k, 2), R(a, k, 2), R(rx[i * 2 + qs], k, 2)))
                    for k in range(0, 4, 2): p('v_pk_mul_f32 %s, %s, %s' % (R(a, k, 2), R(a, k, 2), R(gaf, 4 * i + k, 2)))
                    for k in range(0, 4, 2): p('v_cvt_pk_bf16_f32 %s, %s, %s' % (R(q4, 2 * b + k // 2), R(a, k), R(a, k + 1)))
                for d in range(2): p('v_permlane16_swap_b32 %s, %s' % (R(q4, d), R(q4, 2 + d)))
                p('buffer_store_dwordx4 %s, %s, %s, %s offen offset:%d sc1' % (R(q4, 0, 4), t[2], sr(S_WS), 's19' if qs else 's18', mm * 1024), 'ap')
        if mf_at[3] >= 32: side2(p)
        if not A_ and GU3_AT == -1:
            class _S:
                def place(self, at, f): f(p)
            gu_late(_S())
        if not A_ and WD_AT == -1: wd_loads(p)
        if not A_ and WD_AT == -3: wd_loads(p, (0, 1))
        p.stamp(14)

    def tail(role):
        A_ = role == 'A'; ks = 0 if A_ else 1
        T = RA('v', PR[1], PR[1] + 128)
        gr = T.alloc(4, 4); xf = T.alloc(16, 4); raw = T.alloc(16, 4); uf = T.alloc(16, 4)
        u8 = T.alloc(8, 4); acc = T.alloc(8, 4); fin = T.alloc(8, 4); sl = T.alloc(8, 4)
        w = [sub(uf, 4 * i) for i in range(4)] + [T.alloc(4, 4) for _ in range(4)]
        LB = RING1
        L_KEY = LB; L_BEST = LB + 256; L_XS = LB + 1024; L_X2 = LB + 3072; L_GS = LB + 5120; L_YS = LB + 8192; L_RS = LB + 24576 + 1024
        a0, a1, b0, b1 = R(u8, 0), R(u8, 1), R(u8, 2), R(u8, 3)
        a01, b01 = R(u8, 0, 2), R(u8, 2, 2)
        b0v = R(fin, 2)
        usum = R(fin, 3)
        def products():
            p('v_mov_b32 %s, 0' % b0v); p('v_mov_b32 %s, 0' % usum)
            for d in range(8):
                unpack(p, a0, a1, R(MOD, MC1 + d)); unpack(p, b0, b1, R(MOD, MWR + d))
                p('v_pk_mul_f32 %s, %s, %s' % (R(uf, 2 * d, 2), a01, b01))
                unpack(p, a0, a1, R(MOD, MSB + d))
                p('v_fmac_f32 %s, %s, %s' % (b0v, a0, b0)); p('v_fmac_f32 %s, %s, %s' % (b0v, a1, b1))
                p('v_add_f32 %s, %s, %s' % (usum, usum, R(uf, 2 * d))); p('v_add_f32 %s, %s, %s' % (usum, usum, R(uf, 2 * d + 1)))
            for n in (1, 2, 4, 8):
                ror_add(p, b0v, n); ror_add(p, usum, n)
            xor16_add(p, b0v, a0); xor16_add(p, usum, a1); xor32_add(p, b0v, a0); xor32_add(p, usum, a1)
            for d in range(8): unpack(p, R(xf, 2 * d), R(xf, 2 * d + 1), R(XROW, d))
        if not MODL_ON: products()
        if AP_WG:
            p('s_lshl_b32 s16, s30, 5'); p('s_lshl_b32 s17, s31, 1'); p('s_add_u32 s16, s16, s17'); p('s_add_u32 s16, s16, s15')
            p('s_lshl_b32 s16, s16, 2'); p('s_add_u32 s16, s16, 0x%x' % WS_AFLAG)
            p('s_cmp_eq_u32 s3, 0'); p('s_cselect_b32 s16, s16, 0x%x' % OOB)
        else:
            p('s_and_b32 s17, s3, 3'); p('s_lshl_b32 s16, s30, 2'); p('s_add_u32 s16, s16, s17'); p('s_lshl_b32 s16, s16, 5')
            p('s_lshl_b32 s17, s31, 2'); p('s_add_u32 s16, s16, s17'); p('s_lshl_b32 s17, s15, 1'); p('s_add_u32 s16, s16, s17')
            p('s_add_u32 s16, s16, %d' % ks); p('s_lshl_b32 s16, s16, 2'); p('s_add_u32 s16, s16, 0x%x' % WS_AFLAG)
        p('v_mov_b32 %s, s28' % t[0]); p('v_mov_b32 %s, 0' % t[1])
        p('s_lshr_b32 s18, s14, 4'); p('s_lshl_b32 s18, s18, 15'); p('s_and_b32 s19, s14, 15'); p('s_lshl_b32 s19, s19, 6')
        p('s_add_u32 s18, s18, s19'); p('s_add_u32 s18, s18, 0x%x' % WS_AP); p('s_add_u32 s19, s18, 16384')
        p('v_lshrrev_b32 %s, 2, %s' % (t[2], lane)); p('v_lshlrev_b32 %s, 10, %s' % (t[2], t[2]))
        p('v_and_b32 %s, 3, %s' % (t[3], lane)); p('v_lshl_add_u32 %s, %s, 4, %s' % (t[2], t[3], t[2]))
        p('v_add_u32 %s, 0x400000, %s' % (t[3], t[2]))
        if AP_WG:
            p('s_lshl_b32 s25, s30, 7'); p('s_add_u32 s25, s25, 0x%x' % WS_AFLAG)
            p('v_and_b32 %s, 15, %s' % (t[4], lane)); p('v_lshlrev_b32 %s, 2, %s' % (t[4], t[4]))
        else:
            p('s_lshr_b32 s25, s14, 5'); p('s_lshl_b32 s25, s25, 7'); p('s_add_u32 s25, s25, 0x%x' % WS_AFLAG)
            p('v_and_b32 %s, 31, %s' % (t[4], lane)); p('v_lshlrev_b32 %s, 2, %s' % (t[4], t[4]))
        p.wait_tag('ap')
        if MODL_ON: p.wait_tag('ml')
        if AP_WG: p('s_barrier')
        p('s_mov_b64 exec, 1')
        p('buffer_store_dword %s, %s, %s, s16 offen sc1' % (t[0], t[1], sr(S_WS)))
        p('s_mov_b64 exec, -1')
        if MODL_ON:
            assert AP_WG
            p('v_add_u32 %s, %d, %s' % (t[0], MODL, l16))
            for k in range(8): p('ds_read_b128 %s, %s offset:%d' % (R(MOD, 4 * k, 4), t[0], k * 1024))
            products()
        p.stamp(15)
        backoff(p, 'a')
        poll(p, 'a', lambda: p('buffer_load_dword %s, %s, %s, s25 offen sc1' % (a0, t[4], sr(S_WS))),
             lambda: p('v_cmp_ne_u32 vcc, s28, %s' % a0))
        for hf in range(2):
            p('buffer_load_dwordx4 %s, %s, %s, s%d offen sc1' % (R(raw, 4 * hf, 4), t[2], sr(S_WS), 18 + hf))
            p('buffer_load_dwordx4 %s, %s, %s, s%d offen sc1' % (R(raw, 8 + 4 * hf, 4), t[3], sr(S_WS), 18 + hf))
        p('v_lshlrev_b32 %s, 2, %s' % (t[5], tid))
        p('s_mov_b32 s16, 0x%x' % (WS_MODB + 2048))
        p('buffer_load_dword %s, %s, %s, s16 offen sc1' % (R(sl, 6), t[5], sr(S_WS)))
        p('buffer_load_dword %s, %s, %s, s16 offen offset:2048 sc1' % (R(sl, 4), t[5], sr(S_WS)))
        p.stamp(16)
        for d in range(8):
            k = (d % 2) * 4
            A0, A1, B0_, B1 = [R(u8, k + i) for i in range(4)]
            unpack(p, A0, A1, R(raw, d)); unpack(p, B0_, B1, R(raw, 8 + d))
            p('v_pk_add_f32 %s, %s, %s' % (R(u8, k, 2), R(u8, k, 2), R(u8, k + 2, 2)))
            p('v_pk_add_f32 %s, %s, %s' % (R(xf, 2 * d, 2), R(xf, 2 * d, 2), R(u8, k, 2)))
            rb2(p, R(xf, 2 * d), R(xf, 2 * d + 1), t[d % 2])
        mean, var, s3v, rcp = R(fin, 4), R(fin, 5), R(fin, 6), R(fin, 7)
        c01 = R(u8, 4, 2)
        p('v_pk_add_f32 %s, %s, %s' % (a01, R(xf, 0, 2), R(xf, 2, 2)))
        p('v_pk_mul_f32 %s, %s, %s' % (b01, R(xf, 0, 2), R(xf, 0, 2)))
        p('v_pk_mul_f32 %s, %s, %s' % (c01, R(xf, 0, 2), R(uf, 0, 2)))
        p('v_pk_fma_f32 %s, %s, %s, %s' % (b01, R(xf, 2, 2), R(xf, 2, 2), b01))
        p('v_pk_fma_f32 %s, %s, %s, %s' % (c01, R(xf, 2, 2), R(uf, 2, 2), c01))
        for d in range(2, 8):
            p('v_pk_add_f32 %s, %s, %s' % (a01, a01, R(xf, 2 * d, 2)))
            p('v_pk_fma_f32 %s, %s, %s, %s' % (b01, R(xf, 2 * d, 2), R(xf, 2 * d, 2), b01))
            p('v_pk_fma_f32 %s, %s, %s, %s' % (c01, R(xf, 2 * d, 2), R(uf, 2 * d, 2), c01))
        p('v_add_f32 %s, %s, %s' % (mean, a0, a1)); p('v_add_f32 %s, %s, %s' % (var, b0, b1)); p('v_add_f32 %s, %s, %s' % (s3v, R(u8, 4), R(u8, 5)))
        for n in (1, 2, 4, 8):
            ror_add(p, mean, n); ror_add(p, var, n); ror_add(p, s3v, n)
        xor16_add(p, mean, a0); xor16_add(p, var, a1); xor16_add(p, s3v, b0)
        xor32_add(p, mean, a0); xor32_add(p, var, a1); xor32_add(p, s3v, b0)
        p('v_mul_f32 %s, 0x%x, %s' % (mean, f2u(1.0 / 1024), mean))
        p('v_mul_f32 %s, 0x%x, %s' % (var, f2u(1.0 / 1024), var))
        p('v_fma_f32 %s, -%s, %s, %s' % (var, mean, mean, var))
        p('v_max_f32 %s, 0, %s' % (var, var))
        p('v_fma_f32 %s, -%s, %s, %s' % (s3v, mean, usum, s3v))
        p('v_add_f32 %s, 0x%x, %s' % (a0, f2u(1e-5), var))
        p('v_rsq_f32 %s, %s' % (a0, a0))
        p('v_fma_f32 %s, %s, %s, %s' % (R(gr, 3), s3v, a0, b0v))
        sd = s3v
        ln_scalars(p, mean, var, sd, rcp)
        p('v_mov_b32 %s, %s' % (R(gr, 1), mean))
        p('v_mov_b32 %s, %s' % (R(gr, 2), sd))
        p('v_ashrrev_i32 %s, 31, %s' % (t[0], R(gr, 3)))
        p('v_or_b32 %s, 0x80000000, %s' % (t[0], t[0]))
        p('v_xor_b32 %s, %s, %s' % (R(gr, 0), R(gr, 3), t[0]))
        p('v_and_b32 %s, 0xfffff800, %s' % (R(gr, 0), R(gr, 0)))
        p('v_max_u32 %s, 0x800, %s' % (R(gr, 0), R(gr, 0)))
        p('s_sub_u32 s16, 2047, s14')
        p('v_or_b32 %s, s16, %s' % (R(gr, 0), R(gr, 0)))
        p('s_lshl_b32 s16, s3, 4'); p('s_add_u32 s16, s16, %d' % L_KEY)
        p('v_mov_b32 %s, s16' % t[0])
        p('ds_write_b128 %s, %s' % (t[0], R(gr, 0, 4)))
        p('s_waitcnt lgkmcnt(0)')
        p('s_barrier')
        def best_of(ldsoff, n):
            p('v_and_b32 %s, %d, %s' % (t[0], n - 1, lane))
            p('v_lshlrev_b32 %s, 4, %s' % (t[0], t[0])); p('v_add_u32 %s, %d, %s' % (t[0], ldsoff, t[0]))
            p('ds_read_b32 %s, %s' % (a0, t[0]))
            p('v_mov_b32 %s, %s' % (a1, a0))
            for k in ((1, 2, 4) if n == 8 else (1, 2)): ror_add(p, a1, k, 'v_max_u32')
            p('v_cmp_eq_u32 vcc, %s, %s' % (a0, a1))
            p('s_ff1_i32_b64 s16, vcc')
            p('s_lshl_b32 s16, s16, 4'); p('s_add_u32 s16, s16, %d' % ldsoff)
            p('v_mov_b32 %s, s16' % t[0])
            p('ds_read_b128 %s, %s' % (R(gr, 0, 4), t[0]))
        best_of(L_KEY, 8)
        p('s_lshl_b32 s16, s2, 4'); p('s_add_u32 s16, s16, 0x%x' % WS_KEY)
        p('s_cmp_eq_u32 s3, 0'); p('s_cselect_b32 s16, s16, 0x%x' % OOB)
        p('v_mov_b32 %s, 0' % t[1])
        p('s_mov_b64 exec, 1')
        p('buffer_store_dwordx4 %s, %s, %s, s16 offen sc1' % (R(gr, 0, 4), t[1], sr(S_WS)))
        p('s_mov_b64 exec, -1')
        if not A_ and WD_AT == -2: wd_loads(p)
        if not A_ and WD_AT == -3: wd_loads(p, (2, 3))
        p.stamp(17)
        for hf in range(2):
            X = [R(raw, i) for i in range(8)]
            c1 = [R(raw, 8 + i) for i in range(8)]
            for i in range(8): p('v_sub_f32 %s, %s, %s' % (X[i], R(xf, 8 * hf + i), mean))
            for i in range(0, 8, 2): rb2(p, X[i], X[i + 1], t[0])
            for i in range(8): p('v_mul_f32 %s, %s, %s' % (c1[i], X[i], rcp))
            for i in range(8): p('v_fma_f32 %s, -%s, %s, %s' % (X[i], c1[i], sd, X[i]))
            for i in range(8): p('v_fma_f32 %s, %s, %s, %s' % (X[i], X[i], rcp, c1[i]))
            for i in range(0, 8, 2): rb2(p, X[i], X[i + 1], t[0])
            for op, mo in (('v_pk_mul_f32', MC1), ('v_pk_add_f32', MSB), ('v_pk_mul_f32', MGB)):
                for d in range(4): unpack(p, c1[2 * d], c1[2 * d + 1], R(MOD, mo + 4 * hf + d))
                for d in range(4): p('%s %s, %s, %s' % (op, R(raw, 2 * d, 2), R(raw, 2 * d, 2), R(raw, 8 + 2 * d, 2)))
                for i in range(0, 8, 2): rb2(p, X[i], X[i + 1], t[0])
            for d in range(4): p('v_pk_add_f32 %s, %s, %s' % (R(raw, 2 * d, 2), R(raw, 2 * d, 2), R(xf, 8 * hf + 2 * d, 2)))
            for d in range(4): p('v_cvt_pk_bf16_f32 %s, %s, %s' % (R(xf, 8 * hf + d), X[2 * d], X[2 * d + 1]))
        if A_:
            p('v_lshlrev_b32 %s, 4, %s' % (t[2], tid))
            p('s_mov_b32 s16, 0x%x' % WS_KEY)
            backoff(p, 'w')
            poll(p, 'w', lambda: p('buffer_load_dwordx4 %s, %s, %s, s16 offen sc1' % (R(gr, 0, 4), t[2], sr(S_WS))),
                 lambda: p('v_cmp_eq_u32 vcc, 0, %s' % R(gr, 0)))
            p('v_mov_b32 %s, %s' % (a0, R(gr, 0)))
            for n in (1, 2, 4, 8): ror_add(p, a0, n, 'v_max_u32')
            xor16_add(p, a0, a1, 'v_max_u32'); xor32_add(p, a0, a1, 'v_max_u32')
            p('v_cmp_eq_u32 vcc, %s, %s' % (a0, R(gr, 0)))
            p('s_lshl_b32 s16, s3, 4'); p('s_add_u32 s16, s16, %d' % L_BEST)
            p('v_mov_b32 %s, s16' % t[0])
            p('s_and_saveexec_b64 s[62:63], vcc')
            p('ds_write_b128 %s, %s' % (t[0], R(gr, 0, 4)))
            p('s_mov_b64 exec, s[62:63]')
            p('s_waitcnt lgkmcnt(0)')
        p('s_barrier')
        best_of(L_BEST, 4)
        p('v_and_b32 %s, 0x7ff, %s' % (a0, R(gr, 0)))
        p('v_sub_u32 %s, 2047, %s' % (a0, a0))
        p('v_readfirstlane_b32 s12, %s' % a0)
        p('v_rcp_f32 %s, %s' % (R(sl, 3), R(gr, 2)))
        p.stamp(18)
        p('s_lshr_b32 s18, s12, 4'); p('s_lshl_b32 s18, s18, 15'); p('s_and_b32 s19, s12, 15'); p('s_lshl_b32 s19, s19, 6')
        p('s_add_u32 s18, s18, s19'); p('s_add_u32 s18, s18, 0x%x' % WS_AP); p('s_add_u32 s19, s18, 0x400000')
        p('v_lshrrev_b32 %s, 4, %s' % (t[2], tid)); p('v_lshlrev_b32 %s, 10, %s' % (t[2], t[2]))
        p('v_and_b32 %s, 15, %s' % (t[3], tid)); p('v_lshl_add_u32 %s, %s, 2, %s' % (t[2], t[3], t[2]))
        p('s_lshl_b32 s13, s12, 11')
        p('buffer_load_dword %s, %s, %s, s18 offen sc1' % (R(sl, 0), t[2], sr(S_WS)))
        p('buffer_load_dword %s, %s, %s, s19 offen sc1' % (R(sl, 1), t[2], sr(S_WS)))
        p('buffer_load_dword %s, %s, %s, s13 offen' % (R(sl, 2), t[5], sr(S_E)))
        p('s_lshl_b32 s16, s14, 11'); p('s_cmp_lg_u32 s12, s14'); p('s_cselect_b32 s16, s16, 0x%x' % OOB)
        for hf in range(2):
            p('buffer_store_dwordx4 %s, %s, %s, s16 offen offset:%d sc1' % (R(xf, 8 * hf, 4), l16, sr(S_C), hf * 1024))
        p('s_lshl_b32 s16, s3, 13'); p('v_add_u32 %s, s16, %s' % (t[4], l16))
        p.wait_tag('gu')
        X = [R(fin, 0), R(fin, 1)]
        unpack(p, a0, a1, R(sl, 0)); unpack(p, b0, b1, R(sl, 1))
        p('v_pk_add_f32 %s, %s, %s' % (a01, a01, b01))
        unpack(p, b0, b1, R(sl, 2))
        p('v_pk_add_f32 %s, %s, %s' % (R(fin, 0, 2), b01, a01))
        rb2(p, X[0], X[1], a0)
        p('v_cvt_pk_bf16_f32 %s, %s, %s' % (R(sl, 0), X[0], X[1]))
        unpack(p, R(sl, 4), R(sl, 5), R(sl, 4)); unpack(p, R(sl, 6), R(sl, 7), R(sl, 6))
        ln_apply(p, X, 2, R(gr, 1), R(gr, 2), R(sl, 3), [R(sl, 4), R(sl, 5)], [R(sl, 6), R(sl, 7)], a0, a1)
        p('v_cvt_pk_bf16_f32 %s, %s, %s' % (R(sl, 1), X[0], X[1]))
        p('v_add_u32 %s, %d, %s' % (t[0], L_XS, t[5]))
        p('ds_write_b32 %s, %s' % (t[0], R(sl, 1)))
        p('ds_write_b32 %s, %s offset:2048' % (t[0], R(sl, 0)))
        p('s_waitcnt lgkmcnt(0)')
        p('s_barrier')
        p.stamp(23)
        for i in range(8): p('ds_read_b128 %s, %s offset:%d' % (R(w[i], 0, 4), t[4], i * 1024))
        p('s_and_b32 s16, s3, 3'); p('s_lshl_b32 s16, s16, 7'); p('s_and_b32 s17, s29, 3'); p('s_lshl_b32 s17, s17, 9')
        p('s_add_u32 s16, s16, s17'); p('s_add_u32 s16, s16, %d' % L_XS)
        p('v_lshrrev_b32 %s, 3, %s' % (t[0], lane)); p('v_lshlrev_b32 %s, 4, %s' % (t[0], t[0])); p('v_add_u32 %s, s16, %s' % (t[0], t[0]))
        x8 = sub(sl, 4)
        p('ds_read_b128 %s, %s' % (R(x8, 0, 4), t[0]))
        for i in range(8):
            hi, lo = R(u8, (i % 4) * 2), R(u8, (i % 4) * 2 + 1)
            if i % 2 == 0:
                p('v_lshlrev_b32 %s, 16, %s' % (hi, R(x8, i // 2))); p('v_and_b32 %s, 0xffff, %s' % (lo, R(x8, i // 2)))
            else:
                p('v_and_b32 %s, 0xffff0000, %s' % (hi, R(x8, i // 2))); p('v_lshrrev_b32 %s, 16, %s' % (lo, R(x8, i // 2)))
            for d in range(4):
                for h, xx in ((1, hi), (0, lo)):
                    if i == 0: p('v_dot2_f32_bf16 %s, %s, %s, 0' % (R(acc, 2 * d + h), R(w[i], d), xx))
                    else: p('v_dot2c_f32_bf16 %s, %s, %s' % (R(acc, 2 * d + h), R(w[i], d), xx))
        for e in range(4): p('v_permlane32_swap_b32 %s, %s' % (R(acc, e), R(acc, 4 + e)))
        for e in range(4): p('v_add_f32 %s, %s, %s' % (R(acc, e), R(acc, e), R(acc, 4 + e)))
        for e in range(2): p('v_permlane16_swap_b32 %s, %s' % (R(acc, e), R(acc, 2 + e)))
        for e in range(2): p('v_add_f32 %s, %s, %s' % (R(acc, e), R(acc, e), R(acc, 2 + e)))
        for e in range(2): ror_add(p, R(acc, e), 8)
        p('v_and_b32 %s, 7, %s' % (t[0], lane)); p('v_lshlrev_b32 %s, 5, %s' % (t[0], t[0]))
        p('v_lshrrev_b32 %s, 4, %s' % (t[1], lane)); p('v_lshl_add_u32 %s, %s, 3, %s' % (t[0], t[1], t[0]))
        p('s_lshl_b32 s16, s3, 8'); p('s_add_u32 s16, s16, %d' % L_GS)
        p('v_add_u32 %s, s16, %s' % (t[0], t[0]))
        p('ds_write_b64 %s, %s' % (t[0], R(acc, 0, 2)))
        p('s_lshr_b32 s16, s3, 2'); p('s_lshl_b32 s17, s16, 10'); p('s_add_u32 s17, s17, %d' % L_GS)
        p('v_lshlrev_b32 %s, 2, %s' % (t[1], lane)); p('v_add_u32 %s, s17, %s' % (t[0], t[1]))
        p('s_and_b32 s17, s29, 3'); p('s_lshl_b32 s17, s17, 1'); p('s_add_u32 s17, s17, s16'); p('s_mul_i32 s17, s17, %d' % (3584 * 4))
        p('s_lshr_b32 s16, s29, 2'); p('s_lshl_b32 s16, s16, 8'); p('s_add_u32 s17, s17, s16'); p('s_add_u32 s17, s17, 0x%x' % WS_GUP)
        p('s_and_b32 s16, s3, 3'); p('s_cmp_eq_u32 s16, 0'); p('s_cselect_b32 s17, s17, 0x%x' % OOB)
        p('s_cmp_lt_u32 s2, 224'); p('s_cselect_b32 s17, s17, 0x%x' % OOB)
        p('s_waitcnt lgkmcnt(0)')
        p('s_barrier')
        for b in range(4): p('ds_read_b32 %s, %s offset:%d' % (R(acc, b), t[0], b * 256))
        p('v_add_f32 %s, %s, %s' % (R(acc, 0), R(acc, 0), R(acc, 1))); p('v_add_f32 %s, %s, %s' % (R(acc, 2), R(acc, 2), R(acc, 3)))
        p('v_add_f32 %s, %s, %s' % (R(acc, 0), R(acc, 0), R(acc, 2)))
        p('v_or_b32 %s, 1, %s' % (R(acc, 0), R(acc, 0)))
        p('buffer_store_dword %s, %s, %s, s17 offen sc1' % (R(acc, 0), t[1], sr(S_WS)))
        p.stamp(19)
        if not A_:
            p('v_lshrrev_b32 %s, 4, %s' % (t[0], lane)); p('v_mul_u32_u24 %s, %d, %s' % (t[0], 2 * 3584 * 4, t[0]))
            p('v_and_b32 %s, 15, %s' % (t[1], lane)); p('v_lshl_add_u32 %s, %s, 2, %s' % (t[0], t[1], t[0]))
            p('s_lshl_b32 s16, s29, 6'); p('s_add_u32 s16, s16, 0x%x' % WS_GUP); p('s_add_u32 s17, s16, %d' % (3584 * 4))
            g_, u_ = R(acc, 0), R(acc, 1)
            def gl2():
                p('buffer_load_dword %s, %s, %s, s16 offen sc1' % (g_, t[0], sr(S_WS)))
                p('buffer_load_dword %s, %s, %s, s17 offen sc1' % (u_, t[0], sr(S_WS)))
            def gt2():
                p('v_min_u32 %s, %s, %s' % (R(acc, 2), g_, u_))
                p('v_cmp_eq_u32 vcc, 0, %s' % R(acc, 2))
                p('s_cmp_lt_u32 s2, 224'); p('s_cselect_b64 s[62:63], -1, 0'); p('s_and_b64 vcc, vcc, s[62:63]')
            backoff(p, 'gu')
            poll(p, 'gu', gl2, gt2)
            p.stamp(24)
            xor16_add(p, g_, R(acc, 2)); xor16_add(p, u_, R(acc, 3)); xor32_add(p, g_, R(acc, 2)); xor32_add(p, u_, R(acc, 3))
            rb2(p, g_, u_, R(acc, 2))
            silu(p, g_, R(acc, 2)); rb1(p, g_)
            p('v_mul_f32 %s, %s, %s' % (g_, g_, u_)); rb1(p, g_)
            p('s_sub_u32 s16, s3, 4'); p('s_lshl_b32 s16, s16, 2')
            for i in range(4):
                p('s_add_u32 s17, s16, %d' % i)
                p('v_readlane_b32 s%d, %s, s17' % (20 + i, g_))
                p('s_lshr_b32 s%d, s%d, 16' % (4 + i, 20 + i))
            y = raw
            for i in range(4):
                for hf in range(2):
                    for d in range(4):
                        for h, xx in ((1, 's%d' % (20 + i)), (0, 's%d' % (4 + i))):
                            dst = R(y, 8 * hf + 2 * d + h)
                            if i == 0: p('v_dot2_f32_bf16 %s, %s, %s, 0' % (dst, R(WD[2 * i + hf], d), xx))
                            else: p('v_dot2c_f32_bf16 %s, %s, %s' % (dst, xx, R(WD[2 * i + hf], d)))
            p('s_sub_u32 s16, s3, 4'); p('s_lshl_b32 s16, s16, 12'); p('s_add_u32 s16, s16, %d' % L_YS)
            p('v_lshlrev_b32 %s, 5, %s' % (t[0], lane)); p('v_add_u32 %s, s16, %s' % (t[0], t[0]))
            for hf in range(2):
                for k in range(2): p('ds_write_b128 %s, %s offset:%d' % (t[0], R(y, 8 * hf + 4 * k, 4), hf * 2048 + k * 16))
            p('s_waitcnt lgkmcnt(0)')
        p('s_barrier')
        p('v_lshlrev_b32 %s, 3, %s' % (t[0], tid)); p('v_add_u32 %s, %d, %s' % (t[1], L_YS, t[0]))
        for b in range(4): p('ds_read_b64 %s, %s offset:%d' % (R(acc, 2 * b, 2), t[1], b * 4096))
        p('v_pk_add_f32 %s, %s, %s' % (R(acc, 0, 2), R(acc, 0, 2), R(acc, 2, 2)))
        p('v_pk_add_f32 %s, %s, %s' % (R(acc, 4, 2), R(acc, 4, 2), R(acc, 6, 2)))
        p('v_pk_add_f32 %s, %s, %s' % (R(acc, 0, 2), R(acc, 0, 2), R(acc, 4, 2)))
        p('v_or_b32 %s, 1, %s' % (R(acc, 0), R(acc, 0))); p('v_or_b32 %s, 1, %s' % (R(acc, 1), R(acc, 1)))
        p('s_lshl_b32 s16, s29, 12'); p('s_add_u32 s16, s16, 0x%x' % WS_YP)
        p('s_cmp_lt_u32 s2, 224'); p('s_cselect_b32 s16, s16, 0x%x' % OOB)
        p('buffer_store_dwordx2 %s, %s, %s, s16 offen sc1' % (R(acc, 0, 2), t[0], sr(S_WS)))
        p.stamp(25)
        p('s_cmp_lt_u32 s2, 224')
        p('s_cbranch_scc1 %s_end' % name)
        pp = raw
        p('s_sub_u32 s16, s2, 224'); p('s_lshl_b32 s17, s16, 7'); p('s_add_u32 s17, s17, 0x%x' % WS_YP)
        p('v_lshrrev_b32 %s, 3, %s' % (t[0], tid)); p('v_lshlrev_b32 %s, 12, %s' % (t[0], t[0]))
        p('v_and_b32 %s, 7, %s' % (t[1], tid)); p('v_lshl_add_u32 %s, %s, 4, %s' % (t[0], t[1], t[0]))
        p('v_cmp_gt_u32 vcc, 256, %s' % tid)
        p('v_bfrev_b32 %s, -2' % t[1])
        p('v_cndmask_b32 %s, %s, %s, vcc' % (t[1], t[1], t[0]))
        p('v_mov_b32 %s, 0' % t[3])
        p('v_cndmask_b32 %s, 1, %s, vcc' % (t[2], t[3]))
        p('s_lshl_b32 s18, s16, 6')
        p('v_and_b32 %s, 31, %s' % (t[3], lane)); p('v_lshlrev_b32 %s, 1, %s' % (t[3], t[3])); p('v_add_u32 %s, s18, %s' % (t[3], t[3]))
        p('s_mov_b32 s19, 0x%x' % (WS_MODB + 6144))
        p('buffer_load_ushort %s, %s, %s, s19 offen sc1' % (R(fin, 3), t[3], sr(S_WS)))
        p('v_add_u32 %s, %d, %s' % (t[4], L_XS, t[3]))
        p('ds_read_u16 %s, %s' % (R(fin, 4), t[4])); p('ds_read_u16 %s, %s offset:2048' % (R(fin, 5), t[4]))
        rsel = R(fin, 2)
        p('v_mov_b32 %s, %s' % (rsel, R(gr, 3)))
        rb1(p, rsel)
        p('v_mul_f32 %s, 0x%x, %s' % (rsel, f2u(-LOG2E), rsel))
        p('v_exp_f32 %s, %s' % (rsel, rsel))
        p('v_add_f32 %s, 1.0, %s' % (rsel, rsel))
        p('v_rcp_f32 %s, %s' % (rsel, rsel))
        rb1(p, rsel)
        for r_ in (R(fin, 3), R(fin, 4), R(fin, 5)): p('v_lshlrev_b32 %s, 16, %s' % (r_, r_))
        mn = R(fin, 6)
        def l2():
            for k in range(4):
                p('s_add_u32 s19, s17, 0x%x' % (k * 64 * 4096))
                p('buffer_load_dwordx4 %s, %s, %s, s19 offen sc1' % (R(pp, 4 * k, 4), t[1] if k == 3 else t[0], sr(S_WS)))
        def t2():
            q_ = [R(pp, i) for i in range(16)]
            p('v_min3_u32 %s, %s, %s, %s' % (mn, q_[12], q_[13], q_[14])); p('v_min_u32 %s, %s, %s' % (mn, mn, q_[15]))
            p('v_or_b32 %s, %s, %s' % (mn, mn, t[2]))
            for k in range(0, 12, 2): p('v_min3_u32 %s, %s, %s, %s' % (mn, mn, q_[k], q_[k + 1]))
            p('v_cmp_eq_u32 vcc, 0, %s' % mn)
        backoff(p, 'y')
        p.stamp(27)
        poll(p, 'y', l2, t2)
        p.stamp(26)
        for st in (8, 4):
            for k in range(0, st, 2): p('v_pk_add_f32 %s, %s, %s' % (R(pp, k, 2), R(pp, k, 2), R(pp, st + k, 2)))
        for e in range(4): ror_add(p, R(pp, e), 8)
        for e in range(2): p('v_permlane32_swap_b32 %s, %s' % (R(pp, e), R(pp, 2 + e)))
        for e in range(2): p('v_add_f32 %s, %s, %s' % (R(pp, e), R(pp, e), R(pp, 2 + e)))
        p('v_permlane16_swap_b32 %s, %s' % (R(pp, 0), R(pp, 1)))
        p('v_add_f32 %s, %s, %s' % (R(pp, 0), R(pp, 0), R(pp, 1)))
        p('v_and_b32 %s, 7, %s' % (t[0], lane)); p('v_lshlrev_b32 %s, 4, %s' % (t[0], t[0]))
        p('v_lshrrev_b32 %s, 4, %s' % (t[1], lane)); p('v_lshl_add_u32 %s, %s, 2, %s' % (t[0], t[1], t[0]))
        p('s_lshl_b32 s19, s3, 7'); p('s_add_u32 s19, s19, %d' % L_RS)
        p('v_add_u32 %s, s19, %s' % (t[0], t[0]))
        p('ds_write_b32 %s, %s' % (t[0], R(pp, 0)))
        p('v_and_b32 %s, 31, %s' % (t[0], lane)); p('v_lshlrev_b32 %s, 2, %s' % (t[0], t[0])); p('v_add_u32 %s, %d, %s' % (t[0], L_RS, t[0]))
        p('s_waitcnt lgkmcnt(0)')
        p('s_barrier')
        p('s_cmp_lg_u32 s3, 0')
        p('s_cbranch_scc1 %s_end' % name)
        for i in range(8): p('ds_read_b32 %s, %s offset:%d' % (R(pp, i), t[0], i * 128))
        for st in (4, 2, 1):
            for k in range(st): p('v_add_f32 %s, %s, %s' % (R(pp, k), R(pp, k), R(pp, st + k)))
        y = R(pp, 0)
        rb1(p, y)
        p('v_mul_f32 %s, %s, %s' % (y, y, rsel)); rb1(p, y)
        p('v_add_f32 %s, %s, %s' % (y, y, R(fin, 4))); rb1(p, y)
        p('v_mul_f32 %s, %s, %s' % (y, y, R(fin, 3))); rb1(p, y)
        p('v_add_f32 %s, %s, %s' % (y, y, R(fin, 5)))
        p('v_cvt_pk_bf16_f32 %s, %s, %s' % (y, y, y))
        p('s_mov_b64 exec, 0xffffffff')
        p('buffer_store_short %s, %s, %s, s13 offen sc1' % (y, t[3], sr(S_C)))

    def role_prog(role):
        front(role)
        if stop == 'front': return
        phase1(role)
        phase2(role)
        if stop == 'p2': return
        phase3(role)
        tail(role)
    p.alt_begin()
    role_prog('A')
    p('s_branch %s_end' % name)
    p.alt_next()
    p.label('%s_roleB' % name)
    role_prog('B')
    p.alt_end()
    p.label('%s_end' % name)
    p('s_endpgm')
    body = p.emit()
    extra = ''.join(z.emit() for z in rare)
    return body, extra, dict(vgpr=256, accum=256, sgpr=80, lds=163840, block=512, grid=256)
```

```python
from asmdsl import Prog, Inst
from lay2 import *
from k2 import RA, R, Sched
from small import silu, rb1, rb2, unpack, ror_add, xor16_add, xor32_add, f2u, ln_scalars, ln_apply
import math

SPIN_MAX = 1 << 16
LOG2E = 1.4426950408889634
PTR = dict(x=32, k=34, v=36, wq=38, wo=40, bx=42, wr=44, wg=46, wu=48, wd=50, c=52, wmod=54, out=56, dbg=58, ws=60)
OOB = 0x7ffffff0
RING0 = 0; RING1 = 65536; NSL = 6
S_WS, S_A, S_B, S_C, S_D, S_E = 8, 4, 64, 68, 72, 76

def sr(b): return 's[%d:%d]' % (b, b + 3)

def gen_mega(name, stop=None, D1=4, D2=4, D3=4, PO=5, NH=3, prioB=False, gu_at=(1, 7), nwq0=3, MP_AT=(94, 10, 44), WD_AT=6, OF_AT=(180, 255, 1040, 1090), P3_AT=(196, 225), OST_SP=1, mc_comp=True, NWQ=4, GU3_ROLE='B', SMPIPE=False, WQ_BAR=False, XFIRST=False, H_WAITDMA=False, XPF=None, BIG=False, NO=3, GU3_SPLIT=False, M_ST=(10, 11), WARM=None, CPF1=None, LMF=False, QCONV=False, P3B=None, P1B=(0, 0), P2B=0, OST2_LATE=False, WQ_LATE=False, MODL_ON=False, modsc=' sc1', ROT3=None, AP_WG=False, ROT=None, P3D=(1, 7), P3O=(2, 6), GU3_AT=None, wopf_pv=None, SPF=None, p1pf=None, p1st=None, dmaA=False, osc=' sc1', hsc=' sc1', kvsc=' sc1', wlin=False, p3st=None, do_gu=True, do_mc=True, do_wd=True, wopf=None, mf_at=(16, 20, 21, 23), qkst=None, pvst=None, slp=None, slp_loop=0, dma_split=False):
    slp = slp or {}
    def backoff(q, k):
        n = slp.get(k, 0)
        while n > 0:
            q('s_sleep %d' % min(n, 127)); n -= 127

    p = Prog()
    rare = []
    V = RA('v', 0, 256)
    v_tid = V.alloc(1); v_lane = V.alloc(1); v_l16 = V.alloc(1)
    v_wqoff = V.alloc(1); v_tr = V.alloc(1); v_tr2 = V.alloc(1); v_wq2 = V.alloc(1); v_hoff = V.alloc(1); v_kvoff = V.alloc(1)
    v_l = [V.alloc(1), V.alloc(1)]; v_xv = V.alloc(1)
    x4 = V.alloc(4, 4)
    v_t = [V.alloc(1) for _ in range(6)]
    PR = V.alloc(128, 4); QF = V.alloc(32, 4); SS = V.alloc(32, 4); negm = V.alloc(8, 4)
    NRA = 6
    FR = V.alloc(4 * NRA, 4); SP = V.alloc(8, 4)
    assert V.n <= 256
    def sub(reg, off): return (reg[0], reg[1] + off)
    fr = [sub(FR, 4 * i) for i in range(NRA)]
    qf = [sub(QF, 4 * i) for i in range(8)]
    S = [sub(SS, 0), sub(SS, 16)]
    tid, lane, l16 = R(v_tid), R(v_lane), R(v_l16)
    t = [R(x) for x in v_t]

    def mk_srd(q, base, ptr, size):
        q('s_mov_b64 s[%d:%d], s[%d:%d]' % (base, base + 1, PTR[ptr], PTR[ptr] + 1))
        q('s_mov_b32 s%d, 0x%x' % (base + 2, size)); q('s_mov_b32 s%d, 0x20000' % (base + 3))
    cnt = [0]
    def poll(q, tag, loads, test):
        cnt[0] += 1
        lab = '%s_%s%d' % (name, tag, cnt[0])
        q('s_mov_b32 s27, 0')
        q.loop_begin(); q.label(lab + 'p')
        loads(); test()
        if slp_loop: q('s_cbranch_vccz %sg' % lab); q('s_sleep %d' % slp_loop)
        q('s_add_u32 s27, s27, 1')
        q('s_cmp_ge_u32 s27, %d' % SPIN_MAX)
        q('s_cbranch_scc1 %sg' % lab)
        q('s_cbranch_vccnz %sp' % lab)
        q.loop_end()
        q.label(lab + 'g')
    def rare_poll(q, tag, test, loads, flush=True):
        cnt[0] += 1
        lab = '%s_%s%d' % (name, tag, cnt[0])
        test(q)
        q('s_cbranch_vccnz %sr' % lab)
        q.label(lab + 'b')
        z = Prog()
        z.label(lab + 'r')
        if flush: z.flush()
        z('s_mov_b32 s27, 0')
        z.loop_begin(); z.label(lab + 'p')
        loads(z); test(z)
        z('s_add_u32 s27, s27, 1')
        z('s_cmp_ge_u32 s27, %d' % SPIN_MAX)
        z('s_cbranch_scc1 %sg' % lab)
        z('s_cbranch_vccnz %sp' % lab)
        z.loop_end()
        z.label(lab + 'g'); z.flush()
        z('s_branch %sb' % lab)
        rare.append(z)

    p('s_cmp_ge_u32 s2, 256')
    p('s_cbranch_scc1 %s_end' % name)
    if WARM and WARM.get('entry'):
        ca, cb = sub(PR, 0), sub(PR, 2)
        p('s_getpc_b64 s[76:77]')
        p.label('%s_pc0' % name)
        p('s_sub_u32 s76, s76, %s_pc0-%s' % (name, name)); p('s_subb_u32 s77, s77, 0')
        p('v_and_b32 %s, 63, %s' % (t[0], tid)); p('v_lshlrev_b32 %s, 7, %s' % (t[0], t[0]))
        p('v_lshrrev_b32 %s, 6, %s' % (t[1], tid))
        p('s_lshr_b32 s62, s2, 3'); p('s_lshl_b32 s62, s62, 13')
        p('v_lshlrev_b32 %s, 13, %s' % (t[2], t[1])); p('v_mov_b32 %s, s62' % t[3])
        p('v_cmp_eq_u32 vcc, 7, %s' % t[1]); p('v_cndmask_b32 %s, %s, %s, vcc' % (t[2], t[2], t[3]))
        p('v_add_u32 %s, %s, %s' % (t[0], t[0], t[2]))
        p('v_min_u32 %s, %s_codeend-%s-4, %s' % (t[0], name, name, t[0]))
        p('v_mov_b32 %s, s77' % R(ca, 1))
        p('v_add_co_u32 %s, vcc, s76, %s' % (R(ca, 0), t[0]))
        p('v_addc_co_u32 %s, vcc, 0, %s, vcc' % (R(ca, 1), R(ca, 1)))
        p('v_cmp_gt_u32 vcc, %d, %s' % (WARM['entry'], t[1])); p('v_cmp_eq_u32 s[62:63], 7, %s' % t[1]); p('s_or_b64 vcc, vcc, s[62:63]')
        p('s_and_saveexec_b64 s[62:63], vcc')
        p('s_cbranch_execz %s_nocp0' % name)
        p.alt_begin()
        p('global_load_dword %s, %s, off' % (R(cb, 0), R(ca, 0, 2)), 'pf')
        p.alt_next()
        p.alt_end()
        p.label('%s_nocp0' % name)
        p('s_mov_b64 exec, s[62:63]')
    p('s_load_dwordx4 s[56:59], s[0:1], 96')
    p('s_load_dwordx2 s[60:61], s[0:1], 112')
    p('s_load_dwordx8 s[48:55], s[0:1], 64')
    p('s_load_dwordx16 s[32:47], s[0:1], 0')
    p('s_memrealtime s[62:63]')
    p('v_lshrrev_b32 %s, 6, %s' % (t[0], tid))
    p('v_and_b32 %s, 63, %s' % (lane, tid))
    p('v_readfirstlane_b32 s3, %s' % t[0])
    p('v_lshlrev_b32 %s, 4, %s' % (l16, lane))
    p('s_and_b32 s12, s2, 3'); p('s_lshl_b32 s12, s12, 3'); p('s_bfe_u32 s13, s2, 0x30003'); p('s_add_u32 s12, s12, s13')
    p('s_bfe_u32 s13, s2, 0x10002'); p('s_lshl_b32 s13, s13, 2'); p('s_lshr_b32 s14, s2, 6'); p('s_add_u32 s13, s13, s14')
    p('v_bfe_u32 %s, %s, 2, 2' % (t[0], lane))
    p('v_lshrrev_b32 %s, 4, %s' % (t[1], lane))
    p('v_and_b32 %s, 3, %s' % (t[2], lane))
    p('v_lshlrev_b32 %s, 6, %s' % (t[3], t[1]))
    p('v_lshl_add_u32 %s, %s, 4, %s' % (t[3], t[2], t[3]))
    p('v_lshl_add_u32 %s, %s, 13, %s' % (R(v_wqoff), t[0], t[3]))
    p('s_and_b32 s14, s3, 1'); p('s_lshl_b32 s14, s14, 5')
    p('v_xor_b32 %s, s14, %s' % (R(v_wqoff), R(v_wqoff)))
    p('v_lshlrev_b32 %s, 11, %s' % (R(v_tr), t[1]))
    p('v_lshl_add_u32 %s, %s, 6, %s' % (R(v_tr), t[0], R(v_tr)))
    p('v_lshl_add_u32 %s, %s, 3, %s' % (R(v_tr), t[2], R(v_tr)))
    p('v_and_b32 %s, 1, %s' % (t[4], t[1])); p('v_lshlrev_b32 %s, 5, %s' % (t[4], t[4]))
    p('v_sub_u32 %s, %s, %s' % (R(v_tr2), R(v_tr), t[4]))
    p('v_add_u32 %s, %s, %s' % (R(v_tr), R(v_tr), t[4]))
    p('s_lshl_b32 s14, s13, 3'); p('s_add_u32 s14, s14, s3'); p('s_lshl_b32 s14, s14, 16')
    p('v_add_u32 %s, s14, %s' % (R(v_hoff), l16))
    p('s_cmp_ge_u32 s3, 4')
    p('s_cbranch_scc1 %s_roleB' % name)

    def wq_slot(s):
        k = s % NWQ
        return RING0 + k * 16384 if k < 4 else RING1 + k * 16384
    def dma_wq(s):
        out = []
        for i in range(2):
            if ROT:
                if i == 0: out.append(('s_add_u32 s22, s25, 0x%x\ns_and_b32 s22, s22, 0x7fffff\ns_add_u32 s22, s22, s19' % (s * 64 * 8192), None))
                else: out.append(('s_add_u32 s22, s22, 32768', None))
            else:
                out.append(('s_add_u32 s22, s19, 0x%x' % (s * 64 * 8192 + i * 32768), None))
            out.append(('s_add_u32 m0, s20, 0x%x' % (wq_slot(s) + i * 1024), None))
            out.append(('buffer_load_dwordx4 %s, %s, s22 offen lds' % (R(v_wqoff), sr(S_A)), 'wq%d' % s))
        return out
    def slot(c): return RING1 + (c % NSL) * 16384
    W0 = 18
    def dma_chunk(c):
        out = []
        for i in range(2):
            if 2 <= c < 18:
                off = ((c - 2) * 16384 if c < 10 else (WS_VF - WS_KF) + (c - 10) * 16384) + i * 1024
                out.append(('s_add_u32 s22, s21, 0x%x' % off, None))
                out.append(('s_add_u32 m0, s20, 0x%x' % (slot(c) + i * 1024), None))
                out.append(('buffer_load_dwordx4 %s, %s, s22 offen%s lds' % (l16, sr(S_WS), kvsc), 'ch%d' % c))
            elif c < 2:
                out.append(('s_add_u32 s22, s14, 0x%x' % ((c * 64 + 4 * i) * 12288), None))
                out.append(('s_add_u32 m0, s20, 0x%x' % (slot(c) + i * 1024), None))
                out.append(('buffer_load_dwordx4 %s, %s, s22 offen lds' % (R(v_wq2), sr(S_E)), 'ch%d' % c))
            else:
                s_ = c - W0
                if BIG:
                    out.append(('s_add_u32 s22, s24, 0x%x' % (((s_ % 4) * 256 + (s_ // 4) * 32) * 2048 + i * 8192), None))
                elif ROT3:
                    if i == 0: out.append(('s_lshl_b32 s22, s62, 6\ns_add_u32 s22, s22, 0x%x\ns_and_b32 s22, s22, 0x3fffff\ns_add_u32 s22, s22, s24\ns_add_u32 s22, s22, 0x%x' % ((s_ % 8) * 0x80000, (s_ // 8) * 32 * 2048), None))
                    else: out.append(('s_add_u32 s22, s22, 8192', None))
                else:
                    out.append(('s_add_u32 s22, s24, 0x%x' % (((s_ % 8) * 256 + (s_ // 8) * 32) * 2048 + i * 8192), None))
                out.append(('s_add_u32 m0, s20, 0x%x' % (slot(c) + i * 1024), None))
                out.append(('buffer_load_dwordx4 %s, %s, s22 offen lds' % (R(v_wqoff), sr(S_A)), 'ch%d' % c))
        return out

    acc3 = [[sub(PR, 64 + (n * 2 + qs) * 4) for qs in range(2)] for n in range(8)]
    OB = [[sub(PR, (k * 2 + qs) * 4) for qs in range(2)] for k in range(PO)]
    assert PO * 8 <= 64
    v_oo = v_wq2
    def oload(s, qs):
        return [('s_add_u32 s23, s62, 0x%x\ns_and_b32 s23, s23, 0xffff\ns_or_b32 s23, s23, 0x%x' % ((s % 8) * 8192, qs * 131072) if qs else
                 's_add_u32 s23, s62, 0x%x\ns_and_b32 s23, s23, 0xffff' % ((s % 8) * 8192)) if ROT3 else 's_mov_b32 s23, 0x%x' % (qs * 131072 + (s % 8) * 8192),
                'buffer_load_dwordx4 %s, %s, %s, s23 offen offset:%d%s' % (R(OB[s % PO][qs], 0, 4), R(v_oo), sr(S_WS), (s // 8) * 1024, osc)]
    OBB = [[sub(PR, k * 16 + j * 4) for j in range(4)] for k in range(NO)]
    GAB = sub(PR, 48)
    assert not BIG or NO * 16 <= 48
    def oload_big(s, j):
        e, qs = j // 2, j % 2
        return ['s_mov_b32 s23, 0x%x' % (qs * 131072 + (s % 4) * 8192 + e * 4096),
                'buffer_load_dwordx4 %s, %s, %s, s23 offen offset:%d%s' % (R(OBB[s % NO][j], 0, 4), R(v_oo), sr(S_WS), (s // 4) * 1024, osc)]
    of2 = R(x4, 0)
    def of_load(q): q('buffer_load_dword %s, %s, %s, s17k offen sc1'.replace('s17k', 's19') % (of2, R(x4, 1), sr(S_WS)))
    def p3_setup(q, ks):
        if BIG:
            q('s_mov_b32 s30, s13'); q('s_and_b32 s31, s12, 7')
            q('s_lshl_b32 s19, s13, 3'); q('s_add_u32 s19, s19, s3'); q('s_lshr_b32 s16, s12, 3')
            q('s_lshl_b32 s17, s19, 18'); q('s_lshl_b32 s23, s16, 15'); q('s_add_u32 s17, s17, s23'); q('s_add_u32 s17, s17, 0x%x' % WS_O)
            q('v_add_u32 %s, s17, %s' % (R(v_oo), l16))
            q('s_lshl_b32 s19, s19, 7'); q('s_lshl_b32 s23, s16, 5'); q('s_add_u32 s19, s19, s23'); q('s_add_u32 s19, s19, 0x%x' % WS_OFLAG)
            q('v_and_b32 %s, 7, %s' % (R(x4, 1), lane)); q('v_lshlrev_b32 %s, 2, %s' % (R(x4, 1), R(x4, 1)))
            of_load(q)
            return
        q('s_bfe_u32 s30, s2, 0x20001'); q('s_lshl_b32 s30, s30, 2'); q('s_bfe_u32 s17, s2, 0x20003'); q('s_add_u32 s30, s30, s17')
        q('s_lshr_b32 s31, s2, 5')
        q('s_and_b32 s17, s3, 3'); q('s_lshl_b32 s19, s30, 2'); q('s_add_u32 s19, s19, s17')
        q('s_and_b32 s16, s2, 1')
        q('s_lshl_b32 s17, s19, 18'); q('s_lshl_b32 s23, s16, 16'); q('s_add_u32 s17, s17, s23'); q('s_add_u32 s17, s17, 0x%x' % (WS_O + ks * 4096))
        q('v_add_u32 %s, s17, %s' % (R(v_oo), l16))
        q('s_lshl_b32 s19, s19, 7'); q('s_lshl_b32 s23, s16, 6'); q('s_add_u32 s19, s19, s23'); q('s_add_u32 s19, s19, 0x%x' % WS_OFLAG)
        q('v_and_b32 %s, 15, %s' % (R(x4, 1), lane)); q('v_lshlrev_b32 %s, 2, %s' % (R(x4, 1), R(x4, 1)))
        of_load(q)
    def p3_addr(ks):
        o = []
        o.append('v_bfe_u32 %s, %s, 2, 2' % (t[2], lane)); o.append('v_lshrrev_b32 %s, 4, %s' % (t[3], lane)); o.append('v_and_b32 %s, 3, %s' % (t[1], lane))
        o.append('v_lshlrev_b32 %s, 11, %s' % (t[0], t[3]))
        o.append('v_lshl_add_u32 %s, %s, 6, %s' % (t[0], t[2], t[0]))
        o.append('v_lshl_add_u32 %s, %s, 3, %s' % (t[0], t[1], t[0]))
        o.append('v_add_u32 %s, 0x%x, %s' % (t[0], 0x10000 + ks * 8192, t[0]))
        o.append('v_and_b32 %s, 1, %s' % (t[3], t[3])); o.append('v_lshlrev_b32 %s, 5, %s' % (t[3], t[3]))
        o.append('v_sub_u32 %s, %s, %s' % (R(v_tr2), t[0], t[3]))
        o.append('v_add_u32 %s, %s, %s' % (R(v_tr), t[0], t[3]))
        o.append('v_add_u32 %s, 0x10000, %s' % (R(v_hoff), R(v_tr))); o.append('v_add_u32 %s, 0x10000, %s' % (R(v_kvoff), R(v_tr2)))
        return o

    CSF = [sub(PR, 112 + 4 * k) for k in range(4)]; MACC = sub(PR, 80); MFR = [sub(PR, 64 + 4 * k) for k in range(4)]; v_m = v_xv
    assert NWQ == 4 and NH == 3
    def m_setup(q):
        mk_srd(q, S_E, 'wmod', 1024 * 6144 * 2)
        q('v_bfe_u32 %s, %s, 2, 2' % (t[4], lane)); q('v_lshlrev_b32 %s, 12, %s' % (t[4], t[4]))
        q('v_add_u32 %s, %s, %s' % (R(v_wq2), R(v_wqoff), t[4]))
        q('s_lshr_b32 s16, s2, 5'); q('s_lshl_b32 s16, s16, 7'); q('s_lshl_b32 s17, s3, 3'); q('s_add_u32 s16, s16, s17'); q('s_mul_i32 s14, s16, 12288')
        q('s_and_b32 s16, s2, 31'); q('s_lshl_b32 s16, s16, 8'); q('s_add_u32 s14, s14, s16'); q('s_add_u32 s14, s14, 4096')
    def m_cs(q):
        q('v_lshrrev_b32 %s, 4, %s' % (t[4], lane)); q('v_lshlrev_b32 %s, 4, %s' % (t[5], t[4]))
        q('s_lshl_b32 s16, s2, 8'); q('s_add_u32 s16, s16, 0x%x' % WS_CSW)
        for k in range(4): q('buffer_load_dwordx4 %s, %s, %s, s16 offen offset:%d sc1' % (R(CSF[k], 0, 4), t[5], sr(S_WS), k * 64))
        vm = R(v_m)
        q('v_lshlrev_b32 %s, 11, %s' % (vm, t[4]))
        q('v_xor_b32 %s, s3, %s' % (t[4], t[4])); q('v_and_b32 %s, 1, %s' % (t[4], t[4])); q('v_lshl_add_u32 %s, %s, 5, %s' % (vm, t[4], vm))
        q('v_bfe_u32 %s, %s, 2, 2' % (t[4], lane)); q('v_lshl_add_u32 %s, %s, 6, %s' % (vm, t[4], vm))
        q('v_and_b32 %s, 3, %s' % (t[4], lane)); q('v_lshl_add_u32 %s, %s, 3, %s' % (vm, t[4], vm))
        q('s_lshr_b32 s16, s3, 1'); q('s_lshl_b32 s16, s16, 8'); q('s_add_u32 s16, s16, %d' % slot(0))
        q('v_add_u32 %s, s16, %s' % (vm, vm))
    def m_reads(q):
        for k in range(4):
            off = (k // 2) * 16384 + (k % 2) * 8192
            q('ds_read_b64_tr_b16 %s, %s offset:%d' % (R(MFR[k], 0, 2), R(v_m), off))
            q('ds_read_b64_tr_b16 %s, %s offset:%d' % (R(MFR[k], 2, 2), R(v_m), off + 1024))
    def m_mfma(q):
        for k in range(4):
            q('v_mfma_f32_16x16x32_bf16 %s, %s, %s, %s' % (R(MACC, 0, 4), R(MFR[k], 0, 4), R(CSF[k], 0, 4), '0' if k == 0 else R(MACC, 0, 4)))
    def m_store(q):
        q('v_lshrrev_b32 %s, 4, %s' % (t[4], lane)); q('v_lshlrev_b32 %s, 4, %s' % (t[4], t[4]))
        q('s_lshr_b32 s16, s2, 5'); q('s_lshl_b32 s16, s16, 14'); q('s_and_b32 s17, s2, 31'); q('s_lshl_b32 s17, s17, 9'); q('s_add_u32 s16, s16, s17')
        q('s_lshl_b32 s17, s3, 6'); q('s_add_u32 s16, s16, s17'); q('s_add_u32 s16, s16, 0x%x' % WS_MODP)
        q('s_mov_b32 exec_lo, 0x10001'); q('s_mov_b32 exec_hi, 0x10001')
        q('buffer_store_dwordx4 %s, %s, %s, s16 offen sc1' % (R(MACC, 0, 4), t[4], sr(S_WS)), 'mst')
        q('s_mov_b64 exec, -1')
    def mc_pub(q):
        q('v_mov_b32 %s, s28' % t[4]); q('v_mov_b32 %s, 0' % t[5])
        q('s_lshl_b32 s16, s2, 2'); q('s_add_u32 s16, s16, 0x%x' % WS_MPFLAG)
        q('s_cmp_eq_u32 s3, 0'); q('s_cselect_b32 s16, s16, 0x%x' % OOB)
        q('s_mov_b64 exec, 1')
        q('buffer_store_dword %s, %s, %s, s16 offen sc1' % (t[4], t[5], sr(S_WS)))
        q('s_mov_b64 exec, -1')
    def mc_final(sc):
        mpf = R(SP, 0); mpv = R(SP, 1); va, vb = R(SP, 2), R(SP, 5); mpw = R(SP, 6)
        def mp_load(q):
            q('buffer_load_dword %s, %s, %s, s14 offen sc1' % (mpf, va, sr(S_WS)))
        def mp_issue(q):
            q('v_and_b32 %s, 7, %s' % (va, lane)); q('v_lshlrev_b32 %s, 7, %s' % (va, va))
            q('s_lshr_b32 s14, s2, 3'); q('s_lshl_b32 s14, s14, 2'); q('s_add_u32 s14, s14, 0x%x' % WS_MPFLAG)
            mp_load(q)
        sc.place(MP_AT[1], mp_issue)
        sc.place(MP_AT[2], lambda q: rare_poll(q, 'mp', lambda z: z('v_cmp_ne_u32 vcc, s28, %s' % mpf), mp_load))
        def mp_get(q):
            q('v_lshrrev_b32 %s, 4, %s' % (va, lane)); q('v_lshlrev_b32 %s, 14, %s' % (va, va))
            q('v_and_b32 %s, 15, %s' % (vb, lane)); q('v_lshl_add_u32 %s, %s, 2, %s' % (va, vb, va))
            q('s_lshl_b32 s14, s2, 6'); q('s_add_u32 s14, s14, 0x%x' % WS_MODP)
            q('buffer_load_dword %s, %s, %s, s14 offen sc1' % (mpv, va, sr(S_WS)))
            q('s_add_u32 s14, s14, 0x10000')
            q('buffer_load_dword %s, %s, %s, s14 offen sc1' % (mpw, va, sr(S_WS)))
        sc.place(MP_AT[2] + 1, mp_get)
        def mp_fin(q):
            q('v_add_f32 %s, %s, %s' % (mpv, mpv, mpw))
            xor16_add(q, mpv, va); xor32_add(q, mpv, va)
            rb1(q, mpv)
            q('s_lshr_b32 s14, s2, 6'); q('s_cmp_eq_u32 s14, 2'); q('s_cselect_b32 s14, 1.0, 0')
            q('v_add_f32 %s, s14, %s' % (mpv, mpv))
            q('v_cvt_pk_bf16_f32 %s, %s, %s' % (mpv, mpv, mpv))
            q('v_lshlrev_b32 %s, 1, %s' % (vb, vb))
            q('s_lshl_b32 s14, s2, 5'); q('s_add_u32 s14, s14, 0x%x' % WS_MODB)
            q('s_cmp_eq_u32 s3, 0'); q('s_cselect_b32 s14, s14, 0x%x' % OOB)
            q('s_mov_b64 exec, 0xffff')
            q('buffer_store_short %s, %s, %s, s14 offen sc1' % (mpv, vb, sr(S_WS)), 'mb')
            q('s_mov_b64 exec, -1')
        sc.place(MP_AT[2] + 24, mp_fin)
        def mp_flag(q):
            q.wait_tag('mb')
            q('v_mov_b32 %s, s28' % mpf); q('v_mov_b32 %s, 0' % mpv)
            q('s_lshl_b32 s14, s2, 2'); q('s_add_u32 s14, s14, 0x%x' % WS_MFLAG)
            q('s_cmp_eq_u32 s3, 0'); q('s_cselect_b32 s14, s14, 0x%x' % OOB)
            q('s_mov_b64 exec, 1')
            q('buffer_store_dword %s, %s, %s, s14 offen sc1' % (mpf, mpv, sr(S_WS)))
            q('s_mov_b64 exec, -1')
        sc.place(MP_AT[2] + 64, mp_flag)

    def spf(q, buf, nl, lo, hi):
        q('s_lshl_b32 s0x, s2, 3'.replace('s0x', 's16')); q('s_add_u32 s16, s16, s3'); q('s_mul_i32 s16, s16, %d' % (nl * 128))
        q('s_add_u32 s76, s%d, s16' % PTR[buf]); q('s_addc_u32 s77, s%d, 0' % (PTR[buf] + 1))
        for i in range(lo, hi): q.raw('s_load_dword s62, s[76:77], 0x%x' % (i * 128))
    def warm(q, role, va, vb, a64):
        SZB = dict(wg=7340032, wu=7340032, wd=7340032, wo=8388608, wq=8388608, out=4194304, wmod=1024 * 6144 * 2, wr=2048, ws=WS_SIZE)
        if role == 'B':
            step = WARM.get('step', 1 << 21)
            q('v_mov_b32 %s, %d' % (va, step)); q('v_mul_lo_u32 %s, %s, %s' % (va, va, lane))
            for wv, bufs in WARM.get('plan', ((4, ('wo', 'wg')), (5, ('wu', 'wd')), (6, ('wq', 'out')), (7, ('wmod', 'wr')))):
                for b in bufs:
                    mk_srd(q, S_E, b, SZB[b])
                    for k in range(-(-SZB[b] // (64 * step))):
                        q('s_mov_b32 s62, 0x%x' % (k * 64 * step)); q('s_cmp_eq_u32 s3, %d' % wv); q('s_cselect_b32 s62, s62, 0x%x' % OOB)
                        q('buffer_load_dword %s, %s, %s, s62 offen' % (vb, va, sr(S_E)), 'pf')
        elif WARM.get('code'):
            q('s_getpc_b64 s[76:77]')
            q.label('%s_pc' % name)
            q('s_sub_u32 s76, s76, %s_pc-%s' % (name, name)); q('s_subb_u32 s77, s77, 0')
            q('v_lshlrev_b32 %s, 7, %s' % (va, lane)); q('s_lshr_b32 s62, s2, 3'); q('s_lshl_b32 s62, s62, 13')
            q('v_add_u32 %s, s62, %s' % (va, va))
            q('v_min_u32 %s, %s_codeend-%s-4, %s' % (va, name, name, va))
            q('v_mov_b32 %s, s77' % R(a64, 1))
            q('v_add_co_u32 %s, vcc, s76, %s' % (R(a64, 0), va))
            q('v_addc_co_u32 %s, vcc, 0, %s, vcc' % (R(a64, 1), R(a64, 1)))
            q('s_cmp_eq_u32 s3, %d' % WARM.get('cw', 1))
            q('s_cbranch_scc0 %s_nocp' % name)
            q.alt_begin()
            q('global_load_dword %s, %s, off' % (vb, R(a64, 0, 2)), 'pf')
            q.alt_next()
            q.alt_end()
            q.label('%s_nocp' % name)
    def front(role):
        A_ = role == 'A'
        F = RA('v', PR[1], 256)
        w0 = F.alloc(4, 4); w1 = F.alloc(4, 4); xr = [F.alloc(4, 4), F.alloc(4, 4)]; xt = [F.alloc(4, 4), F.alloc(4, 4)]
        acc = F.alloc(8, 4); X = F.alloc(16, 4); cc = F.alloc(4, 4); g4 = F.alloc(4, 4); s4 = F.alloc(4, 4); kv = F.alloc(12, 4)
        rd = [F.alloc(4, 4) for _ in range(8)]; st = F.alloc(4, 4)
        vz = F.alloc(2, 2); vn = F.alloc(1); va = F.alloc(1); vb = F.alloc(1); vc = F.alloc(1); ve = F.alloc(1); vg = F.alloc(1); vs = F.alloc(1)
        FS = RING1 + 5 * 16384; MT = FS + 4096
        p('v_mov_b32 %s, 0' % R(vz, 0)); p('v_mov_b32 %s, 0' % R(vz, 1))
        p('v_lshrrev_b32 %s, 3, %s' % (t[0], tid)); p('v_and_b32 %s, 7, %s' % (t[1], tid))
        p('v_mul_u32_u24 %s, %d, %s' % (R(va), 2 * 12288, t[0])); p('v_lshl_add_u32 %s, %s, 4, %s' % (R(va), t[1], R(va)))
        p('v_lshlrev_b32 %s, 2, %s' % (R(vb), t[0]))
        p('s_and_b32 s14, s2, 31'); p('s_lshr_b32 s15, s2, 5')
        p('s_mul_i32 s26, s15, %d' % (128 * 12288)); p('s_lshl_b32 s16, s14, 7'); p('s_add_u32 s26, s26, s16')
        p('s_lshl_b32 s29, s15, 8')
        p('v_lshlrev_b32 %s, 3, %s' % (R(vc), tid))
        p('s_lshl_b32 s18, s2, 3'); p('s_add_u32 s18, s18, s3'); p('s_lshl_b32 s18, s18, 11')
        p('v_and_b32 %s, 15, %s' % (t[2], lane)); p('v_lshrrev_b32 %s, 4, %s' % (t[3], lane))
        p('v_lshlrev_b32 %s, 11, %s' % (R(ve), t[2])); p('v_lshl_add_u32 %s, %s, 4, %s' % (R(ve), t[3], R(ve)))
        p('s_lshr_b32 s30, s2, 4'); p('s_and_b32 s31, s2, 15')
        p('s_lshl_b32 s19, s30, 3'); p('s_add_u32 s19, s19, s3')
        p('s_lshl_b32 s22, s19, 15'); p('s_lshl_b32 s23, s31, 7'); p('s_add_u32 s22, s22, s23')
        p('s_lshl_b32 s23, s2, 12'); p('s_add_u32 s23, s23, 0x%x' % WS_Z)
        p('s_or_b32 s25, s2, s3')
        p('s_cmp_eq_u32 s25, 0'); p('s_cselect_b32 s25, 0, 0x%x' % OOB)
        p('s_waitcnt lgkmcnt(0)')
        p.stamp(0)
        mk_srd(p, S_B, 'dbg', 256)
        p('s_or_b32 s28, s62, 1')
        p('v_mov_b32 %s, s28' % R(vn))
        p('s_mov_b64 exec, 1')
        p('buffer_store_dword %s, %s, %s, s25 offen sc1' % (R(vn), R(vz, 0), sr(S_B)))
        p('s_mov_b64 exec, -1')
        mk_srd(p, S_C, 'c', 2048); mk_srd(p, S_D, 'wmod', 1024 * 6144 * 2); mk_srd(p, S_E, 'x', 4194304); mk_srd(p, S_WS, 'ws', WS_SIZE)
        def ld_x():
            for i in range(2):
                p('buffer_load_dwordx4 %s, %s, %s, s18 offen offset:%d' % (R(xr[i], 0, 4), l16, sr(S_E), i * 1024))
        if XFIRST: ld_x()
        p('buffer_load_dword %s, %s, %s, s29 offen' % (R(cc, 0), R(vb), sr(S_C)))
        p('buffer_load_dwordx4 %s, %s, %s, s26 offen' % (R(w0, 0, 4), R(va), sr(S_D)))
        p('s_add_u32 s26, s26, 12288')
        p('buffer_load_dwordx4 %s, %s, %s, s26 offen' % (R(w1, 0, 4), R(va), sr(S_D)))
        if not XFIRST: ld_x()
        if A_:
            p('s_cmp_eq_u32 s3, 0'); p('s_cselect_b32 s25, 0, 0x%x' % OOB)
            p('buffer_load_dword %s, %s, %s, s25 offen sc1' % (R(vn), R(vz, 0), sr(S_B)), 'n1')
        p('buffer_store_dwordx2 %s, %s, %s, s23 offen sc1' % (R(vz, 0, 2), R(vc), sr(S_WS)))
        p('s_barrier')
        for i in range(2):
            p('buffer_load_dwordx4 %s, %s, %s, s22 offen offset:%d' % (R(xt[i], 0, 4), R(ve), sr(S_E), i * 64))
        p('s_mov_b32 s29, s19')
        if not A_:
            mk_srd(p, S_B, 'k', 2097152); mk_srd(p, S_C, 'v', 2097152)
            p('s_lshl_b32 s20, s2, 2'); p('s_add_u32 s20, s20, s3'); p('s_sub_u32 s20, s20, 4')
            p('s_lshr_b32 s22, s20, 8'); p('s_bfe_u32 s23, s20, 0x40004'); p('s_and_b32 s24, s20, 15')
            p('s_lshl_b32 s25, s22, 19'); p('s_lshl_b32 s26, s23, 13'); p('s_add_u32 s25, s25, s26'); p('s_add_u32 s25, s25, %d' % (1536 * 256))
            p('v_and_b32 %s, 15, %s' % (t[0], lane)); p('v_lshrrev_b32 %s, 4, %s' % (t[1], lane))
            p('s_lshl_b32 s21, s22, 17')
            p('s_cmp_ge_u32 s24, 8')
            p('s_cbranch_scc1 %s_kvV' % name)
            p.alt_begin()
            p('v_lshlrev_b32 %s, 8, %s' % (t[2], t[0])); p('v_lshl_add_u32 %s, %s, 3, %s' % (t[2], t[1], t[2]))
            p('s_and_b32 s26, s24, 1'); p('s_lshl_b32 s26, s26, 12'); p('s_add_u32 s25, s25, s26')
            p('s_lshr_b32 s26, s24, 1'); p('s_lshl_b32 s26, s26, 6'); p('s_add_u32 s25, s25, s26')
            p('buffer_load_dwordx2 %s, %s, %s, s25 offen' % (R(kv, 0, 2), t[2], sr(S_B)))
            p('buffer_load_dwordx2 %s, %s, %s, s25 offen offset:32' % (R(kv, 2, 2), t[2], sr(S_B)))
            p('s_mov_b32 s26, 0x%x' % OOB)
            for e in range(6): p('buffer_load_ushort %s, %s, %s, s26 offen' % (R(kv, 4 + e), t[2], sr(S_B)))
            p('s_lshl_b32 s26, s23, 13'); p('s_add_u32 s21, s21, s26'); p('s_lshl_b32 s26, s24, 10'); p('s_add_u32 s21, s21, s26')
            p('s_add_u32 s21, s21, 0x%x' % WS_KF)
            p('s_branch %s_kvJ' % name)
            p.alt_next()
            p.label('%s_kvV' % name)
            p('s_bfe_u32 s26, s24, 0x20001'); p('s_lshl_b32 s26, s26, 6'); p('s_add_u32 s25, s25, s26')
            p('s_and_b32 s26, s24, 1'); p('s_lshl_b32 s26, s26, 3'); p('s_add_u32 s25, s25, s26')
            p('s_add_u32 s26, s25, 4096')
            p('v_lshrrev_b32 %s, 2, %s' % (t[2], t[0])); p('v_lshlrev_b32 %s, 4, %s' % (t[2], t[2]))
            p('v_and_b32 %s, 3, %s' % (t[3], t[0])); p('v_lshl_add_u32 %s, %s, 1, %s' % (t[2], t[3], t[2]))
            p('v_lshl_add_u32 %s, %s, 10, %s' % (t[2], t[1], t[2]))
            for e in range(8):
                p('buffer_load_ushort %s, %s, %s, %s offen offset:%d' % (R(kv, 4 + e), t[2], sr(S_C), 's26' if e >= 4 else 's25', (e % 4) * 256))
            p('s_bfe_u32 s26, s24, 0x20001'); p('s_lshl_b32 s26, s26, 15'); p('s_add_u32 s21, s21, s26')
            p('s_lshl_b32 s26, s23, 11'); p('s_add_u32 s21, s21, s26')
            p('s_and_b32 s26, s24, 1'); p('s_lshl_b32 s26, s26, 10'); p('s_add_u32 s21, s21, s26')
            p('s_add_u32 s21, s21, 0x%x' % WS_VF)
            p.alt_end()
            p.label('%s_kvJ' % name)
        def part_gemv():
            cs0, cs1, lo0, lo1 = R(cc, 0), R(cc, 1), R(cc, 2), R(cc, 3)
            unpack(p, cs0, cs1, cs0)
            silu(p, cs0, t[0]); silu(p, cs1, t[1])
            rb2(p, cs0, cs1, t[0])
            p('s_lshl_b32 s16, s2, 8'); p('s_add_u32 s16, s16, 0x%x' % WS_CSW)
            p('s_mov_b32 exec_lo, 0x01010101'); p('s_mov_b32 exec_hi, 0x01010101')
            p('buffer_store_dword %s, %s, %s, s16 offen sc1' % (t[0], R(vb), sr(S_WS)))
            p('s_mov_b64 exec, -1')
            p('v_lshrrev_b32 %s, 16, %s' % (lo0, cs0)); p('v_lshrrev_b32 %s, 16, %s' % (lo1, cs1))
            for d in range(4):
                p('v_dot2_f32_bf16 %s, %s, %s, 0' % (R(acc, 2 * d + 1), R(w0, d), cs0))
                p('v_dot2_f32_bf16 %s, %s, %s, 0' % (R(acc, 2 * d), R(w0, d), lo0))
            for d in range(4):
                p('v_dot2c_f32_bf16 %s, %s, %s' % (R(acc, 2 * d + 1), R(w1, d), cs1))
                p('v_dot2c_f32_bf16 %s, %s, %s' % (R(acc, 2 * d), R(w1, d), lo1))
            for e in range(4): p('v_permlane32_swap_b32 %s, %s' % (R(acc, e), R(acc, 4 + e)))
            for e in range(4): p('v_add_f32 %s, %s, %s' % (R(acc, e), R(acc, e), R(acc, 4 + e)))
            for e in range(2): p('v_permlane16_swap_b32 %s, %s' % (R(acc, e), R(acc, 2 + e)))
            for e in range(2): p('v_add_f32 %s, %s, %s' % (R(acc, e), R(acc, e), R(acc, 2 + e)))
            for e in range(2): ror_add(p, R(acc, e), 8)
            p('v_and_b32 %s, 7, %s' % (t[0], lane)); p('v_lshlrev_b32 %s, 5, %s' % (t[0], t[0]))
            p('v_lshrrev_b32 %s, 4, %s' % (t[1], lane)); p('v_lshl_add_u32 %s, %s, 3, %s' % (t[0], t[1], t[0]))
            p('s_lshl_b32 s16, s3, 8'); p('s_add_u32 s16, s16, %d' % FS)
            p('v_add_u32 %s, s16, %s' % (t[0], t[0]))
            p('ds_write_b64 %s, %s' % (t[0], R(acc, 0, 2)))
            p.stamp(20)
        def part_stats():
            for i in range(2):
                for d in range(4): unpack(p, R(X, 8 * i + 2 * d), R(X, 8 * i + 2 * d + 1), R(xr[i], d))
            Xs = [R(X, i) for i in range(16)]
            mean, sd, rcp = R(st, 0), R(st, 1), R(st, 2)
            var = t[1]
            a0, a1, b0, b1 = t[4], t[5], t[2], t[3]
            p('v_add_f32 %s, %s, %s' % (a0, Xs[0], Xs[1])); p('v_add_f32 %s, %s, %s' % (a1, Xs[2], Xs[3]))
            for i in range(4, 16, 2):
                p('v_add_f32 %s, %s, %s' % (a0, a0, Xs[i])); p('v_add_f32 %s, %s, %s' % (a1, a1, Xs[i + 1]))
            p('v_add_f32 %s, %s, %s' % (mean, a0, a1))
            for n in (1, 2, 4, 8): ror_add(p, mean, n)
            xor16_add(p, mean, a0); xor32_add(p, mean, a0)
            p('v_mul_f32 %s, 0x%x, %s' % (mean, f2u(1.0 / 1024), mean))
            p('v_sub_f32 %s, %s, %s' % (b0, Xs[0], mean)); p('v_mul_f32 %s, %s, %s' % (a0, b0, b0))
            p('v_sub_f32 %s, %s, %s' % (b1, Xs[1], mean)); p('v_mul_f32 %s, %s, %s' % (a1, b1, b1))
            for i in range(2, 16, 2):
                p('v_sub_f32 %s, %s, %s' % (b0, Xs[i], mean)); p('v_sub_f32 %s, %s, %s' % (b1, Xs[i + 1], mean))
                p('v_fmac_f32 %s, %s, %s' % (a0, b0, b0)); p('v_fmac_f32 %s, %s, %s' % (a1, b1, b1))
            p('v_add_f32 %s, %s, %s' % (var, a0, a1))
            for n in (1, 2, 4, 8): ror_add(p, var, n)
            xor16_add(p, var, a0); xor32_add(p, var, a0)
            p('v_mul_f32 %s, 0x%x, %s' % (var, f2u(1.0 / 1024), var))
            ln_scalars(p, mean, var, sd, rcp)
            p('s_lshl_b32 s16, s3, 4'); p('s_add_u32 s16, s16, %d' % (FS + 2048 + 16))
            p('v_mov_b32 %s, s16' % t[3])
            p('ds_write_b128 %s, %s' % (t[3], R(st, 0, 4)))
        Xs = [R(X, i) for i in range(16)]
        if XFIRST:
            part_stats(); part_gemv()
        else:
            part_gemv(); part_stats()
        p.stamp(3)
        if A_:
            def ntest(q):
                q('v_cmp_eq_u32 vcc, 0, %s' % R(vn))
                q('s_cmp_eq_u32 s3, 0'); q('s_cselect_b64 s[62:63], -1, 0'); q('s_and_b64 vcc, vcc, s[62:63]')
            rare_poll(p, 'n', ntest, lambda q: q('buffer_load_dword %s, %s, %s, 0 offen sc1' % (R(vn), R(vz, 0), sr(S_B))), flush=False)
            p('v_mov_b32 %s, %d' % (t[3], FS + 2048))
            p('s_cmp_eq_u32 s3, 0'); p('s_cselect_b64 exec, 1, 0')
            p('ds_write_b32 %s, %s' % (t[3], R(vn)))
            p('s_mov_b64 exec, -1')
        p.stamp(1)
        p('v_mov_b32 %s, %d' % (t[3], FS + 2048))
        p('v_and_b32 %s, 31, %s' % (t[1], lane)); p('v_lshlrev_b32 %s, 3, %s' % (t[2], t[1])); p('v_add_u32 %s, %d, %s' % (t[2], FS, t[2]))
        p('v_lshlrev_b32 %s, 4, %s' % (t[1], t[1]))
        p('s_waitcnt lgkmcnt(0)')
        p('s_barrier')
        p('ds_read_b32 %s, %s' % (R(vn), t[3]))
        for i in range(8): p('ds_read_b64 %s, %s offset:%d' % (R(rd[i], 0, 2), t[2], i * 256))
        p('v_readfirstlane_b32 s28, %s' % R(vn))
        p('v_and_b32 %s, 7, %s' % (t[4], lane)); p('v_lshlrev_b32 %s, 4, %s' % (t[4], t[4]))
        p('v_add_u32 %s, %d, %s' % (t[5], FS + 2048 + 16, t[4]))
        p('ds_read_b128 %s, %s' % (R(st, 0, 4), t[5]))
        p('v_mov_b32 %s, s28' % R(st, 3))
        p('s_lshl_b32 s16, s2, 7'); p('s_add_u32 s16, s16, 0x%x' % WS_STG)
        p('s_cmp_eq_u32 s3, 0'); p('s_cselect_b32 s16, s16, 0x%x' % OOB)
        p('s_mov_b64 exec, 0xff')
        p('buffer_store_dwordx4 %s, %s, %s, s16 offen sc1' % (R(st, 0, 4), t[4], sr(S_WS)))
        p('s_mov_b64 exec, -1')
        for s_ in (4, 2, 1):
            for i in range(s_): p('v_pk_add_f32 %s, %s, %s' % (R(rd[i], 0, 2), R(rd[i], 0, 2), R(rd[s_ + i], 0, 2)))
        p('v_mov_b32 %s, s28' % R(rd[0], 2)); p('v_mov_b32 %s, s28' % R(rd[0], 3))
        p('s_lshl_b32 s16, s14, 3'); p('s_add_u32 s16, s16, s15'); p('s_lshl_b32 s16, s16, 9'); p('s_add_u32 s16, s16, 0x%x' % WS_MODG)
        p('s_cmp_eq_u32 s3, 0'); p('s_cselect_b32 s16, s16, 0x%x' % OOB)
        p('s_mov_b64 exec, 0xffffffff')
        p('buffer_store_dwordx4 %s, %s, %s, s16 offen sc1' % (R(rd[0], 0, 4), t[1], sr(S_WS)))
        p('s_mov_b64 exec, -1')
        p.stamp(2)
        p('s_lshr_b32 s16, s3, 2'); p('s_lshl_b32 s16, s16, 4'); p('s_add_u32 s16, s16, s31'); p('s_lshl_b32 s16, s16, 12')
        p('s_and_b32 s17, s3, 3'); p('s_lshl_b32 s17, s17, 7'); p('s_add_u32 s16, s16, s17'); p('s_add_u32 s16, s16, 0x%x' % WS_MODG)
        p('v_lshrrev_b32 %s, 3, %s' % (R(vg), lane)); p('v_lshlrev_b32 %s, 9, %s' % (R(vg), R(vg)))
        p('v_and_b32 %s, 7, %s' % (t[0], lane)); p('v_lshl_add_u32 %s, %s, 4, %s' % (R(vg), t[0], R(vg)))
        p('v_and_b32 %s, 15, %s' % (R(vs), lane)); p('v_lshlrev_b32 %s, 4, %s' % (R(vs), R(vs)))
        p('s_lshl_b32 s17, s29, 8'); p('s_add_u32 s17, s17, 0x%x' % WS_STG)
        for i in range(2):
            for d in range(4): unpack(p, R(X, 8 * i + 2 * d), R(X, 8 * i + 2 * d + 1), R(xt[i], d))
        def gl():
            p('buffer_load_dwordx4 %s, %s, %s, s16 offen sc1' % (R(g4, 0, 4), R(vg), sr(S_WS)))
            p('buffer_load_dwordx4 %s, %s, %s, s17 offen sc1' % (R(s4, 0, 4), R(vs), sr(S_WS)))
        def gt():
            p('v_cmp_ne_u32 vcc, s28, %s' % R(g4, 2))
            p('v_cmp_ne_u32 s[62:63], s28, %s' % R(g4, 3))
            p('s_or_b64 vcc, vcc, s[62:63]')
            p('v_cmp_ne_u32 s[62:63], s28, %s' % R(s4, 3))
            p('s_or_b64 vcc, vcc, s[62:63]')
        backoff(p, 'g')
        SZB = dict(wg=7340032, wu=7340032, wd=7340032, wo=8388608, wq=8388608, out=4194304, wmod=1024 * 6144 * 2, wr=2048)
        if WARM: warm(p, role, R(va), R(vb), sub(rd[6], 0))
        poll(p, 'g', gl, gt)
        p.stamp(4)
        m0_, m1_ = R(g4, 0), R(g4, 1)
        ror_add(p, m0_, 8); ror_add(p, m1_, 8)
        xor16_add(p, m0_, t[1]); xor16_add(p, m1_, t[2]); xor32_add(p, m0_, t[1]); xor32_add(p, m1_, t[2])
        rb2(p, m0_, m1_, t[1])
        p('v_add_f32 %s, %s, %s' % (m0_, '0' if A_ else '1.0', m0_)); p('v_add_f32 %s, %s, %s' % (m1_, '0' if A_ else '1.0', m1_))
        if not A_: rb2(p, m0_, m1_, t[1])
        p('s_lshl_b32 s16, s3, 6'); p('s_add_u32 s16, s16, %d' % MT)
        p('v_lshl_add_u32 %s, %s, 3, s16' % (t[0], t[0]))
        p('ds_write_b64 %s, %s' % (t[0], R(g4, 0, 2)))
        p('v_lshrrev_b32 %s, 4, %s' % (t[1], lane)); p('v_lshlrev_b32 %s, 5, %s' % (t[1], t[1])); p('v_add_u32 %s, %d, %s' % (t[1], MT, t[1]))
        mean, sd, rcp = R(s4, 0), R(s4, 1), R(s4, 2)
        for i in range(16): p('v_sub_f32 %s, %s, %s' % (Xs[i], Xs[i], mean))
        for i in range(0, 16, 2): rb2(p, Xs[i], Xs[i + 1], t[2 + (i // 2) % 2])
        for i in range(16): p('v_mul_f32 %s, %s, %s' % (Xs[i], Xs[i], rcp))
        for i in range(0, 16, 2): rb2(p, Xs[i], Xs[i + 1], t[2 + (i // 2) % 2])
        p('s_lshl_b32 s16, s29, 15'); p('s_lshl_b32 s17, s31, 11'); p('s_add_u32 s16, s16, s17')
        if WS_H: p('s_add_u32 s16, s16, 0x%x' % WS_H)
        p('s_waitcnt lgkmcnt(0)')
        p('s_barrier')
        if not A_:
            p('s_cmp_lt_u32 s24, 8')
            p('s_cbranch_scc1 %s_kvS' % name)
            p.alt_begin()
            for d in range(4):
                p('v_lshl_or_b32 %s, %s, 16, %s' % (R(kv, d), R(kv, 4 + 2 * d + 1), R(kv, 4 + 2 * d)))
            for e in range(8): p('v_and_b32 %s, 0x7fff, %s' % (R(kv, 4 + e), R(kv, 4 + e)))
            p('v_max3_u32 %s, %s, %s, %s' % (R(kv, 4), R(kv, 4), R(kv, 5), R(kv, 6))); p('v_max3_u32 %s, %s, %s, %s' % (R(kv, 7), R(kv, 7), R(kv, 8), R(kv, 9)))
            p('v_max3_u32 %s, %s, %s, %s' % (R(kv, 4), R(kv, 4), R(kv, 10), R(kv, 11))); p('v_max_u32 %s, %s, %s' % (R(kv, 4), R(kv, 4), R(kv, 7)))
            p('v_cmp_le_u32 vcc, 0x4980, %s' % R(kv, 4))
            p('v_mov_b32 %s, s28' % R(kv, 5))
            p('s_mov_b32 s26, 0x%x' % WS_BIGV)
            p('s_and_saveexec_b64 s[62:63], vcc')
            p('buffer_store_dword %s, %s, %s, s26 offen sc1' % (R(kv, 5), R(vz, 0), sr(S_WS)))
            p('s_mov_b64 exec, s[62:63]')
            p.alt_next()
            p.alt_end()
            p.label('%s_kvS' % name)
            p('buffer_store_dwordx4 %s, %s, %s, s21 offen sc1' % (R(kv, 0, 4), l16, sr(S_WS)))
        for hh in range(2):
            for k in range(2):
                p('ds_read_b128 %s, %s offset:%d' % (R(rd[4 * hh + k], 0, 4), t[1], 256 + hh * 128 + k * 16))
                p('ds_read_b128 %s, %s offset:%d' % (R(rd[4 * hh + 2 + k], 0, 4), t[1], hh * 128 + k * 16))
        for hh in range(2):
            for k in range(2):
                for e in range(0, 4, 2):
                    p('v_pk_mul_f32 %s, %s, %s' % (R(X, 8 * hh + 4 * k + e, 2), R(X, 8 * hh + 4 * k + e, 2), R(rd[4 * hh + k], e, 2)))
            for e in range(0, 8, 2): rb2(p, Xs[8 * hh + e], Xs[8 * hh + e + 1], t[2 + (e // 2) % 2])
            for k in range(2):
                for e in range(0, 4, 2):
                    p('v_pk_add_f32 %s, %s, %s' % (R(X, 8 * hh + 4 * k + e, 2), R(X, 8 * hh + 4 * k + e, 2), R(rd[4 * hh + 2 + k], e, 2)))
            o = xr[hh]
            for d in range(4): p('v_cvt_pk_bf16_f32 %s, %s, %s' % (R(o, d), Xs[8 * hh + 2 * d], Xs[8 * hh + 2 * d + 1]))
            p('buffer_store_dwordx4 %s, %s, %s, s16 offen offset:%d sc1' % (R(o, 0, 4), l16, sr(S_WS), hh * 1024), 'hst')
        if ROT:
            p('s_bfe_u32 s25, s2, 0x30003'); p('s_mul_i32 s25, s25, %d' % ROT[0]); p('s_lshr_b32 s26, s2, 6'); p('s_mul_i32 s26, s26, %d' % ROT[1])
            p('s_add_u32 s25, s25, s26'); p('s_and_b32 s25, s25, 15'); p('s_lshl_b32 s26, s25, 11'); p('s_lshl_b32 s25, s25, 19')
        p('s_lshl_b32 s19, s3, 16'); p('s_lshl_b32 s20, s3, 11'); p('s_lshl_b32 s16, s12, 8')
        p('s_add_u32 s4, s%d, s16' % PTR['wq']); p('s_addc_u32 s5, s%d, 0' % (PTR['wq'] + 1))
        p('s_sub_u32 s6, 0x800000, s16'); p('s_mov_b32 s7, 0x20000')
        if not WQ_LATE:
            if WQ_BAR: p('s_barrier')
            for s_ in range(NWQ - 1):
                for it, tag in dma_wq(s_): p(it, tag)
        p('v_mov_b32 %s, s28' % R(vn))
        p('s_lshl_b32 s16, s29, 4'); p('s_add_u32 s16, s16, s31'); p('s_lshl_b32 s16, s16, 2'); p('s_add_u32 s16, s16, 0x%x' % WS_HFLAG)
        p('v_and_b32 %s, 31, %s' % (t[0], lane)); p('v_lshlrev_b32 %s, 2, %s' % (t[0], t[0]))
        p('s_lshl_b32 s17, s13, 3'); p('s_add_u32 s17, s17, s3'); p('s_lshl_b32 s17, s17, 7'); p('s_add_u32 s17, s17, 0x%x' % WS_HFLAG)
        p.wait_tag('hst')
        p('s_mov_b64 exec, 1')
        p('buffer_store_dword %s, %s, %s, s16 offen sc1' % (R(vn), R(vz, 0), sr(S_WS)))
        p('s_mov_b64 exec, -1')
        if WQ_LATE:
            for s_ in range(NWQ - 1):
                for it, tag in dma_wq(s_): p(it, tag)
        if M_ST[0] < 0:
            p('s_mov_b32 s62, s17')
            m_setup(p)
            p('s_mov_b32 s17, s62')
            for c_ in range(2):
                for it, tag in dma_chunk(c_): p(it, tag)
        p.stamp(5)
        for b_, n_, lo_, hi_ in (SPF or {}).get('w2', []): spf(p, b_, n_, lo_, hi_)
        if H_WAITDMA: p('s_waitcnt vmcnt(0)')
        backoff(p, 'h')
        poll(p, 'h', lambda: p('buffer_load_dword %s, %s, %s, s17 offen sc1' % (t[1], t[0], sr(S_WS))),
             lambda: p('v_cmp_ne_u32 vcc, s28, %s' % t[1]))
        p.stamp(6)

    acc1 = [sub(PR, 16 * i) for i in range(4)]
    H = [[sub(PR, 64 + 16 * b + 4 * k) for k in range(4)] for b in range(NH)]
    def hload(s, k):
        return [(('s_add_u32 s23, s26, 0x%x\ns_and_b32 s23, s23, 0x7fff\ns_or_b32 s23, s23, 0x%x' % (s * 2048, WS_H + (k % 2) * 32768)) if ROT else ('s_mov_b32 s23, 0x%x' % (WS_H + s * 2048 + (k % 2) * 32768)), None),
                ('buffer_load_dwordx4 %s, %s, %s, s23 offen offset:%d%s' % (R(H[s % NH][k], 0, 4), R(v_hoff), sr(S_WS), (k // 2) * 1024, hsc), None)]
    def trread(dst, base, n, va, vb):
        a = vb if n % 2 else va
        off = base + (n // 2) * 256 + (n % 2) * 32
        return ['ds_read_b64_tr_b16 %s, %s offset:%d' % (R(dst, 0, 2), a, off),
                'ds_read_b64_tr_b16 %s, %s offset:%d' % (R(dst, 2, 2), a, off + 1024)]

    def phase1(role):
        A_ = role == 'A'
        def trr(f):
            s, T, n = f // 16, (f // 8) % 2, f % 8
            a = wq_slot(s) + T * 8192
            if a < 0x10000: return trread(fr[f % NRA], a, n, R(v_tr), R(v_tr2))
            return trread(fr[f % NRA], a - 0x20000, n, R(v_xv), R(v_wq2))
        if NWQ > 4:
            p('v_add_u32 %s, 0x20000, %s' % (R(v_xv), R(v_tr))); p('v_add_u32 %s, 0x20000, %s' % (R(v_wq2), R(v_tr2)))
        for s in range(NH - 1):
            for k in range(4):
                for it, tag in hload(s, k): p(it, tag)
        p('s_lshr_b32 s21, s12, 3'); p('s_lshl_b32 s21, s21, 17'); p('s_add_u32 s21, s21, s20'); p('s_add_u32 s21, s21, 0x%x' % WS_KF)
        p.wait_tag('wq0')
        if prioB and not A_: p('s_setprio 1')
        p('s_barrier')
        for f in range(D1):
            for x in trr(f): p(x)
        sc = Sched()
        hnext = [4 * (NH - 1)]
        for f in range(256):
            s, T, n = f // 16, (f // 8) % 2, f % 8
            for qs in range(2):
                d = R(acc1[n // 2], (n % 2) * 8 + qs * 4, 4)
                idx = sc.mfma('v_mfma_f32_16x16x32_bf16 %s, %s, %s, %s' % (d, R(fr[f % NRA], 0, 4), R(H[s % NH][T * 2 + qs], 0, 4), '0' if f < 8 else d))
            g = f + D1
            if g < 256:
                if g % 16 == 0:
                    sn = g // 16
                    sc.place(idx, lambda q, sn=sn: q.wait_tag('wq%d' % sn))
                    sc.place(idx, 's_barrier')
                    nxt = dma_wq(sn + NWQ - 2) if sn + NWQ - 2 < 16 else []
                    for i in range(len(nxt) // 3):
                        for it, tag in nxt[3 * i:3 * i + 3]: sc.place(idx + (1 + 4 * i) * 2 + (0 if A_ else P1B[0]), it, tag)
                tr = trr(g)
                if g % 16 != 0:
                    sc.place(idx - 1, tr[0]); sc.place(idx, tr[1])
                else:
                    for x in tr: sc.place(idx, x)
            if f % 4 in ((1, 3) if A_ or not P1B[1] else (0, 2)):
                tq = (f // 4) % 4
                lim = min(64, (s + NH - 1) * 4 + tq + 1)
                if hnext[0] < lim:
                    for it, tag in hload(hnext[0] // 4, hnext[0] % 4): sc.place(idx, it, tag)
                    hnext[0] += 1
        if True:
            fl4 = x4
            def kvf_load(q):
                q('buffer_load_dwordx4 %s, %s, %s, s18 offen sc1' % (R(fl4, 0, 4), t[5], sr(S_WS)))
            def kvf_issue(q):
                q('v_lshrrev_b32 %s, 4, %s' % (t[5], lane)); q('v_lshlrev_b32 %s, 9, %s' % (t[5], t[5]))
                q('v_and_b32 %s, 15, %s' % (t[4], lane)); q('v_lshl_add_u32 %s, %s, 4, %s' % (t[5], t[4], t[5]))
                q('s_lshr_b32 s18, s12, 3'); q('s_lshl_b32 s18, s18, 11'); q('s_add_u32 s18, s18, 0x%x' % (WS_HFLAG + 256))
                kvf_load(q)
            def kvf_test(q):
                a_, b_ = R(v_kvoff), t[4]
                q('v_xor_b32 %s, s28, %s' % (a_, R(fl4, 0))); q('v_xor_b32 %s, s28, %s' % (b_, R(fl4, 1)))
                q('v_or_b32 %s, %s, %s' % (a_, a_, b_))
                q('v_xor_b32 %s, s28, %s' % (b_, R(fl4, 2))); q('v_or_b32 %s, %s, %s' % (a_, a_, b_))
                q('v_xor_b32 %s, s28, %s' % (b_, R(fl4, 3))); q('v_or_b32 %s, %s, %s' % (a_, a_, b_))
                q('v_cmp_ne_u32 vcc, 0, %s' % a_)
            sc.place(2 * (16 * 6 + 6), kvf_issue)
            sc.place(2 * (16 * 9 + 6), lambda q: rare_poll(q, 'kv', kvf_test, kvf_load))
            sc.place(2 * (16 * 9 + 6) + 1, lambda q: (q('v_mov_b32 %s, 0' % t[4]), q('s_mov_b32 s16, 0x%x' % WS_BIGV), q('buffer_load_dword %s, %s, %s, s16 offen sc1' % (R(v_kvoff), t[4], sr(S_WS)))))
            if M_ST[0] >= 0: sc.place(2 * (16 * (M_ST[0] - 1) + 10), m_setup)
            sc.place(2 * (16 * 13 + 2), m_cs)
            for c in range(0 if M_ST[0] >= 0 else 2, 4):
                ch = dma_chunk(c)
                for i in range(2):
                    for it, tag in ch[3 * i:3 * i + 3]: sc.place(2 * (16 * (M_ST[c] if c < 2 else 10 + c) + 8 + 2 * i), it, tag)
        if CPF1 and A_:
            va_, vb_, vd_ = R(SS, 0), R(SS, 1), R(SS, 2)
            def cp_setup(q):
                q('v_and_b32 %s, 31, %s' % (vd_, lane))
                q('v_lshrrev_b32 %s, 1, %s' % (va_, vd_)); q('s_lshr_b32 s16, s2, 6'); q('s_lshl_b32 s16, s16, 4'); q('v_add_u32 %s, s16, %s' % (va_, va_))
                q('v_lshlrev_b32 %s, 13, %s' % (va_, va_)); q('v_and_b32 %s, 1, %s' % (vb_, vd_)); q('v_lshl_add_u32 %s, %s, 7, %s' % (va_, vb_, va_))
                q('v_lshrrev_b32 %s, 4, %s' % (vb_, vd_)); q('s_bfe_u32 s16, s2, 0x30003'); q('s_lshl_b32 s16, s16, 1'); q('s_lshl_b32 s17, s13, 4'); q('s_add_u32 s16, s16, s17')
                q('v_add_u32 %s, s16, %s' % (vb_, vb_)); q('v_lshlrev_b32 %s, 15, %s' % (vb_, vb_))
                q('v_and_b32 %s, 15, %s' % (vd_, vd_)); q('v_lshl_add_u32 %s, %s, 7, %s' % (vb_, vd_, vb_))
            sc.place(0, cp_setup)
            for s_ in range(16 - CPF1[0]):
                st_ = s_ + CPF1[0]
                def one(q, st_=st_):
                    q('s_mov_b32 s16, 0x%x' % (st_ * 64 * 8192)); q('s_cmp_eq_u32 s3, %d' % CPF1[1]); q('s_cselect_b32 s16, s16, 0x%x' % OOB)
                    q('s_mov_b32 s17, 0x%x' % (WS_H + st_ * 2048)); q('s_cselect_b32 s17, s17, 0x%x' % OOB)
                    q('s_mov_b64 exec, 0xffffffff')
                    q('buffer_load_dword %s, %s, %s, s16 offen' % (vd_, va_, sr(S_A)), 'pf')
                    q('buffer_load_dword %s, %s, %s, s17 offen' % (vd_, vb_, sr(S_WS)), 'pf')
                    q('s_mov_b64 exec, -1')
                sc.place(32 * s_ + CPF1[2], one)
        if p1pf:
            SZ = dict(wg=7340032, wu=7340032, wd=7340032, wo=8388608, wmod=1024 * 6144 * 2)
            rounds = [(b, k) for b in p1pf['bufs'] for k in range(4)]
            mine = [(i, r) for i, r in enumerate(rounds) if (i % 2 == 0) == A_]
            def pf_setup(q):
                q('v_lshlrev_b32 %s, 7, %s' % (t[1], lane)); q('s_lshl_b32 s16, s2, 13'); q('v_add_u32 %s, s16, %s' % (t[3], t[1]))
            sc.place(1, pf_setup)
            lo, hi = p1pf['at']
            for i, (b, k) in mine:
                at = lo + (i * (hi - lo)) // len(rounds)
                wv = (i // 2) % 4 + (0 if A_ else 4)
                def one(q, b=b, k=k, wv=wv):
                    mk_srd(q, S_B, b, SZ[b])
                    if b == 'wmod':
                        q('s_add_u32 s16, s2, %d' % (k * 256)); q('s_mul_i32 s16, s16, 12288'); q('s_add_u32 s16, s16, 4096')
                    else:
                        q('s_mov_b32 s16, 0x%x' % (k * 0x200000))
                    q('s_cmp_eq_u32 s3, %d' % wv); q('s_cselect_b32 s16, s16, 0x%x' % OOB)
                    q('buffer_load_dword %s, %s, %s, s16 offen' % (t[2], t[1] if b == 'wmod' else t[3], sr(S_B)), 'pf')
                sc.place(at, one)
        if p1st:
            for i_, s_ in enumerate(p1st): sc.place(32 * s_, lambda q, i_=i_: q.stamp(60 + i_))
        sc.emit(p)
        p.stamp(7)
        p.wait_tag('ch0'); p.wait_tag('ch1')
        p('s_barrier')
        for c_ in (4, 5):
            for it, tag in dma_chunk(c_): p(it, tag)
        m_reads(p)
        p('s_mov_b32 s23, 0x%x' % f2u((128 ** -0.5) * LOG2E))
        for dt in range(1 if QCONV else 4):
            for o in qconv(dt): p(o)
            if dt == 0: m_mfma(p)
        p.stamp(8)
    def qconv(dt):
        ops = []
        for r in range(0, 16, 2):
            ta, tb = R(acc1[dt], r), R(acc1[dt], r + 1)
            ops.append('v_mul_f32 %s, s23, %s' % (ta, ta)); ops.append('v_mul_f32 %s, s23, %s' % (tb, tb))
        for r in range(0, 16, 2):
            ops.append('v_cvt_pk_bf16_f32 %s, %s, %s' % (R(qf[((r // 4) % 2) * 4 + dt], (r // 8) * 2 + (r % 4) // 2), R(acc1[dt], r), R(acc1[dt], r + 1)))
        return ops

    v_l16b = v_tr; v_l16c = v_tr2
    P = [[sub(PR, 8 * j + 4 * qs) for qs in range(2)] for j in range(16)]
    def lds_read(dst, addr):
        if addr >= 0x20000: return 'ds_read_b128 %s, %s offset:%d' % (R(dst, 0, 4), R(v_l16c), addr - 0x20000)
        return 'ds_read_b128 %s, %s offset:%d' % (R(dst, 0, 4), R(v_l16b), addr - 0x10000)
    def softmax_ops(j, sub_, first, s=None, lsum=None):
        lsum = (not LMF) if lsum is None else lsum
        ops = []
        s = S[j % 2] if s is None else s
        for r in range(0, 16, 2):
            a, qs = r // 8, (r // 4) % 2
            if sub_:
                ops.append('v_add_f32 %s, %s, %s' % (R(s, r), R(s, r), R(negm, 4 * qs)))
                ops.append('v_add_f32 %s, %s, %s' % (R(s, r + 1), R(s, r + 1), R(negm, 4 * qs)))
            ops.append('v_exp_f32 %s, %s' % (R(s, r), R(s, r)))
            ops.append('v_exp_f32 %s, %s' % (R(s, r + 1), R(s, r + 1)))
            if not lsum: pass
            elif first and r % 4 == 0 and a == 0:
                ops.append('v_add_f32 %s, %s, %s' % (R(v_l[qs]), R(s, r), R(s, r + 1)))
            else:
                ops.append('v_add_f32 %s, %s, %s' % (R(v_l[qs]), R(v_l[qs]), R(s, r)))
                ops.append('v_add_f32 %s, %s, %s' % (R(v_l[qs]), R(v_l[qs]), R(s, r + 1)))
            ops.append('v_cvt_pk_bf16_f32 %s, %s, %s' % (R(P[j][qs], a * 2 + (r % 4) // 2), R(s, r), R(s, r + 1)))
        if not lsum and SMPIPE:
            cv = [o for o in ops if o.startswith('v_cvt')]; rest = [o for o in ops if not o.startswith('v_cvt')]
            per = len(rest) // 8
            out = []
            for k in range(8):
                out += rest[k * per:(k + 1) * per]
                if k > 0: out.append(cv[k - 1])
            out.append(cv[7])
            return out
        return ops
    def xl_red(m, m2, op):
        return ['v_mov_b32 %s, %s' % (m2, m), 'v_permlane16_swap_b32 %s, %s' % (m, m2), '%s %s, %s, %s' % (op, m, m, m2),
                'v_mov_b32 %s, %s' % (m2, m), 'v_permlane32_swap_b32 %s, %s' % (m, m2), '%s %s, %s, %s' % (op, m, m, m2)]
    def finish_max(ms, m2s):
        ops = []
        a, b = xl_red(ms[0], m2s[0], 'v_max_f32'), xl_red(ms[1], m2s[1], 'v_max_f32')
        for x, y in zip(a, b): ops += [x, y]
        for r in range(8): ops.append('v_sub_f32 %s, 0, %s' % (R(negm, r), ms[r // 4]))
        return ops
    def mf_k(sreg, f, frag, cz):
        T, a = f // 2, f % 2
        out = []
        for qs in range(2):
            d = R(sreg, (a * 2 + qs) * 4, 4)
            c = d if T > 0 else ('0' if cz else R(negm, 4 * qs, 4))
            out.append('v_mfma_f32_16x16x32_bf16 %s, %s, %s, %s' % (d, frag, R(qf[qs * 4 + T], 0, 4), c))
        return out
    accO = [sub(SS, 0), sub(SS, 16)]
    stg = [sub(negm, 0), sub(negm, 4)]
    WD = [sub(QF, 4 * i) for i in range(8)]

    def lmf(j, qs):
        d = R(SP, 4 * qs, 4)
        return 'v_mfma_f32_16x16x32_bf16 %s, %s, %s, %s' % (d, R(x4, 0, 4), R(P[j][qs], 0, 4), '0' if j == 0 else d)
    def phase2(role):
        A_ = role == 'A'
        p('v_add_u32 %s, 0x10000, %s' % (R(v_l16b), l16))
        p('v_add_u32 %s, 0x20000, %s' % (R(v_l16c), l16))
        seq = [(j, f) for j in range(16) for f in range(8)]
        sc = Sched()
        for n, (j, f) in enumerate(seq):
            for m_ in mf_k(S[j % 2], f, R(fr[n % NRA], 0, 4), j < 2): sc.mfma(m_)
        def place_reads(sc, nfr, addr_of, chunk_of, n0):
            last = None
            for n in range(nfr):
                at = 2 * (n - D2) + 1 if n - D2 >= 0 else -1
                c = chunk_of(n)
                if c != last:
                    last = c
                    sc.place(at, lambda q, c=c: q.wait_tag('ch%d' % c))
                    sc.place(at, 's_barrier')
                    nx = dma_chunk(c + 4)
                    for q_ in range(len(nx) // 3):
                        for it, tag in nx[3 * q_:3 * q_ + 3]: sc.place(max(at, 0) + 2 + (0 if A_ else P2B) + (8 if len(nx) == 6 else 4) * q_, it, tag)
                sc.place(at, lds_read(fr[(n0 + n) % NRA], addr_of(n)))
        place_reads(sc, 128, lambda n: slot(2 + n // 16) + (n % 16) * 1024, lambda n: 2 + n // 16, 0)
        if QCONV:
            for dt in range(1, 4):
                ops = qconv(dt)
                for i, o in enumerate(ops): sc.place(4 * (dt - 1) + (i * 4) // len(ops), o)
        ms, m2s = [t[0], t[1]], [t[2], t[3]]
        ops = []
        for qs in range(2):
            rg = [R(S[0], (a * 2 + qs) * 4 + k) for a in range(2) for k in range(4)]
            ops.append('v_max3_f32 %s, %s, %s, %s' % (ms[qs], rg[0], rg[1], rg[2]))
            for i in range(3, 7, 2): ops.append('v_max3_f32 %s, %s, %s, %s' % (ms[qs], ms[qs], rg[i], rg[i + 1]))
            ops.append('v_max_f32 %s, %s, %s' % (ms[qs], ms[qs], rg[7]))
        for i, o in enumerate(ops): sc.place(22 + i, o)
        ops = []
        for qs in range(2):
            rg = [R(S[1], (a * 2 + qs) * 4 + k) for a in range(2) for k in range(4)]
            for i in range(0, 8, 2): ops.append('v_max3_f32 %s, %s, %s, %s' % (ms[qs], ms[qs], rg[i], rg[i + 1]))
        ops += finish_max(ms, m2s) + softmax_ops(0, True, True)
        for o in ops: sc.place(31, o)
        for j in range(1, 15):
            lo, hi = 16 * (j + 1) + 1, 16 * (j + 2) - 1
            ops = softmax_ops(j, j < 2, False)
            nm = hi - lo + 1
            for i, o in enumerate(ops): sc.place(lo + min(nm - 1, (i * nm) // len(ops)), o)
        if not A_:
            def gu_setup(q):
                mk_srd(q, S_B, 'wg', 7340032); mk_srd(q, S_C, 'wu', 7340032)
                q('s_cmp_lt_u32 s2, 224'); q('s_cselect_b32 s66, 7340032, 0'); q('s_cselect_b32 s70, 7340032, 0')
                q('s_and_b32 s29, s2, 7'); q('s_mul_i32 s29, s29, 28'); q('s_lshr_b32 s16, s2, 3'); q('s_add_u32 s29, s29, s16')
                q('s_sub_u32 s16, s3, 4')
                q('v_lshrrev_b32 %s, 3, %s' % (t[4], lane)); q('v_lshlrev_b32 %s, 3, %s' % (t[4], t[4]))
                q('s_lshl_b32 s17, s16, 6'); q('v_add_u32 %s, s17, %s' % (t[4], t[4]))
                q('s_mov_b32 s17, 7168'); q('v_mul_lo_u32 %s, s17, %s' % (R(v_xv), t[4]))
                q('v_and_b32 %s, 7, %s' % (t[4], lane)); q('v_lshl_add_u32 %s, %s, 4, %s' % (R(v_xv), t[4], R(v_xv)))
                q('s_and_b32 s17, s29, 3'); q('s_mul_i32 s18, s17, %d' % (256 * 7168))
                q('s_lshr_b32 s17, s29, 2'); q('s_lshl_b32 s17, s17, 7'); q('s_add_u32 s18, s18, s17')
                q('s_lshl_b32 s15, s16, 13')
            sc.place(1, gu_setup)
            if wopf is not None:
                def wo_pf(q):
                    mk_srd(q, S_D, 'wo', 0x800000)
                    q('v_lshlrev_b32 %s, 7, %s' % (t[5], lane))
                    q('s_lshl_b32 s16, s2, 2'); q('s_add_u32 s16, s16, s3'); q('s_sub_u32 s16, s16, 4'); q('s_lshl_b32 s16, s16, 13')
                    q('buffer_load_dword %s, %s, %s, s16 offen' % (R(v_hoff), t[5], sr(S_D)), 'pf')
                sc.place(wopf, wo_pf)
            for b_, at_ in (XPF or {}).items():
                def xpf(q, b_=b_):
                    mk_srd(q, S_D, b_, 7340032)
                    q('s_cmp_lt_u32 s2, 224'); q('s_cselect_b32 s74, 7340032, 0')
                    if b_ == 'wd':
                        q('v_lshlrev_b32 %s, 7, %s' % (t[5], lane))
                        q('s_lshl_b32 s16, s29, 2'); q('s_add_u32 s16, s16, s3'); q('s_sub_u32 s16, s16, 4'); q('s_lshl_b32 s16, s16, 13')
                    else:
                        q('s_sub_u32 s16, s3, 4'); q('s_lshl_b32 s16, s16, 6'); q('v_add_u32 %s, s16, %s' % (t[5], lane))
                        q('s_mov_b32 s16, 7168'); q('v_mul_lo_u32 %s, s16, %s' % (t[5], t[5]))
                        q('s_and_b32 s17, s29, 3'); q('s_mul_i32 s16, s17, %d' % (256 * 7168))
                        q('s_lshr_b32 s17, s29, 2'); q('s_lshl_b32 s17, s17, 7'); q('s_add_u32 s16, s16, s17')
                    q('buffer_load_dword %s, %s, %s, s16 offen' % (R(v_hoff), t[5], sr(S_D)), 'pf')
                sc.place(at_, xpf)
            items = [(m, i) for i in range(8) for m in range(2)]
            lo, hi = 2 * (16 * gu_at[0] + 2), 2 * (16 * gu_at[1])
            if GU3_AT is not None: items = [x for x in items if x[0] == 0]
            for k, (m, i) in enumerate(items if do_gu else []):
                at = lo + (k * (hi - lo)) // len(items)
                sc.place(at, 's_add_u32 s22, s18, %d' % (i * 7168))
                sc.place(at, 's_add_u32 m0, s15, %d' % (m * 32768 + i * 1024))
                sc.place(at, 'buffer_load_dwordx4 %s, %s, s22 offen lds' % (R(v_xv), sr(S_B if m == 0 else S_C)), 'gu')
        else:
            sc.place(1, lambda q: (q('s_and_b32 s29, s2, 7'), q('s_mul_i32 s29, s29, 28'), q('s_lshr_b32 s16, s2, 3'), q('s_add_u32 s29, s29, s16')))
        def wo_setup(q):
            mk_srd(q, S_A, 'wo', 0x800000)
            q('v_bfe_u32 %s, %s, 2, 2' % (t[4], lane))
            q('v_lshlrev_b32 %s, 13, %s' % (t[5], t[4])); q('v_sub_u32 %s, %s, %s' % (R(v_wqoff), R(v_wqoff), t[5]))
            q('v_lshl_add_u32 %s, %s, 11, %s' % (R(v_wqoff), t[4], R(v_wqoff)))
            if BIG:
                q('s_lshr_b32 s16, s12, 3'); q('s_lshl_b32 s24, s16, 21')
                q('s_and_b32 s16, s12, 7'); q('s_lshl_b32 s16, s16, 8'); q('s_add_u32 s24, s24, s16')
            else:
                q('s_and_b32 s16, s2, 1'); q('s_lshl_b32 s24, s16, 22')
                q('s_lshr_b32 s16, s2, 5'); q('s_lshl_b32 s16, s16, 8'); q('s_add_u32 s24, s24, s16')
            q('s_lshl_b32 s16, s3, 14'); q('s_add_u32 s24, s24, s16')
            if ROT3:
                q('s_lshr_b32 s62, s2, 5'); q('s_mul_i32 s62, s62, %d' % ROT3[0]); q('s_bfe_u32 s16, s2, 0x20003'); q('s_mul_i32 s16, s16, %d' % ROT3[1])
                q('s_add_u32 s62, s62, s16'); q('s_and_b32 s62, s62, 7'); q('s_lshl_b32 s62, s62, 13')
            if not A_: q('s_add_u32 s24, s24, %d' % (96 * 2048))
        sc.place(16 * 2 + 5, wo_setup)
        sc.place(0, m_store)
        assert (MP_AT[0] + 2 * D2 - 1) % 32 in range(1, 8)
        sc.place(MP_AT[0] - 8, lambda q: q.wait_tag('mst'))
        if A_: sc.place(MP_AT[0], mc_pub)
        if LMF == 'qk':
            sc.place(-1, lambda q: [q('v_mov_b32 %s, 0x3f803f80' % R(x4, k)) for k in range(4)])
            for j in range(14):
                for qs in range(2): sc.place(16 * (j + 2) + 1 + 2 * qs, lmf(j, qs))
        if qkst:
            for i_, s_ in enumerate(qkst): sc.place(s_, lambda q, i_=i_: q.stamp(40 + i_))
        sc.emit(p)
        p.stamp(9)
        pv = [(T, hh, jj, b) for T in range(4) for hh in range(2) for jj in range(8) for b in range(2)]
        sc = Sched()
        for n, (T, hh, jj, b) in enumerate(pv):
            for qs in range(2):
                d = R(accO[T % 2], b * 8 + qs * 4, 4)
                sc.mfma('v_mfma_f32_16x16x32_bf16 %s, %s, %s, %s' % (d, R(fr[(128 + n) % NRA], 0, 4), R(P[8 * hh + jj][qs], 0, 4), '0' if (hh == 0 and jj == 0) else d))
        place_reads(sc, 128, lambda n: slot(10 + n // 16) + (n % 16) * 1024, lambda n: 10 + n // 16, 128)
        l0, l1 = R(v_l[0]), R(v_l[1])
        def mid(q):
            if LMF == 'qk':
                for qs in range(2): q(lmf(14, qs))
            for o in softmax_ops(15, False, False): q(o)
            if LMF == 'qk':
                for qs in range(2): q(lmf(15, qs))
                guard(q)
                return
            if LMF:
                for k in range(4): q('v_mov_b32 %s, 0x3f803f80' % R(x4, k))
                return
            for x, y in zip(xl_red(l0, t[0], 'v_add_f32'), xl_red(l1, t[2], 'v_add_f32')): q(x); q(y)
            guard(q)
        def guard(q):
            if LMF == 'qk':
                q('v_mov_b32 %s, %s' % (l0, R(SP, 0))); q('v_mov_b32 %s, %s' % (l1, R(SP, 4)))
            elif LMF:
                q('v_mov_b32 %s, %s' % (l0, R(negm, 0))); q('v_mov_b32 %s, %s' % (l1, R(negm, 4)))
            q('v_max_f32 %s, %s, %s' % (t[1], l0, l1))
            q('v_readfirstlane_b32 s17, %s' % R(v_kvoff))
            q('s_cmp_eq_u32 s17, s28'); q('s_cselect_b32 s16, 0, 0x%x' % f2u(2.0 ** 100))
            q('v_cmp_ngt_f32 vcc, s16, %s' % t[1])
            q('v_cmp_u_f32 s[76:77], %s, %s' % (l0, l1))
            q('s_or_b64 vcc, vcc, s[76:77]')
            lab = '%s_fix%s' % (name, role)
            q('s_cbranch_vccnz %s' % lab)
            q.label(lab + 'b')
            q('v_rcp_f32 %s, %s' % (l0, l0)); q('v_rcp_f32 %s, %s' % (l1, l1))
            q('s_lshl_b32 s25, s13, 3'); q('s_add_u32 s25, s25, s3'); q('s_lshl_b32 s25, s25, 18')
            q('s_lshl_b32 s26, s12, 12'); q('s_add_u32 s25, s25, s26'); q('s_add_u32 s25, s25, 0x%x' % WS_O)
            q('s_add_u32 s26, s25, 131072')
            q('s_lshl_b32 s63, s13, 3'); q('s_add_u32 s63, s63, s3'); q('s_lshl_b32 s63, s63, 5'); q('s_add_u32 s63, s63, s12'); q('s_lshl_b32 s63, s63, 2')
            z = Prog()
            z.label(lab); z.flush()
            z('s_lshr_b32 s16, s12, 3'); z('s_lshl_b32 s16, s16, 17'); z('s_add_u32 s16, s16, 0x%x' % WS_KF)
            z('v_add_u32 %s, s16, %s' % (R(v_kvoff), l16))
            z('v_mov_b32 %s, 0xff7fffff' % ms[0]); z('v_mov_b32 %s, 0xff7fffff' % ms[1])
            KF = [sub(S[1], 4 * i) for i in range(4)]
            def ktile(z, j, cz):
                for hf in range(2):
                    z('s_mov_b32 s17, 0x%x' % (j * 8192 + hf * 4096))
                    for i in range(4): z('buffer_load_dwordx4 %s, %s, %s, s17 offen offset:%d' % (R(KF[i], 0, 4), R(v_kvoff), sr(S_WS), i * 1024))
                    for i in range(4):
                        for m_ in mf_k(S[0], hf * 4 + i, R(KF[i], 0, 4), cz): z(m_)
            z('s_mov_b32 s16, 0')
            z.loop_begin(); z.label(lab + 'm')
            for hf in range(2):
                z('s_add_u32 s17, s16, %d' % (hf * 4096))
                for i in range(4): z('buffer_load_dwordx4 %s, %s, %s, s17 offen offset:%d' % (R(KF[i], 0, 4), R(v_kvoff), sr(S_WS), i * 1024))
                for i in range(4):
                    for m_ in mf_k(S[0], hf * 4 + i, R(KF[i], 0, 4), True): z(m_)
            for r in range(0, 16, 2): z('v_max3_f32 %s, %s, %s, %s' % (ms[(r // 4) % 2], ms[(r // 4) % 2], R(S[0], r), R(S[0], r + 1)))
            z('s_add_u32 s16, s16, 8192'); z('s_cmp_lt_u32 s16, 0x20000'); z('s_cbranch_scc1 %sm' % lab)
            z.loop_end()
            for o in finish_max(ms, m2s): z(o)
            for j in range(16):
                ktile(z, j, False)
                for o in softmax_ops(j, False, j == 0, S[0], lsum=True): z(o)
            for x, y in zip(xl_red(l0, t[0], 'v_add_f32'), xl_red(l1, t[2], 'v_add_f32')): z(x); z(y)
            if LMF is True:
                z.flush()
                z('s_lshr_b32 s16, s12, 3'); z('s_lshl_b32 s16, s16, 17'); z('s_add_u32 s16, s16, 0x%x' % WS_VF)
                z('v_add_u32 %s, s16, %s' % (R(v_kvoff), l16))
                for j2 in range(0, 16, 2):
                    z('s_mov_b32 s17, 0x%x' % (j2 * 2048))
                    for i in range(4): z('buffer_load_dwordx4 %s, %s, %s, s17 offen offset:%d' % (R(KF[i], 0, 4), R(v_kvoff), sr(S_WS), i * 1024))
                    for i in range(4):
                        j_, b_ = j2 + i // 2, i % 2
                        for qs in range(2):
                            d = R(accO[0], b_ * 8 + qs * 4, 4)
                            z('v_mfma_f32_16x16x32_bf16 %s, %s, %s, %s' % (d, R(KF[i], 0, 4), R(P[j_][qs], 0, 4), '0' if j_ == 0 else d))
            z.flush()
            z('s_branch %sb' % lab)
            rare.append(z)
        sc.place(-1, mid)
        if LMF is True:
            for j in range(16):
                for qs in range(2):
                    d = R(negm, 4 * qs, 4)
                    sc.place(4 * j + 1 + 2 * qs, 'v_mfma_f32_16x16x32_bf16 %s, %s, %s, %s' % (d, R(x4, 0, 4), R(P[j][qs], 0, 4), '0' if j == 0 else d))
            sc.place(63, guard)
        def ostore(T):
            ops = []
            a = accO[T % 2]
            for qs in range(2):
                for b in range(2):
                    for k in range(4): ops.append(('v_mul_f32 %s, %s, %s' % (R(a, b * 8 + qs * 4 + k), R(a, b * 8 + qs * 4 + k), R(v_l[qs])), None))
                for b in range(2):
                    for k in range(0, 4, 2):
                        ops.append(('v_cvt_pk_bf16_f32 %s, %s, %s' % (R(stg[qs], b * 2 + k // 2), R(a, b * 8 + qs * 4 + k), R(a, b * 8 + qs * 4 + k + 1)), None))
                ops.append(('buffer_store_dwordx4 %s, %s, %s, %s offen offset:%d sc1' % (R(stg[qs], 0, 4), l16, sr(S_WS), 's26' if qs else 's25', T * 1024), 'ost%d' % T))
            return ops
        for T in range(3):
            ops = ostore(T)
            lo = 64 * (T + 1) + 3
            for i, (o, tag) in enumerate(ops):
                if T == 2 and OST2_LATE and o.startswith('buffer_store'): sc.place(252 + (tag is None) + (i > 13), o, tag)
                else: sc.place(lo + OST_SP * i, o, tag)
        if not A_ and do_wd and WD_AT >= 0: sc.place(WD_AT, wd_loads)
        if not A_ and wopf_pv is not None:
            def wo_pf2(q):
                mk_srd(q, S_D, 'wo', 0x800000)
                q('v_lshlrev_b32 %s, 7, %s' % (t[5], lane))
                q('s_lshl_b32 s16, s2, 2'); q('s_add_u32 s16, s16, s3'); q('s_sub_u32 s16, s16, 4'); q('s_lshl_b32 s16, s16, 13')
                q('buffer_load_dword %s, %s, %s, s16 offen' % (t[4], t[5], sr(S_D)), 'pf')
            sc.place(wopf_pv, wo_pf2)
        if A_: mc_final(sc)
        for T_, at_ in enumerate(OF_AT):
            if at_ < 1000: sc.place(at_, lambda q, T_=T_: oflag(q, T_))
        ks_ = 0 if A_ else 1
        sc.place(P3_AT[0], lambda q: p3_setup(q, ks_))
        sc.place(P3_AT[1], lambda q: rare_poll(q, 'o', lambda z: z('v_cmp_ne_u32 vcc, s28, %s' % of2), of_load))
        k_ = 0
        if BIG:
            for s_ in range(NO - 1):
                for j in range(4):
                    for l_ in oload_big(s_, j): sc.place(P3_AT[1] + 1 + (29 * k_) // (4 * (NO - 1)), l_)
                    k_ += 1
        else:
            for s_ in range(PO - 1):
                for qs in range(2):
                    for l_ in oload(s_, qs): sc.place(P3_AT[1] + 1 + (29 * k_) // (2 * (PO - 1)), l_)
                    k_ += 1
        for i_, o_ in enumerate(p3_addr(0 if BIG else ks_)): sc.place(248 + i_ // 2, o_)
        if pvst:
            for i_, s_ in enumerate(pvst): sc.place(s_, lambda q, i_=i_: q.stamp(50 + i_))
        sc.emit(p)
        for o, tag in ostore(3): p(o, tag)
        p.stamp(10)

    gu_defer = []
    last_ostore = [None]
    def oflag(q, T):
        q.wait_tag('ost%d' % T)
        q('s_add_u32 s16, s63, 0x%x' % (WS_OFLAG + T * 8192))
        a_, b_ = (R(x4, 2), R(x4, 3)) if T > 0 else (R(v_hoff), R(v_kvoff))
        q('v_mov_b32 %s, s28' % a_); q('v_mov_b32 %s, 0' % b_)
        q('s_mov_b64 exec, 1')
        q('buffer_store_dword %s, %s, %s, s16 offen sc1' % (a_, b_, sr(S_WS)))
        q('s_mov_b64 exec, -1')
    def gu_late(sc, role='B'):
        def setup(q):
            mk_srd(q, S_D, 'wu', 7340032)
            q('s_cmp_lt_u32 s2, 224'); q('s_cselect_b32 s74, 7340032, 0')
            q('s_and_b32 s16, s3, 3')
            q('v_lshrrev_b32 %s, 3, %s' % (t[4], lane)); q('v_lshlrev_b32 %s, 3, %s' % (t[4], t[4]))
            q('s_lshl_b32 s17, s16, 6'); q('v_add_u32 %s, s17, %s' % (t[4], t[4]))
            q('s_mov_b32 s17, 7168'); q('v_mul_lo_u32 %s, s17, %s' % (t[5], t[4]))
            q('v_and_b32 %s, 7, %s' % (t[4], lane)); q('v_lshl_add_u32 %s, %s, 4, %s' % (t[5], t[4], t[5]))
            q('s_and_b32 s17, s29, 3'); q('s_mul_i32 s18, s17, %d' % (256 * 7168))
            q('s_lshr_b32 s17, s29, 2'); q('s_lshl_b32 s17, s17, 7'); q('s_add_u32 s18, s18, s17')
            q('s_lshl_b32 s16, s16, 13')
            for i in (range(8) if not GU3_SPLIT else (range(4) if role == 'A' else range(4, 8))):
                q('s_add_u32 s22, s18, %d' % (i * 7168))
                q('s_add_u32 m0, s16, %d' % (32768 + i * 1024))
                q('buffer_load_dwordx4 %s, %s, s22 offen lds' % (t[5], sr(S_D)), 'gu')
        sc.place(GU3_AT, setup)
    def wd_loads(q, rows=(0, 1, 2, 3)):
        mk_srd(q, S_D, 'wd', 7340032)
        q('s_cmp_lt_u32 s2, 224'); q('s_cselect_b32 s74, 7340032, 0')
        q('s_lshl_b32 s17, s29, 4'); q('s_sub_u32 s16, s3, 4'); q('s_lshl_b32 s16, s16, 2'); q('s_add_u32 s16, s16, s17'); q('s_lshl_b32 s16, s16, 11')
        for i in rows:
            q('s_add_u32 s17, s16, %d' % (i * 2048))
            for hf in range(2):
                q('buffer_load_dwordx4 %s, %s, %s, s17 offen offset:%d' % (R(WD[2 * i + hf], 0, 4), l16, sr(S_D), hf * 1024))

    XROW = negm; MOD = SS; GA = SP
    MSB, MC1, MGB, MWR = 0, 8, 16, 24
    MODL = RING1 + 16384
    def phase3(role):
        A_ = role == 'A'; ks = 0 if A_ else 1
        if BIG: p('s_lshr_b32 s15, s12, 3')
        else: p('s_and_b32 s15, s2, 1')
        FPS = 16 if BIG else 8
        NST = 256 // FPS
        def rd(f):
            s, n = f // FPS, f % 8
            k = (W0 + s) % NSL
            eo = ((f // 8) % 2) * 8192 if BIG else 0
            if k < 4: return trread(fr[f % NRA], k * 16384 + eo, n, R(v_tr), R(v_tr2))
            return trread(fr[f % NRA], (k - 4) * 16384 + eo, n, R(v_hoff), R(v_kvoff))
        sc = Sched()
        NF = 256
        for T_, at_ in enumerate(OF_AT):
            if at_ >= 1000: sc.place(at_ - 1000, lambda q, T_=T_: oflag(q, T_))
        for f in range(NF):
            s, n = f // FPS, f % 8
            for qs in range(2):
                d = R(acc3[n][qs], 0, 4)
                ob = OBB[s % NO][((f // 8) % 2) * 2 + qs] if BIG else OB[s % PO][qs]
                sc.mfma('v_mfma_f32_16x16x32_bf16 %s, %s, %s, %s' % (d, R(fr[f % NRA], 0, 4), R(ob, 0, 4), '0' if f < 8 else d))
        for f in range(NF):
            at = 2 * (f - D3) + 1 if f - D3 >= 0 else -1
            s, n = f // FPS, f % FPS
            if n == 0:
                c = W0 + s
                sc.place(at, lambda q, c=c: q.wait_tag('ch%d' % c))
                sc.place(at, 's_barrier')
                if c + 4 < W0 + NST:
                    nx = dma_chunk(c + 4)
                    for q_ in range(2):
                        for it, tag in nx[3 * q_:3 * q_ + 3]: sc.place(max(at, 0) + (P3D if A_ or not P3B else P3B[0])[0] + (P3D if A_ or not P3B else P3B[0])[1] * q_, it, tag)
            tr = rd(f)
            if at > 0 and n != 0:
                sc.place(at - 1, tr[0]); sc.place(at, tr[1])
            else:
                for x in tr: sc.place(at, x)
        for s in range(NST if BIG else 0):
            sn = s + NO - 1
            if sn < NST:
                for j in range(4):
                    for l_ in oload_big(sn, j): sc.place(32 * s + (2 if A_ else 6) + 8 * j, l_)
        for s in range(0 if BIG else 32):
            sn = s + PO - 1
            if sn < 32:
                for qs in range(2):
                    for l_ in oload(sn, qs): sc.place(16 * s + (P3O if A_ or not P3B else P3B[1])[0] + (P3O if A_ or not P3B else P3B[1])[1] * qs, l_)
        fl = sub(SS, 0)
        def mfl(q):
            q('s_mov_b32 s16, 0x%x' % WS_MFLAG)
            q('buffer_load_dwordx4 %s, %s, %s, s16 offen sc1' % (R(fl, 0, 4), l16, sr(S_WS)))
        def mft(q):
            q('v_xor_b32 %s, s28, %s' % (t[0], R(fl, 0))); q('v_xor_b32 %s, s28, %s' % (t[1], R(fl, 1)))
            q('v_xor_b32 %s, s28, %s' % (t[2], R(fl, 2))); q('v_xor_b32 %s, s28, %s' % (t[3], R(fl, 3)))
            q('v_or3_b32 %s, %s, %s, %s' % (t[0], t[0], t[1], t[2])); q('v_or_b32 %s, %s, %s' % (t[0], t[0], t[3]))
            q('v_cmp_ne_u32 vcc, 0, %s' % t[0])
        for T_ in range(1, 4):
            chk = (32 * (4 * T_ - (NO - 1))) if BIG else 16 * (8 * T_ - (PO - 1))
            sc.place(chk - 23, lambda q: (q('s_add_u32 s19, s19, 8192'), of_load(q)))
            sc.place(chk - 1, lambda q: rare_poll(q, 'o2', lambda z: z('v_cmp_ne_u32 vcc, s28, %s' % of2), of_load))
        sc.place(16 * mf_at[0] + 5, mfl)
        if mc_comp: sc.place(16 * mf_at[1] + 5, lambda q: rare_poll(q, 'mf', mft, mfl))
        def side(q):
            q('v_lshrrev_b32 %s, 4, %s' % (t[0], lane)); q('v_lshlrev_b32 %s, 3, %s' % (t[0], t[0]))
            q('s_lshl_b32 s16, s31, 8'); q('s_add_u32 s16, s16, 0x%x' % (WS_MODB + (0 if BIG else ks * 128)))
            for i in range(8 if BIG else 4):
                q('buffer_load_dwordx2 %s, %s, %s, s16 offen offset:%d sc1' % (R(GAB if BIG else GA, 2 * i, 2), t[0], sr(S_WS), i * 32))
        sc.place(16 * mf_at[2] + 5, side)
        def side2(q):
            mk_srd(q, S_B, 'wr', 2048); mk_srd(q, S_E, 'x', 4194304); mk_srd(q, S_C, 'out', 4194304)
            q('s_lshl_b32 s14, s31, %d' % (2 if BIG else 1)); q('s_add_u32 s14, s14, s15'); q('s_lshl_b32 s14, s14, 3'); q('s_add_u32 s14, s14, s3')
            q('s_lshl_b32 s16, s30, %d' % (8 if BIG else 7)); q('s_add_u32 s14, s14, s16')
            q('s_lshl_b32 s16, s14, 11')
            for hf in range(2): q('buffer_load_dwordx4 %s, %s, %s, s16 offen offset:%d' % (R(XROW, 4 * hf, 4), l16, sr(S_E), hf * 1024))
            if MODL_ON:
                q('s_lshl_b32 s16, s3, 10'); q('s_add_u32 m0, s16, %d' % MODL)
                if role == 'A':
                    q('s_add_u32 s16, s16, 0x%x' % (WS_MODB + 2048))
                    q('buffer_load_dwordx4 %s, %s, s16 offen sc1 lds' % (l16, sr(S_WS)), 'ml')
                else:
                    q('s_add_u32 s17, s16, 0x%x' % (WS_MODB + 2048)); q('s_cmp_lt_u32 s3, 6'); q('s_cselect_b32 s17, s17, 0x%x' % OOB)
                    q('s_sub_u32 s23, s16, 6144'); q('s_cmp_ge_u32 s3, 6'); q('s_cselect_b32 s23, s23, 0x%x' % OOB)
                    q('s_cbranch_scc1 %s_mlw' % name)
                    q.alt_begin()
                    q('buffer_load_dwordx4 %s, %s, s17 offen sc1 lds' % (l16, sr(S_WS)), 'ml')
                    q('s_branch %s_mlj' % name)
                    q.alt_next()
                    q.label('%s_mlw' % name)
                    q('buffer_load_dwordx4 %s, %s, s23 offen lds' % (l16, sr(S_B)), 'ml')
                    q.alt_end()
                    q.label('%s_mlj' % name)
            else:
                for off, mo in ((2048, MSB), (4096, MC1), (6144, MGB)):
                    q('s_mov_b32 s16, 0x%x' % (WS_MODB + off))
                    for hf in range(2): q('buffer_load_dwordx4 %s, %s, %s, s16 offen offset:%d%s' % (R(MOD, mo + 4 * hf, 4), l16, sr(S_WS), hf * 1024, modsc))
                for hf in range(2): q('buffer_load_dwordx4 %s, %s, %s, 0 offen offset:%d' % (R(MOD, MWR + 4 * hf, 4), l16, sr(S_B), hf * 1024))
        if mf_at[3] < 32: sc.place(16 * mf_at[3] + 5, side2)
        if not A_ and WD_AT <= -1000: sc.place(-WD_AT - 1000, wd_loads)
        if (GU3_SPLIT or role == GU3_ROLE) and GU3_AT is not None and GU3_AT >= 0:
            gu_late(sc, role)
        if p3st:
            for i_, s_ in enumerate(p3st): sc.place(int(16 * s_), lambda q, i_=i_: q.stamp(30 + i_))
        sc.emit(p)
        p.stamp(13)
        if BIG:
            gaf = sub(PR, 0)
            for i in range(8):
                for d in range(2): unpack(p, R(gaf, 4 * i + 2 * d), R(gaf, 4 * i + 2 * d + 1), R(GAB, 2 * i + d))
            p('v_and_b32 %s, 15, %s' % (t[2], lane)); p('v_lshlrev_b32 %s, 6, %s' % (t[2], t[2]))
            p('v_lshrrev_b32 %s, 4, %s' % (t[3], lane))
            p('v_and_b32 %s, 1, %s' % (t[4], t[3])); p('v_lshl_add_u32 %s, %s, 5, %s' % (t[2], t[4], t[2]))
            p('v_lshrrev_b32 %s, 1, %s' % (t[3], t[3])); p('v_lshl_add_u32 %s, %s, 4, %s' % (t[2], t[3], t[2]))
            p('s_lshl_b32 s18, s30, 3'); p('s_add_u32 s18, s18, s3'); p('s_lshl_b32 s18, s18, 16')
            p('s_lshl_b32 s19, s15, 22'); p('s_add_u32 s18, s18, s19'); p('s_lshl_b32 s19, s31, 12'); p('s_add_u32 s18, s18, s19')
            p('s_add_u32 s18, s18, 0x%x' % WS_AP); p('s_add_u32 s19, s18, 32768')
            p.stamp(22)
            st6 = [sub(FR, 4 * i) for i in range(6)]
            k_ = 0
            for mm in range(4):
                for qs in range(2):
                    q4 = st6[k_ % 6]; k_ += 1
                    for b in range(2):
                        i = 2 * mm + b
                        a = acc3[i][qs]
                        for k in range(0, 4, 2): p('v_pk_mul_f32 %s, %s, %s' % (R(a, k, 2), R(a, k, 2), R(gaf, 4 * i + k, 2)))
                        for k in range(0, 4, 2): p('v_cvt_pk_bf16_f32 %s, %s, %s' % (R(q4, 2 * b + k // 2), R(a, k), R(a, k + 1)))
                    for d in range(2): p('v_permlane16_swap_b32 %s, %s' % (R(q4, d), R(q4, 2 + d)))
                    p('buffer_store_dwordx4 %s, %s, %s, %s offen offset:%d sc1' % (R(q4, 0, 4), t[2], sr(S_WS), 's19' if qs else 's18', mm * 1024), 'ap')
            side2(p)
            p.stamp(14)
            return
        XB = RING1 + 2 * 16384
        p('s_lshl_b32 s16, s3, 13'); p('s_xor_b32 s17, s16, 0x8000'); p('s_add_u32 s16, s16, 0x%x' % XB); p('s_add_u32 s17, s17, 0x%x' % XB)
        p('v_add_u32 %s, s16, %s' % (t[0], l16))
        p('s_mov_b32 s16, s17')
        p('v_add_u32 %s, s16, %s' % (t[1], l16))
        o_ = 4 * (1 - ks)
        for i in range(4):
            for qs in range(2): p('ds_write_b128 %s, %s offset:%d' % (t[0], R(acc3[o_ + i][qs], 0, 4), (i * 2 + qs) * 1024))
        gaf = sub(PR, 0)
        for i in range(4):
            for d in range(2): unpack(p, R(gaf, 4 * i + 2 * d), R(gaf, 4 * i + 2 * d + 1), R(GA, 2 * i + d))
        p('v_and_b32 %s, 15, %s' % (t[2], lane)); p('v_lshlrev_b32 %s, 6, %s' % (t[2], t[2]))
        p('v_lshrrev_b32 %s, 4, %s' % (t[3], lane))
        p('v_and_b32 %s, 1, %s' % (t[4], t[3])); p('v_lshl_add_u32 %s, %s, 5, %s' % (t[2], t[4], t[2]))
        p('v_lshrrev_b32 %s, 1, %s' % (t[3], t[3])); p('v_lshl_add_u32 %s, %s, 4, %s' % (t[2], t[3], t[2]))
        p('s_and_b32 s17, s3, 3'); p('s_lshl_b32 s18, s30, 2'); p('s_add_u32 s18, s18, s17'); p('s_lshl_b32 s18, s18, 16')
        p('s_lshl_b32 s19, s15, 22'); p('s_add_u32 s18, s18, s19'); p('s_lshl_b32 s19, s31, 12'); p('s_add_u32 s18, s18, s19')
        p('s_add_u32 s18, s18, 0x%x' % (WS_AP + ks * 2048)); p('s_add_u32 s19, s18, 32768')
        p('s_waitcnt lgkmcnt(0)')
        p('s_barrier')
        p.stamp(22)
        rx = [sub(PR, 16 + 4 * i) for i in range(8)]
        for i in range(4):
            for qs in range(2): p('ds_read_b128 %s, %s offset:%d' % (R(rx[i * 2 + qs], 0, 4), t[1], (i * 2 + qs) * 1024))
        st4 = [sub(FR, 4 * i) for i in range(4)]
        for mm in range(2):
            for qs in range(2):
                q4 = st4[mm * 2 + qs]
                for b in range(2):
                    i = 2 * mm + b
                    a = acc3[4 * ks + i][qs]
                    for k in range(0, 4, 2): p('v_pk_add_f32 %s, %s, %s' % (R(a, k, 2), R(a, k, 2), R(rx[i * 2 + qs], k, 2)))
                    for k in range(0, 4, 2): p('v_pk_mul_f32 %s, %s, %s' % (R(a, k, 2), R(a, k, 2), R(gaf, 4 * i + k, 2)))
                    for k in range(0, 4, 2): p('v_cvt_pk_bf16_f32 %s, %s, %s' % (R(q4, 2 * b + k // 2), R(a, k), R(a, k + 1)))
                for d in range(2): p('v_permlane16_swap_b32 %s, %s' % (R(q4, d), R(q4, 2 + d)))
                p('buffer_store_dwordx4 %s, %s, %s, %s offen offset:%d sc1' % (R(q4, 0, 4), t[2], sr(S_WS), 's19' if qs else 's18', mm * 1024), 'ap')
        if mf_at[3] >= 32: side2(p)
        if not A_ and GU3_AT == -1:
            class _S:
                def place(self, at, f): f(p)
            gu_late(_S())
        if not A_ and WD_AT == -1: wd_loads(p)
        if not A_ and WD_AT == -3: wd_loads(p, (0, 1))
        p.stamp(14)

    def tail(role):
        A_ = role == 'A'; ks = 0 if A_ else 1
        T = RA('v', PR[1], PR[1] + 128)
        gr = T.alloc(4, 4); xf = T.alloc(16, 4); raw = T.alloc(16, 4); uf = T.alloc(16, 4)
        u8 = T.alloc(8, 4); acc = T.alloc(8, 4); fin = T.alloc(8, 4); sl = T.alloc(8, 4)
        w = [sub(uf, 4 * i) for i in range(4)] + [T.alloc(4, 4) for _ in range(4)]
        LB = RING1
        L_KEY = LB; L_BEST = LB + 256; L_XS = LB + 1024; L_X2 = LB + 3072; L_GS = LB + 5120; L_YS = LB + 8192; L_RS = LB + 24576 + 1024
        a0, a1, b0, b1 = R(u8, 0), R(u8, 1), R(u8, 2), R(u8, 3)
        a01, b01 = R(u8, 0, 2), R(u8, 2, 2)
        b0v = R(fin, 2)
        usum = R(fin, 3)
        def products():
            p('v_mov_b32 %s, 0' % b0v); p('v_mov_b32 %s, 0' % usum)
            for d in range(8):
                unpack(p, a0, a1, R(MOD, MC1 + d)); unpack(p, b0, b1, R(MOD, MWR + d))
                p('v_pk_mul_f32 %s, %s, %s' % (R(uf, 2 * d, 2), a01, b01))
                unpack(p, a0, a1, R(MOD, MSB + d))
                p('v_fmac_f32 %s, %s, %s' % (b0v, a0, b0)); p('v_fmac_f32 %s, %s, %s' % (b0v, a1, b1))
                p('v_add_f32 %s, %s, %s' % (usum, usum, R(uf, 2 * d))); p('v_add_f32 %s, %s, %s' % (usum, usum, R(uf, 2 * d + 1)))
            for n in (1, 2, 4, 8):
                ror_add(p, b0v, n); ror_add(p, usum, n)
            xor16_add(p, b0v, a0); xor16_add(p, usum, a1); xor32_add(p, b0v, a0); xor32_add(p, usum, a1)
            for d in range(8): unpack(p, R(xf, 2 * d), R(xf, 2 * d + 1), R(XROW, d))
        if not MODL_ON: products()
        if AP_WG:
            p('s_lshl_b32 s16, s30, 5'); p('s_lshl_b32 s17, s31, %d' % (2 if BIG else 1)); p('s_add_u32 s16, s16, s17'); p('s_add_u32 s16, s16, s15')
            p('s_lshl_b32 s16, s16, 2'); p('s_add_u32 s16, s16, 0x%x' % WS_AFLAG)
            p('s_cmp_eq_u32 s3, 0'); p('s_cselect_b32 s16, s16, 0x%x' % OOB)
        else:
            p('s_and_b32 s17, s3, 3'); p('s_lshl_b32 s16, s30, 2'); p('s_add_u32 s16, s16, s17'); p('s_lshl_b32 s16, s16, 5')
            p('s_lshl_b32 s17, s31, 2'); p('s_add_u32 s16, s16, s17'); p('s_lshl_b32 s17, s15, 1'); p('s_add_u32 s16, s16, s17')
            p('s_add_u32 s16, s16, %d' % ks); p('s_lshl_b32 s16, s16, 2'); p('s_add_u32 s16, s16, 0x%x' % WS_AFLAG)
        p('v_mov_b32 %s, s28' % t[0]); p('v_mov_b32 %s, 0' % t[1])
        p('s_lshr_b32 s18, s14, 4'); p('s_lshl_b32 s18, s18, 15'); p('s_and_b32 s19, s14, 15'); p('s_lshl_b32 s19, s19, 6')
        p('s_add_u32 s18, s18, s19'); p('s_add_u32 s18, s18, 0x%x' % WS_AP); p('s_add_u32 s19, s18, 16384')
        p('v_lshrrev_b32 %s, 2, %s' % (t[2], lane)); p('v_lshlrev_b32 %s, 10, %s' % (t[2], t[2]))
        p('v_and_b32 %s, 3, %s' % (t[3], lane)); p('v_lshl_add_u32 %s, %s, 4, %s' % (t[2], t[3], t[2]))
        p('v_add_u32 %s, 0x400000, %s' % (t[3], t[2]))
        if AP_WG:
            p('s_lshl_b32 s25, s30, 7'); p('s_add_u32 s25, s25, 0x%x' % WS_AFLAG)
            p('v_and_b32 %s, %d, %s' % (t[4], 31 if BIG else 15, lane)); p('v_lshlrev_b32 %s, 2, %s' % (t[4], t[4]))
        else:
            p('s_lshr_b32 s25, s14, 5'); p('s_lshl_b32 s25, s25, 7'); p('s_add_u32 s25, s25, 0x%x' % WS_AFLAG)
            p('v_and_b32 %s, 31, %s' % (t[4], lane)); p('v_lshlrev_b32 %s, 2, %s' % (t[4], t[4]))
        p.wait_tag('ap')
        if MODL_ON: p.wait_tag('ml')
        if AP_WG: p('s_barrier')
        p('s_mov_b64 exec, 1')
        p('buffer_store_dword %s, %s, %s, s16 offen sc1' % (t[0], t[1], sr(S_WS)))
        p('s_mov_b64 exec, -1')
        if MODL_ON:
            assert AP_WG
            p('v_add_u32 %s, %d, %s' % (t[0], MODL, l16))
            for k in range(8): p('ds_read_b128 %s, %s offset:%d' % (R(MOD, 4 * k, 4), t[0], k * 1024))
            products()
        p.stamp(15)
        backoff(p, 'a')
        poll(p, 'a', lambda: p('buffer_load_dword %s, %s, %s, s25 offen sc1' % (a0, t[4], sr(S_WS))),
             lambda: p('v_cmp_ne_u32 vcc, s28, %s' % a0))
        for hf in range(2):
            p('buffer_load_dwordx4 %s, %s, %s, s%d offen sc1' % (R(raw, 4 * hf, 4), t[2], sr(S_WS), 18 + hf))
            p('buffer_load_dwordx4 %s, %s, %s, s%d offen sc1' % (R(raw, 8 + 4 * hf, 4), t[3], sr(S_WS), 18 + hf))
        raw2 = w[4]
        if BIG:
            p('s_add_u32 s20, s18, 0x800000'); p('s_add_u32 s21, s19, 0x800000')
            for hf in range(2):
                p('buffer_load_dwordx4 %s, %s, %s, s%d offen sc1' % (R(raw2, 4 * hf, 4), t[2], sr(S_WS), 20 + hf))
                p('buffer_load_dwordx4 %s, %s, %s, s%d offen sc1' % (R(raw2, 8 + 4 * hf, 4), t[3], sr(S_WS), 20 + hf))
        p('v_lshlrev_b32 %s, 2, %s' % (t[5], tid))
        p('s_mov_b32 s16, 0x%x' % (WS_MODB + 2048))
        p('buffer_load_dword %s, %s, %s, s16 offen sc1' % (R(sl, 6), t[5], sr(S_WS)))
        p('buffer_load_dword %s, %s, %s, s16 offen offset:2048 sc1' % (R(sl, 4), t[5], sr(S_WS)))
        p.stamp(16)
        for d in range(8):
            k = (d % 2) * 4
            A0, A1, B0_, B1 = [R(u8, k + i) for i in range(4)]
            unpack(p, A0, A1, R(raw, d)); unpack(p, B0_, B1, R(raw, 8 + d))
            p('v_pk_add_f32 %s, %s, %s' % (R(u8, k, 2), R(u8, k, 2), R(u8, k + 2, 2)))
            if BIG:
                C0, C1 = R(acc, k), R(acc, k + 1)
                unpack(p, B0_, B1, R(raw2, d)); unpack(p, C0, C1, R(raw2, 8 + d))
                p('v_pk_add_f32 %s, %s, %s' % (R(u8, k + 2, 2), R(u8, k + 2, 2), R(acc, k, 2)))
                p('v_pk_add_f32 %s, %s, %s' % (R(u8, k, 2), R(u8, k, 2), R(u8, k + 2, 2)))
            p('v_pk_add_f32 %s, %s, %s' % (R(xf, 2 * d, 2), R(xf, 2 * d, 2), R(u8, k, 2)))
            rb2(p, R(xf, 2 * d), R(xf, 2 * d + 1), t[d % 2])
        mean, var, s3v, rcp = R(fin, 4), R(fin, 5), R(fin, 6), R(fin, 7)
        c01 = R(u8, 4, 2)
        p('v_pk_add_f32 %s, %s, %s' % (a01, R(xf, 0, 2), R(xf, 2, 2)))
        p('v_pk_mul_f32 %s, %s, %s' % (b01, R(xf, 0, 2), R(xf, 0, 2)))
        p('v_pk_mul_f32 %s, %s, %s' % (c01, R(xf, 0, 2), R(uf, 0, 2)))
        p('v_pk_fma_f32 %s, %s, %s, %s' % (b01, R(xf, 2, 2), R(xf, 2, 2), b01))
        p('v_pk_fma_f32 %s, %s, %s, %s' % (c01, R(xf, 2, 2), R(uf, 2, 2), c01))
        for d in range(2, 8):
            p('v_pk_add_f32 %s, %s, %s' % (a01, a01, R(xf, 2 * d, 2)))
            p('v_pk_fma_f32 %s, %s, %s, %s' % (b01, R(xf, 2 * d, 2), R(xf, 2 * d, 2), b01))
            p('v_pk_fma_f32 %s, %s, %s, %s' % (c01, R(xf, 2 * d, 2), R(uf, 2 * d, 2), c01))
        p('v_add_f32 %s, %s, %s' % (mean, a0, a1)); p('v_add_f32 %s, %s, %s' % (var, b0, b1)); p('v_add_f32 %s, %s, %s' % (s3v, R(u8, 4), R(u8, 5)))
        for n in (1, 2, 4, 8):
            ror_add(p, mean, n); ror_add(p, var, n); ror_add(p, s3v, n)
        xor16_add(p, mean, a0); xor16_add(p, var, a1); xor16_add(p, s3v, b0)
        xor32_add(p, mean, a0); xor32_add(p, var, a1); xor32_add(p, s3v, b0)
        p('v_mul_f32 %s, 0x%x, %s' % (mean, f2u(1.0 / 1024), mean))
        p('v_mul_f32 %s, 0x%x, %s' % (var, f2u(1.0 / 1024), var))
        p('v_fma_f32 %s, -%s, %s, %s' % (var, mean, mean, var))
        p('v_max_f32 %s, 0, %s' % (var, var))
        p('v_fma_f32 %s, -%s, %s, %s' % (s3v, mean, usum, s3v))
        p('v_add_f32 %s, 0x%x, %s' % (a0, f2u(1e-5), var))
        p('v_rsq_f32 %s, %s' % (a0, a0))
        p('v_fma_f32 %s, %s, %s, %s' % (R(gr, 3), s3v, a0, b0v))
        sd = s3v
        ln_scalars(p, mean, var, sd, rcp)
        p('v_mov_b32 %s, %s' % (R(gr, 1), mean))
        p('v_mov_b32 %s, %s' % (R(gr, 2), sd))
        p('v_ashrrev_i32 %s, 31, %s' % (t[0], R(gr, 3)))
        p('v_or_b32 %s, 0x80000000, %s' % (t[0], t[0]))
        p('v_xor_b32 %s, %s, %s' % (R(gr, 0), R(gr, 3), t[0]))
        p('v_and_b32 %s, 0xfffff800, %s' % (R(gr, 0), R(gr, 0)))
        p('v_max_u32 %s, 0x800, %s' % (R(gr, 0), R(gr, 0)))
        p('s_sub_u32 s16, 2047, s14')
        p('v_or_b32 %s, s16, %s' % (R(gr, 0), R(gr, 0)))
        p('s_lshl_b32 s16, s3, 4'); p('s_add_u32 s16, s16, %d' % L_KEY)
        p('v_mov_b32 %s, s16' % t[0])
        p('ds_write_b128 %s, %s' % (t[0], R(gr, 0, 4)))
        p('s_waitcnt lgkmcnt(0)')
        p('s_barrier')
        def best_of(ldsoff, n):
            p('v_and_b32 %s, %d, %s' % (t[0], n - 1, lane))
            p('v_lshlrev_b32 %s, 4, %s' % (t[0], t[0])); p('v_add_u32 %s, %d, %s' % (t[0], ldsoff, t[0]))
            p('ds_read_b32 %s, %s' % (a0, t[0]))
            p('v_mov_b32 %s, %s' % (a1, a0))
            for k in ((1, 2, 4) if n == 8 else (1, 2)): ror_add(p, a1, k, 'v_max_u32')
            p('v_cmp_eq_u32 vcc, %s, %s' % (a0, a1))
            p('s_ff1_i32_b64 s16, vcc')
            p('s_lshl_b32 s16, s16, 4'); p('s_add_u32 s16, s16, %d' % ldsoff)
            p('v_mov_b32 %s, s16' % t[0])
            p('ds_read_b128 %s, %s' % (R(gr, 0, 4), t[0]))
        best_of(L_KEY, 8)
        p('s_lshl_b32 s16, s2, 4'); p('s_add_u32 s16, s16, 0x%x' % WS_KEY)
        p('s_cmp_eq_u32 s3, 0'); p('s_cselect_b32 s16, s16, 0x%x' % OOB)
        p('v_mov_b32 %s, 0' % t[1])
        p('s_mov_b64 exec, 1')
        p('buffer_store_dwordx4 %s, %s, %s, s16 offen sc1' % (R(gr, 0, 4), t[1], sr(S_WS)))
        p('s_mov_b64 exec, -1')
        if not A_ and WD_AT == -2: wd_loads(p)
        if not A_ and WD_AT == -3: wd_loads(p, (2, 3))
        p.stamp(17)
        for hf in range(2):
            X = [R(raw, i) for i in range(8)]
            c1 = [R(raw, 8 + i) for i in range(8)]
            for i in range(8): p('v_sub_f32 %s, %s, %s' % (X[i], R(xf, 8 * hf + i), mean))
            for i in range(0, 8, 2): rb2(p, X[i], X[i + 1], t[0])
            for i in range(8): p('v_mul_f32 %s, %s, %s' % (c1[i], X[i], rcp))
            for i in range(8): p('v_fma_f32 %s, -%s, %s, %s' % (X[i], c1[i], sd, X[i]))
            for i in range(8): p('v_fma_f32 %s, %s, %s, %s' % (X[i], X[i], rcp, c1[i]))
            for i in range(0, 8, 2): rb2(p, X[i], X[i + 1], t[0])
            for op, mo in (('v_pk_mul_f32', MC1), ('v_pk_add_f32', MSB), ('v_pk_mul_f32', MGB)):
                for d in range(4): unpack(p, c1[2 * d], c1[2 * d + 1], R(MOD, mo + 4 * hf + d))
                for d in range(4): p('%s %s, %s, %s' % (op, R(raw, 2 * d, 2), R(raw, 2 * d, 2), R(raw, 8 + 2 * d, 2)))
                for i in range(0, 8, 2): rb2(p, X[i], X[i + 1], t[0])
            for d in range(4): p('v_pk_add_f32 %s, %s, %s' % (R(raw, 2 * d, 2), R(raw, 2 * d, 2), R(xf, 8 * hf + 2 * d, 2)))
            for d in range(4): p('v_cvt_pk_bf16_f32 %s, %s, %s' % (R(xf, 8 * hf + d), X[2 * d], X[2 * d + 1]))
        if A_:
            p('v_lshlrev_b32 %s, 4, %s' % (t[2], tid))
            p('s_mov_b32 s16, 0x%x' % WS_KEY)
            backoff(p, 'w')
            poll(p, 'w', lambda: p('buffer_load_dwordx4 %s, %s, %s, s16 offen sc1' % (R(gr, 0, 4), t[2], sr(S_WS))),
                 lambda: p('v_cmp_eq_u32 vcc, 0, %s' % R(gr, 0)))
            p('v_mov_b32 %s, %s' % (a0, R(gr, 0)))
            for n in (1, 2, 4, 8): ror_add(p, a0, n, 'v_max_u32')
            xor16_add(p, a0, a1, 'v_max_u32'); xor32_add(p, a0, a1, 'v_max_u32')
            p('v_cmp_eq_u32 vcc, %s, %s' % (a0, R(gr, 0)))
            p('s_lshl_b32 s16, s3, 4'); p('s_add_u32 s16, s16, %d' % L_BEST)
            p('v_mov_b32 %s, s16' % t[0])
            p('s_and_saveexec_b64 s[62:63], vcc')
            p('ds_write_b128 %s, %s' % (t[0], R(gr, 0, 4)))
            p('s_mov_b64 exec, s[62:63]')
            p('s_waitcnt lgkmcnt(0)')
        p('s_barrier')
        best_of(L_BEST, 4)
        p('v_and_b32 %s, 0x7ff, %s' % (a0, R(gr, 0)))
        p('v_sub_u32 %s, 2047, %s' % (a0, a0))
        p('v_readfirstlane_b32 s12, %s' % a0)
        p('v_rcp_f32 %s, %s' % (R(sl, 3), R(gr, 2)))
        p.stamp(18)
        p('s_lshr_b32 s18, s12, 4'); p('s_lshl_b32 s18, s18, 15'); p('s_and_b32 s19, s12, 15'); p('s_lshl_b32 s19, s19, 6')
        p('s_add_u32 s18, s18, s19'); p('s_add_u32 s18, s18, 0x%x' % WS_AP); p('s_add_u32 s19, s18, 0x400000')
        p('v_lshrrev_b32 %s, 4, %s' % (t[2], tid)); p('v_lshlrev_b32 %s, 10, %s' % (t[2], t[2]))
        p('v_and_b32 %s, 15, %s' % (t[3], tid)); p('v_lshl_add_u32 %s, %s, 2, %s' % (t[2], t[3], t[2]))
        p('s_lshl_b32 s13, s12, 11')
        p('buffer_load_dword %s, %s, %s, s18 offen sc1' % (R(sl, 0), t[2], sr(S_WS)))
        p('buffer_load_dword %s, %s, %s, s19 offen sc1' % (R(sl, 1), t[2], sr(S_WS)))
        if BIG:
            p('s_add_u32 s20, s18, 0x800000'); p('s_add_u32 s21, s19, 0x800000')
            p('buffer_load_dword %s, %s, %s, s20 offen sc1' % (R(acc, 0), t[2], sr(S_WS)))
            p('buffer_load_dword %s, %s, %s, s21 offen sc1' % (R(acc, 1), t[2], sr(S_WS)))
        p('buffer_load_dword %s, %s, %s, s13 offen' % (R(sl, 2), t[5], sr(S_E)))
        p('s_lshl_b32 s16, s14, 11'); p('s_cmp_lg_u32 s12, s14'); p('s_cselect_b32 s16, s16, 0x%x' % OOB)
        for hf in range(2):
            p('buffer_store_dwordx4 %s, %s, %s, s16 offen offset:%d sc1' % (R(xf, 8 * hf, 4), l16, sr(S_C), hf * 1024))
        p('s_lshl_b32 s16, s3, 13'); p('v_add_u32 %s, s16, %s' % (t[4], l16))
        p.wait_tag('gu')
        X = [R(fin, 0), R(fin, 1)]
        unpack(p, a0, a1, R(sl, 0)); unpack(p, b0, b1, R(sl, 1))
        p('v_pk_add_f32 %s, %s, %s' % (a01, a01, b01))
        if BIG:
            unpack(p, b0, b1, R(acc, 0)); unpack(p, R(acc, 2), R(acc, 3), R(acc, 1))
            p('v_pk_add_f32 %s, %s, %s' % (b01, b01, R(acc, 2, 2)))
            p('v_pk_add_f32 %s, %s, %s' % (a01, a01, b01))
        unpack(p, b0, b1, R(sl, 2))
        p('v_pk_add_f32 %s, %s, %s' % (R(fin, 0, 2), b01, a01))
        rb2(p, X[0], X[1], a0)
        p('v_cvt_pk_bf16_f32 %s, %s, %s' % (R(sl, 0), X[0], X[1]))
        unpack(p, R(sl, 4), R(sl, 5), R(sl, 4)); unpack(p, R(sl, 6), R(sl, 7), R(sl, 6))
        ln_apply(p, X, 2, R(gr, 1), R(gr, 2), R(sl, 3), [R(sl, 4), R(sl, 5)], [R(sl, 6), R(sl, 7)], a0, a1)
        p('v_cvt_pk_bf16_f32 %s, %s, %s' % (R(sl, 1), X[0], X[1]))
        p('v_add_u32 %s, %d, %s' % (t[0], L_XS, t[5]))
        p('ds_write_b32 %s, %s' % (t[0], R(sl, 1)))
        p('ds_write_b32 %s, %s offset:2048' % (t[0], R(sl, 0)))
        p('s_waitcnt lgkmcnt(0)')
        p('s_barrier')
        p.stamp(23)
        for i in range(8): p('ds_read_b128 %s, %s offset:%d' % (R(w[i], 0, 4), t[4], i * 1024))
        p('s_and_b32 s16, s3, 3'); p('s_lshl_b32 s16, s16, 7'); p('s_and_b32 s17, s29, 3'); p('s_lshl_b32 s17, s17, 9')
        p('s_add_u32 s16, s16, s17'); p('s_add_u32 s16, s16, %d' % L_XS)
        p('v_lshrrev_b32 %s, 3, %s' % (t[0], lane)); p('v_lshlrev_b32 %s, 4, %s' % (t[0], t[0])); p('v_add_u32 %s, s16, %s' % (t[0], t[0]))
        x8 = sub(sl, 4)
        p('ds_read_b128 %s, %s' % (R(x8, 0, 4), t[0]))
        for i in range(8):
            hi, lo = R(u8, (i % 4) * 2), R(u8, (i % 4) * 2 + 1)
            if i % 2 == 0:
                p('v_lshlrev_b32 %s, 16, %s' % (hi, R(x8, i // 2))); p('v_and_b32 %s, 0xffff, %s' % (lo, R(x8, i // 2)))
            else:
                p('v_and_b32 %s, 0xffff0000, %s' % (hi, R(x8, i // 2))); p('v_lshrrev_b32 %s, 16, %s' % (lo, R(x8, i // 2)))
            for d in range(4):
                for h, xx in ((1, hi), (0, lo)):
                    if i == 0: p('v_dot2_f32_bf16 %s, %s, %s, 0' % (R(acc, 2 * d + h), R(w[i], d), xx))
                    else: p('v_dot2c_f32_bf16 %s, %s, %s' % (R(acc, 2 * d + h), R(w[i], d), xx))
        for e in range(4): p('v_permlane32_swap_b32 %s, %s' % (R(acc, e), R(acc, 4 + e)))
        for e in range(4): p('v_add_f32 %s, %s, %s' % (R(acc, e), R(acc, e), R(acc, 4 + e)))
        for e in range(2): p('v_permlane16_swap_b32 %s, %s' % (R(acc, e), R(acc, 2 + e)))
        for e in range(2): p('v_add_f32 %s, %s, %s' % (R(acc, e), R(acc, e), R(acc, 2 + e)))
        for e in range(2): ror_add(p, R(acc, e), 8)
        p('v_and_b32 %s, 7, %s' % (t[0], lane)); p('v_lshlrev_b32 %s, 5, %s' % (t[0], t[0]))
        p('v_lshrrev_b32 %s, 4, %s' % (t[1], lane)); p('v_lshl_add_u32 %s, %s, 3, %s' % (t[0], t[1], t[0]))
        p('s_lshl_b32 s16, s3, 8'); p('s_add_u32 s16, s16, %d' % L_GS)
        p('v_add_u32 %s, s16, %s' % (t[0], t[0]))
        p('ds_write_b64 %s, %s' % (t[0], R(acc, 0, 2)))
        p('s_lshr_b32 s16, s3, 2'); p('s_lshl_b32 s17, s16, 10'); p('s_add_u32 s17, s17, %d' % L_GS)
        p('v_lshlrev_b32 %s, 2, %s' % (t[1], lane)); p('v_add_u32 %s, s17, %s' % (t[0], t[1]))
        p('s_and_b32 s17, s29, 3'); p('s_lshl_b32 s17, s17, 1'); p('s_add_u32 s17, s17, s16'); p('s_mul_i32 s17, s17, %d' % (3584 * 4))
        p('s_lshr_b32 s16, s29, 2'); p('s_lshl_b32 s16, s16, 8'); p('s_add_u32 s17, s17, s16'); p('s_add_u32 s17, s17, 0x%x' % WS_GUP)
        p('s_and_b32 s16, s3, 3'); p('s_cmp_eq_u32 s16, 0'); p('s_cselect_b32 s17, s17, 0x%x' % OOB)
        p('s_cmp_lt_u32 s2, 224'); p('s_cselect_b32 s17, s17, 0x%x' % OOB)
        p('s_waitcnt lgkmcnt(0)')
        p('s_barrier')
        for b in range(4): p('ds_read_b32 %s, %s offset:%d' % (R(acc, b), t[0], b * 256))
        p('v_add_f32 %s, %s, %s' % (R(acc, 0), R(acc, 0), R(acc, 1))); p('v_add_f32 %s, %s, %s' % (R(acc, 2), R(acc, 2), R(acc, 3)))
        p('v_add_f32 %s, %s, %s' % (R(acc, 0), R(acc, 0), R(acc, 2)))
        p('v_or_b32 %s, 1, %s' % (R(acc, 0), R(acc, 0)))
        p('buffer_store_dword %s, %s, %s, s17 offen sc1' % (R(acc, 0), t[1], sr(S_WS)))
        p.stamp(19)
        if not A_:
            p('v_lshrrev_b32 %s, 4, %s' % (t[0], lane)); p('v_mul_u32_u24 %s, %d, %s' % (t[0], 2 * 3584 * 4, t[0]))
            p('v_and_b32 %s, 15, %s' % (t[1], lane)); p('v_lshl_add_u32 %s, %s, 2, %s' % (t[0], t[1], t[0]))
            p('s_lshl_b32 s16, s29, 6'); p('s_add_u32 s16, s16, 0x%x' % WS_GUP); p('s_add_u32 s17, s16, %d' % (3584 * 4))
            g_, u_ = R(acc, 0), R(acc, 1)
            def gl2():
                p('buffer_load_dword %s, %s, %s, s16 offen sc1' % (g_, t[0], sr(S_WS)))
                p('buffer_load_dword %s, %s, %s, s17 offen sc1' % (u_, t[0], sr(S_WS)))
            def gt2():
                p('v_min_u32 %s, %s, %s' % (R(acc, 2), g_, u_))
                p('v_cmp_eq_u32 vcc, 0, %s' % R(acc, 2))
                p('s_cmp_lt_u32 s2, 224'); p('s_cselect_b64 s[62:63], -1, 0'); p('s_and_b64 vcc, vcc, s[62:63]')
            backoff(p, 'gu')
            poll(p, 'gu', gl2, gt2)
            p.stamp(24)
            xor16_add(p, g_, R(acc, 2)); xor16_add(p, u_, R(acc, 3)); xor32_add(p, g_, R(acc, 2)); xor32_add(p, u_, R(acc, 3))
            rb2(p, g_, u_, R(acc, 2))
            silu(p, g_, R(acc, 2)); rb1(p, g_)
            p('v_mul_f32 %s, %s, %s' % (g_, g_, u_)); rb1(p, g_)
            p('s_sub_u32 s16, s3, 4'); p('s_lshl_b32 s16, s16, 2')
            for i in range(4):
                p('s_add_u32 s17, s16, %d' % i)
                p('v_readlane_b32 s%d, %s, s17' % (20 + i, g_))
                p('s_lshr_b32 s%d, s%d, 16' % (4 + i, 20 + i))
            y = raw
            for i in range(4):
                for hf in range(2):
                    for d in range(4):
                        for h, xx in ((1, 's%d' % (20 + i)), (0, 's%d' % (4 + i))):
                            dst = R(y, 8 * hf + 2 * d + h)
                            if i == 0: p('v_dot2_f32_bf16 %s, %s, %s, 0' % (dst, R(WD[2 * i + hf], d), xx))
                            else: p('v_dot2c_f32_bf16 %s, %s, %s' % (dst, xx, R(WD[2 * i + hf], d)))
            p('s_sub_u32 s16, s3, 4'); p('s_lshl_b32 s16, s16, 12'); p('s_add_u32 s16, s16, %d' % L_YS)
            p('v_lshlrev_b32 %s, 5, %s' % (t[0], lane)); p('v_add_u32 %s, s16, %s' % (t[0], t[0]))
            for hf in range(2):
                for k in range(2): p('ds_write_b128 %s, %s offset:%d' % (t[0], R(y, 8 * hf + 4 * k, 4), hf * 2048 + k * 16))
            p('s_waitcnt lgkmcnt(0)')
        p('s_barrier')
        p('v_lshlrev_b32 %s, 3, %s' % (t[0], tid)); p('v_add_u32 %s, %d, %s' % (t[1], L_YS, t[0]))
        for b in range(4): p('ds_read_b64 %s, %s offset:%d' % (R(acc, 2 * b, 2), t[1], b * 4096))
        p('v_pk_add_f32 %s, %s, %s' % (R(acc, 0, 2), R(acc, 0, 2), R(acc, 2, 2)))
        p('v_pk_add_f32 %s, %s, %s' % (R(acc, 4, 2), R(acc, 4, 2), R(acc, 6, 2)))
        p('v_pk_add_f32 %s, %s, %s' % (R(acc, 0, 2), R(acc, 0, 2), R(acc, 4, 2)))
        p('v_or_b32 %s, 1, %s' % (R(acc, 0), R(acc, 0))); p('v_or_b32 %s, 1, %s' % (R(acc, 1), R(acc, 1)))
        p('s_lshl_b32 s16, s29, 12'); p('s_add_u32 s16, s16, 0x%x' % WS_YP)
        p('s_cmp_lt_u32 s2, 224'); p('s_cselect_b32 s16, s16, 0x%x' % OOB)
        p('buffer_store_dwordx2 %s, %s, %s, s16 offen sc1' % (R(acc, 0, 2), t[0], sr(S_WS)))
        p.stamp(25)
        p('s_cmp_lt_u32 s2, 224')
        p('s_cbranch_scc1 %s_end' % name)
        pp = raw
        p('s_sub_u32 s16, s2, 224'); p('s_lshl_b32 s17, s16, 7'); p('s_add_u32 s17, s17, 0x%x' % WS_YP)
        p('v_lshrrev_b32 %s, 3, %s' % (t[0], tid)); p('v_lshlrev_b32 %s, 12, %s' % (t[0], t[0]))
        p('v_and_b32 %s, 7, %s' % (t[1], tid)); p('v_lshl_add_u32 %s, %s, 4, %s' % (t[0], t[1], t[0]))
        p('v_cmp_gt_u32 vcc, 256, %s' % tid)
        p('v_bfrev_b32 %s, -2' % t[1])
        p('v_cndmask_b32 %s, %s, %s, vcc' % (t[1], t[1], t[0]))
        p('v_mov_b32 %s, 0' % t[3])
        p('v_cndmask_b32 %s, 1, %s, vcc' % (t[2], t[3]))
        p('s_lshl_b32 s18, s16, 6')
        p('v_and_b32 %s, 31, %s' % (t[3], lane)); p('v_lshlrev_b32 %s, 1, %s' % (t[3], t[3])); p('v_add_u32 %s, s18, %s' % (t[3], t[3]))
        p('s_mov_b32 s19, 0x%x' % (WS_MODB + 6144))
        p('buffer_load_ushort %s, %s, %s, s19 offen sc1' % (R(fin, 3), t[3], sr(S_WS)))
        p('v_add_u32 %s, %d, %s' % (t[4], L_XS, t[3]))
        p('ds_read_u16 %s, %s' % (R(fin, 4), t[4])); p('ds_read_u16 %s, %s offset:2048' % (R(fin, 5), t[4]))
        rsel = R(fin, 2)
        p('v_mov_b32 %s, %s' % (rsel, R(gr, 3)))
        rb1(p, rsel)
        p('v_mul_f32 %s, 0x%x, %s' % (rsel, f2u(-LOG2E), rsel))
        p('v_exp_f32 %s, %s' % (rsel, rsel))
        p('v_add_f32 %s, 1.0, %s' % (rsel, rsel))
        p('v_rcp_f32 %s, %s' % (rsel, rsel))
        rb1(p, rsel)
        for r_ in (R(fin, 3), R(fin, 4), R(fin, 5)): p('v_lshlrev_b32 %s, 16, %s' % (r_, r_))
        mn = R(fin, 6)
        def l2():
            for k in range(4):
                p('s_add_u32 s19, s17, 0x%x' % (k * 64 * 4096))
                p('buffer_load_dwordx4 %s, %s, %s, s19 offen sc1' % (R(pp, 4 * k, 4), t[1] if k == 3 else t[0], sr(S_WS)))
        def t2():
            q_ = [R(pp, i) for i in range(16)]
            p('v_min3_u32 %s, %s, %s, %s' % (mn, q_[12], q_[13], q_[14])); p('v_min_u32 %s, %s, %s' % (mn, mn, q_[15]))
            p('v_or_b32 %s, %s, %s' % (mn, mn, t[2]))
            for k in range(0, 12, 2): p('v_min3_u32 %s, %s, %s, %s' % (mn, mn, q_[k], q_[k + 1]))
            p('v_cmp_eq_u32 vcc, 0, %s' % mn)
        backoff(p, 'y')
        p.stamp(27)
        poll(p, 'y', l2, t2)
        p.stamp(26)
        for st in (8, 4):
            for k in range(0, st, 2): p('v_pk_add_f32 %s, %s, %s' % (R(pp, k, 2), R(pp, k, 2), R(pp, st + k, 2)))
        for e in range(4): ror_add(p, R(pp, e), 8)
        for e in range(2): p('v_permlane32_swap_b32 %s, %s' % (R(pp, e), R(pp, 2 + e)))
        for e in range(2): p('v_add_f32 %s, %s, %s' % (R(pp, e), R(pp, e), R(pp, 2 + e)))
        p('v_permlane16_swap_b32 %s, %s' % (R(pp, 0), R(pp, 1)))
        p('v_add_f32 %s, %s, %s' % (R(pp, 0), R(pp, 0), R(pp, 1)))
        p('v_and_b32 %s, 7, %s' % (t[0], lane)); p('v_lshlrev_b32 %s, 4, %s' % (t[0], t[0]))
        p('v_lshrrev_b32 %s, 4, %s' % (t[1], lane)); p('v_lshl_add_u32 %s, %s, 2, %s' % (t[0], t[1], t[0]))
        p('s_lshl_b32 s19, s3, 7'); p('s_add_u32 s19, s19, %d' % L_RS)
        p('v_add_u32 %s, s19, %s' % (t[0], t[0]))
        p('ds_write_b32 %s, %s' % (t[0], R(pp, 0)))
        p('v_and_b32 %s, 31, %s' % (t[0], lane)); p('v_lshlrev_b32 %s, 2, %s' % (t[0], t[0])); p('v_add_u32 %s, %d, %s' % (t[0], L_RS, t[0]))
        p('s_waitcnt lgkmcnt(0)')
        p('s_barrier')
        p('s_cmp_lg_u32 s3, 0')
        p('s_cbranch_scc1 %s_end' % name)
        for i in range(8): p('ds_read_b32 %s, %s offset:%d' % (R(pp, i), t[0], i * 128))
        for st in (4, 2, 1):
            for k in range(st): p('v_add_f32 %s, %s, %s' % (R(pp, k), R(pp, k), R(pp, st + k)))
        y = R(pp, 0)
        rb1(p, y)
        p('v_mul_f32 %s, %s, %s' % (y, y, rsel)); rb1(p, y)
        p('v_add_f32 %s, %s, %s' % (y, y, R(fin, 4))); rb1(p, y)
        p('v_mul_f32 %s, %s, %s' % (y, y, R(fin, 3))); rb1(p, y)
        p('v_add_f32 %s, %s, %s' % (y, y, R(fin, 5)))
        p('v_cvt_pk_bf16_f32 %s, %s, %s' % (y, y, y))
        p('s_mov_b64 exec, 0xffffffff')
        p('buffer_store_short %s, %s, %s, s13 offen sc1' % (y, t[3], sr(S_C)))

    def role_prog(role):
        front(role)
        if stop == 'front': return
        phase1(role)
        phase2(role)
        if stop == 'p2': return
        phase3(role)
        tail(role)
    p.alt_begin()
    role_prog('A')
    p('s_branch %s_end' % name)
    p.alt_next()
    p.label('%s_roleB' % name)
    role_prog('B')
    p.alt_end()
    p.label('%s_end' % name)
    p('s_endpgm')
    body = p.emit()
    extra = ''.join(z.emit() for z in rare) + '%s_codeend:\n    s_endpgm\n' % name
    return body, extra, dict(vgpr=256, accum=256, sgpr=80, lds=163840, block=512, grid=256)
```

```python
from asmdsl import Prog, Inst
from lay2 import *
from k2 import RA, R, Sched
from small import silu, rb1, rb2, unpack, ror_add, xor16_add, xor32_add, f2u, ln_scalars, ln_apply
import math

SPIN_MAX = 1 << 16
LOG2E = 1.4426950408889634
PTR = dict(x=32, k=34, v=36, wq=38, wo=40, bx=42, wr=44, wg=46, wu=48, wd=50, c=52, wmod=54, out=56, dbg=58, ws=60)
OOB = 0x7ffffff0
RING0 = 0; RING1 = 65536; NSL = 6
S_WS, S_A, S_B, S_C, S_D, S_E = 8, 4, 64, 68, 72, 76

def sr(b): return 's[%d:%d]' % (b, b + 3)

def gen_mega(name, stop=None, D1=4, D2=4, D3=4, PO=5, NH=3, prioB=False, gu_at=(1, 7), nwq0=3, MP_AT=(94, 10, 44), WD_AT=6, OF_AT=(180, 255, 1040, 1090), P3_AT=(196, 225), OST_SP=1, mc_comp=True, NWQ=4, MPV=False, MP3_AT=(20, 60, 288), GU3_ROLE='B', SMPIPE=False, WQ_BAR=False, XFIRST=False, H_WAITDMA=False, XPF=None, BIG=False, NO=3, GU3_SPLIT=False, M_ST=(10, 11), WARM=None, CPF1=None, LMF=False, QCONV=False, P3B=None, P1B=(0, 0), P2B=0, OST2_LATE=False, WQ_LATE=False, MODL_ON=False, modsc=' sc1', ROT3=None, AP_WG=False, ROT=None, P3D=(1, 7), P3O=(2, 6), GU3_AT=None, wopf_pv=None, SPF=None, p1pf=None, p1st=None, dmaA=False, osc=' sc1', hsc=' sc1', kvsc=' sc1', wlin=False, p3st=None, do_gu=True, do_mc=True, do_wd=True, wopf=None, mf_at=(16, 20, 21, 23), qkst=None, pvst=None, slp=None, slp_loop=0, dma_split=False):
    slp = slp or {}
    def backoff(q, k):
        n = slp.get(k, 0)
        while n > 0:
            q('s_sleep %d' % min(n, 127)); n -= 127

    p = Prog()
    rare = []
    V = RA('v', 0, 256)
    v_tid = V.alloc(1); v_lane = V.alloc(1); v_l16 = V.alloc(1)
    v_wqoff = V.alloc(1); v_tr = V.alloc(1); v_tr2 = V.alloc(1); v_wq2 = V.alloc(1); v_hoff = V.alloc(1); v_kvoff = V.alloc(1)
    v_l = [V.alloc(1), V.alloc(1)]; v_xv = V.alloc(1)
    x4 = V.alloc(4, 4)
    v_t = [V.alloc(1) for _ in range(6)]
    PR = V.alloc(128, 4); QF = V.alloc(32, 4); SS = V.alloc(32, 4); negm = V.alloc(8, 4)
    NRA = 6
    FR = V.alloc(4 * NRA, 4); SP = V.alloc(8, 4)
    assert V.n <= 256
    def sub(reg, off): return (reg[0], reg[1] + off)
    fr = [sub(FR, 4 * i) for i in range(NRA)]
    qf = [sub(QF, 4 * i) for i in range(8)]
    S = [sub(SS, 0), sub(SS, 16)]
    tid, lane, l16 = R(v_tid), R(v_lane), R(v_l16)
    t = [R(x) for x in v_t]

    def mk_srd(q, base, ptr, size):
        q('s_mov_b64 s[%d:%d], s[%d:%d]' % (base, base + 1, PTR[ptr], PTR[ptr] + 1))
        q('s_mov_b32 s%d, 0x%x' % (base + 2, size)); q('s_mov_b32 s%d, 0x20000' % (base + 3))
    cnt = [0]
    def poll(q, tag, loads, test):
        cnt[0] += 1
        lab = '%s_%s%d' % (name, tag, cnt[0])
        q('s_mov_b32 s27, 0')
        q.loop_begin(); q.label(lab + 'p')
        loads(); test()
        if slp_loop: q('s_cbranch_vccz %sg' % lab); q('s_sleep %d' % slp_loop)
        q('s_add_u32 s27, s27, 1')
        q('s_cmp_ge_u32 s27, %d' % SPIN_MAX)
        q('s_cbranch_scc1 %sg' % lab)
        q('s_cbranch_vccnz %sp' % lab)
        q.loop_end()
        q.label(lab + 'g')
    def rare_poll(q, tag, test, loads, flush=True):
        cnt[0] += 1
        lab = '%s_%s%d' % (name, tag, cnt[0])
        test(q)
        q('s_cbranch_vccnz %sr' % lab)
        q.label(lab + 'b')
        z = Prog()
        z.label(lab + 'r')
        if flush: z.flush()
        z('s_mov_b32 s27, 0')
        z.loop_begin(); z.label(lab + 'p')
        loads(z); test(z)
        z('s_add_u32 s27, s27, 1')
        z('s_cmp_ge_u32 s27, %d' % SPIN_MAX)
        z('s_cbranch_scc1 %sg' % lab)
        z('s_cbranch_vccnz %sp' % lab)
        z.loop_end()
        z.label(lab + 'g'); z.flush()
        z('s_branch %sb' % lab)
        rare.append(z)

    p('s_cmp_ge_u32 s2, 256')
    p('s_cbranch_scc1 %s_end' % name)
    if WARM and WARM.get('entry'):
        ca, cb = sub(PR, 0), sub(PR, 2)
        p('s_getpc_b64 s[76:77]')
        p.label('%s_pc0' % name)
        p('s_sub_u32 s76, s76, %s_pc0-%s' % (name, name)); p('s_subb_u32 s77, s77, 0')
        p('v_and_b32 %s, 63, %s' % (t[0], tid)); p('v_lshlrev_b32 %s, 7, %s' % (t[0], t[0]))
        p('v_lshrrev_b32 %s, 6, %s' % (t[1], tid))
        p('s_lshr_b32 s62, s2, 3'); p('s_lshl_b32 s62, s62, 13')
        p('v_lshlrev_b32 %s, 13, %s' % (t[2], t[1])); p('v_mov_b32 %s, s62' % t[3])
        p('v_cmp_eq_u32 vcc, 7, %s' % t[1]); p('v_cndmask_b32 %s, %s, %s, vcc' % (t[2], t[2], t[3]))
        p('v_add_u32 %s, %s, %s' % (t[0], t[0], t[2]))
        p('v_min_u32 %s, %s_codeend-%s-4, %s' % (t[0], name, name, t[0]))
        p('v_mov_b32 %s, s77' % R(ca, 1))
        p('v_add_co_u32 %s, vcc, s76, %s' % (R(ca, 0), t[0]))
        p('v_addc_co_u32 %s, vcc, 0, %s, vcc' % (R(ca, 1), R(ca, 1)))
        p('v_cmp_gt_u32 vcc, %d, %s' % (WARM['entry'], t[1])); p('v_cmp_eq_u32 s[62:63], 7, %s' % t[1]); p('s_or_b64 vcc, vcc, s[62:63]')
        p('s_and_saveexec_b64 s[62:63], vcc')
        p('s_cbranch_execz %s_nocp0' % name)
        p.alt_begin()
        p('global_load_dword %s, %s, off' % (R(cb, 0), R(ca, 0, 2)), 'pf')
        p.alt_next()
        p.alt_end()
        p.label('%s_nocp0' % name)
        p('s_mov_b64 exec, s[62:63]')
    p('s_load_dwordx4 s[56:59], s[0:1], 96')
    p('s_load_dwordx2 s[60:61], s[0:1], 112')
    p('s_load_dwordx8 s[48:55], s[0:1], 64')
    p('s_load_dwordx16 s[32:47], s[0:1], 0')
    p('s_memrealtime s[62:63]')
    p('v_lshrrev_b32 %s, 6, %s' % (t[0], tid))
    p('v_and_b32 %s, 63, %s' % (lane, tid))
    p('v_readfirstlane_b32 s3, %s' % t[0])
    p('v_lshlrev_b32 %s, 4, %s' % (l16, lane))
    p('s_and_b32 s12, s2, 3'); p('s_lshl_b32 s12, s12, 3'); p('s_bfe_u32 s13, s2, 0x30003'); p('s_add_u32 s12, s12, s13')
    p('s_bfe_u32 s13, s2, 0x10002'); p('s_lshl_b32 s13, s13, 2'); p('s_lshr_b32 s14, s2, 6'); p('s_add_u32 s13, s13, s14')
    p('v_bfe_u32 %s, %s, 2, 2' % (t[0], lane))
    p('v_lshrrev_b32 %s, 4, %s' % (t[1], lane))
    p('v_and_b32 %s, 3, %s' % (t[2], lane))
    p('v_lshlrev_b32 %s, 6, %s' % (t[3], t[1]))
    p('v_lshl_add_u32 %s, %s, 4, %s' % (t[3], t[2], t[3]))
    p('v_lshl_add_u32 %s, %s, 13, %s' % (R(v_wqoff), t[0], t[3]))
    p('s_and_b32 s14, s3, 1'); p('s_lshl_b32 s14, s14, 5')
    p('v_xor_b32 %s, s14, %s' % (R(v_wqoff), R(v_wqoff)))
    p('v_lshlrev_b32 %s, 11, %s' % (R(v_tr), t[1]))
    p('v_lshl_add_u32 %s, %s, 6, %s' % (R(v_tr), t[0], R(v_tr)))
    p('v_lshl_add_u32 %s, %s, 3, %s' % (R(v_tr), t[2], R(v_tr)))
    p('v_and_b32 %s, 1, %s' % (t[4], t[1])); p('v_lshlrev_b32 %s, 5, %s' % (t[4], t[4]))
    p('v_sub_u32 %s, %s, %s' % (R(v_tr2), R(v_tr), t[4]))
    p('v_add_u32 %s, %s, %s' % (R(v_tr), R(v_tr), t[4]))
    p('s_lshl_b32 s14, s13, 3'); p('s_add_u32 s14, s14, s3'); p('s_lshl_b32 s14, s14, 16')
    p('v_add_u32 %s, s14, %s' % (R(v_hoff), l16))
    p('s_cmp_ge_u32 s3, 4')
    p('s_cbranch_scc1 %s_roleB' % name)

    def wq_slot(s):
        k = s % NWQ
        return RING0 + k * 16384 if k < 4 else RING1 + k * 16384
    def dma_wq(s):
        out = []
        for i in range(2):
            if ROT:
                if i == 0: out.append(('s_add_u32 s22, s25, 0x%x\ns_and_b32 s22, s22, 0x7fffff\ns_add_u32 s22, s22, s19' % (s * 64 * 8192), None))
                else: out.append(('s_add_u32 s22, s22, 32768', None))
            else:
                out.append(('s_add_u32 s22, s19, 0x%x' % (s * 64 * 8192 + i * 32768), None))
            out.append(('s_add_u32 m0, s20, 0x%x' % (wq_slot(s) + i * 1024), None))
            out.append(('buffer_load_dwordx4 %s, %s, s22 offen lds' % (R(v_wqoff), sr(S_A)), 'wq%d' % s))
        return out
    def slot(c): return RING1 + (c % NSL) * 16384
    W0 = 18
    if MPV:
        KCH = list(range(8)); VCH = [8, 9, 10, 11, 14, 15, 16, 17]; MCH = [12, 13]
        ISSUE = {c: [c + 4] for c in range(12)}; ISSUE.update({14: [16], 15: [17, 18], 16: [19, 20], 17: [21]})
    else:
        MCH = [0, 1]; KCH = list(range(2, 10)); VCH = list(range(10, 18))
        ISSUE = {c: [c + 4] for c in range(18)}
    def dma_chunk(c):
        out = []
        for i in range(2):
            if c in KCH or c in VCH:
                off = (KCH.index(c) * 16384 if c in KCH else (WS_VF - WS_KF) + VCH.index(c) * 16384) + i * 1024
                out.append(('s_add_u32 s22, s21, 0x%x' % off, None))
                out.append(('s_add_u32 m0, s20, 0x%x' % (slot(c) + i * 1024), None))
                out.append(('buffer_load_dwordx4 %s, %s, s22 offen%s lds' % (l16, sr(S_WS), kvsc), 'ch%d' % c))
            elif c in MCH:
                out.append(('s_add_u32 s22, s14, 0x%x' % ((MCH.index(c) * 64 + 4 * i) * 12288), None))
                out.append(('s_add_u32 m0, s20, 0x%x' % (slot(c) + i * 1024), None))
                out.append(('buffer_load_dwordx4 %s, %s, s22 offen lds' % (R(v_wq2), sr(S_E)), 'ch%d' % c))
            else:
                s_ = c - W0
                if BIG:
                    out.append(('s_add_u32 s22, s24, 0x%x' % (((s_ % 4) * 256 + (s_ // 4) * 32) * 2048 + i * 8192), None))
                elif ROT3:
                    if i == 0: out.append(('s_lshl_b32 s22, s62, 6\ns_add_u32 s22, s22, 0x%x\ns_and_b32 s22, s22, 0x3fffff\ns_add_u32 s22, s22, s24\ns_add_u32 s22, s22, 0x%x' % ((s_ % 8) * 0x80000, (s_ // 8) * 32 * 2048), None))
                    else: out.append(('s_add_u32 s22, s22, 8192', None))
                else:
                    out.append(('s_add_u32 s22, s24, 0x%x' % (((s_ % 8) * 256 + (s_ // 8) * 32) * 2048 + i * 8192), None))
                out.append(('s_add_u32 m0, s20, 0x%x' % (slot(c) + i * 1024), None))
                out.append(('buffer_load_dwordx4 %s, %s, s22 offen lds' % (R(v_wqoff), sr(S_A)), 'ch%d' % c))
        return out

    acc3 = [[sub(PR, 64 + (n * 2 + qs) * 4) for qs in range(2)] for n in range(8)]
    OB = [[sub(PR, (k * 2 + qs) * 4) for qs in range(2)] for k in range(PO)]
    assert PO * 8 <= 64
    v_oo = v_wq2
    def oload(s, qs):
        return [('s_add_u32 s23, s62, 0x%x\ns_and_b32 s23, s23, 0xffff\ns_or_b32 s23, s23, 0x%x' % ((s % 8) * 8192, qs * 131072) if qs else
                 's_add_u32 s23, s62, 0x%x\ns_and_b32 s23, s23, 0xffff' % ((s % 8) * 8192)) if ROT3 else 's_mov_b32 s23, 0x%x' % (qs * 131072 + (s % 8) * 8192),
                'buffer_load_dwordx4 %s, %s, %s, s23 offen offset:%d%s' % (R(OB[s % PO][qs], 0, 4), R(v_oo), sr(S_WS), (s // 8) * 1024, osc)]
    OBB = [[sub(PR, k * 16 + j * 4) for j in range(4)] for k in range(NO)]
    GAB = sub(PR, 48)
    assert not BIG or NO * 16 <= 48
    def oload_big(s, j):
        e, qs = j // 2, j % 2
        return ['s_mov_b32 s23, 0x%x' % (qs * 131072 + (s % 4) * 8192 + e * 4096),
                'buffer_load_dwordx4 %s, %s, %s, s23 offen offset:%d%s' % (R(OBB[s % NO][j], 0, 4), R(v_oo), sr(S_WS), (s // 4) * 1024, osc)]
    of2 = R(x4, 0)
    def of_load(q): q('buffer_load_dword %s, %s, %s, s17k offen sc1'.replace('s17k', 's19') % (of2, R(x4, 1), sr(S_WS)))
    def p3_setup(q, ks):
        if BIG:
            q('s_mov_b32 s30, s13'); q('s_and_b32 s31, s12, 7')
            q('s_lshl_b32 s19, s13, 3'); q('s_add_u32 s19, s19, s3'); q('s_lshr_b32 s16, s12, 3')
            q('s_lshl_b32 s17, s19, 18'); q('s_lshl_b32 s23, s16, 15'); q('s_add_u32 s17, s17, s23'); q('s_add_u32 s17, s17, 0x%x' % WS_O)
            q('v_add_u32 %s, s17, %s' % (R(v_oo), l16))
            q('s_lshl_b32 s19, s19, 7'); q('s_lshl_b32 s23, s16, 5'); q('s_add_u32 s19, s19, s23'); q('s_add_u32 s19, s19, 0x%x' % WS_OFLAG)
            q('v_and_b32 %s, 7, %s' % (R(x4, 1), lane)); q('v_lshlrev_b32 %s, 2, %s' % (R(x4, 1), R(x4, 1)))
            of_load(q)
            return
        q('s_bfe_u32 s30, s2, 0x20001'); q('s_lshl_b32 s30, s30, 2'); q('s_bfe_u32 s17, s2, 0x20003'); q('s_add_u32 s30, s30, s17')
        q('s_lshr_b32 s31, s2, 5')
        q('s_and_b32 s17, s3, 3'); q('s_lshl_b32 s19, s30, 2'); q('s_add_u32 s19, s19, s17')
        q('s_and_b32 s16, s2, 1')
        q('s_lshl_b32 s17, s19, 18'); q('s_lshl_b32 s23, s16, 16'); q('s_add_u32 s17, s17, s23'); q('s_add_u32 s17, s17, 0x%x' % (WS_O + ks * 4096))
        q('v_add_u32 %s, s17, %s' % (R(v_oo), l16))
        q('s_lshl_b32 s19, s19, 7'); q('s_lshl_b32 s23, s16, 6'); q('s_add_u32 s19, s19, s23'); q('s_add_u32 s19, s19, 0x%x' % WS_OFLAG)
        q('v_and_b32 %s, 15, %s' % (R(x4, 1), lane)); q('v_lshlrev_b32 %s, 2, %s' % (R(x4, 1), R(x4, 1)))
        of_load(q)
    def p3_addr(ks):
        o = []
        o.append('v_bfe_u32 %s, %s, 2, 2' % (t[2], lane)); o.append('v_lshrrev_b32 %s, 4, %s' % (t[3], lane)); o.append('v_and_b32 %s, 3, %s' % (t[1], lane))
        o.append('v_lshlrev_b32 %s, 11, %s' % (t[0], t[3]))
        o.append('v_lshl_add_u32 %s, %s, 6, %s' % (t[0], t[2], t[0]))
        o.append('v_lshl_add_u32 %s, %s, 3, %s' % (t[0], t[1], t[0]))
        o.append('v_add_u32 %s, 0x%x, %s' % (t[0], 0x10000 + ks * 8192, t[0]))
        o.append('v_and_b32 %s, 1, %s' % (t[3], t[3])); o.append('v_lshlrev_b32 %s, 5, %s' % (t[3], t[3]))
        o.append('v_sub_u32 %s, %s, %s' % (R(v_tr2), t[0], t[3]))
        o.append('v_add_u32 %s, %s, %s' % (R(v_tr), t[0], t[3]))
        o.append('v_add_u32 %s, 0x10000, %s' % (R(v_hoff), R(v_tr))); o.append('v_add_u32 %s, 0x10000, %s' % (R(v_kvoff), R(v_tr2)))
        return o

    CSF = [sub(PR, 112 + 4 * k) for k in range(4)]; MACC = sub(PR, 80); MFR = [sub(PR, 64 + 4 * k) for k in range(4)]; v_m = v_xv
    if MPV: CSF = [sub(QF, 4 * k) for k in range(4)]; MFR = [sub(QF, 16 + 4 * k) for k in range(4)]; MACC = sub(SP, 0)
    assert MPV or (NWQ == 4 and NH == 3)
    def m_setup(q):
        mk_srd(q, S_E, 'wmod', 1024 * 6144 * 2)
        q('v_bfe_u32 %s, %s, 2, 2' % (t[4], lane)); q('v_lshlrev_b32 %s, 12, %s' % (t[4], t[4]))
        q('v_add_u32 %s, %s, %s' % (R(v_wq2), R(v_wqoff), t[4]))
        q('s_lshr_b32 s16, s2, 5'); q('s_lshl_b32 s16, s16, 7'); q('s_lshl_b32 s17, s3, 3'); q('s_add_u32 s16, s16, s17'); q('s_mul_i32 s14, s16, 12288')
        q('s_and_b32 s16, s2, 31'); q('s_lshl_b32 s16, s16, 8'); q('s_add_u32 s14, s14, s16'); q('s_add_u32 s14, s14, 4096')
    def m_cs(q):
        q('v_lshrrev_b32 %s, 4, %s' % (t[4], lane)); q('v_lshlrev_b32 %s, 4, %s' % (t[5], t[4]))
        q('s_lshl_b32 s16, s2, 8'); q('s_add_u32 s16, s16, 0x%x' % WS_CSW)
        for k in range(4): q('buffer_load_dwordx4 %s, %s, %s, s16 offen offset:%d sc1' % (R(CSF[k], 0, 4), t[5], sr(S_WS), k * 64))
        vm = R(v_m)
        q('v_lshlrev_b32 %s, 11, %s' % (vm, t[4]))
        q('v_xor_b32 %s, s3, %s' % (t[4], t[4])); q('v_and_b32 %s, 1, %s' % (t[4], t[4])); q('v_lshl_add_u32 %s, %s, 5, %s' % (vm, t[4], vm))
        q('v_bfe_u32 %s, %s, 2, 2' % (t[4], lane)); q('v_lshl_add_u32 %s, %s, 6, %s' % (vm, t[4], vm))
        q('v_and_b32 %s, 3, %s' % (t[4], lane)); q('v_lshl_add_u32 %s, %s, 3, %s' % (vm, t[4], vm))
        q('s_lshr_b32 s16, s3, 1'); q('s_lshl_b32 s16, s16, 8'); q('s_add_u32 s16, s16, %d' % slot(MCH[0]))
        q('v_add_u32 %s, s16, %s' % (vm, vm))
    def m_reads(q):
        for k in range(4):
            off = (k // 2) * 16384 + (k % 2) * 8192
            q('ds_read_b64_tr_b16 %s, %s offset:%d' % (R(MFR[k], 0, 2), R(v_m), off))
            q('ds_read_b64_tr_b16 %s, %s offset:%d' % (R(MFR[k], 2, 2), R(v_m), off + 1024))
    def m_mfma(q):
        for k in range(4):
            q('v_mfma_f32_16x16x32_bf16 %s, %s, %s, %s' % (R(MACC, 0, 4), R(MFR[k], 0, 4), R(CSF[k], 0, 4), '0' if k == 0 else R(MACC, 0, 4)))
    def m_store(q):
        q('v_lshrrev_b32 %s, 4, %s' % (t[4], lane)); q('v_lshlrev_b32 %s, 4, %s' % (t[4], t[4]))
        q('s_lshr_b32 s16, s2, 5'); q('s_lshl_b32 s16, s16, 14'); q('s_and_b32 s17, s2, 31'); q('s_lshl_b32 s17, s17, 9'); q('s_add_u32 s16, s16, s17')
        q('s_lshl_b32 s17, s3, 6'); q('s_add_u32 s16, s16, s17'); q('s_add_u32 s16, s16, 0x%x' % WS_MODP)
        q('s_mov_b32 exec_lo, 0x10001'); q('s_mov_b32 exec_hi, 0x10001')
        q('buffer_store_dwordx4 %s, %s, %s, s16 offen sc1' % (R(MACC, 0, 4), t[4], sr(S_WS)), 'mst')
        q('s_mov_b64 exec, -1')
    def mc_pub(q):
        q('v_mov_b32 %s, s28' % t[4]); q('v_mov_b32 %s, 0' % t[5])
        q('s_lshl_b32 s16, s2, 2'); q('s_add_u32 s16, s16, 0x%x' % WS_MPFLAG)
        q('s_cmp_eq_u32 s3, 0'); q('s_cselect_b32 s16, s16, 0x%x' % OOB)
        q('s_mov_b64 exec, 1')
        q('buffer_store_dword %s, %s, %s, s16 offen sc1' % (t[4], t[5], sr(S_WS)))
        q('s_mov_b64 exec, -1')
    def mc_final(sc, MP_AT=MP_AT, late=None):
        mpf = R(SP, 0); mpv = R(SP, 1); va, vb = R(SP, 2), R(SP, 5); mpw = R(SP, 6)
        def mp_load(q):
            q('buffer_load_dword %s, %s, %s, s14 offen sc1' % (mpf, va, sr(S_WS)))
        def mp_issue(q):
            q('v_and_b32 %s, 7, %s' % (va, lane)); q('v_lshlrev_b32 %s, 7, %s' % (va, va))
            q('s_lshr_b32 s14, s2, 3'); q('s_lshl_b32 s14, s14, 2'); q('s_add_u32 s14, s14, 0x%x' % WS_MPFLAG)
            mp_load(q)
        sc.place(MP_AT[1], mp_issue)
        sc.place(MP_AT[2], lambda q: rare_poll(q, 'mp', lambda z: z('v_cmp_ne_u32 vcc, s28, %s' % mpf), mp_load))
        def mp_get(q):
            q('v_lshrrev_b32 %s, 4, %s' % (va, lane)); q('v_lshlrev_b32 %s, 14, %s' % (va, va))
            q('v_and_b32 %s, 15, %s' % (vb, lane)); q('v_lshl_add_u32 %s, %s, 2, %s' % (va, vb, va))
            q('s_lshl_b32 s14, s2, 6'); q('s_add_u32 s14, s14, 0x%x' % WS_MODP)
            q('buffer_load_dword %s, %s, %s, s14 offen sc1' % (mpv, va, sr(S_WS)))
            q('s_add_u32 s14, s14, 0x10000')
            q('buffer_load_dword %s, %s, %s, s14 offen sc1' % (mpw, va, sr(S_WS)))
        sc.place(MP_AT[2] + 1, mp_get)
        def mp_fin(q):
            q('v_add_f32 %s, %s, %s' % (mpv, mpv, mpw))
            xor16_add(q, mpv, va); xor32_add(q, mpv, va)
            rb1(q, mpv)
            q('s_lshr_b32 s14, s2, 6'); q('s_cmp_eq_u32 s14, 2'); q('s_cselect_b32 s14, 1.0, 0')
            q('v_add_f32 %s, s14, %s' % (mpv, mpv))
            q('v_cvt_pk_bf16_f32 %s, %s, %s' % (mpv, mpv, mpv))
            q('v_lshlrev_b32 %s, 1, %s' % (vb, vb))
            q('s_lshl_b32 s14, s2, 5'); q('s_add_u32 s14, s14, 0x%x' % WS_MODB)
            q('s_cmp_eq_u32 s3, 0'); q('s_cselect_b32 s14, s14, 0x%x' % OOB)
            q('s_mov_b64 exec, 0xffff')
            q('buffer_store_short %s, %s, %s, s14 offen sc1' % (mpv, vb, sr(S_WS)), 'mb')
            q('s_mov_b64 exec, -1')
        sc.place(MP_AT[2] + 24, mp_fin)
        def mp_flag(q):
            q.wait_tag('mb')
            q('v_mov_b32 %s, s28' % mpf); q('v_mov_b32 %s, 0' % mpv)
            q('s_lshl_b32 s14, s2, 2'); q('s_add_u32 s14, s14, 0x%x' % WS_MFLAG)
            q('s_cmp_eq_u32 s3, 0'); q('s_cselect_b32 s14, s14, 0x%x' % OOB)
            q('s_mov_b64 exec, 1')
            q('buffer_store_dword %s, %s, %s, s14 offen sc1' % (mpf, mpv, sr(S_WS)))
            q('s_mov_b64 exec, -1')
        sc.place(late if late is not None else MP_AT[2] + 64, mp_flag)

    def spf(q, buf, nl, lo, hi):
        q('s_lshl_b32 s0x, s2, 3'.replace('s0x', 's16')); q('s_add_u32 s16, s16, s3'); q('s_mul_i32 s16, s16, %d' % (nl * 128))
        q('s_add_u32 s76, s%d, s16' % PTR[buf]); q('s_addc_u32 s77, s%d, 0' % (PTR[buf] + 1))
        for i in range(lo, hi): q.raw('s_load_dword s62, s[76:77], 0x%x' % (i * 128))
    def warm(q, role, va, vb, a64):
        SZB = dict(wg=7340032, wu=7340032, wd=7340032, wo=8388608, wq=8388608, out=4194304, wmod=1024 * 6144 * 2, wr=2048, ws=WS_SIZE)
        if role == 'B':
            step = WARM.get('step', 1 << 21)
            q('v_mov_b32 %s, %d' % (va, step)); q('v_mul_lo_u32 %s, %s, %s' % (va, va, lane))
            for wv, bufs in WARM.get('plan', ((4, ('wo', 'wg')), (5, ('wu', 'wd')), (6, ('wq', 'out')), (7, ('wmod', 'wr')))):
                for b in bufs:
                    mk_srd(q, S_E, b, SZB[b])
                    for k in range(-(-SZB[b] // (64 * step))):
                        q('s_mov_b32 s62, 0x%x' % (k * 64 * step)); q('s_cmp_eq_u32 s3, %d' % wv); q('s_cselect_b32 s62, s62, 0x%x' % OOB)
                        q('buffer_load_dword %s, %s, %s, s62 offen' % (vb, va, sr(S_E)), 'pf')
        elif WARM.get('code'):
            q('s_getpc_b64 s[76:77]')
            q.label('%s_pc' % name)
            q('s_sub_u32 s76, s76, %s_pc-%s' % (name, name)); q('s_subb_u32 s77, s77, 0')
            q('v_lshlrev_b32 %s, 7, %s' % (va, lane)); q('s_lshr_b32 s62, s2, 3'); q('s_lshl_b32 s62, s62, 13')
            q('v_add_u32 %s, s62, %s' % (va, va))
            q('v_min_u32 %s, %s_codeend-%s-4, %s' % (va, name, name, va))
            q('v_mov_b32 %s, s77' % R(a64, 1))
            q('v_add_co_u32 %s, vcc, s76, %s' % (R(a64, 0), va))
            q('v_addc_co_u32 %s, vcc, 0, %s, vcc' % (R(a64, 1), R(a64, 1)))
            q('s_cmp_eq_u32 s3, %d' % WARM.get('cw', 1))
            q('s_cbranch_scc0 %s_nocp' % name)
            q.alt_begin()
            q('global_load_dword %s, %s, off' % (vb, R(a64, 0, 2)), 'pf')
            q.alt_next()
            q.alt_end()
            q.label('%s_nocp' % name)
    def front(role):
        A_ = role == 'A'
        F = RA('v', PR[1], 256)
        w0 = F.alloc(4, 4); w1 = F.alloc(4, 4); xr = [F.alloc(4, 4), F.alloc(4, 4)]; xt = [F.alloc(4, 4), F.alloc(4, 4)]
        acc = F.alloc(8, 4); X = F.alloc(16, 4); cc = F.alloc(4, 4); g4 = F.alloc(4, 4); s4 = F.alloc(4, 4); kv = F.alloc(12, 4)
        rd = [F.alloc(4, 4) for _ in range(8)]; st = F.alloc(4, 4)
        vz = F.alloc(2, 2); vn = F.alloc(1); va = F.alloc(1); vb = F.alloc(1); vc = F.alloc(1); ve = F.alloc(1); vg = F.alloc(1); vs = F.alloc(1)
        FS = RING1 + 5 * 16384; MT = FS + 4096
        p('v_mov_b32 %s, 0' % R(vz, 0)); p('v_mov_b32 %s, 0' % R(vz, 1))
        p('v_lshrrev_b32 %s, 3, %s' % (t[0], tid)); p('v_and_b32 %s, 7, %s' % (t[1], tid))
        p('v_mul_u32_u24 %s, %d, %s' % (R(va), 2 * 12288, t[0])); p('v_lshl_add_u32 %s, %s, 4, %s' % (R(va), t[1], R(va)))
        p('v_lshlrev_b32 %s, 2, %s' % (R(vb), t[0]))
        p('s_and_b32 s14, s2, 31'); p('s_lshr_b32 s15, s2, 5')
        p('s_mul_i32 s26, s15, %d' % (128 * 12288)); p('s_lshl_b32 s16, s14, 7'); p('s_add_u32 s26, s26, s16')
        p('s_lshl_b32 s29, s15, 8')
        p('v_lshlrev_b32 %s, 3, %s' % (R(vc), tid))
        p('s_lshl_b32 s18, s2, 3'); p('s_add_u32 s18, s18, s3'); p('s_lshl_b32 s18, s18, 11')
        p('v_and_b32 %s, 15, %s' % (t[2], lane)); p('v_lshrrev_b32 %s, 4, %s' % (t[3], lane))
        p('v_lshlrev_b32 %s, 11, %s' % (R(ve), t[2])); p('v_lshl_add_u32 %s, %s, 4, %s' % (R(ve), t[3], R(ve)))
        p('s_lshr_b32 s30, s2, 4'); p('s_and_b32 s31, s2, 15')
        p('s_lshl_b32 s19, s30, 3'); p('s_add_u32 s19, s19, s3')
        p('s_lshl_b32 s22, s19, 15'); p('s_lshl_b32 s23, s31, 7'); p('s_add_u32 s22, s22, s23')
        p('s_lshl_b32 s23, s2, 12'); p('s_add_u32 s23, s23, 0x%x' % WS_Z)
        p('s_or_b32 s25, s2, s3')
        p('s_cmp_eq_u32 s25, 0'); p('s_cselect_b32 s25, 0, 0x%x' % OOB)
        p('s_waitcnt lgkmcnt(0)')
        p.stamp(0)
        mk_srd(p, S_B, 'dbg', 256)
        p('s_or_b32 s28, s62, 1')
        p('v_mov_b32 %s, s28' % R(vn))
        p('s_mov_b64 exec, 1')
        p('buffer_store_dword %s, %s, %s, s25 offen sc1' % (R(vn), R(vz, 0), sr(S_B)))
        p('s_mov_b64 exec, -1')
        mk_srd(p, S_C, 'c', 2048); mk_srd(p, S_D, 'wmod', 1024 * 6144 * 2); mk_srd(p, S_E, 'x', 4194304); mk_srd(p, S_WS, 'ws', WS_SIZE)
        def ld_x():
            for i in range(2):
                p('buffer_load_dwordx4 %s, %s, %s, s18 offen offset:%d' % (R(xr[i], 0, 4), l16, sr(S_E), i * 1024))
        if XFIRST: ld_x()
        p('buffer_load_dword %s, %s, %s, s29 offen' % (R(cc, 0), R(vb), sr(S_C)))
        p('buffer_load_dwordx4 %s, %s, %s, s26 offen' % (R(w0, 0, 4), R(va), sr(S_D)))
        p('s_add_u32 s26, s26, 12288')
        p('buffer_load_dwordx4 %s, %s, %s, s26 offen' % (R(w1, 0, 4), R(va), sr(S_D)))
        if not XFIRST: ld_x()
        if A_:
            p('s_cmp_eq_u32 s3, 0'); p('s_cselect_b32 s25, 0, 0x%x' % OOB)
            p('buffer_load_dword %s, %s, %s, s25 offen sc1' % (R(vn), R(vz, 0), sr(S_B)), 'n1')
        p('buffer_store_dwordx2 %s, %s, %s, s23 offen sc1' % (R(vz, 0, 2), R(vc), sr(S_WS)))
        p('s_barrier')
        for i in range(2):
            p('buffer_load_dwordx4 %s, %s, %s, s22 offen offset:%d' % (R(xt[i], 0, 4), R(ve), sr(S_E), i * 64))
        p('s_mov_b32 s29, s19')
        if not A_:
            mk_srd(p, S_B, 'k', 2097152); mk_srd(p, S_C, 'v', 2097152)
            p('s_lshl_b32 s20, s2, 2'); p('s_add_u32 s20, s20, s3'); p('s_sub_u32 s20, s20, 4')
            p('s_lshr_b32 s22, s20, 8'); p('s_bfe_u32 s23, s20, 0x40004'); p('s_and_b32 s24, s20, 15')
            p('s_lshl_b32 s25, s22, 19'); p('s_lshl_b32 s26, s23, 13'); p('s_add_u32 s25, s25, s26'); p('s_add_u32 s25, s25, %d' % (1536 * 256))
            p('v_and_b32 %s, 15, %s' % (t[0], lane)); p('v_lshrrev_b32 %s, 4, %s' % (t[1], lane))
            p('s_lshl_b32 s21, s22, 17')
            p('s_cmp_ge_u32 s24, 8')
            p('s_cbranch_scc1 %s_kvV' % name)
            p.alt_begin()
            p('v_lshlrev_b32 %s, 8, %s' % (t[2], t[0])); p('v_lshl_add_u32 %s, %s, 3, %s' % (t[2], t[1], t[2]))
            p('s_and_b32 s26, s24, 1'); p('s_lshl_b32 s26, s26, 12'); p('s_add_u32 s25, s25, s26')
            p('s_lshr_b32 s26, s24, 1'); p('s_lshl_b32 s26, s26, 6'); p('s_add_u32 s25, s25, s26')
            p('buffer_load_dwordx2 %s, %s, %s, s25 offen' % (R(kv, 0, 2), t[2], sr(S_B)))
            p('buffer_load_dwordx2 %s, %s, %s, s25 offen offset:32' % (R(kv, 2, 2), t[2], sr(S_B)))
            p('s_mov_b32 s26, 0x%x' % OOB)
            for e in range(6): p('buffer_load_ushort %s, %s, %s, s26 offen' % (R(kv, 4 + e), t[2], sr(S_B)))
            p('s_lshl_b32 s26, s23, 13'); p('s_add_u32 s21, s21, s26'); p('s_lshl_b32 s26, s24, 10'); p('s_add_u32 s21, s21, s26')
            p('s_add_u32 s21, s21, 0x%x' % WS_KF)
            p('s_branch %s_kvJ' % name)
            p.alt_next()
            p.label('%s_kvV' % name)
            p('s_bfe_u32 s26, s24, 0x20001'); p('s_lshl_b32 s26, s26, 6'); p('s_add_u32 s25, s25, s26')
            p('s_and_b32 s26, s24, 1'); p('s_lshl_b32 s26, s26, 3'); p('s_add_u32 s25, s25, s26')
            p('s_add_u32 s26, s25, 4096')
            p('v_lshrrev_b32 %s, 2, %s' % (t[2], t[0])); p('v_lshlrev_b32 %s, 4, %s' % (t[2], t[2]))
            p('v_and_b32 %s, 3, %s' % (t[3], t[0])); p('v_lshl_add_u32 %s, %s, 1, %s' % (t[2], t[3], t[2]))
            p('v_lshl_add_u32 %s, %s, 10, %s' % (t[2], t[1], t[2]))
            for e in range(8):
                p('buffer_load_ushort %s, %s, %s, %s offen offset:%d' % (R(kv, 4 + e), t[2], sr(S_C), 's26' if e >= 4 else 's25', (e % 4) * 256))
            p('s_bfe_u32 s26, s24, 0x20001'); p('s_lshl_b32 s26, s26, 15'); p('s_add_u32 s21, s21, s26')
            p('s_lshl_b32 s26, s23, 11'); p('s_add_u32 s21, s21, s26')
            p('s_and_b32 s26, s24, 1'); p('s_lshl_b32 s26, s26, 10'); p('s_add_u32 s21, s21, s26')
            p('s_add_u32 s21, s21, 0x%x' % WS_VF)
            p.alt_end()
            p.label('%s_kvJ' % name)
        def part_gemv():
            cs0, cs1, lo0, lo1 = R(cc, 0), R(cc, 1), R(cc, 2), R(cc, 3)
            unpack(p, cs0, cs1, cs0)
            silu(p, cs0, t[0]); silu(p, cs1, t[1])
            rb2(p, cs0, cs1, t[0])
            p('s_lshl_b32 s16, s2, 8'); p('s_add_u32 s16, s16, 0x%x' % WS_CSW)
            p('s_mov_b32 exec_lo, 0x01010101'); p('s_mov_b32 exec_hi, 0x01010101')
            p('buffer_store_dword %s, %s, %s, s16 offen sc1' % (t[0], R(vb), sr(S_WS)))
            p('s_mov_b64 exec, -1')
            p('v_lshrrev_b32 %s, 16, %s' % (lo0, cs0)); p('v_lshrrev_b32 %s, 16, %s' % (lo1, cs1))
            for d in range(4):
                p('v_dot2_f32_bf16 %s, %s, %s, 0' % (R(acc, 2 * d + 1), R(w0, d), cs0))
                p('v_dot2_f32_bf16 %s, %s, %s, 0' % (R(acc, 2 * d), R(w0, d), lo0))
            for d in range(4):
                p('v_dot2c_f32_bf16 %s, %s, %s' % (R(acc, 2 * d + 1), R(w1, d), cs1))
                p('v_dot2c_f32_bf16 %s, %s, %s' % (R(acc, 2 * d), R(w1, d), lo1))
            for e in range(4): p('v_permlane32_swap_b32 %s, %s' % (R(acc, e), R(acc, 4 + e)))
            for e in range(4): p('v_add_f32 %s, %s, %s' % (R(acc, e), R(acc, e), R(acc, 4 + e)))
            for e in range(2): p('v_permlane16_swap_b32 %s, %s' % (R(acc, e), R(acc, 2 + e)))
            for e in range(2): p('v_add_f32 %s, %s, %s' % (R(acc, e), R(acc, e), R(acc, 2 + e)))
            for e in range(2): ror_add(p, R(acc, e), 8)
            p('v_and_b32 %s, 7, %s' % (t[0], lane)); p('v_lshlrev_b32 %s, 5, %s' % (t[0], t[0]))
            p('v_lshrrev_b32 %s, 4, %s' % (t[1], lane)); p('v_lshl_add_u32 %s, %s, 3, %s' % (t[0], t[1], t[0]))
            p('s_lshl_b32 s16, s3, 8'); p('s_add_u32 s16, s16, %d' % FS)
            p('v_add_u32 %s, s16, %s' % (t[0], t[0]))
            p('ds_write_b64 %s, %s' % (t[0], R(acc, 0, 2)))
            p.stamp(20)
        def part_stats():
            for i in range(2):
                for d in range(4): unpack(p, R(X, 8 * i + 2 * d), R(X, 8 * i + 2 * d + 1), R(xr[i], d))
            Xs = [R(X, i) for i in range(16)]
            mean, sd, rcp = R(st, 0), R(st, 1), R(st, 2)
            var = t[1]
            a0, a1, b0, b1 = t[4], t[5], t[2], t[3]
            p('v_add_f32 %s, %s, %s' % (a0, Xs[0], Xs[1])); p('v_add_f32 %s, %s, %s' % (a1, Xs[2], Xs[3]))
            for i in range(4, 16, 2):
                p('v_add_f32 %s, %s, %s' % (a0, a0, Xs[i])); p('v_add_f32 %s, %s, %s' % (a1, a1, Xs[i + 1]))
            p('v_add_f32 %s, %s, %s' % (mean, a0, a1))
            for n in (1, 2, 4, 8): ror_add(p, mean, n)
            xor16_add(p, mean, a0); xor32_add(p, mean, a0)
            p('v_mul_f32 %s, 0x%x, %s' % (mean, f2u(1.0 / 1024), mean))
            p('v_sub_f32 %s, %s, %s' % (b0, Xs[0], mean)); p('v_mul_f32 %s, %s, %s' % (a0, b0, b0))
            p('v_sub_f32 %s, %s, %s' % (b1, Xs[1], mean)); p('v_mul_f32 %s, %s, %s' % (a1, b1, b1))
            for i in range(2, 16, 2):
                p('v_sub_f32 %s, %s, %s' % (b0, Xs[i], mean)); p('v_sub_f32 %s, %s, %s' % (b1, Xs[i + 1], mean))
                p('v_fmac_f32 %s, %s, %s' % (a0, b0, b0)); p('v_fmac_f32 %s, %s, %s' % (a1, b1, b1))
            p('v_add_f32 %s, %s, %s' % (var, a0, a1))
            for n in (1, 2, 4, 8): ror_add(p, var, n)
            xor16_add(p, var, a0); xor32_add(p, var, a0)
            p('v_mul_f32 %s, 0x%x, %s' % (var, f2u(1.0 / 1024), var))
            ln_scalars(p, mean, var, sd, rcp)
            p('s_lshl_b32 s16, s3, 4'); p('s_add_u32 s16, s16, %d' % (FS + 2048 + 16))
            p('v_mov_b32 %s, s16' % t[3])
            p('ds_write_b128 %s, %s' % (t[3], R(st, 0, 4)))
        Xs = [R(X, i) for i in range(16)]
        if XFIRST:
            part_stats(); part_gemv()
        else:
            part_gemv(); part_stats()
        p.stamp(3)
        if A_:
            def ntest(q):
                q('v_cmp_eq_u32 vcc, 0, %s' % R(vn))
                q('s_cmp_eq_u32 s3, 0'); q('s_cselect_b64 s[62:63], -1, 0'); q('s_and_b64 vcc, vcc, s[62:63]')
            rare_poll(p, 'n', ntest, lambda q: q('buffer_load_dword %s, %s, %s, 0 offen sc1' % (R(vn), R(vz, 0), sr(S_B))), flush=False)
            p('v_mov_b32 %s, %d' % (t[3], FS + 2048))
            p('s_cmp_eq_u32 s3, 0'); p('s_cselect_b64 exec, 1, 0')
            p('ds_write_b32 %s, %s' % (t[3], R(vn)))
            p('s_mov_b64 exec, -1')
        p.stamp(1)
        p('v_mov_b32 %s, %d' % (t[3], FS + 2048))
        p('v_and_b32 %s, 31, %s' % (t[1], lane)); p('v_lshlrev_b32 %s, 3, %s' % (t[2], t[1])); p('v_add_u32 %s, %d, %s' % (t[2], FS, t[2]))
        p('v_lshlrev_b32 %s, 4, %s' % (t[1], t[1]))
        p('s_waitcnt lgkmcnt(0)')
        p('s_barrier')
        p('ds_read_b32 %s, %s' % (R(vn), t[3]))
        for i in range(8): p('ds_read_b64 %s, %s offset:%d' % (R(rd[i], 0, 2), t[2], i * 256))
        p('v_readfirstlane_b32 s28, %s' % R(vn))
        p('v_and_b32 %s, 7, %s' % (t[4], lane)); p('v_lshlrev_b32 %s, 4, %s' % (t[4], t[4]))
        p('v_add_u32 %s, %d, %s' % (t[5], FS + 2048 + 16, t[4]))
        p('ds_read_b128 %s, %s' % (R(st, 0, 4), t[5]))
        p('v_mov_b32 %s, s28' % R(st, 3))
        p('s_lshl_b32 s16, s2, 7'); p('s_add_u32 s16, s16, 0x%x' % WS_STG)
        p('s_cmp_eq_u32 s3, 0'); p('s_cselect_b32 s16, s16, 0x%x' % OOB)
        p('s_mov_b64 exec, 0xff')
        p('buffer_store_dwordx4 %s, %s, %s, s16 offen sc1' % (R(st, 0, 4), t[4], sr(S_WS)))
        p('s_mov_b64 exec, -1')
        for s_ in (4, 2, 1):
            for i in range(s_): p('v_pk_add_f32 %s, %s, %s' % (R(rd[i], 0, 2), R(rd[i], 0, 2), R(rd[s_ + i], 0, 2)))
        p('v_mov_b32 %s, s28' % R(rd[0], 2)); p('v_mov_b32 %s, s28' % R(rd[0], 3))
        p('s_lshl_b32 s16, s14, 3'); p('s_add_u32 s16, s16, s15'); p('s_lshl_b32 s16, s16, 9'); p('s_add_u32 s16, s16, 0x%x' % WS_MODG)
        p('s_cmp_eq_u32 s3, 0'); p('s_cselect_b32 s16, s16, 0x%x' % OOB)
        p('s_mov_b64 exec, 0xffffffff')
        p('buffer_store_dwordx4 %s, %s, %s, s16 offen sc1' % (R(rd[0], 0, 4), t[1], sr(S_WS)))
        p('s_mov_b64 exec, -1')
        p.stamp(2)
        p('s_lshr_b32 s16, s3, 2'); p('s_lshl_b32 s16, s16, 4'); p('s_add_u32 s16, s16, s31'); p('s_lshl_b32 s16, s16, 12')
        p('s_and_b32 s17, s3, 3'); p('s_lshl_b32 s17, s17, 7'); p('s_add_u32 s16, s16, s17'); p('s_add_u32 s16, s16, 0x%x' % WS_MODG)
        p('v_lshrrev_b32 %s, 3, %s' % (R(vg), lane)); p('v_lshlrev_b32 %s, 9, %s' % (R(vg), R(vg)))
        p('v_and_b32 %s, 7, %s' % (t[0], lane)); p('v_lshl_add_u32 %s, %s, 4, %s' % (R(vg), t[0], R(vg)))
        p('v_and_b32 %s, 15, %s' % (R(vs), lane)); p('v_lshlrev_b32 %s, 4, %s' % (R(vs), R(vs)))
        p('s_lshl_b32 s17, s29, 8'); p('s_add_u32 s17, s17, 0x%x' % WS_STG)
        for i in range(2):
            for d in range(4): unpack(p, R(X, 8 * i + 2 * d), R(X, 8 * i + 2 * d + 1), R(xt[i], d))
        def gl():
            p('buffer_load_dwordx4 %s, %s, %s, s16 offen sc1' % (R(g4, 0, 4), R(vg), sr(S_WS)))
            p('buffer_load_dwordx4 %s, %s, %s, s17 offen sc1' % (R(s4, 0, 4), R(vs), sr(S_WS)))
        def gt():
            p('v_cmp_ne_u32 vcc, s28, %s' % R(g4, 2))
            p('v_cmp_ne_u32 s[62:63], s28, %s' % R(g4, 3))
            p('s_or_b64 vcc, vcc, s[62:63]')
            p('v_cmp_ne_u32 s[62:63], s28, %s' % R(s4, 3))
            p('s_or_b64 vcc, vcc, s[62:63]')
        backoff(p, 'g')
        SZB = dict(wg=7340032, wu=7340032, wd=7340032, wo=8388608, wq=8388608, out=4194304, wmod=1024 * 6144 * 2, wr=2048)
        if WARM: warm(p, role, R(va), R(vb), sub(rd[6], 0))
        poll(p, 'g', gl, gt)
        p.stamp(4)
        m0_, m1_ = R(g4, 0), R(g4, 1)
        ror_add(p, m0_, 8); ror_add(p, m1_, 8)
        xor16_add(p, m0_, t[1]); xor16_add(p, m1_, t[2]); xor32_add(p, m0_, t[1]); xor32_add(p, m1_, t[2])
        rb2(p, m0_, m1_, t[1])
        p('v_add_f32 %s, %s, %s' % (m0_, '0' if A_ else '1.0', m0_)); p('v_add_f32 %s, %s, %s' % (m1_, '0' if A_ else '1.0', m1_))
        if not A_: rb2(p, m0_, m1_, t[1])
        p('s_lshl_b32 s16, s3, 6'); p('s_add_u32 s16, s16, %d' % MT)
        p('v_lshl_add_u32 %s, %s, 3, s16' % (t[0], t[0]))
        p('ds_write_b64 %s, %s' % (t[0], R(g4, 0, 2)))
        p('v_lshrrev_b32 %s, 4, %s' % (t[1], lane)); p('v_lshlrev_b32 %s, 5, %s' % (t[1], t[1])); p('v_add_u32 %s, %d, %s' % (t[1], MT, t[1]))
        mean, sd, rcp = R(s4, 0), R(s4, 1), R(s4, 2)
        for i in range(16): p('v_sub_f32 %s, %s, %s' % (Xs[i], Xs[i], mean))
        for i in range(0, 16, 2): rb2(p, Xs[i], Xs[i + 1], t[2 + (i // 2) % 2])
        for i in range(16): p('v_mul_f32 %s, %s, %s' % (Xs[i], Xs[i], rcp))
        for i in range(0, 16, 2): rb2(p, Xs[i], Xs[i + 1], t[2 + (i // 2) % 2])
        p('s_lshl_b32 s16, s29, 15'); p('s_lshl_b32 s17, s31, 11'); p('s_add_u32 s16, s16, s17')
        if WS_H: p('s_add_u32 s16, s16, 0x%x' % WS_H)
        p('s_waitcnt lgkmcnt(0)')
        p('s_barrier')
        if not A_:
            p('s_cmp_lt_u32 s24, 8')
            p('s_cbranch_scc1 %s_kvS' % name)
            p.alt_begin()
            for d in range(4):
                p('v_lshl_or_b32 %s, %s, 16, %s' % (R(kv, d), R(kv, 4 + 2 * d + 1), R(kv, 4 + 2 * d)))
            for e in range(8): p('v_and_b32 %s, 0x7fff, %s' % (R(kv, 4 + e), R(kv, 4 + e)))
            p('v_max3_u32 %s, %s, %s, %s' % (R(kv, 4), R(kv, 4), R(kv, 5), R(kv, 6))); p('v_max3_u32 %s, %s, %s, %s' % (R(kv, 7), R(kv, 7), R(kv, 8), R(kv, 9)))
            p('v_max3_u32 %s, %s, %s, %s' % (R(kv, 4), R(kv, 4), R(kv, 10), R(kv, 11))); p('v_max_u32 %s, %s, %s' % (R(kv, 4), R(kv, 4), R(kv, 7)))
            p('v_cmp_le_u32 vcc, 0x4980, %s' % R(kv, 4))
            p('v_mov_b32 %s, s28' % R(kv, 5))
            p('s_mov_b32 s26, 0x%x' % WS_BIGV)
            p('s_and_saveexec_b64 s[62:63], vcc')
            p('buffer_store_dword %s, %s, %s, s26 offen sc1' % (R(kv, 5), R(vz, 0), sr(S_WS)))
            p('s_mov_b64 exec, s[62:63]')
            p.alt_next()
            p.alt_end()
            p.label('%s_kvS' % name)
            p('buffer_store_dwordx4 %s, %s, %s, s21 offen sc1' % (R(kv, 0, 4), l16, sr(S_WS)))
        for hh in range(2):
            for k in range(2):
                p('ds_read_b128 %s, %s offset:%d' % (R(rd[4 * hh + k], 0, 4), t[1], 256 + hh * 128 + k * 16))
                p('ds_read_b128 %s, %s offset:%d' % (R(rd[4 * hh + 2 + k], 0, 4), t[1], hh * 128 + k * 16))
        for hh in range(2):
            for k in range(2):
                for e in range(0, 4, 2):
                    p('v_pk_mul_f32 %s, %s, %s' % (R(X, 8 * hh + 4 * k + e, 2), R(X, 8 * hh + 4 * k + e, 2), R(rd[4 * hh + k], e, 2)))
            for e in range(0, 8, 2): rb2(p, Xs[8 * hh + e], Xs[8 * hh + e + 1], t[2 + (e // 2) % 2])
            for k in range(2):
                for e in range(0, 4, 2):
                    p('v_pk_add_f32 %s, %s, %s' % (R(X, 8 * hh + 4 * k + e, 2), R(X, 8 * hh + 4 * k + e, 2), R(rd[4 * hh + 2 + k], e, 2)))
            o = xr[hh]
            for d in range(4): p('v_cvt_pk_bf16_f32 %s, %s, %s' % (R(o, d), Xs[8 * hh + 2 * d], Xs[8 * hh + 2 * d + 1]))
            p('buffer_store_dwordx4 %s, %s, %s, s16 offen offset:%d sc1' % (R(o, 0, 4), l16, sr(S_WS), hh * 1024), 'hst')
        if ROT:
            p('s_bfe_u32 s25, s2, 0x30003'); p('s_mul_i32 s25, s25, %d' % ROT[0]); p('s_lshr_b32 s26, s2, 6'); p('s_mul_i32 s26, s26, %d' % ROT[1])
            p('s_add_u32 s25, s25, s26'); p('s_and_b32 s25, s25, 15'); p('s_lshl_b32 s26, s25, 11'); p('s_lshl_b32 s25, s25, 19')
        p('s_lshl_b32 s19, s3, 16'); p('s_lshl_b32 s20, s3, 11'); p('s_lshl_b32 s16, s12, 8')
        p('s_add_u32 s4, s%d, s16' % PTR['wq']); p('s_addc_u32 s5, s%d, 0' % (PTR['wq'] + 1))
        p('s_sub_u32 s6, 0x800000, s16'); p('s_mov_b32 s7, 0x20000')
        if not WQ_LATE:
            if WQ_BAR: p('s_barrier')
            for s_ in range(NWQ - 1):
                for it, tag in dma_wq(s_): p(it, tag)
        p('v_mov_b32 %s, s28' % R(vn))
        p('s_lshl_b32 s16, s29, 4'); p('s_add_u32 s16, s16, s31'); p('s_lshl_b32 s16, s16, 2'); p('s_add_u32 s16, s16, 0x%x' % WS_HFLAG)
        p('v_and_b32 %s, 31, %s' % (t[0], lane)); p('v_lshlrev_b32 %s, 2, %s' % (t[0], t[0]))
        p('s_lshl_b32 s17, s13, 3'); p('s_add_u32 s17, s17, s3'); p('s_lshl_b32 s17, s17, 7'); p('s_add_u32 s17, s17, 0x%x' % WS_HFLAG)
        p.wait_tag('hst')
        p('s_mov_b64 exec, 1')
        p('buffer_store_dword %s, %s, %s, s16 offen sc1' % (R(vn), R(vz, 0), sr(S_WS)))
        p('s_mov_b64 exec, -1')
        if WQ_LATE:
            for s_ in range(NWQ - 1):
                for it, tag in dma_wq(s_): p(it, tag)
        if M_ST[0] < 0:
            p('s_mov_b32 s62, s17')
            m_setup(p)
            p('s_mov_b32 s17, s62')
            for c_ in range(2):
                for it, tag in dma_chunk(c_): p(it, tag)
        p.stamp(5)
        for b_, n_, lo_, hi_ in (SPF or {}).get('w2', []): spf(p, b_, n_, lo_, hi_)
        if H_WAITDMA: p('s_waitcnt vmcnt(0)')
        backoff(p, 'h')
        poll(p, 'h', lambda: p('buffer_load_dword %s, %s, %s, s17 offen sc1' % (t[1], t[0], sr(S_WS))),
             lambda: p('v_cmp_ne_u32 vcc, s28, %s' % t[1]))
        p.stamp(6)

    acc1 = [sub(PR, 16 * i) for i in range(4)]
    H = [[(sub(PR, 64 + 16 * b + 4 * k) if b < 4 else sub(SS, 16 * (b - 4) + 4 * k)) for k in range(4)] for b in range(NH)]
    def hload(s, k):
        return [(('s_add_u32 s23, s26, 0x%x\ns_and_b32 s23, s23, 0x7fff\ns_or_b32 s23, s23, 0x%x' % (s * 2048, WS_H + (k % 2) * 32768)) if ROT else ('s_mov_b32 s23, 0x%x' % (WS_H + s * 2048 + (k % 2) * 32768)), None),
                ('buffer_load_dwordx4 %s, %s, %s, s23 offen offset:%d%s' % (R(H[s % NH][k], 0, 4), R(v_hoff), sr(S_WS), (k // 2) * 1024, hsc), None)]
    def trread(dst, base, n, va, vb):
        a = vb if n % 2 else va
        off = base + (n // 2) * 256 + (n % 2) * 32
        return ['ds_read_b64_tr_b16 %s, %s offset:%d' % (R(dst, 0, 2), a, off),
                'ds_read_b64_tr_b16 %s, %s offset:%d' % (R(dst, 2, 2), a, off + 1024)]

    def phase1(role):
        A_ = role == 'A'
        def trr(f):
            s, T, n = f // 16, (f // 8) % 2, f % 8
            a = wq_slot(s) + T * 8192
            if a < 0x10000: return trread(fr[f % NRA], a, n, R(v_tr), R(v_tr2))
            return trread(fr[f % NRA], a - 0x20000, n, R(v_xv), R(v_wq2))
        if NWQ > 4:
            p('v_add_u32 %s, 0x20000, %s' % (R(v_xv), R(v_tr))); p('v_add_u32 %s, 0x20000, %s' % (R(v_wq2), R(v_tr2)))
        for s in range(NH - 1):
            for k in range(4):
                for it, tag in hload(s, k): p(it, tag)
        p('s_lshr_b32 s21, s12, 3'); p('s_lshl_b32 s21, s21, 17'); p('s_add_u32 s21, s21, s20'); p('s_add_u32 s21, s21, 0x%x' % WS_KF)
        p.wait_tag('wq0')
        if prioB and not A_: p('s_setprio 1')
        p('s_barrier')
        for f in range(D1):
            for x in trr(f): p(x)
        sc = Sched()
        hnext = [4 * (NH - 1)]
        for f in range(256):
            s, T, n = f // 16, (f // 8) % 2, f % 8
            for qs in range(2):
                d = R(acc1[n // 2], (n % 2) * 8 + qs * 4, 4)
                idx = sc.mfma('v_mfma_f32_16x16x32_bf16 %s, %s, %s, %s' % (d, R(fr[f % NRA], 0, 4), R(H[s % NH][T * 2 + qs], 0, 4), '0' if f < 8 else d))
            g = f + D1
            if g < 256:
                if g % 16 == 0:
                    sn = g // 16
                    sc.place(idx, lambda q, sn=sn: q.wait_tag('wq%d' % sn))
                    sc.place(idx, 's_barrier')
                    nxt = dma_wq(sn + NWQ - 2) if sn + NWQ - 2 < 16 else []
                    for i in range(len(nxt) // 3):
                        for it, tag in nxt[3 * i:3 * i + 3]: sc.place(idx + (1 + 4 * i) * 2 + (0 if A_ else P1B[0]), it, tag)
                tr = trr(g)
                if g % 16 != 0:
                    sc.place(idx - 1, tr[0]); sc.place(idx, tr[1])
                else:
                    for x in tr: sc.place(idx, x)
            if f % 4 in ((1, 3) if A_ or not P1B[1] else (0, 2)):
                tq = (f // 4) % 4
                lim = min(64, (s + NH - 1) * 4 + tq + 1)
                if hnext[0] < lim:
                    for it, tag in hload(hnext[0] // 4, hnext[0] % 4): sc.place(idx, it, tag)
                    hnext[0] += 1
        if True:
            fl4 = x4
            def kvf_load(q):
                q('buffer_load_dwordx4 %s, %s, %s, s18 offen sc1' % (R(fl4, 0, 4), t[5], sr(S_WS)))
            def kvf_issue(q):
                q('v_lshrrev_b32 %s, 4, %s' % (t[5], lane)); q('v_lshlrev_b32 %s, 9, %s' % (t[5], t[5]))
                q('v_and_b32 %s, 15, %s' % (t[4], lane)); q('v_lshl_add_u32 %s, %s, 4, %s' % (t[5], t[4], t[5]))
                q('s_lshr_b32 s18, s12, 3'); q('s_lshl_b32 s18, s18, 11'); q('s_add_u32 s18, s18, 0x%x' % (WS_HFLAG + 256))
                kvf_load(q)
            def kvf_test(q):
                a_, b_ = R(v_kvoff), t[4]
                q('v_xor_b32 %s, s28, %s' % (a_, R(fl4, 0))); q('v_xor_b32 %s, s28, %s' % (b_, R(fl4, 1)))
                q('v_or_b32 %s, %s, %s' % (a_, a_, b_))
                q('v_xor_b32 %s, s28, %s' % (b_, R(fl4, 2))); q('v_or_b32 %s, %s, %s' % (a_, a_, b_))
                q('v_xor_b32 %s, s28, %s' % (b_, R(fl4, 3))); q('v_or_b32 %s, %s, %s' % (a_, a_, b_))
                q('v_cmp_ne_u32 vcc, 0, %s' % a_)
            sc.place(2 * (16 * 6 + 6), kvf_issue)
            sc.place(2 * (16 * 9 + 6), lambda q: rare_poll(q, 'kv', kvf_test, kvf_load))
            sc.place(2 * (16 * 9 + 6) + 1, lambda q: (q('v_mov_b32 %s, 0' % t[4]), q('s_mov_b32 s16, 0x%x' % WS_BIGV), q('buffer_load_dword %s, %s, %s, s16 offen sc1' % (R(v_kvoff), t[4], sr(S_WS)))))
            if not MPV:
                if M_ST[0] >= 0: sc.place(2 * (16 * (M_ST[0] - 1) + 10), m_setup)
                sc.place(2 * (16 * 13 + 2), m_cs)
            for c in range(0 if M_ST[0] >= 0 else 2, 4):
                ch = dma_chunk(c)
                for i in range(2):
                    for it, tag in ch[3 * i:3 * i + 3]: sc.place(2 * (16 * (M_ST[c] if (c < 2 and not MPV) else 10 + c) + 8 + 2 * i), it, tag)
        if CPF1 and A_:
            va_, vb_, vd_ = R(SS, 0), R(SS, 1), R(SS, 2)
            def cp_setup(q):
                q('v_and_b32 %s, 31, %s' % (vd_, lane))
                q('v_lshrrev_b32 %s, 1, %s' % (va_, vd_)); q('s_lshr_b32 s16, s2, 6'); q('s_lshl_b32 s16, s16, 4'); q('v_add_u32 %s, s16, %s' % (va_, va_))
                q('v_lshlrev_b32 %s, 13, %s' % (va_, va_)); q('v_and_b32 %s, 1, %s' % (vb_, vd_)); q('v_lshl_add_u32 %s, %s, 7, %s' % (va_, vb_, va_))
                q('v_lshrrev_b32 %s, 4, %s' % (vb_, vd_)); q('s_bfe_u32 s16, s2, 0x30003'); q('s_lshl_b32 s16, s16, 1'); q('s_lshl_b32 s17, s13, 4'); q('s_add_u32 s16, s16, s17')
                q('v_add_u32 %s, s16, %s' % (vb_, vb_)); q('v_lshlrev_b32 %s, 15, %s' % (vb_, vb_))
                q('v_and_b32 %s, 15, %s' % (vd_, vd_)); q('v_lshl_add_u32 %s, %s, 7, %s' % (vb_, vd_, vb_))
            sc.place(0, cp_setup)
            for s_ in range(16 - CPF1[0]):
                st_ = s_ + CPF1[0]
                def one(q, st_=st_):
                    q('s_mov_b32 s16, 0x%x' % (st_ * 64 * 8192)); q('s_cmp_eq_u32 s3, %d' % CPF1[1]); q('s_cselect_b32 s16, s16, 0x%x' % OOB)
                    q('s_mov_b32 s17, 0x%x' % (WS_H + st_ * 2048)); q('s_cselect_b32 s17, s17, 0x%x' % OOB)
                    q('s_mov_b64 exec, 0xffffffff')
                    q('buffer_load_dword %s, %s, %s, s16 offen' % (vd_, va_, sr(S_A)), 'pf')
                    q('buffer_load_dword %s, %s, %s, s17 offen' % (vd_, vb_, sr(S_WS)), 'pf')
                    q('s_mov_b64 exec, -1')
                sc.place(32 * s_ + CPF1[2], one)
        if p1pf:
            SZ = dict(wg=7340032, wu=7340032, wd=7340032, wo=8388608, wmod=1024 * 6144 * 2)
            rounds = [(b, k) for b in p1pf['bufs'] for k in range(4)]
            mine = [(i, r) for i, r in enumerate(rounds) if (i % 2 == 0) == A_]
            def pf_setup(q):
                q('v_lshlrev_b32 %s, 7, %s' % (t[1], lane)); q('s_lshl_b32 s16, s2, 13'); q('v_add_u32 %s, s16, %s' % (t[3], t[1]))
            sc.place(1, pf_setup)
            lo, hi = p1pf['at']
            for i, (b, k) in mine:
                at = lo + (i * (hi - lo)) // len(rounds)
                wv = (i // 2) % 4 + (0 if A_ else 4)
                def one(q, b=b, k=k, wv=wv):
                    mk_srd(q, S_B, b, SZ[b])
                    if b == 'wmod':
                        q('s_add_u32 s16, s2, %d' % (k * 256)); q('s_mul_i32 s16, s16, 12288'); q('s_add_u32 s16, s16, 4096')
                    else:
                        q('s_mov_b32 s16, 0x%x' % (k * 0x200000))
                    q('s_cmp_eq_u32 s3, %d' % wv); q('s_cselect_b32 s16, s16, 0x%x' % OOB)
                    q('buffer_load_dword %s, %s, %s, s16 offen' % (t[2], t[1] if b == 'wmod' else t[3], sr(S_B)), 'pf')
                sc.place(at, one)
        if p1st:
            for i_, s_ in enumerate(p1st): sc.place(32 * s_, lambda q, i_=i_: q.stamp(60 + i_))
        sc.emit(p)
        p.stamp(7)
        if not MPV:
            p.wait_tag('ch0'); p.wait_tag('ch1')
            p('s_barrier')
            for c_ in (4, 5):
                for it, tag in dma_chunk(c_): p(it, tag)
            m_reads(p)
        p('s_mov_b32 s23, 0x%x' % f2u((128 ** -0.5) * LOG2E))
        for dt in range(1 if QCONV else 4):
            for o in qconv(dt): p(o)
            if dt == 0 and not MPV: m_mfma(p)
        p.stamp(8)
    def qconv(dt):
        ops = []
        for r in range(0, 16, 2):
            ta, tb = R(acc1[dt], r), R(acc1[dt], r + 1)
            ops.append('v_mul_f32 %s, s23, %s' % (ta, ta)); ops.append('v_mul_f32 %s, s23, %s' % (tb, tb))
        for r in range(0, 16, 2):
            ops.append('v_cvt_pk_bf16_f32 %s, %s, %s' % (R(qf[((r // 4) % 2) * 4 + dt], (r // 8) * 2 + (r % 4) // 2), R(acc1[dt], r), R(acc1[dt], r + 1)))
        return ops

    v_l16b = v_tr; v_l16c = v_tr2
    P = [[sub(PR, 8 * j + 4 * qs) for qs in range(2)] for j in range(16)]
    def lds_read(dst, addr):
        if addr >= 0x20000: return 'ds_read_b128 %s, %s offset:%d' % (R(dst, 0, 4), R(v_l16c), addr - 0x20000)
        return 'ds_read_b128 %s, %s offset:%d' % (R(dst, 0, 4), R(v_l16b), addr - 0x10000)
    def softmax_ops(j, sub_, first, s=None, lsum=None):
        lsum = (not LMF) if lsum is None else lsum
        ops = []
        s = S[j % 2] if s is None else s
        for r in range(0, 16, 2):
            a, qs = r // 8, (r // 4) % 2
            if sub_:
                ops.append('v_add_f32 %s, %s, %s' % (R(s, r), R(s, r), R(negm, 4 * qs)))
                ops.append('v_add_f32 %s, %s, %s' % (R(s, r + 1), R(s, r + 1), R(negm, 4 * qs)))
            ops.append('v_exp_f32 %s, %s' % (R(s, r), R(s, r)))
            ops.append('v_exp_f32 %s, %s' % (R(s, r + 1), R(s, r + 1)))
            if not lsum: pass
            elif first and r % 4 == 0 and a == 0:
                ops.append('v_add_f32 %s, %s, %s' % (R(v_l[qs]), R(s, r), R(s, r + 1)))
            else:
                ops.append('v_add_f32 %s, %s, %s' % (R(v_l[qs]), R(v_l[qs]), R(s, r)))
                ops.append('v_add_f32 %s, %s, %s' % (R(v_l[qs]), R(v_l[qs]), R(s, r + 1)))
            ops.append('v_cvt_pk_bf16_f32 %s, %s, %s' % (R(P[j][qs], a * 2 + (r % 4) // 2), R(s, r), R(s, r + 1)))
        if not lsum and SMPIPE:
            cv = [o for o in ops if o.startswith('v_cvt')]; rest = [o for o in ops if not o.startswith('v_cvt')]
            per = len(rest) // 8
            out = []
            for k in range(8):
                out += rest[k * per:(k + 1) * per]
                if k > 0: out.append(cv[k - 1])
            out.append(cv[7])
            return out
        return ops
    def xl_red(m, m2, op):
        return ['v_mov_b32 %s, %s' % (m2, m), 'v_permlane16_swap_b32 %s, %s' % (m, m2), '%s %s, %s, %s' % (op, m, m, m2),
                'v_mov_b32 %s, %s' % (m2, m), 'v_permlane32_swap_b32 %s, %s' % (m, m2), '%s %s, %s, %s' % (op, m, m, m2)]
    def finish_max(ms, m2s):
        ops = []
        a, b = xl_red(ms[0], m2s[0], 'v_max_f32'), xl_red(ms[1], m2s[1], 'v_max_f32')
        for x, y in zip(a, b): ops += [x, y]
        for r in range(8): ops.append('v_sub_f32 %s, 0, %s' % (R(negm, r), ms[r // 4]))
        return ops
    def mf_k(sreg, f, frag, cz):
        T, a = f // 2, f % 2
        out = []
        for qs in range(2):
            d = R(sreg, (a * 2 + qs) * 4, 4)
            c = d if T > 0 else ('0' if cz else R(negm, 4 * qs, 4))
            out.append('v_mfma_f32_16x16x32_bf16 %s, %s, %s, %s' % (d, frag, R(qf[qs * 4 + T], 0, 4), c))
        return out
    accO = [sub(SS, 0), sub(SS, 16)]
    stg = [sub(negm, 0), sub(negm, 4)]
    WD = [sub(QF, 4 * i) for i in range(8)]

    def lmf(j, qs):
        d = R(SP, 4 * qs, 4)
        return 'v_mfma_f32_16x16x32_bf16 %s, %s, %s, %s' % (d, R(x4, 0, 4), R(P[j][qs], 0, 4), '0' if j == 0 else d)
    def phase2(role):
        A_ = role == 'A'
        p('v_add_u32 %s, 0x10000, %s' % (R(v_l16b), l16))
        p('v_add_u32 %s, 0x20000, %s' % (R(v_l16c), l16))
        seq = [(j, f) for j in range(16) for f in range(8)]
        sc = Sched()
        for n, (j, f) in enumerate(seq):
            for m_ in mf_k(S[j % 2], f, R(fr[n % NRA], 0, 4), j < 2): sc.mfma(m_)
        def place_reads(sc, nfr, addr_of, chunk_of, n0):
            last = None
            for n in range(nfr):
                at = 2 * (n - D2) + 1 if n - D2 >= 0 else -1
                c = chunk_of(n)
                if c != last:
                    last = c
                    for cw in ([12, 13, 14] if (MPV and c == 14) else [c]): sc.place(at, lambda q, cw=cw: q.wait_tag('ch%d' % cw))
                    sc.place(at, 's_barrier')
                    nx = sum((dma_chunk(ci) for ci in ISSUE[c]), [])
                    for q_ in range(len(nx) // 3):
                        for it, tag in nx[3 * q_:3 * q_ + 3]: sc.place(max(at, 0) + 2 + (0 if A_ else P2B) + (8 if len(nx) == 6 else 4) * q_, it, tag)
                sc.place(at, lds_read(fr[(n0 + n) % NRA], addr_of(n)))
        place_reads(sc, 128, lambda n: slot(KCH[n // 16]) + (n % 16) * 1024, lambda n: KCH[n // 16], 0)
        if QCONV:
            for dt in range(1, 4):
                ops = qconv(dt)
                for i, o in enumerate(ops): sc.place(4 * (dt - 1) + (i * 4) // len(ops), o)
        ms, m2s = [t[0], t[1]], [t[2], t[3]]
        ops = []
        for qs in range(2):
            rg = [R(S[0], (a * 2 + qs) * 4 + k) for a in range(2) for k in range(4)]
            ops.append('v_max3_f32 %s, %s, %s, %s' % (ms[qs], rg[0], rg[1], rg[2]))
            for i in range(3, 7, 2): ops.append('v_max3_f32 %s, %s, %s, %s' % (ms[qs], ms[qs], rg[i], rg[i + 1]))
            ops.append('v_max_f32 %s, %s, %s' % (ms[qs], ms[qs], rg[7]))
        for i, o in enumerate(ops): sc.place(22 + i, o)
        ops = []
        for qs in range(2):
            rg = [R(S[1], (a * 2 + qs) * 4 + k) for a in range(2) for k in range(4)]
            for i in range(0, 8, 2): ops.append('v_max3_f32 %s, %s, %s, %s' % (ms[qs], ms[qs], rg[i], rg[i + 1]))
        ops += finish_max(ms, m2s) + softmax_ops(0, True, True)
        for o in ops: sc.place(31, o)
        for j in range(1, 15):
            lo, hi = 16 * (j + 1) + 1, 16 * (j + 2) - 1
            ops = softmax_ops(j, j < 2, False)
            nm = hi - lo + 1
            for i, o in enumerate(ops): sc.place(lo + min(nm - 1, (i * nm) // len(ops)), o)
        if not A_:
            def gu_setup(q):
                mk_srd(q, S_B, 'wg', 7340032); mk_srd(q, S_C, 'wu', 7340032)
                q('s_cmp_lt_u32 s2, 224'); q('s_cselect_b32 s66, 7340032, 0'); q('s_cselect_b32 s70, 7340032, 0')
                q('s_and_b32 s29, s2, 7'); q('s_mul_i32 s29, s29, 28'); q('s_lshr_b32 s16, s2, 3'); q('s_add_u32 s29, s29, s16')
                q('s_sub_u32 s16, s3, 4')
                q('v_lshrrev_b32 %s, 3, %s' % (t[4], lane)); q('v_lshlrev_b32 %s, 3, %s' % (t[4], t[4]))
                q('s_lshl_b32 s17, s16, 6'); q('v_add_u32 %s, s17, %s' % (t[4], t[4]))
                q('s_mov_b32 s17, 7168'); q('v_mul_lo_u32 %s, s17, %s' % (R(v_xv), t[4]))
                q('v_and_b32 %s, 7, %s' % (t[4], lane)); q('v_lshl_add_u32 %s, %s, 4, %s' % (R(v_xv), t[4], R(v_xv)))
                q('s_and_b32 s17, s29, 3'); q('s_mul_i32 s18, s17, %d' % (256 * 7168))
                q('s_lshr_b32 s17, s29, 2'); q('s_lshl_b32 s17, s17, 7'); q('s_add_u32 s18, s18, s17')
                q('s_lshl_b32 s15, s16, 13')
            sc.place(1, gu_setup)
            if wopf is not None:
                def wo_pf(q):
                    mk_srd(q, S_D, 'wo', 0x800000)
                    q('v_lshlrev_b32 %s, 7, %s' % (t[5], lane))
                    q('s_lshl_b32 s16, s2, 2'); q('s_add_u32 s16, s16, s3'); q('s_sub_u32 s16, s16, 4'); q('s_lshl_b32 s16, s16, 13')
                    q('buffer_load_dword %s, %s, %s, s16 offen' % (R(v_hoff), t[5], sr(S_D)), 'pf')
                sc.place(wopf, wo_pf)
            for b_, at_ in (XPF or {}).items():
                def xpf(q, b_=b_):
                    mk_srd(q, S_D, b_, 7340032)
                    q('s_cmp_lt_u32 s2, 224'); q('s_cselect_b32 s74, 7340032, 0')
                    if b_ == 'wd':
                        q('v_lshlrev_b32 %s, 7, %s' % (t[5], lane))
                        q('s_lshl_b32 s16, s29, 2'); q('s_add_u32 s16, s16, s3'); q('s_sub_u32 s16, s16, 4'); q('s_lshl_b32 s16, s16, 13')
                    else:
                        q('s_sub_u32 s16, s3, 4'); q('s_lshl_b32 s16, s16, 6'); q('v_add_u32 %s, s16, %s' % (t[5], lane))
                        q('s_mov_b32 s16, 7168'); q('v_mul_lo_u32 %s, s16, %s' % (t[5], t[5]))
                        q('s_and_b32 s17, s29, 3'); q('s_mul_i32 s16, s17, %d' % (256 * 7168))
                        q('s_lshr_b32 s17, s29, 2'); q('s_lshl_b32 s17, s17, 7'); q('s_add_u32 s16, s16, s17')
                    q('buffer_load_dword %s, %s, %s, s16 offen' % (R(v_hoff), t[5], sr(S_D)), 'pf')
                sc.place(at_, xpf)
            items = [(m, i) for i in range(8) for m in range(2)]
            lo, hi = 2 * (16 * gu_at[0] + 2), 2 * (16 * gu_at[1])
            if GU3_AT is not None: items = [x for x in items if x[0] == 0]
            for k, (m, i) in enumerate(items if do_gu else []):
                at = lo + (k * (hi - lo)) // len(items)
                sc.place(at, 's_add_u32 s22, s18, %d' % (i * 7168))
                sc.place(at, 's_add_u32 m0, s15, %d' % (m * 32768 + i * 1024))
                sc.place(at, 'buffer_load_dwordx4 %s, %s, s22 offen lds' % (R(v_xv), sr(S_B if m == 0 else S_C)), 'gu')
        else:
            sc.place(1, lambda q: (q('s_and_b32 s29, s2, 7'), q('s_mul_i32 s29, s29, 28'), q('s_lshr_b32 s16, s2, 3'), q('s_add_u32 s29, s29, s16')))
        def wo_setup(q):
            mk_srd(q, S_A, 'wo', 0x800000)
            q('v_bfe_u32 %s, %s, 2, 2' % (t[4], lane))
            q('v_lshlrev_b32 %s, 13, %s' % (t[5], t[4])); q('v_sub_u32 %s, %s, %s' % (R(v_wqoff), R(v_wqoff), t[5]))
            q('v_lshl_add_u32 %s, %s, 11, %s' % (R(v_wqoff), t[4], R(v_wqoff)))
            if BIG:
                q('s_lshr_b32 s16, s12, 3'); q('s_lshl_b32 s24, s16, 21')
                q('s_and_b32 s16, s12, 7'); q('s_lshl_b32 s16, s16, 8'); q('s_add_u32 s24, s24, s16')
            else:
                q('s_and_b32 s16, s2, 1'); q('s_lshl_b32 s24, s16, 22')
                q('s_lshr_b32 s16, s2, 5'); q('s_lshl_b32 s16, s16, 8'); q('s_add_u32 s24, s24, s16')
            q('s_lshl_b32 s16, s3, 14'); q('s_add_u32 s24, s24, s16')
            if ROT3:
                q('s_lshr_b32 s62, s2, 5'); q('s_mul_i32 s62, s62, %d' % ROT3[0]); q('s_bfe_u32 s16, s2, 0x20003'); q('s_mul_i32 s16, s16, %d' % ROT3[1])
                q('s_add_u32 s62, s62, s16'); q('s_and_b32 s62, s62, 7'); q('s_lshl_b32 s62, s62, 13')
            if not A_: q('s_add_u32 s24, s24, %d' % (96 * 2048))
        sc.place(16 * 2 + 5, wo_setup)
        if MPV: sc.place(2, m_setup)
        else:
            sc.place(0, m_store)
            assert (MP_AT[0] + 2 * D2 - 1) % 32 in range(1, 8)
            sc.place(MP_AT[0] - 8, lambda q: q.wait_tag('mst'))
            if A_: sc.place(MP_AT[0], mc_pub)
        if LMF == 'qk':
            sc.place(-1, lambda q: [q('v_mov_b32 %s, 0x3f803f80' % R(x4, k)) for k in range(4)])
            for j in range(14):
                for qs in range(2): sc.place(16 * (j + 2) + 1 + 2 * qs, lmf(j, qs))
        if qkst:
            for i_, s_ in enumerate(qkst): sc.place(s_, lambda q, i_=i_: q.stamp(40 + i_))
        sc.emit(p)
        p.stamp(9)
        pv = [(T, hh, jj, b) for T in range(4) for hh in range(2) for jj in range(8) for b in range(2)]
        sc = Sched()
        for n, (T, hh, jj, b) in enumerate(pv):
            for qs in range(2):
                d = R(accO[T % 2], b * 8 + qs * 4, 4)
                sc.mfma('v_mfma_f32_16x16x32_bf16 %s, %s, %s, %s' % (d, R(fr[(128 + n) % NRA], 0, 4), R(P[8 * hh + jj][qs], 0, 4), '0' if (hh == 0 and jj == 0) else d))
        place_reads(sc, 128, lambda n: slot(VCH[n // 16]) + (n % 16) * 1024, lambda n: VCH[n // 16], 128)
        l0, l1 = R(v_l[0]), R(v_l[1])
        def mid(q):
            if LMF == 'qk':
                for qs in range(2): q(lmf(14, qs))
            for o in softmax_ops(15, False, False): q(o)
            if LMF == 'qk':
                for qs in range(2): q(lmf(15, qs))
                guard(q)
                return
            if LMF:
                for k in range(4): q('v_mov_b32 %s, 0x3f803f80' % R(x4, k))
                return
            for x, y in zip(xl_red(l0, t[0], 'v_add_f32'), xl_red(l1, t[2], 'v_add_f32')): q(x); q(y)
            guard(q)
        def guard(q):
            if LMF == 'qk':
                q('v_mov_b32 %s, %s' % (l0, R(SP, 0))); q('v_mov_b32 %s, %s' % (l1, R(SP, 4)))
            elif LMF:
                q('v_mov_b32 %s, %s' % (l0, R(negm, 0))); q('v_mov_b32 %s, %s' % (l1, R(negm, 4)))
            q('v_max_f32 %s, %s, %s' % (t[1], l0, l1))
            q('v_readfirstlane_b32 s17, %s' % R(v_kvoff))
            q('s_cmp_eq_u32 s17, s28'); q('s_cselect_b32 s16, 0, 0x%x' % f2u(2.0 ** 100))
            q('v_cmp_ngt_f32 vcc, s16, %s' % t[1])
            q('v_cmp_u_f32 s[76:77], %s, %s' % (l0, l1))
            q('s_or_b64 vcc, vcc, s[76:77]')
            lab = '%s_fix%s' % (name, role)
            q('s_cbranch_vccnz %s' % lab)
            q.label(lab + 'b')
            q('v_rcp_f32 %s, %s' % (l0, l0)); q('v_rcp_f32 %s, %s' % (l1, l1))
            q('s_lshl_b32 s25, s13, 3'); q('s_add_u32 s25, s25, s3'); q('s_lshl_b32 s25, s25, 18')
            q('s_lshl_b32 s26, s12, 12'); q('s_add_u32 s25, s25, s26'); q('s_add_u32 s25, s25, 0x%x' % WS_O)
            q('s_add_u32 s26, s25, 131072')
            q('s_lshl_b32 s63, s13, 3'); q('s_add_u32 s63, s63, s3'); q('s_lshl_b32 s63, s63, 5'); q('s_add_u32 s63, s63, s12'); q('s_lshl_b32 s63, s63, 2')
            z = Prog()
            z.label(lab); z.flush()
            z('s_lshr_b32 s16, s12, 3'); z('s_lshl_b32 s16, s16, 17'); z('s_add_u32 s16, s16, 0x%x' % WS_KF)
            z('v_add_u32 %s, s16, %s' % (R(v_kvoff), l16))
            z('v_mov_b32 %s, 0xff7fffff' % ms[0]); z('v_mov_b32 %s, 0xff7fffff' % ms[1])
            KF = [sub(S[1], 4 * i) for i in range(4)]
            def ktile(z, j, cz):
                for hf in range(2):
                    z('s_mov_b32 s17, 0x%x' % (j * 8192 + hf * 4096))
                    for i in range(4): z('buffer_load_dwordx4 %s, %s, %s, s17 offen offset:%d' % (R(KF[i], 0, 4), R(v_kvoff), sr(S_WS), i * 1024))
                    for i in range(4):
                        for m_ in mf_k(S[0], hf * 4 + i, R(KF[i], 0, 4), cz): z(m_)
            z('s_mov_b32 s16, 0')
            z.loop_begin(); z.label(lab + 'm')
            for hf in range(2):
                z('s_add_u32 s17, s16, %d' % (hf * 4096))
                for i in range(4): z('buffer_load_dwordx4 %s, %s, %s, s17 offen offset:%d' % (R(KF[i], 0, 4), R(v_kvoff), sr(S_WS), i * 1024))
                for i in range(4):
                    for m_ in mf_k(S[0], hf * 4 + i, R(KF[i], 0, 4), True): z(m_)
            for r in range(0, 16, 2): z('v_max3_f32 %s, %s, %s, %s' % (ms[(r // 4) % 2], ms[(r // 4) % 2], R(S[0], r), R(S[0], r + 1)))
            z('s_add_u32 s16, s16, 8192'); z('s_cmp_lt_u32 s16, 0x20000'); z('s_cbranch_scc1 %sm' % lab)
            z.loop_end()
            for o in finish_max(ms, m2s): z(o)
            for j in range(16):
                ktile(z, j, False)
                for o in softmax_ops(j, False, j == 0, S[0], lsum=True): z(o)
            for x, y in zip(xl_red(l0, t[0], 'v_add_f32'), xl_red(l1, t[2], 'v_add_f32')): z(x); z(y)
            if LMF is True:
                z.flush()
                z('s_lshr_b32 s16, s12, 3'); z('s_lshl_b32 s16, s16, 17'); z('s_add_u32 s16, s16, 0x%x' % WS_VF)
                z('v_add_u32 %s, s16, %s' % (R(v_kvoff), l16))
                for j2 in range(0, 16, 2):
                    z('s_mov_b32 s17, 0x%x' % (j2 * 2048))
                    for i in range(4): z('buffer_load_dwordx4 %s, %s, %s, s17 offen offset:%d' % (R(KF[i], 0, 4), R(v_kvoff), sr(S_WS), i * 1024))
                    for i in range(4):
                        j_, b_ = j2 + i // 2, i % 2
                        for qs in range(2):
                            d = R(accO[0], b_ * 8 + qs * 4, 4)
                            z('v_mfma_f32_16x16x32_bf16 %s, %s, %s, %s' % (d, R(KF[i], 0, 4), R(P[j_][qs], 0, 4), '0' if j_ == 0 else d))
            z.flush()
            z('s_branch %sb' % lab)
            rare.append(z)
        sc.place(-1, mid)
        if LMF is True:
            for j in range(16):
                for qs in range(2):
                    d = R(negm, 4 * qs, 4)
                    sc.place(4 * j + 1 + 2 * qs, 'v_mfma_f32_16x16x32_bf16 %s, %s, %s, %s' % (d, R(x4, 0, 4), R(P[j][qs], 0, 4), '0' if j == 0 else d))
            sc.place(63, guard)
        def ostore(T):
            ops = []
            a = accO[T % 2]
            for qs in range(2):
                for b in range(2):
                    for k in range(4): ops.append(('v_mul_f32 %s, %s, %s' % (R(a, b * 8 + qs * 4 + k), R(a, b * 8 + qs * 4 + k), R(v_l[qs])), None))
                for b in range(2):
                    for k in range(0, 4, 2):
                        ops.append(('v_cvt_pk_bf16_f32 %s, %s, %s' % (R(stg[qs], b * 2 + k // 2), R(a, b * 8 + qs * 4 + k), R(a, b * 8 + qs * 4 + k + 1)), None))
                ops.append(('buffer_store_dwordx4 %s, %s, %s, %s offen offset:%d sc1' % (R(stg[qs], 0, 4), l16, sr(S_WS), 's26' if qs else 's25', T * 1024), 'ost%d' % T))
            return ops
        for T in range(3):
            ops = ostore(T)
            lo = 64 * (T + 1) + 3
            for i, (o, tag) in enumerate(ops):
                if T == 2 and OST2_LATE and o.startswith('buffer_store'): sc.place(252 + (tag is None) + (i > 13), o, tag)
                else: sc.place(lo + OST_SP * i, o, tag)
        if not A_ and do_wd and WD_AT >= 0: sc.place(WD_AT, wd_loads)
        if not A_ and wopf_pv is not None:
            def wo_pf2(q):
                mk_srd(q, S_D, 'wo', 0x800000)
                q('v_lshlrev_b32 %s, 7, %s' % (t[5], lane))
                q('s_lshl_b32 s16, s2, 2'); q('s_add_u32 s16, s16, s3'); q('s_sub_u32 s16, s16, 4'); q('s_lshl_b32 s16, s16, 13')
                q('buffer_load_dword %s, %s, %s, s16 offen' % (t[4], t[5], sr(S_D)), 'pf')
            sc.place(wopf_pv, wo_pf2)
        if MPV:
            sc.place(0, lambda q: mk_srd(q, S_E, 'wmod', 1024 * 6144 * 2))
            sc.place(96, m_cs)
            sc.place(124, m_reads)
            sc.place(134, m_mfma)
            sc.place(146, m_store)
            sc.place(212, lambda q: q.wait_tag('mst'))
            if A_: sc.place(219, mc_pub)
        elif A_: mc_final(sc)
        for T_, at_ in enumerate(OF_AT):
            if at_ < 1000: sc.place(at_, lambda q, T_=T_: oflag(q, T_))
        ks_ = 0 if A_ else 1
        sc.place(P3_AT[0], lambda q: p3_setup(q, ks_))
        sc.place(P3_AT[1], lambda q: rare_poll(q, 'o', lambda z: z('v_cmp_ne_u32 vcc, s28, %s' % of2), of_load))
        k_ = 0
        if BIG:
            for s_ in range(NO - 1):
                for j in range(4):
                    for l_ in oload_big(s_, j): sc.place(P3_AT[1] + 1 + (29 * k_) // (4 * (NO - 1)), l_)
                    k_ += 1
        else:
            for s_ in range(PO - 1):
                for qs in range(2):
                    for l_ in oload(s_, qs): sc.place(P3_AT[1] + 1 + (29 * k_) // (2 * (PO - 1)), l_)
                    k_ += 1
        for i_, o_ in enumerate(p3_addr(0 if BIG else ks_)): sc.place(248 + i_ // 2, o_)
        if pvst:
            for i_, s_ in enumerate(pvst): sc.place(s_, lambda q, i_=i_: q.stamp(50 + i_))
        sc.emit(p)
        for o, tag in ostore(3): p(o, tag)
        p.stamp(10)

    gu_defer = []
    last_ostore = [None]
    def oflag(q, T):
        q.wait_tag('ost%d' % T)
        q('s_add_u32 s16, s63, 0x%x' % (WS_OFLAG + T * 8192))
        a_, b_ = (R(x4, 2), R(x4, 3)) if T > 0 else (R(v_hoff), R(v_kvoff))
        q('v_mov_b32 %s, s28' % a_); q('v_mov_b32 %s, 0' % b_)
        q('s_mov_b64 exec, 1')
        q('buffer_store_dword %s, %s, %s, s16 offen sc1' % (a_, b_, sr(S_WS)))
        q('s_mov_b64 exec, -1')
    def gu_late(sc, role='B'):
        def setup(q):
            mk_srd(q, S_D, 'wu', 7340032)
            q('s_cmp_lt_u32 s2, 224'); q('s_cselect_b32 s74, 7340032, 0')
            q('s_and_b32 s16, s3, 3')
            q('v_lshrrev_b32 %s, 3, %s' % (t[4], lane)); q('v_lshlrev_b32 %s, 3, %s' % (t[4], t[4]))
            q('s_lshl_b32 s17, s16, 6'); q('v_add_u32 %s, s17, %s' % (t[4], t[4]))
            q('s_mov_b32 s17, 7168'); q('v_mul_lo_u32 %s, s17, %s' % (t[5], t[4]))
            q('v_and_b32 %s, 7, %s' % (t[4], lane)); q('v_lshl_add_u32 %s, %s, 4, %s' % (t[5], t[4], t[5]))
            q('s_and_b32 s17, s29, 3'); q('s_mul_i32 s18, s17, %d' % (256 * 7168))
            q('s_lshr_b32 s17, s29, 2'); q('s_lshl_b32 s17, s17, 7'); q('s_add_u32 s18, s18, s17')
            q('s_lshl_b32 s16, s16, 13')
            for i in (range(8) if not GU3_SPLIT else (range(4) if role == 'A' else range(4, 8))):
                q('s_add_u32 s22, s18, %d' % (i * 7168))
                q('s_add_u32 m0, s16, %d' % (32768 + i * 1024))
                q('buffer_load_dwordx4 %s, %s, s22 offen lds' % (t[5], sr(S_D)), 'gu')
        sc.place(GU3_AT, setup)
    def wd_loads(q, rows=(0, 1, 2, 3)):
        mk_srd(q, S_D, 'wd', 7340032)
        q('s_cmp_lt_u32 s2, 224'); q('s_cselect_b32 s74, 7340032, 0')
        q('s_lshl_b32 s17, s29, 4'); q('s_sub_u32 s16, s3, 4'); q('s_lshl_b32 s16, s16, 2'); q('s_add_u32 s16, s16, s17'); q('s_lshl_b32 s16, s16, 11')
        for i in rows:
            q('s_add_u32 s17, s16, %d' % (i * 2048))
            for hf in range(2):
                q('buffer_load_dwordx4 %s, %s, %s, s17 offen offset:%d' % (R(WD[2 * i + hf], 0, 4), l16, sr(S_D), hf * 1024))

    XROW = negm; MOD = SS; GA = SP
    MSB, MC1, MGB, MWR = 0, 8, 16, 24
    MODL = RING1 + 16384
    def phase3(role):
        A_ = role == 'A'; ks = 0 if A_ else 1
        if BIG: p('s_lshr_b32 s15, s12, 3')
        else: p('s_and_b32 s15, s2, 1')
        FPS = 16 if BIG else 8
        NST = 256 // FPS
        def rd(f):
            s, n = f // FPS, f % 8
            k = (W0 + s) % NSL
            eo = ((f // 8) % 2) * 8192 if BIG else 0
            if k < 4: return trread(fr[f % NRA], k * 16384 + eo, n, R(v_tr), R(v_tr2))
            return trread(fr[f % NRA], (k - 4) * 16384 + eo, n, R(v_hoff), R(v_kvoff))
        sc = Sched()
        NF = 256
        for T_, at_ in enumerate(OF_AT):
            if at_ >= 1000: sc.place(at_ - 1000, lambda q, T_=T_: oflag(q, T_))
        if MPV and A_: mc_final(sc, (0, MP3_AT[0], MP3_AT[1]), MP3_AT[2])
        for f in range(NF):
            s, n = f // FPS, f % 8
            for qs in range(2):
                d = R(acc3[n][qs], 0, 4)
                ob = OBB[s % NO][((f // 8) % 2) * 2 + qs] if BIG else OB[s % PO][qs]
                sc.mfma('v_mfma_f32_16x16x32_bf16 %s, %s, %s, %s' % (d, R(fr[f % NRA], 0, 4), R(ob, 0, 4), '0' if f < 8 else d))
        for f in range(NF):
            at = 2 * (f - D3) + 1 if f - D3 >= 0 else -1
            s, n = f // FPS, f % FPS
            if n == 0:
                c = W0 + s
                sc.place(at, lambda q, c=c: q.wait_tag('ch%d' % c))
                sc.place(at, 's_barrier')
                if c + 4 < W0 + NST:
                    nx = dma_chunk(c + 4)
                    for q_ in range(2):
                        for it, tag in nx[3 * q_:3 * q_ + 3]: sc.place(max(at, 0) + (P3D if A_ or not P3B else P3B[0])[0] + (P3D if A_ or not P3B else P3B[0])[1] * q_, it, tag)
            tr = rd(f)
            if at > 0 and n != 0:
                sc.place(at - 1, tr[0]); sc.place(at, tr[1])
            else:
                for x in tr: sc.place(at, x)
        for s in range(NST if BIG else 0):
            sn = s + NO - 1
            if sn < NST:
                for j in range(4):
                    for l_ in oload_big(sn, j): sc.place(32 * s + (2 if A_ else 6) + 8 * j, l_)
        for s in range(0 if BIG else 32):
            sn = s + PO - 1
            if sn < 32:
                for qs in range(2):
                    for l_ in oload(sn, qs): sc.place(16 * s + (P3O if A_ or not P3B else P3B[1])[0] + (P3O if A_ or not P3B else P3B[1])[1] * qs, l_)
        fl = sub(SS, 0)
        def mfl(q):
            q('s_mov_b32 s16, 0x%x' % WS_MFLAG)
            q('buffer_load_dwordx4 %s, %s, %s, s16 offen sc1' % (R(fl, 0, 4), l16, sr(S_WS)))
        def mft(q):
            q('v_xor_b32 %s, s28, %s' % (t[0], R(fl, 0))); q('v_xor_b32 %s, s28, %s' % (t[1], R(fl, 1)))
            q('v_xor_b32 %s, s28, %s' % (t[2], R(fl, 2))); q('v_xor_b32 %s, s28, %s' % (t[3], R(fl, 3)))
            q('v_or3_b32 %s, %s, %s, %s' % (t[0], t[0], t[1], t[2])); q('v_or_b32 %s, %s, %s' % (t[0], t[0], t[3]))
            q('v_cmp_ne_u32 vcc, 0, %s' % t[0])
        for T_ in range(1, 4):
            chk = (32 * (4 * T_ - (NO - 1))) if BIG else 16 * (8 * T_ - (PO - 1))
            sc.place(chk - 23, lambda q: (q('s_add_u32 s19, s19, 8192'), of_load(q)))
            sc.place(chk - 1, lambda q: rare_poll(q, 'o2', lambda z: z('v_cmp_ne_u32 vcc, s28, %s' % of2), of_load))
        sc.place(16 * mf_at[0] + 5, mfl)
        if mc_comp: sc.place(16 * mf_at[1] + 5, lambda q: rare_poll(q, 'mf', mft, mfl))
        def side(q):
            q('v_lshrrev_b32 %s, 4, %s' % (t[0], lane)); q('v_lshlrev_b32 %s, 3, %s' % (t[0], t[0]))
            q('s_lshl_b32 s16, s31, 8'); q('s_add_u32 s16, s16, 0x%x' % (WS_MODB + (0 if BIG else ks * 128)))
            for i in range(8 if BIG else 4):
                q('buffer_load_dwordx2 %s, %s, %s, s16 offen offset:%d sc1' % (R(GAB if BIG else GA, 2 * i, 2), t[0], sr(S_WS), i * 32))
        sc.place(16 * mf_at[2] + 5, side)
        def side2(q):
            mk_srd(q, S_B, 'wr', 2048); mk_srd(q, S_E, 'x', 4194304); mk_srd(q, S_C, 'out', 4194304)
            q('s_lshl_b32 s14, s31, %d' % (2 if BIG else 1)); q('s_add_u32 s14, s14, s15'); q('s_lshl_b32 s14, s14, 3'); q('s_add_u32 s14, s14, s3')
            q('s_lshl_b32 s16, s30, %d' % (8 if BIG else 7)); q('s_add_u32 s14, s14, s16')
            q('s_lshl_b32 s16, s14, 11')
            for hf in range(2): q('buffer_load_dwordx4 %s, %s, %s, s16 offen offset:%d' % (R(XROW, 4 * hf, 4), l16, sr(S_E), hf * 1024))
            if MODL_ON:
                q('s_lshl_b32 s16, s3, 10'); q('s_add_u32 m0, s16, %d' % MODL)
                if role == 'A':
                    q('s_add_u32 s16, s16, 0x%x' % (WS_MODB + 2048))
                    q('buffer_load_dwordx4 %s, %s, s16 offen sc1 lds' % (l16, sr(S_WS)), 'ml')
                else:
                    q('s_add_u32 s17, s16, 0x%x' % (WS_MODB + 2048)); q('s_cmp_lt_u32 s3, 6'); q('s_cselect_b32 s17, s17, 0x%x' % OOB)
                    q('s_sub_u32 s23, s16, 6144'); q('s_cmp_ge_u32 s3, 6'); q('s_cselect_b32 s23, s23, 0x%x' % OOB)
                    q('s_cbranch_scc1 %s_mlw' % name)
                    q.alt_begin()
                    q('buffer_load_dwordx4 %s, %s, s17 offen sc1 lds' % (l16, sr(S_WS)), 'ml')
                    q('s_branch %s_mlj' % name)
                    q.alt_next()
                    q.label('%s_mlw' % name)
                    q('buffer_load_dwordx4 %s, %s, s23 offen lds' % (l16, sr(S_B)), 'ml')
                    q.alt_end()
                    q.label('%s_mlj' % name)
            else:
                for off, mo in ((2048, MSB), (4096, MC1), (6144, MGB)):
                    q('s_mov_b32 s16, 0x%x' % (WS_MODB + off))
                    for hf in range(2): q('buffer_load_dwordx4 %s, %s, %s, s16 offen offset:%d%s' % (R(MOD, mo + 4 * hf, 4), l16, sr(S_WS), hf * 1024, modsc))
                for hf in range(2): q('buffer_load_dwordx4 %s, %s, %s, 0 offen offset:%d' % (R(MOD, MWR + 4 * hf, 4), l16, sr(S_B), hf * 1024))
        if mf_at[3] < 32: sc.place(16 * mf_at[3] + 5, side2)
        if not A_ and WD_AT <= -1000: sc.place(-WD_AT - 1000, wd_loads)
        if (GU3_SPLIT or role == GU3_ROLE) and GU3_AT is not None and GU3_AT >= 0:
            gu_late(sc, role)
        if p3st:
            for i_, s_ in enumerate(p3st): sc.place(int(16 * s_), lambda q, i_=i_: q.stamp(30 + i_))
        sc.emit(p)
        p.stamp(13)
        if BIG:
            gaf = sub(PR, 0)
            for i in range(8):
                for d in range(2): unpack(p, R(gaf, 4 * i + 2 * d), R(gaf, 4 * i + 2 * d + 1), R(GAB, 2 * i + d))
            p('v_and_b32 %s, 15, %s' % (t[2], lane)); p('v_lshlrev_b32 %s, 6, %s' % (t[2], t[2]))
            p('v_lshrrev_b32 %s, 4, %s' % (t[3], lane))
            p('v_and_b32 %s, 1, %s' % (t[4], t[3])); p('v_lshl_add_u32 %s, %s, 5, %s' % (t[2], t[4], t[2]))
            p('v_lshrrev_b32 %s, 1, %s' % (t[3], t[3])); p('v_lshl_add_u32 %s, %s, 4, %s' % (t[2], t[3], t[2]))
            p('s_lshl_b32 s18, s30, 3'); p('s_add_u32 s18, s18, s3'); p('s_lshl_b32 s18, s18, 16')
            p('s_lshl_b32 s19, s15, 22'); p('s_add_u32 s18, s18, s19'); p('s_lshl_b32 s19, s31, 12'); p('s_add_u32 s18, s18, s19')
            p('s_add_u32 s18, s18, 0x%x' % WS_AP); p('s_add_u32 s19, s18, 32768')
            p.stamp(22)
            st6 = [sub(FR, 4 * i) for i in range(6)]
            k_ = 0
            for mm in range(4):
                for qs in range(2):
                    q4 = st6[k_ % 6]; k_ += 1
                    for b in range(2):
                        i = 2 * mm + b
                        a = acc3[i][qs]
                        for k in range(0, 4, 2): p('v_pk_mul_f32 %s, %s, %s' % (R(a, k, 2), R(a, k, 2), R(gaf, 4 * i + k, 2)))
                        for k in range(0, 4, 2): p('v_cvt_pk_bf16_f32 %s, %s, %s' % (R(q4, 2 * b + k // 2), R(a, k), R(a, k + 1)))
                    for d in range(2): p('v_permlane16_swap_b32 %s, %s' % (R(q4, d), R(q4, 2 + d)))
                    p('buffer_store_dwordx4 %s, %s, %s, %s offen offset:%d sc1' % (R(q4, 0, 4), t[2], sr(S_WS), 's19' if qs else 's18', mm * 1024), 'ap')
            side2(p)
            p.stamp(14)
            return
        XB = RING1 + 2 * 16384
        p('s_lshl_b32 s16, s3, 13'); p('s_xor_b32 s17, s16, 0x8000'); p('s_add_u32 s16, s16, 0x%x' % XB); p('s_add_u32 s17, s17, 0x%x' % XB)
        p('v_add_u32 %s, s16, %s' % (t[0], l16))
        p('s_mov_b32 s16, s17')
        p('v_add_u32 %s, s16, %s' % (t[1], l16))
        o_ = 4 * (1 - ks)
        for i in range(4):
            for qs in range(2): p('ds_write_b128 %s, %s offset:%d' % (t[0], R(acc3[o_ + i][qs], 0, 4), (i * 2 + qs) * 1024))
        gaf = sub(PR, 0)
        for i in range(4):
            for d in range(2): unpack(p, R(gaf, 4 * i + 2 * d), R(gaf, 4 * i + 2 * d + 1), R(GA, 2 * i + d))
        p('v_and_b32 %s, 15, %s' % (t[2], lane)); p('v_lshlrev_b32 %s, 6, %s' % (t[2], t[2]))
        p('v_lshrrev_b32 %s, 4, %s' % (t[3], lane))
        p('v_and_b32 %s, 1, %s' % (t[4], t[3])); p('v_lshl_add_u32 %s, %s, 5, %s' % (t[2], t[4], t[2]))
        p('v_lshrrev_b32 %s, 1, %s' % (t[3], t[3])); p('v_lshl_add_u32 %s, %s, 4, %s' % (t[2], t[3], t[2]))
        p('s_and_b32 s17, s3, 3'); p('s_lshl_b32 s18, s30, 2'); p('s_add_u32 s18, s18, s17'); p('s_lshl_b32 s18, s18, 16')
        p('s_lshl_b32 s19, s15, 22'); p('s_add_u32 s18, s18, s19'); p('s_lshl_b32 s19, s31, 12'); p('s_add_u32 s18, s18, s19')
        p('s_add_u32 s18, s18, 0x%x' % (WS_AP + ks * 2048)); p('s_add_u32 s19, s18, 32768')
        p('s_waitcnt lgkmcnt(0)')
        p('s_barrier')
        p.stamp(22)
        rx = [sub(PR, 16 + 4 * i) for i in range(8)]
        for i in range(4):
            for qs in range(2): p('ds_read_b128 %s, %s offset:%d' % (R(rx[i * 2 + qs], 0, 4), t[1], (i * 2 + qs) * 1024))
        st4 = [sub(FR, 4 * i) for i in range(4)]
        for mm in range(2):
            for qs in range(2):
                q4 = st4[mm * 2 + qs]
                for b in range(2):
                    i = 2 * mm + b
                    a = acc3[4 * ks + i][qs]
                    for k in range(0, 4, 2): p('v_pk_add_f32 %s, %s, %s' % (R(a, k, 2), R(a, k, 2), R(rx[i * 2 + qs], k, 2)))
                    for k in range(0, 4, 2): p('v_pk_mul_f32 %s, %s, %s' % (R(a, k, 2), R(a, k, 2), R(gaf, 4 * i + k, 2)))
                    for k in range(0, 4, 2): p('v_cvt_pk_bf16_f32 %s, %s, %s' % (R(q4, 2 * b + k // 2), R(a, k), R(a, k + 1)))
                for d in range(2): p('v_permlane16_swap_b32 %s, %s' % (R(q4, d), R(q4, 2 + d)))
                p('buffer_store_dwordx4 %s, %s, %s, %s offen offset:%d sc1' % (R(q4, 0, 4), t[2], sr(S_WS), 's19' if qs else 's18', mm * 1024), 'ap')
        if mf_at[3] >= 32: side2(p)
        if not A_ and GU3_AT == -1:
            class _S:
                def place(self, at, f): f(p)
            gu_late(_S())
        if not A_ and WD_AT == -1: wd_loads(p)
        if not A_ and WD_AT == -3: wd_loads(p, (0, 1))
        p.stamp(14)

    def tail(role):
        A_ = role == 'A'; ks = 0 if A_ else 1
        T = RA('v', PR[1], PR[1] + 128)
        gr = T.alloc(4, 4); xf = T.alloc(16, 4); raw = T.alloc(16, 4); uf = T.alloc(16, 4)
        u8 = T.alloc(8, 4); acc = T.alloc(8, 4); fin = T.alloc(8, 4); sl = T.alloc(8, 4)
        w = [sub(uf, 4 * i) for i in range(4)] + [T.alloc(4, 4) for _ in range(4)]
        LB = RING1
        L_KEY = LB; L_BEST = LB + 256; L_XS = LB + 1024; L_X2 = LB + 3072; L_GS = LB + 5120; L_YS = LB + 8192; L_RS = LB + 24576 + 1024
        a0, a1, b0, b1 = R(u8, 0), R(u8, 1), R(u8, 2), R(u8, 3)
        a01, b01 = R(u8, 0, 2), R(u8, 2, 2)
        b0v = R(fin, 2)
        usum = R(fin, 3)
        def products():
            p('v_mov_b32 %s, 0' % b0v); p('v_mov_b32 %s, 0' % usum)
            for d in range(8):
                unpack(p, a0, a1, R(MOD, MC1 + d)); unpack(p, b0, b1, R(MOD, MWR + d))
                p('v_pk_mul_f32 %s, %s, %s' % (R(uf, 2 * d, 2), a01, b01))
                unpack(p, a0, a1, R(MOD, MSB + d))
                p('v_fmac_f32 %s, %s, %s' % (b0v, a0, b0)); p('v_fmac_f32 %s, %s, %s' % (b0v, a1, b1))
                p('v_add_f32 %s, %s, %s' % (usum, usum, R(uf, 2 * d))); p('v_add_f32 %s, %s, %s' % (usum, usum, R(uf, 2 * d + 1)))
            for n in (1, 2, 4, 8):
                ror_add(p, b0v, n); ror_add(p, usum, n)
            xor16_add(p, b0v, a0); xor16_add(p, usum, a1); xor32_add(p, b0v, a0); xor32_add(p, usum, a1)
            for d in range(8): unpack(p, R(xf, 2 * d), R(xf, 2 * d + 1), R(XROW, d))
        if not MODL_ON: products()
        if AP_WG:
            p('s_lshl_b32 s16, s30, 5'); p('s_lshl_b32 s17, s31, %d' % (2 if BIG else 1)); p('s_add_u32 s16, s16, s17'); p('s_add_u32 s16, s16, s15')
            p('s_lshl_b32 s16, s16, 2'); p('s_add_u32 s16, s16, 0x%x' % WS_AFLAG)
            p('s_cmp_eq_u32 s3, 0'); p('s_cselect_b32 s16, s16, 0x%x' % OOB)
        else:
            p('s_and_b32 s17, s3, 3'); p('s_lshl_b32 s16, s30, 2'); p('s_add_u32 s16, s16, s17'); p('s_lshl_b32 s16, s16, 5')
            p('s_lshl_b32 s17, s31, 2'); p('s_add_u32 s16, s16, s17'); p('s_lshl_b32 s17, s15, 1'); p('s_add_u32 s16, s16, s17')
            p('s_add_u32 s16, s16, %d' % ks); p('s_lshl_b32 s16, s16, 2'); p('s_add_u32 s16, s16, 0x%x' % WS_AFLAG)
        p('v_mov_b32 %s, s28' % t[0]); p('v_mov_b32 %s, 0' % t[1])
        p('s_lshr_b32 s18, s14, 4'); p('s_lshl_b32 s18, s18, 15'); p('s_and_b32 s19, s14, 15'); p('s_lshl_b32 s19, s19, 6')
        p('s_add_u32 s18, s18, s19'); p('s_add_u32 s18, s18, 0x%x' % WS_AP); p('s_add_u32 s19, s18, 16384')
        p('v_lshrrev_b32 %s, 2, %s' % (t[2], lane)); p('v_lshlrev_b32 %s, 10, %s' % (t[2], t[2]))
        p('v_and_b32 %s, 3, %s' % (t[3], lane)); p('v_lshl_add_u32 %s, %s, 4, %s' % (t[2], t[3], t[2]))
        p('v_add_u32 %s, 0x400000, %s' % (t[3], t[2]))
        if AP_WG:
            p('s_lshl_b32 s25, s30, 7'); p('s_add_u32 s25, s25, 0x%x' % WS_AFLAG)
            p('v_and_b32 %s, %d, %s' % (t[4], 31 if BIG else 15, lane)); p('v_lshlrev_b32 %s, 2, %s' % (t[4], t[4]))
        else:
            p('s_lshr_b32 s25, s14, 5'); p('s_lshl_b32 s25, s25, 7'); p('s_add_u32 s25, s25, 0x%x' % WS_AFLAG)
            p('v_and_b32 %s, 31, %s' % (t[4], lane)); p('v_lshlrev_b32 %s, 2, %s' % (t[4], t[4]))
        p.wait_tag('ap')
        if MODL_ON: p.wait_tag('ml')
        if AP_WG: p('s_barrier')
        p('s_mov_b64 exec, 1')
        p('buffer_store_dword %s, %s, %s, s16 offen sc1' % (t[0], t[1], sr(S_WS)))
        p('s_mov_b64 exec, -1')
        if MODL_ON:
            assert AP_WG
            p('v_add_u32 %s, %d, %s' % (t[0], MODL, l16))
            for k in range(8): p('ds_read_b128 %s, %s offset:%d' % (R(MOD, 4 * k, 4), t[0], k * 1024))
            products()
        p.stamp(15)
        backoff(p, 'a')
        poll(p, 'a', lambda: p('buffer_load_dword %s, %s, %s, s25 offen sc1' % (a0, t[4], sr(S_WS))),
             lambda: p('v_cmp_ne_u32 vcc, s28, %s' % a0))
        for hf in range(2):
            p('buffer_load_dwordx4 %s, %s, %s, s%d offen sc1' % (R(raw, 4 * hf, 4), t[2], sr(S_WS), 18 + hf))
            p('buffer_load_dwordx4 %s, %s, %s, s%d offen sc1' % (R(raw, 8 + 4 * hf, 4), t[3], sr(S_WS), 18 + hf))
        raw2 = w[4]
        if BIG:
            p('s_add_u32 s20, s18, 0x800000'); p('s_add_u32 s21, s19, 0x800000')
            for hf in range(2):
                p('buffer_load_dwordx4 %s, %s, %s, s%d offen sc1' % (R(raw2, 4 * hf, 4), t[2], sr(S_WS), 20 + hf))
                p('buffer_load_dwordx4 %s, %s, %s, s%d offen sc1' % (R(raw2, 8 + 4 * hf, 4), t[3], sr(S_WS), 20 + hf))
        p('v_lshlrev_b32 %s, 2, %s' % (t[5], tid))
        p('s_mov_b32 s16, 0x%x' % (WS_MODB + 2048))
        p('buffer_load_dword %s, %s, %s, s16 offen sc1' % (R(sl, 6), t[5], sr(S_WS)))
        p('buffer_load_dword %s, %s, %s, s16 offen offset:2048 sc1' % (R(sl, 4), t[5], sr(S_WS)))
        p.stamp(16)
        for d in range(8):
            k = (d % 2) * 4
            A0, A1, B0_, B1 = [R(u8, k + i) for i in range(4)]
            unpack(p, A0, A1, R(raw, d)); unpack(p, B0_, B1, R(raw, 8 + d))
            p('v_pk_add_f32 %s, %s, %s' % (R(u8, k, 2), R(u8, k, 2), R(u8, k + 2, 2)))
            if BIG:
                C0, C1 = R(acc, k), R(acc, k + 1)
                unpack(p, B0_, B1, R(raw2, d)); unpack(p, C0, C1, R(raw2, 8 + d))
                p('v_pk_add_f32 %s, %s, %s' % (R(u8, k + 2, 2), R(u8, k + 2, 2), R(acc, k, 2)))
                p('v_pk_add_f32 %s, %s, %s' % (R(u8, k, 2), R(u8, k, 2), R(u8, k + 2, 2)))
            p('v_pk_add_f32 %s, %s, %s' % (R(xf, 2 * d, 2), R(xf, 2 * d, 2), R(u8, k, 2)))
            rb2(p, R(xf, 2 * d), R(xf, 2 * d + 1), t[d % 2])
        mean, var, s3v, rcp = R(fin, 4), R(fin, 5), R(fin, 6), R(fin, 7)
        c01 = R(u8, 4, 2)
        p('v_pk_add_f32 %s, %s, %s' % (a01, R(xf, 0, 2), R(xf, 2, 2)))
        p('v_pk_mul_f32 %s, %s, %s' % (b01, R(xf, 0, 2), R(xf, 0, 2)))
        p('v_pk_mul_f32 %s, %s, %s' % (c01, R(xf, 0, 2), R(uf, 0, 2)))
        p('v_pk_fma_f32 %s, %s, %s, %s' % (b01, R(xf, 2, 2), R(xf, 2, 2), b01))
        p('v_pk_fma_f32 %s, %s, %s, %s' % (c01, R(xf, 2, 2), R(uf, 2, 2), c01))
        for d in range(2, 8):
            p('v_pk_add_f32 %s, %s, %s' % (a01, a01, R(xf, 2 * d, 2)))
            p('v_pk_fma_f32 %s, %s, %s, %s' % (b01, R(xf, 2 * d, 2), R(xf, 2 * d, 2), b01))
            p('v_pk_fma_f32 %s, %s, %s, %s' % (c01, R(xf, 2 * d, 2), R(uf, 2 * d, 2), c01))
        p('v_add_f32 %s, %s, %s' % (mean, a0, a1)); p('v_add_f32 %s, %s, %s' % (var, b0, b1)); p('v_add_f32 %s, %s, %s' % (s3v, R(u8, 4), R(u8, 5)))
        for n in (1, 2, 4, 8):
            ror_add(p, mean, n); ror_add(p, var, n); ror_add(p, s3v, n)
        xor16_add(p, mean, a0); xor16_add(p, var, a1); xor16_add(p, s3v, b0)
        xor32_add(p, mean, a0); xor32_add(p, var, a1); xor32_add(p, s3v, b0)
        p('v_mul_f32 %s, 0x%x, %s' % (mean, f2u(1.0 / 1024), mean))
        p('v_mul_f32 %s, 0x%x, %s' % (var, f2u(1.0 / 1024), var))
        p('v_fma_f32 %s, -%s, %s, %s' % (var, mean, mean, var))
        p('v_max_f32 %s, 0, %s' % (var, var))
        p('v_fma_f32 %s, -%s, %s, %s' % (s3v, mean, usum, s3v))
        p('v_add_f32 %s, 0x%x, %s' % (a0, f2u(1e-5), var))
        p('v_rsq_f32 %s, %s' % (a0, a0))
        p('v_fma_f32 %s, %s, %s, %s' % (R(gr, 3), s3v, a0, b0v))
        sd = s3v
        ln_scalars(p, mean, var, sd, rcp)
        p('v_mov_b32 %s, %s' % (R(gr, 1), mean))
        p('v_mov_b32 %s, %s' % (R(gr, 2), sd))
        p('v_ashrrev_i32 %s, 31, %s' % (t[0], R(gr, 3)))
        p('v_or_b32 %s, 0x80000000, %s' % (t[0], t[0]))
        p('v_xor_b32 %s, %s, %s' % (R(gr, 0), R(gr, 3), t[0]))
        p('v_and_b32 %s, 0xfffff800, %s' % (R(gr, 0), R(gr, 0)))
        p('v_max_u32 %s, 0x800, %s' % (R(gr, 0), R(gr, 0)))
        p('s_sub_u32 s16, 2047, s14')
        p('v_or_b32 %s, s16, %s' % (R(gr, 0), R(gr, 0)))
        p('s_lshl_b32 s16, s3, 4'); p('s_add_u32 s16, s16, %d' % L_KEY)
        p('v_mov_b32 %s, s16' % t[0])
        p('ds_write_b128 %s, %s' % (t[0], R(gr, 0, 4)))
        p('s_waitcnt lgkmcnt(0)')
        p('s_barrier')
        def best_of(ldsoff, n):
            p('v_and_b32 %s, %d, %s' % (t[0], n - 1, lane))
            p('v_lshlrev_b32 %s, 4, %s' % (t[0], t[0])); p('v_add_u32 %s, %d, %s' % (t[0], ldsoff, t[0]))
            p('ds_read_b32 %s, %s' % (a0, t[0]))
            p('v_mov_b32 %s, %s' % (a1, a0))
            for k in ((1, 2, 4) if n == 8 else (1, 2)): ror_add(p, a1, k, 'v_max_u32')
            p('v_cmp_eq_u32 vcc, %s, %s' % (a0, a1))
            p('s_ff1_i32_b64 s16, vcc')
            p('s_lshl_b32 s16, s16, 4'); p('s_add_u32 s16, s16, %d' % ldsoff)
            p('v_mov_b32 %s, s16' % t[0])
            p('ds_read_b128 %s, %s' % (R(gr, 0, 4), t[0]))
        best_of(L_KEY, 8)
        p('s_lshl_b32 s16, s2, 4'); p('s_add_u32 s16, s16, 0x%x' % WS_KEY)
        p('s_cmp_eq_u32 s3, 0'); p('s_cselect_b32 s16, s16, 0x%x' % OOB)
        p('v_mov_b32 %s, 0' % t[1])
        p('s_mov_b64 exec, 1')
        p('buffer_store_dwordx4 %s, %s, %s, s16 offen sc1' % (R(gr, 0, 4), t[1], sr(S_WS)))
        p('s_mov_b64 exec, -1')
        if not A_ and WD_AT == -2: wd_loads(p)
        if not A_ and WD_AT == -3: wd_loads(p, (2, 3))
        p.stamp(17)
        for hf in range(2):
            X = [R(raw, i) for i in range(8)]
            c1 = [R(raw, 8 + i) for i in range(8)]
            for i in range(8): p('v_sub_f32 %s, %s, %s' % (X[i], R(xf, 8 * hf + i), mean))
            for i in range(0, 8, 2): rb2(p, X[i], X[i + 1], t[0])
            for i in range(8): p('v_mul_f32 %s, %s, %s' % (c1[i], X[i], rcp))
            for i in range(8): p('v_fma_f32 %s, -%s, %s, %s' % (X[i], c1[i], sd, X[i]))
            for i in range(8): p('v_fma_f32 %s, %s, %s, %s' % (X[i], X[i], rcp, c1[i]))
            for i in range(0, 8, 2): rb2(p, X[i], X[i + 1], t[0])
            for op, mo in (('v_pk_mul_f32', MC1), ('v_pk_add_f32', MSB), ('v_pk_mul_f32', MGB)):
                for d in range(4): unpack(p, c1[2 * d], c1[2 * d + 1], R(MOD, mo + 4 * hf + d))
                for d in range(4): p('%s %s, %s, %s' % (op, R(raw, 2 * d, 2), R(raw, 2 * d, 2), R(raw, 8 + 2 * d, 2)))
                for i in range(0, 8, 2): rb2(p, X[i], X[i + 1], t[0])
            for d in range(4): p('v_pk_add_f32 %s, %s, %s' % (R(raw, 2 * d, 2), R(raw, 2 * d, 2), R(xf, 8 * hf + 2 * d, 2)))
            for d in range(4): p('v_cvt_pk_bf16_f32 %s, %s, %s' % (R(xf, 8 * hf + d), X[2 * d], X[2 * d + 1]))
        if A_:
            p('v_lshlrev_b32 %s, 4, %s' % (t[2], tid))
            p('s_mov_b32 s16, 0x%x' % WS_KEY)
            backoff(p, 'w')
            poll(p, 'w', lambda: p('buffer_load_dwordx4 %s, %s, %s, s16 offen sc1' % (R(gr, 0, 4), t[2], sr(S_WS))),
                 lambda: p('v_cmp_eq_u32 vcc, 0, %s' % R(gr, 0)))
            p('v_mov_b32 %s, %s' % (a0, R(gr, 0)))
            for n in (1, 2, 4, 8): ror_add(p, a0, n, 'v_max_u32')
            xor16_add(p, a0, a1, 'v_max_u32'); xor32_add(p, a0, a1, 'v_max_u32')
            p('v_cmp_eq_u32 vcc, %s, %s' % (a0, R(gr, 0)))
            p('s_lshl_b32 s16, s3, 4'); p('s_add_u32 s16, s16, %d' % L_BEST)
            p('v_mov_b32 %s, s16' % t[0])
            p('s_and_saveexec_b64 s[62:63], vcc')
            p('ds_write_b128 %s, %s' % (t[0], R(gr, 0, 4)))
            p('s_mov_b64 exec, s[62:63]')
            p('s_waitcnt lgkmcnt(0)')
        p('s_barrier')
        best_of(L_BEST, 4)
        p('v_and_b32 %s, 0x7ff, %s' % (a0, R(gr, 0)))
        p('v_sub_u32 %s, 2047, %s' % (a0, a0))
        p('v_readfirstlane_b32 s12, %s' % a0)
        p('v_rcp_f32 %s, %s' % (R(sl, 3), R(gr, 2)))
        p.stamp(18)
        p('s_lshr_b32 s18, s12, 4'); p('s_lshl_b32 s18, s18, 15'); p('s_and_b32 s19, s12, 15'); p('s_lshl_b32 s19, s19, 6')
        p('s_add_u32 s18, s18, s19'); p('s_add_u32 s18, s18, 0x%x' % WS_AP); p('s_add_u32 s19, s18, 0x400000')
        p('v_lshrrev_b32 %s, 4, %s' % (t[2], tid)); p('v_lshlrev_b32 %s, 10, %s' % (t[2], t[2]))
        p('v_and_b32 %s, 15, %s' % (t[3], tid)); p('v_lshl_add_u32 %s, %s, 2, %s' % (t[2], t[3], t[2]))
        p('s_lshl_b32 s13, s12, 11')
        p('buffer_load_dword %s, %s, %s, s18 offen sc1' % (R(sl, 0), t[2], sr(S_WS)))
        p('buffer_load_dword %s, %s, %s, s19 offen sc1' % (R(sl, 1), t[2], sr(S_WS)))
        if BIG:
            p('s_add_u32 s20, s18, 0x800000'); p('s_add_u32 s21, s19, 0x800000')
            p('buffer_load_dword %s, %s, %s, s20 offen sc1' % (R(acc, 0), t[2], sr(S_WS)))
            p('buffer_load_dword %s, %s, %s, s21 offen sc1' % (R(acc, 1), t[2], sr(S_WS)))
        p('buffer_load_dword %s, %s, %s, s13 offen' % (R(sl, 2), t[5], sr(S_E)))
        p('s_lshl_b32 s16, s14, 11'); p('s_cmp_lg_u32 s12, s14'); p('s_cselect_b32 s16, s16, 0x%x' % OOB)
        for hf in range(2):
            p('buffer_store_dwordx4 %s, %s, %s, s16 offen offset:%d sc1' % (R(xf, 8 * hf, 4), l16, sr(S_C), hf * 1024))
        p('s_lshl_b32 s16, s3, 13'); p('v_add_u32 %s, s16, %s' % (t[4], l16))
        p.wait_tag('gu')
        X = [R(fin, 0), R(fin, 1)]
        unpack(p, a0, a1, R(sl, 0)); unpack(p, b0, b1, R(sl, 1))
        p('v_pk_add_f32 %s, %s, %s' % (a01, a01, b01))
        if BIG:
            unpack(p, b0, b1, R(acc, 0)); unpack(p, R(acc, 2), R(acc, 3), R(acc, 1))
            p('v_pk_add_f32 %s, %s, %s' % (b01, b01, R(acc, 2, 2)))
            p('v_pk_add_f32 %s, %s, %s' % (a01, a01, b01))
        unpack(p, b0, b1, R(sl, 2))
        p('v_pk_add_f32 %s, %s, %s' % (R(fin, 0, 2), b01, a01))
        rb2(p, X[0], X[1], a0)
        p('v_cvt_pk_bf16_f32 %s, %s, %s' % (R(sl, 0), X[0], X[1]))
        unpack(p, R(sl, 4), R(sl, 5), R(sl, 4)); unpack(p, R(sl, 6), R(sl, 7), R(sl, 6))
        ln_apply(p, X, 2, R(gr, 1), R(gr, 2), R(sl, 3), [R(sl, 4), R(sl, 5)], [R(sl, 6), R(sl, 7)], a0, a1)
        p('v_cvt_pk_bf16_f32 %s, %s, %s' % (R(sl, 1), X[0], X[1]))
        p('v_add_u32 %s, %d, %s' % (t[0], L_XS, t[5]))
        p('ds_write_b32 %s, %s' % (t[0], R(sl, 1)))
        p('ds_write_b32 %s, %s offset:2048' % (t[0], R(sl, 0)))
        p('s_waitcnt lgkmcnt(0)')
        p('s_barrier')
        p.stamp(23)
        for i in range(8): p('ds_read_b128 %s, %s offset:%d' % (R(w[i], 0, 4), t[4], i * 1024))
        p('s_and_b32 s16, s3, 3'); p('s_lshl_b32 s16, s16, 7'); p('s_and_b32 s17, s29, 3'); p('s_lshl_b32 s17, s17, 9')
        p('s_add_u32 s16, s16, s17'); p('s_add_u32 s16, s16, %d' % L_XS)
        p('v_lshrrev_b32 %s, 3, %s' % (t[0], lane)); p('v_lshlrev_b32 %s, 4, %s' % (t[0], t[0])); p('v_add_u32 %s, s16, %s' % (t[0], t[0]))
        x8 = sub(sl, 4)
        p('ds_read_b128 %s, %s' % (R(x8, 0, 4), t[0]))
        for i in range(8):
            hi, lo = R(u8, (i % 4) * 2), R(u8, (i % 4) * 2 + 1)
            if i % 2 == 0:
                p('v_lshlrev_b32 %s, 16, %s' % (hi, R(x8, i // 2))); p('v_and_b32 %s, 0xffff, %s' % (lo, R(x8, i // 2)))
            else:
                p('v_and_b32 %s, 0xffff0000, %s' % (hi, R(x8, i // 2))); p('v_lshrrev_b32 %s, 16, %s' % (lo, R(x8, i // 2)))
            for d in range(4):
                for h, xx in ((1, hi), (0, lo)):
                    if i == 0: p('v_dot2_f32_bf16 %s, %s, %s, 0' % (R(acc, 2 * d + h), R(w[i], d), xx))
                    else: p('v_dot2c_f32_bf16 %s, %s, %s' % (R(acc, 2 * d + h), R(w[i], d), xx))
        for e in range(4): p('v_permlane32_swap_b32 %s, %s' % (R(acc, e), R(acc, 4 + e)))
        for e in range(4): p('v_add_f32 %s, %s, %s' % (R(acc, e), R(acc, e), R(acc, 4 + e)))
        for e in range(2): p('v_permlane16_swap_b32 %s, %s' % (R(acc, e), R(acc, 2 + e)))
        for e in range(2): p('v_add_f32 %s, %s, %s' % (R(acc, e), R(acc, e), R(acc, 2 + e)))
        for e in range(2): ror_add(p, R(acc, e), 8)
        p('v_and_b32 %s, 7, %s' % (t[0], lane)); p('v_lshlrev_b32 %s, 5, %s' % (t[0], t[0]))
        p('v_lshrrev_b32 %s, 4, %s' % (t[1], lane)); p('v_lshl_add_u32 %s, %s, 3, %s' % (t[0], t[1], t[0]))
        p('s_lshl_b32 s16, s3, 8'); p('s_add_u32 s16, s16, %d' % L_GS)
        p('v_add_u32 %s, s16, %s' % (t[0], t[0]))
        p('ds_write_b64 %s, %s' % (t[0], R(acc, 0, 2)))
        p('s_lshr_b32 s16, s3, 2'); p('s_lshl_b32 s17, s16, 10'); p('s_add_u32 s17, s17, %d' % L_GS)
        p('v_lshlrev_b32 %s, 2, %s' % (t[1], lane)); p('v_add_u32 %s, s17, %s' % (t[0], t[1]))
        p('s_and_b32 s17, s29, 3'); p('s_lshl_b32 s17, s17, 1'); p('s_add_u32 s17, s17, s16'); p('s_mul_i32 s17, s17, %d' % (3584 * 4))
        p('s_lshr_b32 s16, s29, 2'); p('s_lshl_b32 s16, s16, 8'); p('s_add_u32 s17, s17, s16'); p('s_add_u32 s17, s17, 0x%x' % WS_GUP)
        p('s_and_b32 s16, s3, 3'); p('s_cmp_eq_u32 s16, 0'); p('s_cselect_b32 s17, s17, 0x%x' % OOB)
        p('s_cmp_lt_u32 s2, 224'); p('s_cselect_b32 s17, s17, 0x%x' % OOB)
        p('s_waitcnt lgkmcnt(0)')
        p('s_barrier')
        for b in range(4): p('ds_read_b32 %s, %s offset:%d' % (R(acc, b), t[0], b * 256))
        p('v_add_f32 %s, %s, %s' % (R(acc, 0), R(acc, 0), R(acc, 1))); p('v_add_f32 %s, %s, %s' % (R(acc, 2), R(acc, 2), R(acc, 3)))
        p('v_add_f32 %s, %s, %s' % (R(acc, 0), R(acc, 0), R(acc, 2)))
        p('v_or_b32 %s, 1, %s' % (R(acc, 0), R(acc, 0)))
        p('buffer_store_dword %s, %s, %s, s17 offen sc1' % (R(acc, 0), t[1], sr(S_WS)))
        p.stamp(19)
        if not A_:
            p('v_lshrrev_b32 %s, 4, %s' % (t[0], lane)); p('v_mul_u32_u24 %s, %d, %s' % (t[0], 2 * 3584 * 4, t[0]))
            p('v_and_b32 %s, 15, %s' % (t[1], lane)); p('v_lshl_add_u32 %s, %s, 2, %s' % (t[0], t[1], t[0]))
            p('s_lshl_b32 s16, s29, 6'); p('s_add_u32 s16, s16, 0x%x' % WS_GUP); p('s_add_u32 s17, s16, %d' % (3584 * 4))
            g_, u_ = R(acc, 0), R(acc, 1)
            def gl2():
                p('buffer_load_dword %s, %s, %s, s16 offen sc1' % (g_, t[0], sr(S_WS)))
                p('buffer_load_dword %s, %s, %s, s17 offen sc1' % (u_, t[0], sr(S_WS)))
            def gt2():
                p('v_min_u32 %s, %s, %s' % (R(acc, 2), g_, u_))
                p('v_cmp_eq_u32 vcc, 0, %s' % R(acc, 2))
                p('s_cmp_lt_u32 s2, 224'); p('s_cselect_b64 s[62:63], -1, 0'); p('s_and_b64 vcc, vcc, s[62:63]')
            backoff(p, 'gu')
            poll(p, 'gu', gl2, gt2)
            p.stamp(24)
            xor16_add(p, g_, R(acc, 2)); xor16_add(p, u_, R(acc, 3)); xor32_add(p, g_, R(acc, 2)); xor32_add(p, u_, R(acc, 3))
            rb2(p, g_, u_, R(acc, 2))
            silu(p, g_, R(acc, 2)); rb1(p, g_)
            p('v_mul_f32 %s, %s, %s' % (g_, g_, u_)); rb1(p, g_)
            p('s_sub_u32 s16, s3, 4'); p('s_lshl_b32 s16, s16, 2')
            for i in range(4):
                p('s_add_u32 s17, s16, %d' % i)
                p('v_readlane_b32 s%d, %s, s17' % (20 + i, g_))
                p('s_lshr_b32 s%d, s%d, 16' % (4 + i, 20 + i))
            y = raw
            for i in range(4):
                for hf in range(2):
                    for d in range(4):
                        for h, xx in ((1, 's%d' % (20 + i)), (0, 's%d' % (4 + i))):
                            dst = R(y, 8 * hf + 2 * d + h)
                            if i == 0: p('v_dot2_f32_bf16 %s, %s, %s, 0' % (dst, R(WD[2 * i + hf], d), xx))
                            else: p('v_dot2c_f32_bf16 %s, %s, %s' % (dst, xx, R(WD[2 * i + hf], d)))
            p('s_sub_u32 s16, s3, 4'); p('s_lshl_b32 s16, s16, 12'); p('s_add_u32 s16, s16, %d' % L_YS)
            p('v_lshlrev_b32 %s, 5, %s' % (t[0], lane)); p('v_add_u32 %s, s16, %s' % (t[0], t[0]))
            for hf in range(2):
                for k in range(2): p('ds_write_b128 %s, %s offset:%d' % (t[0], R(y, 8 * hf + 4 * k, 4), hf * 2048 + k * 16))
            p('s_waitcnt lgkmcnt(0)')
        p('s_barrier')
        p('v_lshlrev_b32 %s, 3, %s' % (t[0], tid)); p('v_add_u32 %s, %d, %s' % (t[1], L_YS, t[0]))
        for b in range(4): p('ds_read_b64 %s, %s offset:%d' % (R(acc, 2 * b, 2), t[1], b * 4096))
        p('v_pk_add_f32 %s, %s, %s' % (R(acc, 0, 2), R(acc, 0, 2), R(acc, 2, 2)))
        p('v_pk_add_f32 %s, %s, %s' % (R(acc, 4, 2), R(acc, 4, 2), R(acc, 6, 2)))
        p('v_pk_add_f32 %s, %s, %s' % (R(acc, 0, 2), R(acc, 0, 2), R(acc, 4, 2)))
        p('v_or_b32 %s, 1, %s' % (R(acc, 0), R(acc, 0))); p('v_or_b32 %s, 1, %s' % (R(acc, 1), R(acc, 1)))
        p('s_lshl_b32 s16, s29, 12'); p('s_add_u32 s16, s16, 0x%x' % WS_YP)
        p('s_cmp_lt_u32 s2, 224'); p('s_cselect_b32 s16, s16, 0x%x' % OOB)
        p('buffer_store_dwordx2 %s, %s, %s, s16 offen sc1' % (R(acc, 0, 2), t[0], sr(S_WS)))
        p.stamp(25)
        p('s_cmp_lt_u32 s2, 224')
        p('s_cbranch_scc1 %s_end' % name)
        pp = raw
        p('s_sub_u32 s16, s2, 224'); p('s_lshl_b32 s17, s16, 7'); p('s_add_u32 s17, s17, 0x%x' % WS_YP)
        p('v_lshrrev_b32 %s, 3, %s' % (t[0], tid)); p('v_lshlrev_b32 %s, 12, %s' % (t[0], t[0]))
        p('v_and_b32 %s, 7, %s' % (t[1], tid)); p('v_lshl_add_u32 %s, %s, 4, %s' % (t[0], t[1], t[0]))
        p('v_cmp_gt_u32 vcc, 256, %s' % tid)
        p('v_bfrev_b32 %s, -2' % t[1])
        p('v_cndmask_b32 %s, %s, %s, vcc' % (t[1], t[1], t[0]))
        p('v_mov_b32 %s, 0' % t[3])
        p('v_cndmask_b32 %s, 1, %s, vcc' % (t[2], t[3]))
        p('s_lshl_b32 s18, s16, 6')
        p('v_and_b32 %s, 31, %s' % (t[3], lane)); p('v_lshlrev_b32 %s, 1, %s' % (t[3], t[3])); p('v_add_u32 %s, s18, %s' % (t[3], t[3]))
        p('s_mov_b32 s19, 0x%x' % (WS_MODB + 6144))
        p('buffer_load_ushort %s, %s, %s, s19 offen sc1' % (R(fin, 3), t[3], sr(S_WS)))
        p('v_add_u32 %s, %d, %s' % (t[4], L_XS, t[3]))
        p('ds_read_u16 %s, %s' % (R(fin, 4), t[4])); p('ds_read_u16 %s, %s offset:2048' % (R(fin, 5), t[4]))
        rsel = R(fin, 2)
        p('v_mov_b32 %s, %s' % (rsel, R(gr, 3)))
        rb1(p, rsel)
        p('v_mul_f32 %s, 0x%x, %s' % (rsel, f2u(-LOG2E), rsel))
        p('v_exp_f32 %s, %s' % (rsel, rsel))
        p('v_add_f32 %s, 1.0, %s' % (rsel, rsel))
        p('v_rcp_f32 %s, %s' % (rsel, rsel))
        rb1(p, rsel)
        for r_ in (R(fin, 3), R(fin, 4), R(fin, 5)): p('v_lshlrev_b32 %s, 16, %s' % (r_, r_))
        mn = R(fin, 6)
        def l2():
            for k in range(4):
                p('s_add_u32 s19, s17, 0x%x' % (k * 64 * 4096))
                p('buffer_load_dwordx4 %s, %s, %s, s19 offen sc1' % (R(pp, 4 * k, 4), t[1] if k == 3 else t[0], sr(S_WS)))
        def t2():
            q_ = [R(pp, i) for i in range(16)]
            p('v_min3_u32 %s, %s, %s, %s' % (mn, q_[12], q_[13], q_[14])); p('v_min_u32 %s, %s, %s' % (mn, mn, q_[15]))
            p('v_or_b32 %s, %s, %s' % (mn, mn, t[2]))
            for k in range(0, 12, 2): p('v_min3_u32 %s, %s, %s, %s' % (mn, mn, q_[k], q_[k + 1]))
            p('v_cmp_eq_u32 vcc, 0, %s' % mn)
        backoff(p, 'y')
        p.stamp(27)
        poll(p, 'y', l2, t2)
        p.stamp(26)
        for st in (8, 4):
            for k in range(0, st, 2): p('v_pk_add_f32 %s, %s, %s' % (R(pp, k, 2), R(pp, k, 2), R(pp, st + k, 2)))
        for e in range(4): ror_add(p, R(pp, e), 8)
        for e in range(2): p('v_permlane32_swap_b32 %s, %s' % (R(pp, e), R(pp, 2 + e)))
        for e in range(2): p('v_add_f32 %s, %s, %s' % (R(pp, e), R(pp, e), R(pp, 2 + e)))
        p('v_permlane16_swap_b32 %s, %s' % (R(pp, 0), R(pp, 1)))
        p('v_add_f32 %s, %s, %s' % (R(pp, 0), R(pp, 0), R(pp, 1)))
        p('v_and_b32 %s, 7, %s' % (t[0], lane)); p('v_lshlrev_b32 %s, 4, %s' % (t[0], t[0]))
        p('v_lshrrev_b32 %s, 4, %s' % (t[1], lane)); p('v_lshl_add_u32 %s, %s, 2, %s' % (t[0], t[1], t[0]))
        p('s_lshl_b32 s19, s3, 7'); p('s_add_u32 s19, s19, %d' % L_RS)
        p('v_add_u32 %s, s19, %s' % (t[0], t[0]))
        p('ds_write_b32 %s, %s' % (t[0], R(pp, 0)))
        p('v_and_b32 %s, 31, %s' % (t[0], lane)); p('v_lshlrev_b32 %s, 2, %s' % (t[0], t[0])); p('v_add_u32 %s, %d, %s' % (t[0], L_RS, t[0]))
        p('s_waitcnt lgkmcnt(0)')
        p('s_barrier')
        p('s_cmp_lg_u32 s3, 0')
        p('s_cbranch_scc1 %s_end' % name)
        for i in range(8): p('ds_read_b32 %s, %s offset:%d' % (R(pp, i), t[0], i * 128))
        for st in (4, 2, 1):
            for k in range(st): p('v_add_f32 %s, %s, %s' % (R(pp, k), R(pp, k), R(pp, st + k)))
        y = R(pp, 0)
        rb1(p, y)
        p('v_mul_f32 %s, %s, %s' % (y, y, rsel)); rb1(p, y)
        p('v_add_f32 %s, %s, %s' % (y, y, R(fin, 4))); rb1(p, y)
        p('v_mul_f32 %s, %s, %s' % (y, y, R(fin, 3))); rb1(p, y)
        p('v_add_f32 %s, %s, %s' % (y, y, R(fin, 5)))
        p('v_cvt_pk_bf16_f32 %s, %s, %s' % (y, y, y))
        p('s_mov_b64 exec, 0xffffffff')
        p('buffer_store_short %s, %s, %s, s13 offen sc1' % (y, t[3], sr(S_C)))

    def role_prog(role):
        front(role)
        if stop == 'front': return
        phase1(role)
        phase2(role)
        if stop == 'p2': return
        phase3(role)
        tail(role)
    p.alt_begin()
    role_prog('A')
    p('s_branch %s_end' % name)
    p.alt_next()
    p.label('%s_roleB' % name)
    role_prog('B')
    p.alt_end()
    p.label('%s_end' % name)
    p('s_endpgm')
    body = p.emit()
    extra = ''.join(z.emit() for z in rare) + '%s_codeend:\n    s_endpgm\n' % name
    return body, extra, dict(vgpr=256, accum=256, sgpr=80, lds=163840, block=512, grid=256)
```

```python
import sys, json
from mega import gen_mega
from build2 import assemble, KNAME
from gen_final import CFG
for tag, kw in json.loads(sys.argv[1]).items():
    c = dict(CFG); c.update(kw)
    body, extra, info = gen_mega(KNAME, **c)
    assemble(KNAME, body, extra, info, 'x_%s.s' % tag)
```
